```python
import torch

def _softmax(x, axis=-1):
    return torch.softmax(x, dim=axis)
def _gelu(x):
    return torch.nn.functional.gelu(x, approximate="tanh")
def _silu(x):
    return torch.nn.functional.silu(x)
def _sigmoid(x):
    return torch.sigmoid(x)
def _layernorm(x, axis=-1, eps=1e-5):
    m = x.mean(dim=axis, keepdim=True)
    v = x.var(dim=axis, keepdim=True, unbiased=False)
    return (x - m) / torch.sqrt(v + eps)
def _scatter_add(tgt, idx, src, axis=0):
    return tgt.clone().index_add_(axis, idx, src)
def _segment_sum(src, seg, n):
    out = torch.zeros((n,) + src.shape[1:], dtype=src.dtype)
    return out.index_add_(0, seg, src)
def _pad(x, pw):
    flat = tuple(v for pair in reversed(pw) for v in pair)
    return torch.nn.functional.pad(x, flat)

kernel_name = 'concat_heads__linear_attn_block__ssm_conv_s5__prompt'

def setup_inputs():

    _w = (lambda a: (lambda t: t.to(torch.bfloat16) if t.is_floating_point() else t)(torch.as_tensor(a)))
    def _A_setup():
        B, S, D = 1, 2048, 512
        return {
            "x": _w((lambda *s: torch.randn(*s, dtype=torch.bfloat16) * 0.05)(B, S, D)),
            "wqkv": _w((lambda *s: torch.randn(*s, dtype=torch.bfloat16) * 0.4)(D, 3 * D)),
            "wo": _w((lambda *s: torch.randn(*s, dtype=torch.bfloat16) * 0.05)(D, D)),
        }
    _A_in = _A_setup()

    def _B_setup():
        B, S, D = 1, 2048, 512
        P = D
        Lambda_re = -0.5 * (lambda _x: torch.exp(torch.as_tensor(_x)))((lambda *s: torch.randn(*s, dtype=torch.bfloat16) * 0.2)(P))
        Lambda_im = (lambda *s: torch.randn(*s, dtype=torch.bfloat16) * 0.8)(P) * 1.0
        B_re = (lambda *s: torch.randn(*s, dtype=torch.bfloat16) * 0.2)(P, D) * (D ** -0.5)
        B_im = (lambda *s: torch.randn(*s, dtype=torch.bfloat16) * 0.2)(P, D) * (D ** -0.5)
        C_re = (lambda *s: torch.randn(*s, dtype=torch.bfloat16) * 0.2)(D, P) * (P ** -0.5)
        C_im = (lambda *s: torch.randn(*s, dtype=torch.bfloat16) * 0.2)(D, P) * (P ** -0.5)
        log_dt = (lambda *s: torch.randn(*s, dtype=torch.bfloat16) * 0.2)(P) * 0.3 - 2.0
        Dskip = (lambda *s: torch.randn(*s, dtype=torch.bfloat16) * 0.05)(D)
        return {
            "x": _w((lambda *s: torch.randn(*s, dtype=torch.bfloat16) * 0.05)(B, S, D)),
            "Lambda_re": _w(Lambda_re),
            "Lambda_im": _w(Lambda_im),
            "B_re": _w(B_re),
            "B_im": _w(B_im),
            "C_re": _w(C_re),
            "C_im": _w(C_im),
            "log_dt": _w(log_dt),
            "Dskip": _w(Dskip),
        }
    _B_in = _B_setup()

    return {
        "A_x": _A_in["x"],
        "A_wqkv": _A_in["wqkv"],
        "A_wo": _A_in["wo"],
        "B_x": _B_in["x"],
        "B_Lambda_re": _B_in["Lambda_re"],
        "B_Lambda_im": _B_in["Lambda_im"],
        "B_B_re": _B_in["B_re"],
        "B_B_im": _B_in["B_im"],
        "B_C_re": _B_in["C_re"],
        "B_C_im": _B_in["C_im"],
        "B_log_dt": _B_in["log_dt"],
        "B_Dskip": _B_in["Dskip"],
    }

def reference(A_x, A_wqkv, A_wo, B_x, B_Lambda_re, B_Lambda_im, B_B_re, B_B_im, B_C_re, B_C_im, B_log_dt, B_Dskip):
    def _A_ref(x, wqkv, wo):
        B, S, D = x.shape
        H = 32; Dh = D // H
        qkv = (lambda x, *d: x.permute(*d))((x @ wqkv).reshape(B, S, 3, H, Dh), 2, 0, 3, 1, 4)
        q, k, v = qkv[0], qkv[1], qkv[2]
        phi = lambda t: torch.where(t > 0, t + 1, torch.exp(t)) + 1e-6
        pq, pk = phi(q), phi(k)
        kv = torch.einsum("bhsd,bhse->bhde", pk, v)
        z = torch.einsum("bhsd->bhd", pk)
        num = torch.einsum("bhqd,bhde->bhqe", pq, kv)
        den = torch.einsum("bhqd,bhd->bhq", pq, z)[..., None] + 1e-6
        o = num / den
        return (lambda x, *d: x.permute(*d))(o, 0, 2, 1, 3).reshape(B, S, D) @ wo

    def _B_ref(x, Lambda_re, Lambda_im, B_re, B_im, C_re, C_im, log_dt, Dskip):
        Bsz, L, H = x.shape
        Lam = Lambda_re + 1j * Lambda_im
        Bmat = B_re + 1j * B_im
        Cmat = C_re + 1j * C_im
        dt = torch.exp(log_dt)
        Lam_bar = torch.exp(dt * Lam)
        B_bar = ((Lam_bar - 1.0) / Lam)[:, None] * Bmat
        Bu = torch.einsum("bld,pd->blp", x + 0j, B_bar)
        h = torch.zeros_like(Bu[:, 0, :])
        hs = []
        for t in range(L):
            h = Lam_bar[None, :] * h + Bu[:, t, :]
            hs.append(h)
        hseq = torch.stack(hs, 1)
        y = 2.0 * torch.einsum("blp,dp->bld", hseq, Cmat).real + x * Dskip[None, None, :]
        return y

    a = _A_ref(A_x, A_wqkv, A_wo)
    b = _B_ref(B_x, B_Lambda_re, B_Lambda_im, B_B_re, B_B_im, B_C_re, B_C_im, B_log_dt, B_Dskip)
    return torch.concatenate([a, b], axis=-1)
```

```python
NAME = "concat_heads__linear_attn_block__ssm_conv_s5__prompt"

def v(i, n=1):
    return f"v{i}" if n == 1 else f"v[{i}:{i+n-1}]"
def a(i, n=1):
    return f"a{i}" if n == 1 else f"a[{i}:{i+n-1}]"
def s(i, n=1):
    return f"s{i}" if n == 1 else f"s[{i}:{i+n-1}]"

HEADER_COMMENT = """; Kernarg layout for this problem (120 bytes, ptrs only, base s[0:1]):
"""
KA = dict(A_x=0, wqkv=8, wo=16, B_x=24, Lre=32, Lim=40, Bre=48, Bim=56, Cre=64, Cim=72, logdt=80, D=88, out=96, dbg=104, ws=112)
SIZES = dict(A_x=2097152, wqkv=1572864, wo=524288, B_x=2097152, Lre=1024, Lim=1024, Bre=524288, Bim=524288,
             Cre=524288, Cim=524288, logdt=1024, D=1024, out=8388608, dbg=256, ws=268435456)

class Asm:
    def __init__(self):
        self.lines = []
        self.nlabel = 0
    def __call__(self, s_, *more):
        self.lines.append("    " + s_)
        for m in more:
            self.lines.append("    " + m)
    def c(self, txt):
        self.lines.append("    ; " + txt)
    def label(self, name):
        self.lines.append(name + ":")
    def newlabel(self, base="L"):
        self.nlabel += 1
        return f"{base}_{self.nlabel}"
    def raw(self, txt):
        self.lines.append(txt)
    def text(self):
        return "\n".join(self.lines) + "\n"
    def srd(self, sd, sbase, nbytes):
        self(f"s_mov_b32 {s(sd)}, {s(sbase)}")
        self(f"s_and_b32 {s(sd+1)}, {s(sbase+1)}, 0xffff")
        self(f"s_mov_b32 {s(sd+2)}, {nbytes:#x}")
        self(f"s_mov_b32 {s(sd+3)}, 0x20000")
    def kernel_begin(self, name):
        self.raw(".text")
        self.raw(f".globl {name}")
        self.raw(".p2align 8")
        self.raw(f".type {name},@function")
        self.raw(f"{name}:")
    def kernel_desc(self, name, vgpr, sgpr=102, accum=None, wg_y=False):
        if accum is None:
            accum = (vgpr + 3) // 4 * 4
        self.raw('.section .rodata,"a"')
        self.raw(".p2align 6")
        self.raw(f".amdhsa_kernel {name}")
        self.raw(f"  .amdhsa_next_free_vgpr {vgpr}")
        self.raw(f"  .amdhsa_next_free_sgpr {sgpr}")
        self.raw(f"  .amdhsa_accum_offset {accum}")
        self.raw("  .amdhsa_group_segment_fixed_size 0")
        self.raw("  .amdhsa_kernarg_size 120")
        self.raw("  .amdhsa_user_sgpr_count 2")
        self.raw("  .amdhsa_user_sgpr_kernarg_segment_ptr 1")
        self.raw("  .amdhsa_system_sgpr_workgroup_id_x 1")
        if wg_y:
            self.raw("  .amdhsa_system_sgpr_workgroup_id_y 1")
        self.raw("  .amdhsa_float_denorm_mode_32 3")
        self.raw(".end_amdhsa_kernel")

def file_header(launches):
    t = HEADER_COMMENT
    for (k, g, b, l) in launches:
        t += f"; @launch kernel={k} grid=({g[0]},{g[1]},{g[2]}) block=({b[0]},{b[1]},{b[2]}) lds={l}\n"
    t += '.amdgcn_target "amdgcn-amd-amdhsa--gfx950"\n'
    return t

class Lgkm:
    def __init__(self, A):
        self.A = A
        self.q = []
    def issue(self, instr, tag):
        self.A(instr)
        self.q.append(tag)
    def need(self, *tags):
        idx = -1
        for t in tags:
            for i, x in enumerate(self.q):
                if x == t:
                    idx = max(idx, i)
        if idx < 0:
            return
        n = len(self.q) - 1 - idx
        self.A(f"s_waitcnt lgkmcnt({min(n, 15)})")
        self.q = self.q[idx+1:] if n <= 15 else self.q[len(self.q)-15:]
    def drain(self):
        self.A("s_waitcnt lgkmcnt(0)")
        self.q = []
```

```python
import sys
sys.path.insert(0, "gen"); sys.path.insert(0, "scratch")
from asmlib import *
WS = dict(O=0x000000, H=0x200000, WOP=0x600000, CP=0x680000, KVP=0x780000, ES=0x800000, ST=0x900000)
P1_LDS = 163840
SLOT = 32768
LOG2E = 0x3FB8AA3B
EPS = 0x358637BD
INV2PI = 0x3E22F983
POLL_LIMIT = 1 << 22

S_WAVE, S_XCD, S_SLOT, S_RT, S_G, S_ROT, S_W = 32, 33, 34, 35, 36, 37, 38
SRD_X, SRD_W, SRD_WS, SRD_DBG = 40, 44, 48, 52
SRD_T1, SRD_T2, SRD_T3 = 56, 60, 96

def stamp(A, stamps, i):
    if stamps:
        A(f"s_memrealtime s[{80+2*i}:{81+2*i}]")
        A("s_waitcnt lgkmcnt(0)")

def write_stamps(A, stamps, L, tag, base):
    if not stamps:
        return
    A("s_waitcnt vmcnt(0) lgkmcnt(0)")
    A("s_memrealtime s[94:95]", "s_waitcnt lgkmcnt(0)")
    for j in range(16):
        A(f"v_mov_b32 v{16+j}, s{80+j}")
    A(f"s_lshl_b32 s64, s2, 3", f"s_add_u32 s64, s64, s{S_WAVE}", "s_lshl_b32 s64, s64, 6", f"s_add_u32 s64, s64, {base}", "v_mov_b32 v2, s64")
    A("v_cmp_eq_u32 vcc, 0, v0", "s_and_saveexec_b64 s[66:67], vcc")
    for j in range(4):
        A(f"buffer_store_dwordx4 v[{16+4*j}:{19+4*j}], v2, s[{SRD_WS}:{SRD_WS+3}], 0 offen offset:{16*j}")

def gen_p1(A, K, stamps=False):
    L = lambda n: f"{K}_{n}"
    A.kernel_begin(K)
    if stamps:
        for j in range(16):
            A(f"s_mov_b32 s{80+j}, 0")
        A("s_memrealtime s[80:81]")
    A("s_cmp_ge_u32 s2, 256", f"s_cbranch_scc1 {L('end')}")
    A("s_load_dwordx4 s[4:7], s[0:1], 0")
    A("s_load_dwordx4 s[8:11], s[0:1], 16")
    A("s_load_dwordx4 s[12:15], s[0:1], 32")
    A("s_load_dwordx4 s[16:19], s[0:1], 48")
    A("s_load_dwordx4 s[20:23], s[0:1], 64")
    A("s_load_dwordx2 s[24:25], s[0:1], 80")
    A("s_load_dwordx4 s[28:31], s[0:1], 104")
    A("v_lshrrev_b32 v1, 6, v0")
    A("v_and_b32 v0, 63, v0")
    A(f"v_readfirstlane_b32 s{S_WAVE}, v1")
    A(f"s_and_b32 s{S_XCD}, s2, 7", f"s_lshr_b32 s{S_SLOT}, s2, 3")
    A(f"s_and_b32 s64, s{S_XCD}, 3", f"s_lshl_b32 s{S_RT}, s64, 2", f"s_and_b32 s65, s{S_SLOT}, 3", f"s_add_u32 s{S_RT}, s{S_RT}, s65")
    A(f"s_lshr_b32 s{S_G}, s{S_SLOT}, 2")
    A(f"s_lshl_b32 s65, s65, 1", f"s_add_u32 s{S_ROT}, s{S_G}, s65", "s_and_b32 s64, s64, 1", f"s_add_u32 s{S_ROT}, s{S_ROT}, s64", f"s_and_b32 s{S_ROT}, s{S_ROT}, 7")
    A(f"s_and_b32 s{S_W}, s{S_WAVE}, 3")
    A("s_waitcnt lgkmcnt(0)")
    A.srd(SRD_WS, 30, 268435456)
    A.srd(SRD_DBG, 28, 256)
    A(f"s_cmp_ge_u32 s{S_XCD}, 4", f"s_cbranch_scc1 {L('bu')}")
    A.srd(SRD_X, 4, 2097152)
    A.srd(SRD_W, 6, 1572864)
    A(f"s_cmp_ge_u32 s{S_WAVE}, 4", f"s_cbranch_scc1 {L('qkv_load')}")
    qkv_compute(A, L, stamps)
    A.label(L("qkv_load"))
    loader(A, L, "qkv", stamps)
    A.label(L("bu"))
    A.srd(SRD_X, 10, 2097152)
    A(f"s_cmp_ge_u32 s{S_WAVE}, 4", f"s_cbranch_scc1 {L('bu_load')}")
    bu_compute(A, L, stamps)
    A.label(L("bu_load"))
    loader(A, L, "bu", stamps)
    A.label(L("end"))
    A("s_endpgm")

def poll_flags(A, L, tag, flag_off_sgpr, mask_sgprs, R=8):
    lp = L(f"poll_{tag}"); done = L(f"polldone_{tag}")
    A(f"s_mov_b32 s72, {POLL_LIMIT}")
    A(f"v_mov_b32 v{R+4}, s{flag_off_sgpr}")
    A.label(lp)
    A(f"buffer_load_dwordx4 v[{R}:{R+3}], v{R+4}, s[{SRD_DBG}:{SRD_DBG+3}], 0 offen sc1")
    A("s_waitcnt vmcnt(0)")
    for i in range(4):
        A(f"v_and_b32 v{R+i}, s{mask_sgprs[i]}, v{R+i}")
    for i in range(4):
        A(f"v_xor_b32 v{R+i}, s{mask_sgprs[i]}, v{R+i}")
    A(f"v_or3_b32 v{R}, v{R}, v{R+1}, v{R+2}", f"v_or_b32 v{R}, v{R}, v{R+3}")
    A(f"v_cmp_eq_u32 vcc, 0, v{R}")
    A("s_sub_u32 s72, s72, 1")
    A(f"s_cbranch_scc1 {done}")
    A(f"s_cbranch_vccnz {done}")
    A("s_sleep 1")
    A(f"s_branch {lp}")
    A.label(done)

def loader(A, L, role, stamps):
    last = 9 if role == "qkv" else 7
    A("v_lshrrev_b32 v5, 3, v0")
    A("v_and_b32 v6, 7, v0")
    A("v_lshrrev_b32 v7, 4, v0")
    A("v_xor_b32 v8, v6, v7", "v_lshlrev_b32 v8, 4, v8")
    A("v_lshlrev_b32 v2, 10, v5", "v_add_u32 v2, v2, v8")
    A("v_xor_b32 v3, 64, v2")
    if role == "qkv":
        A("v_and_b32 v9, 1, v7", "v_lshlrev_b32 v9, 2, v9", "v_xor_b32 v9, v6, v9", "v_lshlrev_b32 v9, 4, v9")
        A("v_mul_u32_u24 v4, 3072, v5", "v_add_u32 v4, v4, v9")
        A(f"s_lshl_b32 s64, s{S_RT}, 7", f"s_lshl_b32 s65, s{S_W}, 5", "s_add_u32 s64, s64, s65", "s_lshl_b32 s68, s64, 10")
        A(f"s_mul_i32 s69, s{S_W}, {16*3072}", f"s_lshl_b32 s65, s{S_G}, 7", "s_add_u32 s69, s69, s65")
    else:
        A("v_lshrrev_b32 v9, 5, v0", "v_lshlrev_b32 v9, 5, v9", "v_and_b32 v10, 1, v5", "v_lshlrev_b32 v10, 4, v10", "v_add_u32 v9, v9, v10")
        A("v_and_b32 v10, 1, v7", "v_add_u32 v9, v9, v10", "v_lshlrev_b32 v4, 10, v9", "v_add_u32 v4, v4, v8")
        A("v_xor_b32 v11, 64, v4")
        A(f"s_lshl_b32 s64, s{S_RT}, 7", f"s_lshl_b32 s65, s{S_W}, 2", "s_add_u32 s64, s64, s65", "s_lshl_b32 s68, s64, 10")
        A(f"s_cmp_lt_u32 s{S_W}, 2", "s_cselect_b32 s64, s16, s18", "s_cselect_b32 s65, s17, s19")
        A.srd(SRD_W, 64, 524288)
        A(f"s_lshl_b32 s64, s{S_G}, 6", f"s_and_b32 s65, s{S_W}, 1", "s_lshl_b32 s65, s65, 5", "s_add_u32 s64, s64, s65", "s_lshl_b32 s69, s64, 10")
    A(f"s_lshl_b32 s70, s{S_W}, 12")
    X = f"s[{SRD_X}:{SRD_X+3}]"; W = f"s[{SRD_W}:{SRD_W+3}]"
    def issue(st):
        slot = (st % 5) * SLOT
        if st >= 8:
            a = st - 8
            A(f"s_add_u32 s64, s{S_ROT}, s{S_W}", f"s_add_u32 s64, s64, {4*a}", "s_and_b32 s64, s64, 7")
            A(f"s_mul_i32 s64, s64, {64*3072}", f"s_lshl_b32 s65, s{S_G}, 7", "s_add_u32 s64, s64, s65")
            A(f"s_lshl_b32 s66, s70, 1")
            for i in range(8):
                A(f"s_add_u32 m0, s66, {slot + i*1024}")
                A(f"s_add_u32 s67, s64, {i*8*3072}")
                A(f"buffer_load_dwordx4 v4, {W}, s67 offen lds")
            return
        A(f"s_add_u32 s64, s{S_ROT}, {st}", "s_and_b32 s64, s64, 7")
        A("s_lshl_b32 s65, s64, 7", "s_add_u32 s65, s65, s68")
        if role == "qkv":
            A(f"s_mul_i32 s66, s64, {64*3072}", "s_add_u32 s66, s66, s69")
            for ii in range(4):
                A(f"s_add_u32 m0, s70, {slot + ii*1024}")
                A(f"s_add_u32 s67, s65, {ii*8192}")
                A(f"buffer_load_dwordx4 v{2 + (ii&1)}, {X}, s67 offen lds")
            A("s_lshr_b32 s71, s70, 1")
            for part in range(2):
                for ii in range(2):
                    A(f"s_add_u32 m0, s71, {slot + 16384 + part*8192 + ii*1024}")
                    A(f"s_add_u32 s67, s66, {ii*8*3072 + (1+part)*1024}")
                    A(f"buffer_load_dwordx4 v4, {W}, s67 offen lds")
        else:
            A("s_lshl_b32 s66, s64, 7", "s_add_u32 s66, s66, s69")
            for ii in range(4):
                A(f"s_add_u32 m0, s70, {slot + ii*1024}")
                A(f"s_add_u32 s67, s65, {(64*(ii&1) + 2*(ii>>1))*1024}")
                A(f"buffer_load_dwordx4 v{4 if (ii&1)==0 else 11}, {X}, s67 offen lds")
            for ii in range(4):
                A(f"s_add_u32 m0, s70, {slot + 16384 + ii*1024}")
                A(f"s_add_u32 s67, s66, {ii*8192}")
                A(f"buffer_load_dwordx4 v{2 + (ii&1)}, {W}, s67 offen lds")
    for st in range(5):
        issue(st)
    stamp(A, stamps, 1)
    for st in range(8):
        upto = min(last, max(4, st + 2))
        A(f"s_waitcnt vmcnt({(upto - st) * 8})")
        A("s_barrier")
        if st == 0:
            stamp(A, stamps, 2)
        if st >= 2 and st + 3 <= last:
            issue(st + 3)
    if role == "qkv":
        qkv_loader_tail(A, L, stamps)
    else:
        bu_loader_tail(A, L, stamps)

def qkv_loader_tail(A, L, stamps):
    WSr = f"s[{SRD_WS}:{SRD_WS+3}]"
    CNT = SLOT + 8192
    FIN = SLOT
    A("s_waitcnt vmcnt(0)")
    stamp(A, stamps, 3)
    A("s_barrier")
    stamp(A, stamps, 4)
    A("v_lshlrev_b32 v2, 5, v0", f"s_lshl_b32 s64, s{S_W}, 11", "v_add_u32 v2, s64, v2")
    for w in range(4):
        A(f"ds_read_b128 v[{16+8*w}:{19+8*w}], v2 offset:{w*8192}")
        A(f"ds_read_b128 v[{20+8*w}:{23+8*w}], v2 offset:{w*8192+16}")
    A("s_waitcnt lgkmcnt(4)")
    for j in range(0, 8, 2):
        A(f"v_pk_add_f32 v[{16+j}:{17+j}], v[{16+j}:{17+j}], v[{24+j}:{25+j}]")
    A("s_waitcnt lgkmcnt(0)")
    for j in range(0, 8, 2):
        A(f"v_pk_add_f32 v[{32+j}:{33+j}], v[{32+j}:{33+j}], v[{40+j}:{41+j}]")
    for j in range(0, 8, 2):
        A(f"v_pk_add_f32 v[{16+j}:{17+j}], v[{16+j}:{17+j}], v[{32+j}:{33+j}]")
    for j in range(4):
        A(f"v_cvt_pk_bf16_f32 v{48+j}, v{16+2*j}, v{17+2*j}")
    A("v_lshlrev_b32 v3, 4, v0")
    A(f"s_lshl_b32 s64, s{S_G}, 4", f"s_add_u32 s64, s64, s{S_RT}", "s_lshl_b32 s64, s64, 2", f"s_add_u32 s64, s64, s{S_W}", "s_lshl_b32 s64, s64, 10", f"s_add_u32 s64, s64, {WS['KVP']}")
    A(f"buffer_store_dwordx4 v[48:51], v3, {WSr}, s64 offen sc1")
    A("s_waitcnt vmcnt(0)")
    A("v_mov_b32 v4, 1", f"v_mov_b32 v5, {CNT}")
    A("s_mov_b64 s[66:67], exec", "s_mov_b64 exec, 1")
    A("ds_add_rtn_u32 v6, v5, v4")
    A("s_waitcnt lgkmcnt(0)")
    A("v_readfirstlane_b32 s65, v6")
    A("s_cmp_lg_u32 s65, 3", f"s_cbranch_scc1 {L('q_noflag')}")
    A(f"s_lshl_b32 s65, s{S_G}, 4", f"s_add_u32 s65, s65, s{S_RT}", "v_mov_b32 v5, s65")
    A(f"buffer_store_byte v4, v5, s[{SRD_DBG}:{SRD_DBG+3}], 0 offen sc1")
    A.label(L("q_noflag"))
    A("s_mov_b64 exec, s[66:67]")
    stamp(A, stamps, 5)
    A(f"s_lshl_b32 s65, s{S_G}, 4")
    A("s_mov_b32 s73, 0x01010101")
    poll_flags(A, L, "q", 65, [73, 73, 73, 73])
    stamp(A, stamps, 6)
    A(f"s_lshl_b32 s64, s{S_G}, 6", f"s_add_u32 s64, s64, s{S_W}", "s_lshl_b32 s64, s64, 10", f"s_add_u32 s64, s64, {WS['KVP']}")
    for r in range(16):
        A(f"buffer_load_dwordx4 v[{64+4*r}:{67+4*r}], v3, {WSr}, s64 offen sc1")
        if r < 15:
            A("s_add_u32 s64, s64, 4096")
    for j in range(8):
        A(f"v_mov_b32 v{16+j}, 0")
    A("v_mov_b32 v24, 0x00003f80", "v_mov_b32 v25, 0x3f800000")
    for r in range(16):
        A(f"s_waitcnt vmcnt({15-r})")
        for j in range(4):
            A(f"v_dot2c_f32_bf16 v{16+2*j}, v{64+4*r+j}, v24")
            A(f"v_dot2c_f32_bf16 v{17+2*j}, v{64+4*r+j}, v25")
    A("s_nop 2")
    for j in range(4):
        A(f"v_cvt_pk_bf16_f32 v{48+j}, v{16+2*j}, v{17+2*j}")
    A(f"s_lshl_b32 s64, s{S_W}, 10", f"s_add_u32 s64, s64, {FIN}", "v_add_u32 v4, s64, v3")
    A("ds_write_b128 v4, v[48:51]")
    A("s_waitcnt lgkmcnt(0)")
    A("s_barrier")
    write_stamps(A, stamps, L, "ql", WS["ST"])
    A("s_endpgm")

def coef_code(A, P, T):
    A(f"v_lshlrev_b32 v{P}, 16, v{P}", f"v_lshlrev_b32 v{P+1}, 16, v{P+1}", f"v_lshlrev_b32 v{P+2}, 16, v{P+2}")
    A(f"v_mul_f32 v{T}, {LOG2E:#x}, v{P+2}")
    A(f"v_exp_f32 v{T}, v{T}")
    A("s_nop 0")
    A(f"v_cvt_pk_bf16_f32 v{T}, v{T}, v{T}")
    A(f"v_lshlrev_b32 v{T}, 16, v{T}")
    A(f"v_mul_f32 v{T+1}, v{T}, v{P}")
    A(f"v_mul_f32 v{T+2}, v{T}, v{P+1}")
    A(f"v_mul_f32 v{T+1}, {LOG2E:#x}, v{T+1}")
    A(f"v_mul_f32 v{T+2}, {INV2PI:#x}, v{T+2}")
    A(f"v_exp_f32 v{T+1}, v{T+1}")
    A(f"v_fract_f32 v{T+2}, v{T+2}")
    A("s_nop 0")
    A(f"v_cos_f32 v{P+3}, v{T+2}")
    A(f"v_sin_f32 v{P+4}, v{T+2}")
    A("s_nop 0")
    A(f"v_mul_f32 v{P+3}, v{P+3}, v{T+1}")
    A(f"v_mul_f32 v{P+4}, v{P+4}, v{T+1}")

def csq(A, d, s_, t):
    A(f"v_mul_f32 v{t}, v{s_+1}, v{s_+1}")
    A(f"v_mul_f32 v{d+1}, v{s_}, v{s_+1}")
    A(f"v_fma_f32 v{d}, v{s_}, v{s_}, -v{t}")
    A(f"v_add_f32 v{d+1}, v{d+1}, v{d+1}")

def bu_loader_tail(A, L, stamps):
    WSr = f"s[{SRD_WS}:{SRD_WS+3}]"
    stamp(A, stamps, 3)
    A("s_barrier")
    stamp(A, stamps, 4)
    A(f"s_sub_u32 s64, s{S_XCD}, 4", "s_lshl_b32 s64, s64, 5", f"s_add_u32 s74, s64, s{S_SLOT}")
    A.srd(SRD_T1, 8, 524288)
    A(f"s_lshl_b32 s64, s74, 2", f"s_add_u32 s64, s64, s{S_W}")
    A("s_lshr_b32 s65, s64, 5", "s_and_b32 s66, s64, 31")
    A("s_lshl_b32 s66, s66, 14", "s_lshl_b32 s65, s65, 6", "s_add_u32 s66, s66, s65")
    A("v_and_b32 v5, 31, v0", "v_lshrrev_b32 v6, 5, v0")
    A("v_lshlrev_b32 v7, 12, v6", "v_lshlrev_b32 v8, 1, v5", "v_add_u32 v7, v7, v8")
    T1 = f"s[{SRD_T1}:{SRD_T1+3}]"
    for j in range(4):
        A(f"buffer_load_ushort v{16+j}, v7, {T1}, s66 offen offset:{j*1024}")
    A("s_add_u32 s66, s66, 8192")
    for j in range(4):
        A(f"buffer_load_ushort v{20+j}, v7, {T1}, s66 offen offset:{j*1024}")
    A("s_lshl_b32 s75, s64, 10", f"s_add_u32 s75, s75, {WS['WOP']}")
    A.srd(SRD_T2, 12, 1024)
    A("s_lshr_b32 s76, s74, 1")
    A("v_and_b32 v9, 7, v0", "v_lshlrev_b32 v9, 1, v9", "s_lshl_b32 s65, s76, 4")
    T2 = f"s[{SRD_T2}:{SRD_T2+3}]"
    A(f"buffer_load_ushort v32, v9, {T2}, s65 offen")
    A.srd(SRD_T3, 14, 1024)
    A(f"buffer_load_ushort v33, v9, s[{SRD_T3}:{SRD_T3+3}], s65 offen")
    A("s_nop 0")
    A.srd(SRD_T2, 24, 1024)
    A(f"buffer_load_ushort v34, v9, {T2}, s65 offen")
    A("s_and_b32 s65, s74, 1", "s_lshl_b32 s65, s65, 3", f"s_lshl_b32 s66, s{S_W}, 1", "s_add_u32 s77, s65, s66")
    A("s_lshl_b32 s65, s77, 15", "s_lshl_b32 s66, s76, 4", "s_add_u32 s65, s65, s66")
    A("v_lshlrev_b32 v10, 10, v5", "v_lshlrev_b32 v11, 3, v6", "v_add_u32 v10, v10, v11")
    A.srd(SRD_T1, 20, 524288)
    A(f"buffer_load_dwordx2 v[40:41], v10, {T1}, s65 offen")
    A("s_add_u32 s66, s65, 32768")
    A(f"buffer_load_dwordx2 v[44:45], v10, {T1}, s66 offen")
    A.srd(SRD_T3, 22, 524288)
    A(f"buffer_load_dwordx2 v[42:43], v10, s[{SRD_T3}:{SRD_T3+3}], s65 offen")
    A(f"buffer_load_dwordx2 v[46:47], v10, s[{SRD_T3}:{SRD_T3+3}], s66 offen")
    A("s_waitcnt vmcnt(7)")
    for j in range(4):
        A(f"v_lshl_or_b32 v{24+j}, v{17+2*j}, 16, v{16+2*j}")
    A("v_lshlrev_b32 v3, 4, v0")
    A(f"buffer_store_dwordx4 v[24:27], v3, {WSr}, s75 offen")
    A("s_waitcnt vmcnt(5)")
    coef_code(A, 32, 48)
    A("v_add_f32 v35, -1.0, v35")
    A("v_mul_f32 v48, v32, v32", "v_fma_f32 v48, v33, v33, v48", "v_rcp_f32 v48, v48")
    A("v_mul_f32 v49, v35, v32", "v_fma_f32 v49, v36, v33, v49")
    A("v_mul_f32 v50, v36, v32", "v_fma_f32 v50, -v35, v33, v50")
    A("v_add_f32 v48, v48, v48")
    A("v_mul_f32 v49, v49, v48", "v_mul_f32 v50, v50, v48")
    A("v_lshlrev_b32 v51, 4, v6")
    for j in range(4):
        A(f"v_add_u32 v52, {4*j}, v51")
        A(f"ds_bpermute_b32 v{56+j}, v52, v49")
        A(f"ds_bpermute_b32 v{60+j}, v52, v50")
    A("s_waitcnt vmcnt(0) lgkmcnt(0)")
    for b in range(2):
        cr = 40 + 4*b; ci = 42 + 4*b
        for (src, dst) in ((cr, 64), (ci, 68)):
            A(f"v_lshlrev_b32 v{dst}, 16, v{src}", f"v_and_b32 v{dst+1}, 0xffff0000, v{src}")
            A(f"v_lshlrev_b32 v{dst+2}, 16, v{src+1}", f"v_and_b32 v{dst+3}, 0xffff0000, v{src+1}")
        for j in range(4):
            A(f"v_mul_f32 v72, v{64+j}, v{56+j}", f"v_fma_f32 v72, -v{68+j}, v{60+j}, v72")
            A(f"v_mul_f32 v73, v{64+j}, v{60+j}", f"v_fma_f32 v73, v{68+j}, v{56+j}, v73")
            A(f"v_cvt_pk_bf16_f32 v{76+4*b+j}, v72, -v73")
        A(f"s_add_u32 s65, s77, {b}", "s_lshl_b32 s65, s65, 6", "s_add_u32 s65, s65, s76", "s_lshl_b32 s65, s65, 10", f"s_add_u32 s65, s65, {WS['CP']}")
        A(f"buffer_store_dwordx4 v[{76+4*b}:{79+4*b}], v3, {WSr}, s65 offen")
    write_stamps(A, stamps, L, "bl", WS["ST"])
    A("s_endpgm")

def phi_pack(A, acc, n, dst, T):
    for base in range(0, n, 8):
        for i in range(0, 8, 2):
            A(f"v_pk_mul_f32 v[{T+i}:{T+i+1}], v[{acc+base+i}:{acc+base+i+1}], s[76:77]")
        for i in range(8):
            A(f"v_exp_f32_e64 v{T+i}, v{T+i} clamp")
        for i in range(8):
            A(f"v_max_f32 v{acc+base+i}, 0, v{acc+base+i}")
        for i in range(0, 8, 2):
            A(f"v_pk_add_f32 v[{acc+base+i}:{acc+base+i+1}], v[{acc+base+i}:{acc+base+i+1}], v[{T+i}:{T+i+1}]")
        for i in range(0, 8, 2):
            A(f"v_pk_add_f32 v[{acc+base+i}:{acc+base+i+1}], v[{acc+base+i}:{acc+base+i+1}], s[78:79]")
        for i in range(0, 8, 2):
            A(f"v_cvt_pk_bf16_f32 v{dst+(base+i)//2}, v{acc+base+i}, v{acc+base+i+1}")

def qkv_compute(A, L, stamps):
    WSr = f"s[{SRD_WS}:{SRD_WS+3}]"
    ACC, WF, XF, TMP = 16, 80, 112, 240
    VA, VW = 4, 8
    lg = Lgkm(A)
    A("v_and_b32 v10, 31, v0", "v_lshrrev_b32 v11, 5, v0")
    A(f"s_lshl_b32 s64, s{S_W}, 5", "v_add_u32 v12, s64, v10", "v_lshlrev_b32 v12, 7, v12")
    A("v_lshrrev_b32 v13, 1, v10", "v_and_b32 v13, 7, v13", "v_xor_b32 v13, v13, v11", "v_lshlrev_b32 v13, 4, v13")
    A(f"v_add_u32 v{VA}, v12, v13")
    for ks in range(1, 4):
        A(f"v_xor_b32 v{VA+ks}, {32*ks}, v{VA}")
    A("v_lshrrev_b32 v12, 5, v0", "v_lshlrev_b32 v12, 3, v12", "v_bfe_u32 v13, v0, 2, 2", "v_add_u32 v12, v12, v13", "v_lshlrev_b32 v12, 7, v12")
    A("v_bfe_u32 v13, v0, 3, 1", "v_lshlrev_b32 v13, 6, v13", "v_add_u32 v12, v12, v13")
    A("v_bfe_u32 v13, v0, 4, 1", "v_lshlrev_b32 v13, 5, v13", "v_add_u32 v12, v12, v13")
    A("v_and_b32 v13, 3, v0", "v_lshlrev_b32 v13, 3, v13", f"v_add_u32 v{VW}, v12, v13")
    A(f"v_xor_b32 v{VW+1}, 64, v{VW}")
    A(f"v_add_u32 v2, {3*SLOT}, v{VW}", f"v_add_u32 v3, {3*SLOT}, v{VW+1}")
    A(f"s_mov_b32 s76, {LOG2E:#x}", f"s_mov_b32 s77, {LOG2E:#x}", f"s_mov_b32 s78, {EPS:#x}", f"s_mov_b32 s79, {EPS:#x}")
    A("v_cmp_gt_u32 s[74:75], 16, v10")
    for i in range(64):
        A(f"v_mov_b32 v{ACC+i}, 0")
    def reads(s_, ks):
        buf = (s_ * 4 + ks) & 1
        out = [(f"ds_read_b128 {v(XF + (s_*4+ks)*4, 4)}, v{VA+ks}", ("x", s_, ks))]
        for nt in range(4):
            part, sub = nt >> 1, nt & 1
            for a_ in range(2):
                off = 16384 + part * 8192 + (16 * ks + 4 * a_) * 128
                out.append((f"ds_read_b64_tr_b16 {v(WF + buf*16 + nt*4 + 2*a_, 2)}, v{VW+sub} offset:{off}", ("w", s_, ks, nt)))
        return out
    A("s_barrier")
    stamp(A, stamps, 1)
    for ins, tag in reads(0, 0):
        lg.issue(ins, tag)
    for s_ in range(8):
        for ks in range(4):
            nxt = (s_, ks + 1) if ks < 3 else ((s_ + 1, 0) if s_ < 7 else None)
            if ks == 3 and s_ < 7:
                A("s_barrier")
                d = SLOT if (s_ + 1) % 5 != 0 else -4 * SLOT
                for r in list(range(VA, VA + 4)) + [VW, VW + 1]:
                    A(f"v_add_u32 v{r}, {d & 0xffffffff:#x}, v{r}")
            nr = reads(*nxt) if nxt else []
            buf = (s_ * 4 + ks) & 1
            xf = v(XF + (s_ * 4 + ks) * 4, 4)
            for nt in range(4):
                if nt == 0:
                    lg.need(("x", s_, ks), ("w", s_, ks, 0))
                else:
                    lg.need(("w", s_, ks, nt))
                A(f"v_mfma_f32_32x32x16_bf16 {v(ACC+16*nt,16)}, {xf}, {v(WF+buf*16+nt*4,4)}, {v(ACC+16*nt,16)}")
                if nr:
                    sel = nr[0:3] if nt == 0 else nr[1 + 2*nt: 3 + 2*nt]
                    for ins, tag in sel:
                        lg.issue(ins, tag)
    stamp(A, stamps, 2)
    A("s_nop 7", "s_nop 7")
    phi_pack(A, ACC, 16, WF, TMP)
    phi_pack(A, ACC + 16, 16, WF + 8, TMP)
    for hp in range(2):
        for i in range(0, 16, 2):
            A(f"v_cvt_pk_bf16_f32 v{WF+16+8*hp+i//2}, v{ACC+32+16*hp+i}, v{ACC+33+16*hp+i}")
    for i in range(4):
        A(f"v_mov_b32 v{TMP+i}, 0x3f803f80")
    A("s_nop 1")
    for hp in range(2):
        kv = ACC + 16 * hp; z = ACC + 32 + 16 * hp
        A(f"v_mfma_f32_32x32x16_bf16 {v(kv,16)}, {v(WF+8*hp,4)}, {v(WF+16+8*hp,4)}, 0")
        A(f"v_mfma_f32_32x32x16_bf16 {v(z,16)}, {v(WF+8*hp,4)}, {v(TMP,4)}, 0")
        A(f"v_mfma_f32_32x32x16_bf16 {v(kv,16)}, {v(WF+8*hp+4,4)}, {v(WF+16+8*hp+4,4)}, {v(kv,16)}")
        A(f"v_mfma_f32_32x32x16_bf16 {v(z,16)}, {v(WF+8*hp+4,4)}, {v(TMP,4)}, {v(z,16)}")
    A("v_and_b32 v12, 15, v10", "v_lshlrev_b32 v13, 5, v11", "v_add_u32 v12, v12, v13", "v_lshlrev_b32 v12, 5, v12")
    A("v_lshrrev_b32 v13, 4, v10", "v_lshlrev_b32 v13, 11, v13", "v_add_u32 v12, v12, v13")
    A(f"s_lshl_b32 s64, s{S_W}, 13", "v_add_u32 v12, s64, v12")
    A("s_nop 7", "s_nop 3")
    for hp in range(2):
        kv = ACC + 16 * hp; z = ACC + 32 + 16 * hp
        for j in range(8):
            A(f"v_cndmask_b32 v{WF+j}, v{kv+8+j}, v{kv+j}, s[74:75]")
        for j in range(8):
            A(f"v_cndmask_b32 v{WF+8+j}, v{z+8+j}, v{z+j}, s[74:75]")
        A(f"ds_write_b128 v12, {v(WF,4)} offset:{hp*4096}")
        A(f"ds_write_b128 v12, {v(WF+4,4)} offset:{hp*4096+16}")
        A(f"ds_write_b128 v12, {v(WF+8,4)} offset:{hp*4096+512}")
        A(f"ds_write_b128 v12, {v(WF+12,4)} offset:{hp*4096+528}")
        if hp == 0:
            A("s_waitcnt lgkmcnt(0)")
    A("v_mov_b32 v13, 0", f"v_mov_b32 v14, {SLOT+8192}")
    A("ds_write_b32 v14, v13")
    A("s_waitcnt lgkmcnt(0)")
    stamp(A, stamps, 3)
    A("s_barrier")
    for i in range(32):
        A(f"v_mov_b32 v{ACC+i}, 0")
    lg = Lgkm(A)
    NB = 4
    def qreads(step):
        idx, ks = step >> 2, step & 3
        a9, u = idx >> 2, idx & 3
        b = WF + (step % NB) * 8
        out = []
        for sub in range(2):
            for a_ in range(2):
                off = a9 * SLOT + u * 8192 + (16 * ks + 4 * a_) * 128
                out.append((f"ds_read_b64_tr_b16 {v(b + sub*4 + 2*a_, 2)}, v{2+sub} offset:{off}", ("q", step, sub)))
        return out
    for st in range(3):
        for ins, tag in qreads(st):
            lg.issue(ins, tag)
    for step in range(32):
        b = WF + (step % NB) * 8
        xf = v(XF + step * 4, 4)
        nr = qreads(step + 3) if step + 3 < 32 else []
        for sub in range(2):
            lg.need(("q", step, sub))
            A(f"v_mfma_f32_32x32x16_bf16 {v(ACC+16*sub,16)}, {v(b+4*sub,4)}, {xf}, {v(ACC+16*sub,16)}")
            for ins, tag in nr[2*sub:2*sub+2]:
                lg.issue(ins, tag)
    stamp(A, stamps, 4)
    A("s_nop 7", "s_nop 7")
    phi_pack(A, ACC, 16, WF, TMP)
    phi_pack(A, ACC + 16, 16, WF + 8, TMP)
    stamp(A, stamps, 5)
    A("s_barrier")
    stamp(A, stamps, 6)
    A("v_lshlrev_b32 v12, 4, v0")
    A(f"v_add_u32 v13, {SLOT}, v12")
    for hl in range(4):
        A(f"ds_read_b128 {v(WF+16+4*hl,4)}, v13 offset:{hl*1024}")
    A("s_waitcnt lgkmcnt(0)")
    for hl in range(4):
        hp, a_ = hl >> 1, hl & 1
        A(f"v_mfma_f32_32x32x16_bf16 {v(ACC+16*hl,16)}, {v(WF+16+4*hl,4)}, {v(WF+8*hp+4*a_,4)}, 0")
    A(f"s_lshl_b32 s64, s{S_RT}, 2", f"s_add_u32 s64, s64, s{S_W}", "s_lshl_b32 s64, s64, 5", f"s_lshl_b32 s65, s{S_G}, 2", "s_add_u32 s64, s64, s65", "s_lshl_b32 s64, s64, 10")
    A("s_nop 7")
    for hl in range(4):
        d = ACC + 16 * hl
        A(f"v_add_f32 v{d+8}, {EPS:#x}, v{d+8}")
    for hl in range(4):
        d = ACC + 16 * hl
        A(f"v_rcp_f32 v{d+8}, v{d+8}")
    A("s_nop 0")
    for hl in range(4):
        d = ACC + 16 * hl
        for j in range(8):
            A(f"v_mul_f32 v{d+j}, v{d+j}, v{d+8}")
        for j in range(4):
            A(f"v_cvt_pk_bf16_f32 v{d+12+j}, v{d+2*j}, v{d+2*j+1}")
        A(f"buffer_store_dwordx4 {v(d+12,4)}, v12, {WSr}, s64 offen offset:{hl*1024}")
    write_stamps(A, stamps, L, "qc", WS["ST"])
    A("s_endpgm")

def bu_compute(A, L, stamps):
    WSr = f"s[{SRD_WS}:{SRD_WS+3}]"
    RE, IM, AF, BF = 16, 48, 80, 144
    C = 160
    lg = Lgkm(A)
    A("v_and_b32 v10, 15, v0", "v_lshrrev_b32 v11, 4, v0")
    A(f"s_lshl_b32 s64, s{S_G}, 6", f"s_lshl_b32 s65, s{S_W}, 4", "s_add_u32 s64, s64, s65", "s_lshl_b32 s64, s64, 1")
    A("v_lshlrev_b32 v12, 1, v10")
    A.srd(SRD_T1, 12, 1024); A.srd(SRD_T2, 14, 1024); A.srd(SRD_T3, 24, 1024)
    A(f"buffer_load_ushort v{C}, v12, s[{SRD_T1}:{SRD_T1+3}], s64 offen")
    A(f"buffer_load_ushort v{C+1}, v12, s[{SRD_T2}:{SRD_T2+3}], s64 offen")
    A(f"buffer_load_ushort v{C+2}, v12, s[{SRD_T3}:{SRD_T3+3}], s64 offen")
    A("v_lshrrev_b32 v12, 1, v10", "v_xor_b32 v12, v12, v11", "v_lshlrev_b32 v12, 4, v12", "v_lshlrev_b32 v13, 7, v10", "v_add_u32 v4, v12, v13")
    A("v_xor_b32 v5, 64, v4")
    A(f"s_lshl_b32 s65, s{S_W}, 11", "s_add_u32 s65, s65, 16384")
    A("v_add_u32 v6, s65, v4", "v_add_u32 v7, s65, v5")
    for i in range(64):
        A(f"v_mov_b32 v{RE+i}, 0")
    A("s_waitcnt vmcnt(0)")
    coef_code(A, C, C + 8)
    LB = C + 4 - 1
    A(f"v_mov_b32 v166, v{C+3}", f"v_mov_b32 v167, v{C+4}")
    csq(A, 174, 166, 176); csq(A, 178, 174, 176); csq(A, 174, 178, 176); csq(A, 168, 174, 176)
    csq(A, 170, 168, 176)
    csq(A, 174, 170, 176)
    csq(A, 172, 174, 176)
    LR, LI = 166, 167
    if DBG_NOSCAN:
        for r in (166, 167, 168, 169, 170, 171, 172, 173):
            A(f"v_mov_b32 v{r}, 0")
    def reads(s_, k2):
        buf = (s_ * 2 + k2) & 1
        out = [(f"ds_read_b128 {v(BF + buf*8, 4)}, v{6+k2} offset:0", ("b", s_, k2, 0)),
               (f"ds_read_b128 {v(BF + buf*8 + 4, 4)}, v{6+k2} offset:8192", ("b", s_, k2, 1))]
        for mt in range(8):
            out.append((f"ds_read_b128 {v(AF + buf*32 + mt*4, 4)}, v{4+k2} offset:{mt*2048}", ("a", s_, k2, mt)))
        return out
    A("s_barrier")
    stamp(A, stamps, 1)
    if DBG_DUMPLDS:
        ld = L("nodump")
        A("s_cmp_lg_u32 s2, 4", f"s_cbranch_scc1 {ld}", f"s_cmp_lg_u32 s{S_W}, 0", f"s_cbranch_scc1 {ld}")
        A("v_lshlrev_b32 v12, 4, v0")
        A("s_mov_b32 s64, 0xA00000")
        for i in range(32):
            A(f"ds_read_b128 v[200:203], v12 offset:{i*1024}", "s_waitcnt lgkmcnt(0)")
            A(f"buffer_store_dwordx4 v[200:203], v12, {WSr}, s64 offen", "s_add_u32 s64, s64, 1024", "s_waitcnt vmcnt(0)")
        A.label(ld)
    for ins, tag in reads(0, 0):
        lg.issue(ins, tag)
    for s_ in range(8):
        for k2 in range(2):
            nxt = (s_, 1) if k2 == 0 else ((s_ + 1, 0) if s_ < 7 else None)
            if k2 == 1 and s_ < 7:
                A("s_barrier")
                d = SLOT if (s_ + 1) % 5 != 0 else -4 * SLOT
                for r in range(4, 8):
                    A(f"v_add_u32 v{r}, {d & 0xffffffff:#x}, v{r}")
            nr = reads(*nxt) if nxt else []
            buf = (s_ * 2 + k2) & 1
            for mt in range(8):
                if mt == 0:
                    lg.need(("b", s_, k2, 0), ("b", s_, k2, 1), ("a", s_, k2, 0))
                else:
                    lg.need(("a", s_, k2, mt))
                af = v(AF + buf*32 + mt*4, 4)
                A(f"v_mfma_f32_16x16x32_bf16 {v(RE+4*mt,4)}, {af}, {v(BF+buf*8,4)}, {v(RE+4*mt,4)}")
                A(f"v_mfma_f32_16x16x32_bf16 {v(IM+4*mt,4)}, {af}, {v(BF+buf*8+4,4)}, {v(IM+4*mt,4)}")
                if nr:
                    sel = nr[0:3] if mt == 0 else [nr[2 + mt]]
                    for ins, tag in sel:
                        lg.issue(ins, tag)
    stamp(A, stamps, 2)
    A("s_nop 7")
    def pr(base, sg): return base + 4 * (sg >> 1) + 2 * (sg & 1)
    E0, E1_ = 180, 184
    Lr = f"v[{LR}:{LR+1}]"
    def step(dre, dim, sre, sim, ure, uim):
        A(f"v_pk_fma_f32 v[{dre}:{dre+1}], v[{sre}:{sre+1}], {Lr}, v[{ure}:{ure+1}] op_sel_hi:[1,0,1]")
        A(f"v_pk_fma_f32 v[{dim}:{dim+1}], v[{sim}:{sim+1}], {Lr}, v[{uim}:{uim+1}] op_sel_hi:[1,0,1]")
        A(f"v_pk_fma_f32 v[{dre}:{dre+1}], v[{sim}:{sim+1}], {Lr}, v[{dre}:{dre+1}] op_sel:[0,1,0] op_sel_hi:[1,1,1] neg_lo:[0,1,0] neg_hi:[0,1,0]")
        A(f"v_pk_fma_f32 v[{dim}:{dim+1}], v[{sre}:{sre+1}], {Lr}, v[{dim}:{dim+1}] op_sel:[0,1,0] op_sel_hi:[1,1,1]")
    cur = (pr(RE, 0), pr(IM, 0))
    for sg in range(1, 16):
        d = E0 if sg & 1 else E1_
        step(d, d + 2, cur[0], cur[1], pr(RE, sg), pr(IM, sg))
        cur = (d, d + 2)
    er, ei = cur
    def cfma(dr, di, ar, ai, br, bi, cr, ci):
        A(f"v_fma_f32 v{dr}, v{ar}, v{br}, v{cr}", f"v_fma_f32 v{di}, v{ar}, v{bi}, v{ci}")
        A(f"v_fma_f32 v{dr}, -v{ai}, v{bi}, v{dr}", f"v_fma_f32 v{di}, v{ai}, v{br}, v{di}")
    cfma(188, 189, 168, 169, er, ei, er + 1, ei + 1)
    A("v_lshlrev_b32 v12, 2, v10")
    for qq in range(4):
        A(f"v_add_u32 v13, {64*qq}, v12")
        A(f"ds_bpermute_b32 v{190+2*qq}, v13, v188")
        A(f"ds_bpermute_b32 v{191+2*qq}, v13, v189")
    A("s_waitcnt lgkmcnt(0)")
    cfma(198, 199, 170, 171, 190, 191, 192, 193)
    cfma(200, 201, 170, 171, 198, 199, 194, 195)
    cfma(202, 203, 170, 171, 200, 201, 196, 197)
    A(f"s_lshl_b32 s64, s{S_G}, 4", f"s_add_u32 s64, s64, s{S_RT}", "s_lshl_b32 s64, s64, 6", f"s_lshl_b32 s65, s{S_W}, 4", "s_add_u32 s64, s64, s65", "s_lshl_b32 s64, s64, 3", f"s_add_u32 s64, s64, {WS['ES']}")
    A("v_lshlrev_b32 v13, 3, v10")
    A("s_mov_b64 s[66:67], exec", "s_mov_b64 exec, 0xffff")
    A(f"buffer_store_dwordx2 v[202:203], v13, {WSr}, s64 offen sc1")
    A("s_mov_b64 exec, s[66:67]")
    A("s_waitcnt vmcnt(0)")
    stamp(A, stamps, 3)
    A("s_barrier")
    lf = L("b_noflag")
    A(f"s_cmp_lg_u32 s{S_W}, 0", f"s_cbranch_scc1 {lf}")
    A(f"s_lshl_b32 s65, s{S_G}, 4", f"s_add_u32 s65, s65, s{S_RT}", "s_add_u32 s65, s65, 128")
    A("v_mov_b32 v13, s65", "v_mov_b32 v14, 1")
    A("s_mov_b64 exec, 1")
    A(f"buffer_store_byte v14, v13, s[{SRD_DBG}:{SRD_DBG+3}], 0 offen sc1")
    A("s_mov_b64 exec, s[66:67]")
    A.label(lf)
    for i in range(4):
        A(f"s_sub_i32 s64, s{S_RT}, {4*i}", "s_max_i32 s64, s64, 0", "s_min_i32 s64, s64, 4", "s_lshl_b32 s64, s64, 3")
        A(f"s_lshl_b64 s[68:69], 1, s64", "s_sub_u32 s68, s68, 1", f"s_and_b32 s{76+i}, s68, 0x01010101")
    A(f"s_lshl_b32 s65, s{S_G}, 4", "s_add_u32 s65, s65, 128")
    poll_flags(A, L, "b", 65, [76, 77, 78, 79], R=212)
    stamp(A, stamps, 4)
    A(f"s_lshl_b32 s64, s{S_G}, 10", f"s_lshl_b32 s65, s{S_W}, 4", "s_add_u32 s64, s64, s65", "s_lshl_b32 s64, s64, 3", f"s_add_u32 s64, s64, {WS['ES']}")
    A("v_lshlrev_b32 v13, 3, v10")
    lgd = L("b_gdone")
    for j in range(15):
        A(f"s_cmp_le_u32 s{S_RT}, {j}", f"s_cbranch_scc1 {lgd}")
        A(f"buffer_load_dwordx2 v[{208+2*j}:{209+2*j}], v13, {WSr}, s64 offen offset:{j*512} sc1" if j < 8 else
          f"buffer_load_dwordx2 v[{208+2*j}:{209+2*j}], v13, {WSr}, s65 offen offset:{(j-8)*512} sc1")
        if j == 7:
            A("s_add_u32 s65, s64, 4096")
    A.label(lgd)
    A("v_mov_b32 v204, 0", "v_mov_b32 v205, 0")
    A("s_waitcnt vmcnt(0)")
    lhd = L("b_hdone")
    for j in range(15):
        A(f"s_cmp_le_u32 s{S_RT}, {j}", f"s_cbranch_scc1 {lhd}")
        cfma(206, 207, 172, 173, 204, 205, 208 + 2*j, 209 + 2*j)
        A("v_mov_b32 v204, v206", "v_mov_b32 v205, v207")
    A.label(lhd)
    stamp(A, stamps, 5)
    cfma(198, 199, 170, 171, 204, 205, 190, 191)
    cfma(200, 201, 170, 171, 198, 199, 192, 193)
    cfma(202, 203, 170, 171, 200, 201, 194, 195)
    for qq, (sr, si) in enumerate(((198, 199), (200, 201), (202, 203)), start=1):
        A(f"v_cmp_eq_u32 vcc, {qq}, v11")
        A("s_nop 1")
        A(f"v_cndmask_b32 v204, v204, v{sr}, vcc", f"v_cndmask_b32 v205, v205, v{si}, vcc")
    cfma(206, 207, 168, 169, 204, 205, er, ei)
    A("v_mov_b32 v208, v204", "v_mov_b32 v209, v206", "v_mov_b32 v210, v205", "v_mov_b32 v211, v207")
    cur = (208, 210)
    for sg in range(16):
        d = (pr(RE, sg), pr(IM, sg))
        step(d[0], d[1], cur[0], cur[1], d[0], d[1])
        cur = d
    A(f"s_lshl_b32 s64, s{S_W}, 13")
    A("v_lshlrev_b32 v12, 11, v11", "v_lshlrev_b32 v13, 2, v10", "v_add_u32 v12, v12, v13", "v_add_u32 v12, s64, v12")
    for mt in range(8):
        for r in range(4):
            t = 16 * (r & 1) + 2 * mt + (r >> 1)
            A(f"v_cvt_pk_bf16_f32 v{AF + 4*mt + r}, v{RE+4*mt+r}, v{IM+4*mt+r}")
    for mt in range(8):
        for r in range(4):
            t = 16 * (r & 1) + 2 * mt + (r >> 1)
            A(f"ds_write_b32 v12, v{AF + 4*mt + r} offset:{t*64}")
    A("v_and_b32 v13, 31, v0", "v_lshlrev_b32 v13, 6, v13", "v_lshrrev_b32 v14, 5, v0", "v_lshlrev_b32 v14, 4, v14", "v_add_u32 v13, v13, v14", "v_add_u32 v13, s64, v13")
    A("s_waitcnt lgkmcnt(0)")
    for rb in range(4):
        for ksl in range(2):
            A(f"ds_read_b128 {v(RE + (rb*2+ksl)*4, 4)}, v13 offset:{rb*2048 + ksl*32}")
    A(f"s_lshl_b32 s64, s{S_RT}, 8", f"s_lshl_b32 s65, s{S_G}, 3", "s_add_u32 s64, s64, s65", f"s_lshl_b32 s65, s{S_W}, 1", "s_add_u32 s64, s64, s65", "s_lshl_b32 s64, s64, 10", f"s_add_u32 s64, s64, {WS['H']}")
    A("v_lshlrev_b32 v12, 4, v0")
    for rb in range(4):
        A(f"s_waitcnt lgkmcnt({6-2*rb})")
        for ksl in range(2):
            A(f"buffer_store_dwordx4 {v(RE + (rb*2+ksl)*4, 4)}, v12, {WSr}, s64 offen offset:{ksl*1024}")
        if rb < 3:
            A("s_add_u32 s64, s64, 0x10000")
    write_stamps(A, stamps, L, "bc", WS["ST"])
    A("s_endpgm")

if __name__ == "__main__":
    K = "p1_kernel"
    A = Asm()
    A.raw(file_header([(K, (256,1,1), (512,1,1), P1_LDS)]))
    gen_p1(A, K, stamps=True)
    A.kernel_desc(K, 256, accum=256)
    open("p1_test.s", "w").write(A.text())
```

```python
import sys
sys.path.insert(0, "gen"); sys.path.insert(0, "scratch")
from asmlib import *
WS = dict(O=0x000000, H=0x200000, WOP=0x600000, CP=0x680000, KVP=0x780000, ES=0x800000, ST=0x900000)

P2_LDS = 163840

def gen_p2(A, K, stamps=False):
    A.kernel_begin(K)
    L = lambda n: f"{K}_{n}"
    if stamps:
        A("s_memrealtime s[80:81]")
    A("s_cmp_ge_u32 s2, 256", f"s_cbranch_scc1 {L('end')}")
    A("s_load_dwordx2 s[4:5], s[0:1], 112")
    A("s_load_dwordx2 s[6:7], s[0:1], 96")
    A("s_load_dwordx2 s[8:9], s[0:1], 24")
    A("s_load_dwordx2 s[10:11], s[0:1], 88")
    A("v_lshrrev_b32 v1, 6, v0")
    A("v_and_b32 v0, 63, v0")
    A("v_readfirstlane_b32 s12, v1")
    A("s_and_b32 s13, s2, 7")
    A("s_lshr_b32 s14, s2, 3")
    A("s_and_b32 s15, s13, 3", "s_lshl_b32 s15, s15, 2", "s_and_b32 s16, s14, 3", "s_add_u32 s15, s15, s16")
    A("s_lshr_b32 s16, s14, 2")
    A("s_and_b32 s17, s12, 3")
    A("s_lshr_b32 s18, s12, 2")
    A("v_lshlrev_b32 v2, 4, v0")
    A("s_waitcnt lgkmcnt(0)")
    A.srd(20, 4, 268435456)
    A.srd(24, 6, 8388608)
    A("s_cmp_ge_u32 s13, 4", f"s_cbranch_scc1 {L('roleB')}")

    def body(role):
        nk = 32 if role == "A" else 64
        nkh = nk // 2
        abase = WS["O"] if role == "A" else WS["H"]
        pbase = WS["WOP"] if role == "A" else WS["CP"]
        ndma = 2 * nk // 8
        AF = 64
        ACC = 16
        BF = 48
        XS = 192
        A(f"s_mul_i32 s28, s16, {2*nk*1024}", f"s_add_u32 s28, s28, {pbase}")
        A(f"s_mul_i32 s29, s12, {ndma*1024}")
        A("s_add_u32 s28, s28, s29")
        for i in range(ndma):
            A(f"s_add_u32 m0, s29, {i*1024}")
            A(f"s_add_u32 s30, s28, {i*1024}")
            A("buffer_load_dwordx4 v2, s[20:23], s30 offen lds")
        A("s_lshl_b32 s31, s15, 2", "s_add_u32 s31, s31, s17", f"s_mul_i32 s31, s31, {nk*1024}")
        A(f"s_mul_i32 s32, s18, {nkh*1024}", "s_add_u32 s31, s31, s32", f"s_add_u32 s31, s31, {abase}")
        for k in range(nkh):
            if k % 4 == 0 and k > 0:
                A("s_add_u32 s31, s31, 4096")
            A(f"buffer_load_dwordx4 {v(AF+4*k,4)}, v2, s[20:23], s31 offen offset:{(k%4)*1024}")
        A(f"v_add_u32 v3, s32, v2")
        A(f"v_add_u32 v4, {nk*1024}, v3")
        A("v_and_b32 v5, 31, v0", "v_lshrrev_b32 v6, 5, v0")
        for i in range(32):
            A(f"v_mov_b32 v{ACC+i}, 0")
        A(f"s_waitcnt vmcnt({nkh})")
        A("s_barrier")
        if stamps:
            A("s_memrealtime s[82:83]")
        nskip = 0
        if role == "B":
            A.srd(36, 8, 2097152)
            A.srd(40, 10, 1024)
            A("s_lshl_b32 s33, s15, 7", "s_lshl_b32 s34, s17, 5", "s_add_u32 s33, s33, s34", "s_lshl_b32 s33, s33, 10")
            A("s_lshl_b32 s34, s16, 7", "s_lshl_b32 s35, s18, 6", "s_add_u32 s34, s34, s35")
            A("s_add_u32 s33, s33, s34")
            A("v_lshlrev_b32 v7, 12, v6", "v_lshlrev_b32 v8, 1, v5", "v_add_u32 v7, v7, v8")
            for r in range(16):
                if r % 4 == 0 and r > 0:
                    A("s_add_u32 s33, s33, 8192")
                A(f"buffer_load_ushort v{XS+r}, v7, s[36:39], s33 offen offset:{(r%4)*1024}")
            A(f"buffer_load_ushort v{XS+16}, v8, s[40:43], s34 offen")
            nskip = 17
        def bread(k):
            b = BF + 8 * (k % 2)
            A(f"ds_read_b128 {v(b,4)}, v3 offset:{k*1024}")
            A(f"ds_read_b128 {v(b+4,4)}, v4 offset:{k*1024}")
        bread(0)
        for k in range(nkh):
            if k + 1 < nkh:
                bread(k + 1)
                A(f"s_waitcnt vmcnt({nkh-1-k+nskip}) lgkmcnt(2)")
            else:
                A(f"s_waitcnt vmcnt({nskip}) lgkmcnt(0)")
            b = BF + 8 * (k % 2)
            A(f"v_mfma_f32_32x32x16_bf16 {v(ACC,16)}, {v(AF+4*k,4)}, {v(b,4)}, {v(ACC,16)}")
            A(f"v_mfma_f32_32x32x16_bf16 {v(ACC+16,16)}, {v(AF+4*k,4)}, {v(b+4,4)}, {v(ACC+16,16)}")
        if stamps:
            A("s_memrealtime s[84:85]")
        A("s_lshl_b32 s36, s12, 12", "s_add_u32 s36, s36, 0x20000")
        A("v_add_u32 v9, s36, v2")
        A("s_xor_b32 s37, s12, 4", "s_lshl_b32 s37, s37, 12", "s_add_u32 s37, s37, 0x20000")
        A("v_add_u32 v10, s37, v2")
        A("s_lshl_b32 s33, s15, 7", "s_lshl_b32 s34, s17, 5", "s_add_u32 s33, s33, s34", "s_lshl_b32 s33, s33, 12")
        A("s_lshl_b32 s34, s16, 8", "s_lshl_b32 s35, s18, 7", "s_add_u32 s34, s34, s35", "s_add_u32 s33, s33, s34")
        if role == "B":
            A("s_add_u32 s33, s33, 2048")
        A("v_lshlrev_b32 v11, 14, v6", "v_lshlrev_b32 v12, 2, v5", "v_add_u32 v11, v11, v12")
        A("s_nop 7")
        lk = L(f"kh1_{role}"); lj = L(f"join_{role}")
        A("s_cmp_eq_u32 s18, 1", f"s_cbranch_scc1 {lk}")
        for i in range(4):
            A(f"ds_write_b128 v9, {v(ACC+16+4*i,4)} offset:{i*1024}")
        A(f"s_branch {lj}")
        A.label(lk)
        for i in range(4):
            A(f"ds_write_b128 v9, {v(ACC+4*i,4)} offset:{i*1024}")
        A("s_nop 1")
        for i in range(16):
            A(f"v_mov_b32 v{ACC+i}, v{ACC+16+i}")
        A.label(lj)
        A("s_waitcnt lgkmcnt(0)")
        A("s_barrier")
        if stamps:
            A("s_memrealtime s[86:87]")
        R = 48
        for i in range(4):
            A(f"ds_read_b128 {v(R+4*i,4)}, v10 offset:{i*1024}")
        if role == "B":
            A("s_waitcnt vmcnt(0)")
            A(f"v_lshlrev_b32 v{XS+16}, 16, v{XS+16}")
            for r in range(16):
                A(f"v_lshlrev_b32 v{XS+r}, 16, v{XS+r}")
            for r in range(16):
                A(f"v_mul_f32 v{XS+r}, v{XS+r}, v{XS+16}")
            for r in range(0, 16, 2):
                A(f"v_cvt_pk_bf16_f32 v{XS+r}, v{XS+r}, v{XS+r+1}")
            for r in range(0, 16, 2):
                A(f"v_and_b32 v{XS+r+1}, 0xffff0000, v{XS+r}")
                A(f"v_lshlrev_b32 v{XS+r}, 16, v{XS+r}")
            for r in range(16):
                A(f"v_add_f32 v{ACC+r}, v{ACC+r}, v{XS+r}")
        A("s_waitcnt lgkmcnt(0)")
        for r in range(16):
            A(f"v_add_f32 v{ACC+r}, v{ACC+r}, v{R+r}")
        if stamps:
            A("s_memrealtime s[88:89]")
        for r in range(16):
            row = (r & 3) + 8 * (r >> 2)
            A(f"s_add_u32 s34, s33, {row*4096}")
            A(f"buffer_store_dword v{ACC+r}, v11, s[24:27], s34 offen")
        if stamps:
            A("s_memrealtime s[90:91]")
            A("s_waitcnt vmcnt(0) lgkmcnt(0)")
            A("s_memrealtime s[92:93]")
            A("s_waitcnt lgkmcnt(0)")
            ls = L(f"nost_{role}")
            for j in range(14):
                A(f"v_mov_b32 v{16+j}, s{80+j}")
            A("v_mov_b32 v30, 0", "v_mov_b32 v31, 0")
            A("s_lshl_b32 s34, s2, 3", "s_add_u32 s34, s34, s12", "s_lshl_b32 s34, s34, 6", f"s_add_u32 s34, s34, {WS['ST']+0x10000}", "v_mov_b32 v2, s34")
            A("v_cmp_eq_u32 vcc, 0, v0", "s_and_saveexec_b64 s[60:61], vcc")
            A("buffer_store_dwordx4 v[16:19], v2, s[20:23], 0 offen")
            A("buffer_store_dwordx4 v[20:23], v2, s[20:23], 0 offen offset:16")
            A("buffer_store_dwordx4 v[24:27], v2, s[20:23], 0 offen offset:32")
            A("buffer_store_dwordx4 v[28:31], v2, s[20:23], 0 offen offset:48")
            A.label(ls)
        A("s_endpgm")
    body("A")
    A.label(L("roleB"))
    body("B")
    A.label(L("end"))
    A("s_endpgm")

if __name__ == "__main__":
    K = "p2_kernel"
    A = Asm()
    A.raw(file_header([(K, (256,1,1), (512,1,1), P2_LDS)]))
    gen_p2(A, K, stamps=True)
    A.kernel_desc(K, 256, accum=256)
    open("p2_test.s", "w").write(A.text())
```

```python
import sys
sys.path.insert(0, "gen")
from asmlib import *
import p1, p2
def build(out, stamps=False):
    A = Asm()
    K1, K2 = "s5p1_kernel", "s5p2_kernel"
    A.raw(file_header([(K1, (256,1,1), (512,1,1), p1.P1_LDS), (K2, (256,1,1), (512,1,1), p2.P2_LDS)]))
    p1.gen_p1(A, K1, stamps=stamps)
    p2.gen_p2(A, K2, stamps=stamps)
    A.kernel_desc(K1, 256, accum=256)
    A.kernel_desc(K2, 256, accum=256)
    open(out, "w").write(A.text())
if __name__ == "__main__":
    out = sys.argv[1]
    build(out, stamps=(len(sys.argv) > 2 and sys.argv[2] == "stamps"))
```

```python
import sys
sys.path.insert(0, "gen")
from asmlib import *
import p1, p2
def build(out, order):
    A = Asm()
    K1, K2, KE = "s5p1_kernel", "s5p2_kernel", "empty_kernel"
    d = {"1": (K1, (256,1,1), (512,1,1), p1.P1_LDS), "2": (K2, (256,1,1), (512,1,1), p2.P2_LDS), "e": (KE, (256,1,1), (64,1,1), 0)}
    A.raw(file_header([d[c] for c in order]))
    p1.gen_p1(A, K1); p2.gen_p2(A, K2)
    A.kernel_begin(KE); A("s_endpgm")
    A.kernel_desc(K1, 256, accum=256); A.kernel_desc(K2, 256, accum=256); A.kernel_desc(KE, 8)
    open(out, "w").write(A.text())
for o in ("12", "12e", "e12", "12eeee", "122", "112"):
    build(f"exp_{o}.s", o)
```

```python
import sys
sys.path.insert(0, "gen"); sys.path.insert(0, "scratch")
from asmlib import *
WS = dict(O=0x000000, H=0x200000, KVP=0x600000, ES=0x700000, FLG=0x740000, KFLG=0x760000, ST=0x900000)
LDS_BYTES = 163840
SLOT = 32768
NSLOT = 4
MISC = NSLOT * SLOT
PART_STRIDE = 1152
FIN = MISC + 20480
CNT = MISC + 24576
NONCE = MISC + 24576 + 64
LOG2E = 0x3FB8AA3B
EPS = 0x358637BD
INV2PI = 0x3E22F983
POLL_LIMIT = 1 << 18
EXP = set(a for a in sys.argv[3:])
LOOK = 3 if 'look3' in EXP else 2
OUTF = 'nt' if 'outnt' in EXP else 'sc1' if 'outsc1' in EXP else 'sc0 sc1' if 'outsc01' in EXP else 'sc1 nt' if 'outsc1nt' in EXP else ''

S_W, S_WAVE, S_XCD, S_SLOT, S_RT, S_G, S_ROT = 3, 34, 35, 36, 37, 38, 39
SRD_X, SRD_W, SRD_WS, SRD_T0, SRD_T1, SRD_T2, SRD_T3 = 40, 44, 48, 52, 56, 60, 96
NON = 78
def R4(n): return f"s[{n}:{n+3}]"
WSr = R4(SRD_WS)

class G:
    def __init__(self, A, K, stamps):
        self.A, self.K, self.stamps = A, K, stamps
    def L(self, n): return f"{self.K}_{n}"
    def stamp(self, i):
        if self.stamps:
            self.A("s_memtime s[100:101]", "s_waitcnt lgkmcnt(0)", f"s_mov_b32 s{80+i}, s100")
    def write_stamps(self):
        A = self.A
        if not self.stamps: return
        A("s_waitcnt vmcnt(0) lgkmcnt(0)")
        self.stamp(13)
        A("s_memrealtime s[100:101]", "s_waitcnt lgkmcnt(0)", "s_mov_b32 s95, s100")
        for j in range(16):
            A(f"v_mov_b32 v{16+j}, s{80+j}")
        A("s_lshl_b32 s64, s2, 3", f"s_add_u32 s64, s64, s{S_WAVE}", "s_lshl_b32 s64, s64, 6", f"s_add_u32 s64, s64, {WS['ST']}", "v_mov_b32 v2, s64")
        A("v_cmp_eq_u32 vcc, 0, v0", "s_and_saveexec_b64 s[66:67], vcc")
        for j in range(4):
            A(f"buffer_store_dwordx4 v[{16+4*j}:{19+4*j}], v2, {WSr}, 0 offen offset:{16*j}")

    def gen(self):
        A, L = self.A, self.L
        A.kernel_begin(self.K)
        if self.stamps:
            for j in range(16): A(f"s_mov_b32 s{80+j}, 0")
            A("s_memrealtime s[100:101]", "s_waitcnt lgkmcnt(0)", "s_mov_b32 s94, s100")
            self.stamp(0)
        A("s_cmp_ge_u32 s2, 256", f"s_cbranch_scc1 {L('end')}")
        A("s_load_dwordx4 s[4:7], s[0:1], 0", "s_load_dwordx4 s[8:11], s[0:1], 16", "s_load_dwordx4 s[12:15], s[0:1], 32")
        A("s_load_dwordx4 s[16:19], s[0:1], 48", "s_load_dwordx4 s[20:23], s[0:1], 64", "s_load_dwordx4 s[24:27], s[0:1], 80")
        A("s_load_dwordx4 s[28:31], s[0:1], 96", "s_load_dwordx2 s[32:33], s[0:1], 112")
        A("v_lshrrev_b32 v1, 6, v0", "v_and_b32 v0, 63, v0")
        A(f"v_readfirstlane_b32 s{S_WAVE}, v1")
        A(f"s_and_b32 s{S_XCD}, s2, 7", f"s_lshr_b32 s{S_SLOT}, s2, 3")
        A(f"s_and_b32 s64, s{S_XCD}, 3", f"s_lshl_b32 s{S_RT}, s64, 2", f"s_and_b32 s65, s{S_SLOT}, 3", f"s_add_u32 s{S_RT}, s{S_RT}, s65")
        A(f"s_lshr_b32 s{S_G}, s{S_SLOT}, 2")
        A("s_lshl_b32 s65, s65, 1", f"s_add_u32 s{S_ROT}, s{S_G}, s65", "s_and_b32 s64, s64, 1", f"s_add_u32 s{S_ROT}, s{S_ROT}, s64", f"s_and_b32 s{S_ROT}, s{S_ROT}, 7")
        A(f"s_and_b32 s{S_W}, s{S_WAVE}, 3")
        A("s_waitcnt lgkmcnt(0)")
        A.srd(SRD_WS, 32, 268435456)
        A(f"s_cmp_ge_u32 s{S_XCD}, 4", f"s_cbranch_scc1 {L('bu')}")
        A.srd(SRD_X, 4, 2097152)
        A.srd(SRD_W, 6, 1572864)
        A(f"s_cmp_ge_u32 s{S_WAVE}, 4", f"s_cbranch_scc1 {L('qkv_load')}")
        self.qkv_compute()
        A(f"s_branch {L('p2A')}")
        A.label(L("qkv_load"))
        self.loader("qkv")
        A.label(L("p2A"))
        self.p2("A")
        A.label(L("bu"))
        A.srd(SRD_X, 10, 2097152)
        A(f"s_cmp_ge_u32 s{S_WAVE}, 4", f"s_cbranch_scc1 {L('bu_load')}")
        self.bu_compute()
        A(f"s_branch {L('p2B')}")
        A.label(L("bu_load"))
        self.loader("bu")
        A.label(L("p2B"))
        self.p2("B")
        A.label(L("end"))
        A("s_endpgm")

    def poll_lines(self, tag, nl, sbase, stride_log2, R=8):
        A, L = self.A, self.L
        lp, done = L(f"poll_{tag}"), L(f"polld_{tag}")
        A(f"s_mov_b32 s72, {POLL_LIMIT}")
        A(f"v_lshlrev_b32 v{R+2}, {stride_log2}, v0")
        A("s_mov_b64 s[74:75], exec", f"s_mov_b64 exec, {(1 << nl) - 1:#x}")
        A.label(lp)
        A(f"buffer_load_dwordx2 v[{R}:{R+1}], v{R+2}, {WSr}, s{sbase} offen sc1")
        A("s_waitcnt vmcnt(0)")
        A(f"v_xor_b32 v{R}, s{NON}, v{R}", f"v_xor_b32 v{R+1}, s{NON+1}, v{R+1}", f"v_or_b32 v{R}, v{R}, v{R+1}")
        A(f"v_cmp_ne_u32 vcc, 0, v{R}")
        A("s_sub_u32 s72, s72, 1")
        A(f"s_cbranch_scc1 {done}")
        A(f"s_cbranch_vccz {done}")
        A("s_sleep 1")
        A(f"s_branch {lp}")
        A.label(done)
        A("s_mov_b64 exec, s[74:75]")

    def store_flag(self, sbase, R=8):
        A = self.A
        A(f"v_mov_b32 v{R}, s{NON}", f"v_mov_b32 v{R+1}, s{NON+1}", f"v_mov_b32 v{R+2}, 0")
        A("s_mov_b64 s[74:75], exec", "s_mov_b64 exec, 1")
        A(f"buffer_store_dwordx2 v[{R}:{R+1}], v{R+2}, {WSr}, s{sbase} offen sc1")
        A("s_mov_b64 exec, s[74:75]")

    def loader(self, role):
        A, L = self.A, self.L
        last = 9 if role == "qkv" else 7
        ln = L(f"nononce_{role}")
        if role == "qkv":
            A("s_cmp_lg_u32 s2, 0", f"s_cbranch_scc1 {ln}", f"s_cmp_lg_u32 s{S_WAVE}, 4", f"s_cbranch_scc1 {ln}")
            A("s_memrealtime s[76:77]", "s_waitcnt lgkmcnt(0)", "s_or_b32 s76, s76, 1")
            A("v_mov_b32 v8, s76", "v_mov_b32 v9, s77", "v_mov_b32 v10, 0")
            A.srd(SRD_T0, 30, 256)
            A("s_mov_b64 s[74:75], exec", "s_mov_b64 exec, 1")
            A(f"buffer_store_dwordx2 v[8:9], v10, {R4(SRD_T0)}, 0 offen sc1")
            A("s_mov_b64 exec, s[74:75]")
            A("s_waitcnt vmcnt(0)")
            A.label(ln)
        A("v_lshrrev_b32 v5, 3, v0", "v_and_b32 v6, 7, v0", "v_lshrrev_b32 v7, 4, v0")
        A("v_xor_b32 v8, v6, v7", "v_lshlrev_b32 v8, 4, v8")
        A("v_lshlrev_b32 v2, 10, v5", "v_add_u32 v2, v2, v8", "v_xor_b32 v3, 64, v2")
        if role == "qkv":
            A("v_and_b32 v9, 1, v7", "v_lshlrev_b32 v9, 2, v9", "v_xor_b32 v9, v6, v9", "v_lshlrev_b32 v9, 4, v9")
            A("v_mul_u32_u24 v4, 3072, v5", "v_add_u32 v4, v4, v9")
            A("v_lshlrev_b32 v12, 10, v5", "v_add_u32 v12, v12, v9")
            A(f"s_lshl_b32 s64, s{S_RT}, 7", f"s_lshl_b32 s65, s{S_W}, 5", "s_add_u32 s64, s64, s65", "s_lshl_b32 s68, s64, 10")
            A(f"s_mul_i32 s69, s{S_W}, {16*3072}", f"s_lshl_b32 s65, s{S_G}, 7", "s_add_u32 s69, s69, s65")
        else:
            A("v_lshrrev_b32 v9, 5, v0", "v_lshlrev_b32 v9, 5, v9", "v_and_b32 v10, 1, v5", "v_lshlrev_b32 v10, 4, v10", "v_add_u32 v9, v9, v10")
            A("v_and_b32 v10, 1, v7", "v_add_u32 v9, v9, v10", "v_lshlrev_b32 v4, 10, v9", "v_add_u32 v4, v4, v8")
            A("v_xor_b32 v11, 64, v4")
            A(f"s_lshl_b32 s64, s{S_RT}, 7", f"s_lshl_b32 s65, s{S_W}, 2", "s_add_u32 s64, s64, s65", "s_lshl_b32 s68, s64, 10")
            A(f"s_cmp_lt_u32 s{S_W}, 2", "s_cselect_b32 s64, s16, s18", "s_cselect_b32 s65, s17, s19")
            A.srd(SRD_W, 64, 524288)
            A(f"s_lshl_b32 s64, s{S_G}, 6", f"s_and_b32 s65, s{S_W}, 1", "s_lshl_b32 s65, s65, 5", "s_add_u32 s64, s64, s65", "s_lshl_b32 s69, s64, 10")
        A(f"s_lshl_b32 s70, s{S_W}, 12")
        X, W = R4(SRD_X), R4(SRD_W)
        def issue(st):
            if 'noload' in EXP and st >= 2: return
            slot = (st % NSLOT) * SLOT
            if st >= 8:
                a = st - 8
                A(f"s_add_u32 s64, s{S_ROT}, s{S_W}", f"s_add_u32 s64, s64, {4*a}", "s_and_b32 s64, s64, 7")
                A(f"s_mul_i32 s64, s64, {64*3072}", f"s_lshl_b32 s65, s{S_G}, 7", "s_add_u32 s64, s64, s65")
                A("s_lshl_b32 s66, s70, 1")
                for i in range(8):
                    A(f"s_add_u32 m0, s66, {slot + i*1024}", f"s_add_u32 s67, s64, {i*8*3072}")
                    A(f"buffer_load_dwordx4 v4, {W}, s67 offen lds")
                return
            A(f"s_add_u32 s64, s{S_ROT}, {st}", "s_and_b32 s64, s64, 7")
            A("s_lshl_b32 s65, s64, 7", "s_add_u32 s65, s65, s68")
            if role == "qkv":
                A(f"s_mul_i32 s66, s64, {64*3072}", "s_add_u32 s66, s66, s69")
                for ii in range(4):
                    A(f"s_add_u32 m0, s70, {slot + ii*1024}", f"s_add_u32 s67, s65, {ii*8192}")
                    A(f"buffer_load_dwordx4 v{2 + (ii&1)}, {X}, s67 offen lds")
                A("s_lshr_b32 s71, s70, 1")
                for part in range(2):
                    for ii in range(2):
                        A(f"s_add_u32 m0, s71, {slot + 16384 + part*8192 + ii*1024}", f"s_add_u32 s67, s66, {ii*8*3072 + (1+part)*1024}")
                        A(f"buffer_load_dwordx4 v4, {W}, s67 offen lds")
            else:
                A("s_lshl_b32 s66, s64, 7", "s_add_u32 s66, s66, s69")
                for ii in range(4):
                    A(f"s_add_u32 m0, s70, {slot + ii*1024}", f"s_add_u32 s67, s65, {(64*(ii&1) + 2*(ii>>1))*1024}")
                    A(f"buffer_load_dwordx4 v{4 if (ii&1)==0 else 11}, {X}, s67 offen lds")
                for ii in range(4):
                    A(f"s_add_u32 m0, s70, {slot + 16384 + ii*1024}", f"s_add_u32 s67, s66, {ii*8192}")
                    A(f"buffer_load_dwordx4 v{2 + (ii&1)}, {W}, s67 offen lds")
        issue(0); issue(1)
        self.stamp(1)
        extra = 0
        for st in range(8):
            upto = min(last, st + 1)
            A(f"s_waitcnt vmcnt({min(63, (upto - st) * 8 + extra)})")
            extra = 0
            if st == 6:
                self.get_nonce(role)
            A("s_barrier")
            if st == 0: self.stamp(2)
            if st + 2 <= last:
                issue(st + 2)
            if st == 2:
                A("s_lshl_b32 s64, s2, 2", f"s_add_u32 s64, s64, s{S_W}", "s_mul_i32 s64, s64, 12")
                A("v_add_u32 v13, s64, v0", "v_lshlrev_b32 v13, 7, v13")
                A.srd(SRD_T0, 8, 524288); A.srd(SRD_T1, 20, 524288); A.srd(SRD_T2, 22, 524288)
                A("s_mov_b64 s[74:75], exec", "s_mov_b64 exec, 0xfff")
                A(f"buffer_load_dword v14, v13, {R4(SRD_T0)}, 0 offen")
                A("v_subrev_u32 v15, 0x80000, v13")
                A(f"buffer_load_dword v14, v15, {R4(SRD_T1)}, 0 offen")
                A("v_subrev_u32 v15, 0x100000, v13")
                A(f"buffer_load_dword v14, v15, {R4(SRD_T2)}, 0 offen")
                A("s_mov_b64 exec, s[74:75]")
                extra = 3
            if st == 4:
                A(f"s_load_dwordx2 s[{NON}:{NON+1}], s[30:31], 0")
        if role == "qkv":
            self.qkv_loader_tail()
        else:
            self.bu_loader_tail()

    def get_nonce(self, role):
        A, L = self.A, self.L
        ok, lp = L(f"nok_{role}"), L(f"nlp_{role}")
        A("s_waitcnt lgkmcnt(0)")
        A(f"s_cmp_lg_u32 s{NON}, 0", f"s_cbranch_scc1 {ok}")
        A.srd(SRD_T0, 30, 256)
        A(f"s_mov_b32 s72, {POLL_LIMIT}", "v_mov_b32 v13, 0")
        A.label(lp)
        A(f"buffer_load_dwordx2 v[14:15], v13, {R4(SRD_T0)}, 0 offen sc1", "s_waitcnt vmcnt(0)")
        A(f"v_readfirstlane_b32 s{NON}, v14", f"v_readfirstlane_b32 s{NON+1}, v15", "s_nop 3")
        A("s_sub_u32 s72, s72, 1", f"s_cbranch_scc1 {ok}")
        A(f"s_cmp_lg_u32 s{NON}, 0", f"s_cbranch_scc1 {ok}", "s_sleep 2", f"s_branch {lp}")
        A.label(ok)
        A(f"v_mov_b32 v14, s{NON}", f"v_mov_b32 v15, s{NON+1}", f"v_mov_b32 v13, {NONCE}", "v_mov_b32 v16, 0")
        A("ds_write_b64 v13, v[14:15]")
        A(f"v_mov_b32 v13, {CNT}", "ds_write_b32 v13, v16")
        A("s_waitcnt lgkmcnt(0)")

    def qkv_loader_tail(self):
        A, L = self.A, self.L
        A("s_waitcnt vmcnt(0)")
        self.stamp(3)
        A("s_barrier")
        self.stamp(4)
        A("v_and_b32 v5, 31, v0", "v_lshrrev_b32 v6, 5, v0")
        A("v_lshlrev_b32 v7, 4, v6", "v_add_u32 v7, v7, v5", "v_lshlrev_b32 v7, 5, v7")
        A("v_lshlrev_b32 v8, 5, v6", "v_add_u32 v8, 1024, v8")
        A("v_cmp_gt_u32 vcc, 16, v5", "s_nop 1", "v_cndmask_b32 v7, v8, v7, vcc")
        A(f"s_mul_i32 s64, s{S_W}, {PART_STRIDE}", f"s_add_u32 s64, s64, {MISC}", "v_add_u32 v7, s64, v7")
        for w in range(4):
            A(f"ds_read_b128 v[{16+8*w}:{19+8*w}], v7 offset:{w*4*PART_STRIDE}")
            A(f"ds_read_b128 v[{20+8*w}:{23+8*w}], v7 offset:{w*4*PART_STRIDE+16}")
        A("s_waitcnt lgkmcnt(4)")
        for j in range(0, 8, 2):
            A(f"v_pk_add_f32 v[{16+j}:{17+j}], v[{16+j}:{17+j}], v[{24+j}:{25+j}]")
        A("s_waitcnt lgkmcnt(0)")
        for j in range(0, 8, 2):
            A(f"v_pk_add_f32 v[{32+j}:{33+j}], v[{32+j}:{33+j}], v[{40+j}:{41+j}]")
        for j in range(0, 8, 2):
            A(f"v_pk_add_f32 v[{16+j}:{17+j}], v[{16+j}:{17+j}], v[{32+j}:{33+j}]")
        for j in range(4):
            A(f"v_cvt_pk_bf16_f32 v{48+j}, v{16+2*j}, v{17+2*j}")
        A("v_lshlrev_b32 v3, 4, v0")
        A(f"s_lshl_b32 s64, s{S_G}, 4", f"s_add_u32 s64, s64, s{S_RT}", "s_lshl_b32 s64, s64, 2", f"s_add_u32 s64, s64, s{S_W}", "s_lshl_b32 s64, s64, 10", f"s_add_u32 s64, s64, {WS['KVP']}")
        A(f"buffer_store_dwordx4 v[48:51], v3, {WSr}, s64 offen sc1")
        A("s_waitcnt vmcnt(0)")
        self.stamp(5)
        A("v_mov_b32 v4, 1", f"v_mov_b32 v5, {CNT}")
        A("s_mov_b64 s[66:67], exec", "s_mov_b64 exec, 1")
        A("ds_add_rtn_u32 v6, v5, v4")
        A("s_waitcnt lgkmcnt(0)")
        A("v_readfirstlane_b32 s65, v6")
        A("s_mov_b64 exec, s[66:67]")
        A("s_nop 1")
        A("s_cmp_lg_u32 s65, 3", f"s_cbranch_scc1 {L('q_noflag')}")
        A(f"s_lshl_b32 s65, s{S_G}, 4", f"s_add_u32 s65, s65, s{S_RT}", "s_lshl_b32 s65, s65, 7", f"s_add_u32 s65, s65, {WS['KFLG']}")
        self.store_flag(65)
        A.label(L("q_noflag"))
        A.srd(SRD_T0, 8, 524288)
        A(f"s_lshl_b32 s64, s{S_W}, 17", f"s_lshl_b32 s65, s{S_G}, 7", "s_add_u32 s64, s64, s65")
        A(f"s_lshl_b32 s65, s{S_W}, 14")
        for i in range(16):
            A(f"s_add_u32 m0, s65, {2*SLOT + i*1024}", f"s_add_u32 s67, s64, {i*8192}")
            A(f"buffer_load_dwordx4 v12, {R4(SRD_T0)}, s67 offen lds")
        A(f"s_lshl_b32 s65, s{S_G}, 11", f"s_add_u32 s65, s65, {WS['KFLG']}")
        A("s_waitcnt vmcnt(0)")
        self.poll_lines("kv", 16, 65, 7)
        self.stamp(6)
        A(f"s_lshl_b32 s64, s{S_G}, 6", f"s_add_u32 s64, s64, s{S_W}", "s_lshl_b32 s64, s64, 10", f"s_add_u32 s64, s64, {WS['KVP']}")
        for r in range(16):
            A(f"buffer_load_dwordx4 v[{64+4*r}:{67+4*r}], v3, {WSr}, s64 offen")
            if r < 15: A("s_add_u32 s64, s64, 4096")
        for j in range(8):
            A(f"v_mov_b32 v{16+j}, 0")
        A("v_mov_b32 v24, 0x00003f80", "v_mov_b32 v25, 0x3f800000")
        for r in range(16):
            A(f"s_waitcnt vmcnt({15-r})")
            for j in range(4):
                A(f"v_dot2c_f32_bf16 v{16+2*j}, v{64+4*r+j}, v24")
                A(f"v_dot2c_f32_bf16 v{17+2*j}, v{64+4*r+j}, v25")
        A("s_nop 2")
        for j in range(4):
            A(f"v_cvt_pk_bf16_f32 v{48+j}, v{16+2*j}, v{17+2*j}")
        A(f"s_lshl_b32 s64, s{S_W}, 10", f"s_add_u32 s64, s64, {FIN}", "v_add_u32 v4, s64, v3")
        A("ds_write_b128 v4, v[48:51]")
        A("s_waitcnt lgkmcnt(0)")
        self.stamp(7)
        A("s_barrier")
        A("s_barrier")
        self.stamp(8)
        self.p1p2_sync("A")

    def bu_loader_tail(self):
        A, L = self.A, self.L
        self.stamp(3)
        A("s_barrier")
        A(f"s_cmp_lt_u32 s{S_W}, 2", "s_cselect_b32 s64, s20, s22", "s_cselect_b32 s65, s21, s23")
        A.srd(SRD_T0, 64, 524288)
        A(f"s_lshl_b32 s64, s{S_G}, 6", f"s_and_b32 s65, s{S_W}, 1", "s_lshl_b32 s65, s65, 5", "s_add_u32 s64, s64, s65", "s_lshl_b32 s64, s64, 10")
        A(f"s_lshl_b32 s65, s{S_W}, 15")
        A("v_lshlrev_b32 v3, 4, v0")
        for i in range(32):
            A(f"v_xor_b32 v{8+(i&3)}, {(i & 15) * 16}, v3")
            A(f"s_add_u32 m0, s65, {i*1024}", f"s_add_u32 s67, s64, {i*1024}")
            A(f"buffer_load_dwordx4 v{8+(i&3)}, {R4(SRD_T0)}, s67 offen lds")
            if i >= 7 and i % 2 == 1:
                A("s_waitcnt vmcnt(6)")
        A("s_waitcnt vmcnt(0)")
        self.stamp(4)
        A("s_barrier")
        self.stamp(8)
        self.p1p2_sync("B")

    def p1p2_sync(self, role):
        A, L = self.A, self.L
        rb = 0 if role == "A" else 1
        A(f"s_add_u32 s64, s{S_RT}, {16*rb}", "s_lshl_b32 s64, s64, 10", f"s_add_u32 s64, s64, {WS['FLG']}")
        lx = L(f"sync_{role}")
        A(f"s_cmp_lg_u32 s{S_W}, 0", f"s_cbranch_scc1 {lx}")
        A(f"s_lshl_b32 s65, s{S_G}, 7", "s_add_u32 s65, s65, s64")
        self.store_flag(65)
        self.poll_lines(f"p2{role}", 8, 64, 7)
        A.label(lx)
        A("s_barrier")

    def phi_pack(self, acc, n, dst, T):
        A = self.A
        for base in range(0, n, 8):
            for i in range(0, 8, 2):
                A(f"v_pk_mul_f32 v[{T+i}:{T+i+1}], v[{acc+base+i}:{acc+base+i+1}], s[76:77]")
            for i in range(8):
                A(f"v_exp_f32_e64 v{T+i}, v{T+i} clamp")
            for i in range(8):
                A(f"v_max_f32 v{acc+base+i}, 0, v{acc+base+i}")
            for i in range(0, 8, 2):
                A(f"v_pk_add_f32 v[{acc+base+i}:{acc+base+i+1}], v[{acc+base+i}:{acc+base+i+1}], v[{T+i}:{T+i+1}]")
            for i in range(0, 8, 2):
                A(f"v_pk_add_f32 v[{acc+base+i}:{acc+base+i+1}], v[{acc+base+i}:{acc+base+i+1}], s[64:65]")
            for i in range(0, 8, 2):
                A(f"v_cvt_pk_bf16_f32 v{dst+(base+i)//2}, v{acc+base+i}, v{acc+base+i+1}")

    def lam_code(self, P, T):
        A = self.A
        A(f"v_lshlrev_b32 v{P}, 16, v{P}", f"v_lshlrev_b32 v{P+1}, 16, v{P+1}", f"v_lshlrev_b32 v{P+2}, 16, v{P+2}")
        A(f"v_mul_f32 v{T}, {LOG2E:#x}, v{P+2}", f"v_exp_f32 v{T}, v{T}", "s_nop 0")
        A(f"v_cvt_pk_bf16_f32 v{T}, v{T}, v{T}", f"v_lshlrev_b32 v{T}, 16, v{T}")
        A(f"v_mul_f32 v{T+1}, v{T}, v{P}", f"v_mul_f32 v{T+2}, v{T}, v{P+1}")
        A(f"v_mul_f32 v{T+1}, {LOG2E:#x}, v{T+1}", f"v_mul_f32 v{T+2}, {INV2PI:#x}, v{T+2}")
        A(f"v_exp_f32 v{T+1}, v{T+1}", f"v_fract_f32 v{T+2}, v{T+2}", "s_nop 0")
        A(f"v_cos_f32 v{P+3}, v{T+2}", f"v_sin_f32 v{P+4}, v{T+2}", "s_nop 0")
        A(f"v_mul_f32 v{P+3}, v{P+3}, v{T+1}", f"v_mul_f32 v{P+4}, v{P+4}, v{T+1}")

    def csq(self, d, s_, t):
        A = self.A
        A(f"v_mul_f32 v{t}, v{s_+1}, v{s_+1}", f"v_mul_f32 v{d+1}, v{s_}, v{s_+1}")
        A(f"v_fma_f32 v{d}, v{s_}, v{s_}, -v{t}", f"v_add_f32 v{d+1}, v{d+1}, v{d+1}")

    def cfma(self, dr, di, ar, ai, br, bi, cr, ci):
        A = self.A
        A(f"v_fma_f32 v{dr}, v{ar}, v{br}, v{cr}", f"v_fma_f32 v{di}, v{ar}, v{bi}, v{ci}")
        A(f"v_fma_f32 v{dr}, -v{ai}, v{bi}, v{dr}", f"v_fma_f32 v{di}, v{ai}, v{br}, v{di}")

    def qkv_compute(self):
        A, L = self.A, self.L
        ACC, WF, XF, TMP = 16, 80, 112, 240
        VA, VW = 4, 8
        lg = Lgkm(A)
        A("v_and_b32 v10, 31, v0", "v_lshrrev_b32 v11, 5, v0")
        A(f"s_lshl_b32 s64, s{S_W}, 5", "v_add_u32 v12, s64, v10", "v_lshlrev_b32 v12, 7, v12")
        A("v_lshrrev_b32 v13, 1, v10", "v_and_b32 v13, 7, v13", "v_xor_b32 v13, v13, v11", "v_lshlrev_b32 v13, 4, v13")
        A(f"v_add_u32 v{VA}, v12, v13")
        for ks in range(1, 4):
            A(f"v_xor_b32 v{VA+ks}, {32*ks}, v{VA}")
        A("v_lshrrev_b32 v12, 5, v0", "v_lshlrev_b32 v12, 3, v12", "v_bfe_u32 v13, v0, 2, 2", "v_add_u32 v12, v12, v13", "v_lshlrev_b32 v12, 7, v12")
        A("v_bfe_u32 v13, v0, 3, 1", "v_lshlrev_b32 v13, 6, v13", "v_add_u32 v12, v12, v13")
        A("v_bfe_u32 v13, v0, 4, 1", "v_lshlrev_b32 v13, 5, v13", "v_add_u32 v12, v12, v13")
        A("v_and_b32 v13, 3, v0", "v_lshlrev_b32 v13, 3, v13", f"v_add_u32 v{VW}, v12, v13")
        A(f"v_xor_b32 v{VW+1}, 64, v{VW}")
        A(f"v_mov_b32 v2, v{VW}", f"v_mov_b32 v3, v{VW+1}")
        A(f"s_mov_b32 s76, {LOG2E:#x}", f"s_mov_b32 s77, {LOG2E:#x}")
        A("v_cmp_gt_u32 s[74:75], 16, v10")
        for i in range(64): A(f"v_mov_b32 v{ACC+i}, 0")
        def reads(s_, ks):
            buf = (s_ * 4 + ks) & 1
            out = [(f"ds_read_b128 {v(XF + (s_*4+ks)*4, 4)}, v{VA+ks}", ("x", s_, ks))]
            for nt in range(4):
                part, sub = nt >> 1, nt & 1
                for a_ in range(2):
                    off = 16384 + part * 8192 + (16 * ks + 4 * a_) * 128
                    out.append((f"ds_read_b64_tr_b16 {v(WF + buf*16 + nt*4 + 2*a_, 2)}, v{VW+sub} offset:{off}", ("w", s_, ks, nt)))
            return out
        A("s_barrier")
        self.stamp(1)
        for ins, tag in reads(0, 0): lg.issue(ins, tag)
        for s_ in range(8):
            for ks in range(4):
                nxt = (s_, ks + 1) if ks < 3 else ((s_ + 1, 0) if s_ < 7 else None)
                if ks == 3 and s_ < 7:
                    A("s_barrier")
                    d = SLOT if (s_ + 1) % NSLOT != 0 else -(NSLOT - 1) * SLOT
                    for r in list(range(VA, VA + 4)) + [VW, VW + 1]:
                        A(f"v_add_u32 v{r}, {d & 0xffffffff:#x}, v{r}")
                nr = reads(*nxt) if nxt else []
                if 'nocomp' in EXP: continue
                buf = (s_ * 4 + ks) & 1
                xf = v(XF + (s_ * 4 + ks) * 4, 4)
                for nt in range(4):
                    if nt == 0: lg.need(("x", s_, ks), ("w", s_, ks, 0))
                    else: lg.need(("w", s_, ks, nt))
                    A(f"v_mfma_f32_32x32x16_bf16 {v(ACC+16*nt,16)}, {xf}, {v(WF+buf*16+nt*4,4)}, {v(ACC+16*nt,16)}")
                    if nr:
                        for ins, tag in (nr[0:3] if nt == 0 else nr[1 + 2*nt: 3 + 2*nt]):
                            lg.issue(ins, tag)
        self.stamp(2)
        A(f"s_mov_b32 s64, {EPS:#x}", f"s_mov_b32 s65, {EPS:#x}")
        A("v_and_b32 v12, 15, v10", "v_lshlrev_b32 v13, 4, v11", "v_add_u32 v12, v12, v13", "v_lshlrev_b32 v12, 5, v12")
        A("v_lshrrev_b32 v13, 4, v10", f"v_mul_u32_u24 v13, {PART_STRIDE}, v13", "v_add_u32 v12, v12, v13")
        A(f"s_mul_i32 s66, s{S_W}, {4*PART_STRIDE}", f"s_add_u32 s66, s66, {MISC}", "v_add_u32 v12, s66, v12")
        A("v_lshlrev_b32 v14, 5, v11", "v_add_u32 v14, v14, v13", "v_add_u32 v14, s66, v14", "v_add_u32 v14, 1024, v14")
        A("s_nop 3")
        self.phi_pack(ACC, 16, WF, TMP)
        self.phi_pack(ACC + 16, 16, WF + 8, TMP)
        for hp in range(2):
            for i in range(0, 16, 2):
                A(f"v_cvt_pk_bf16_f32 v{WF+16+8*hp+i//2}, v{ACC+32+16*hp+i}, v{ACC+33+16*hp+i}")
        for i in range(4): A(f"v_mov_b32 v{TMP+i}, 0x3f803f80")
        A("s_nop 1")
        for hp in range(2):
            kv = ACC + 16 * hp; z = ACC + 32 + 16 * hp
            A(f"v_mfma_f32_32x32x16_bf16 {v(kv,16)}, {v(WF+8*hp,4)}, {v(WF+16+8*hp,4)}, 0")
            A(f"v_mfma_f32_32x32x16_bf16 {v(z,16)}, {v(WF+8*hp,4)}, {v(TMP,4)}, 0")
            A(f"v_mfma_f32_32x32x16_bf16 {v(kv,16)}, {v(WF+8*hp+4,4)}, {v(WF+16+8*hp+4,4)}, {v(kv,16)}")
            A(f"v_mfma_f32_32x32x16_bf16 {v(z,16)}, {v(WF+8*hp+4,4)}, {v(TMP,4)}, {v(z,16)}")
        A("s_nop 7", "s_nop 3")
        for hp in range(2):
            kv = ACC + 16 * hp; z = ACC + 32 + 16 * hp
            T0 = WF + 16 * hp
            for j in range(8):
                A(f"v_cndmask_b32 v{T0+j}, v{kv+8+j}, v{kv+j}, s[74:75]")
            for j in range(8):
                A(f"v_cndmask_b32 v{T0+8+j}, v{z+8+j}, v{z+j}, s[74:75]")
            A(f"ds_write_b128 v12, {v(T0,4)} offset:{hp*2*PART_STRIDE}")
            A(f"ds_write_b128 v12, {v(T0+4,4)} offset:{hp*2*PART_STRIDE+16}")
            A("s_mov_b64 s[66:67], exec", "s_mov_b32 exec_lo, 0x00010001", "s_mov_b32 exec_hi, 0x00010001")
            A(f"ds_write_b128 v14, {v(T0+8,4)} offset:{hp*2*PART_STRIDE}")
            A(f"ds_write_b128 v14, {v(T0+12,4)} offset:{hp*2*PART_STRIDE+16}")
            A("s_mov_b64 exec, s[66:67]")
        A("s_waitcnt lgkmcnt(0)")
        self.stamp(3)
        A("s_barrier")
        for i in range(32): A(f"v_mov_b32 v{ACC+i}, 0")
        lg = Lgkm(A)
        NB = 4
        def qreads(step):
            idx, ks = step >> 2, step & 3
            a9, u = idx >> 2, idx & 3
            b = WF + (step % NB) * 8
            out = []
            for sub in range(2):
                for a_ in range(2):
                    off = a9 * SLOT + u * 8192 + (16 * ks + 4 * a_) * 128
                    out.append((f"ds_read_b64_tr_b16 {v(b + sub*4 + 2*a_, 2)}, v{2+sub} offset:{off}", ("q", step, sub)))
            return out
        for st in range(3):
            for ins, tag in qreads(st): lg.issue(ins, tag)
        for step in range(32):
            b = WF + (step % NB) * 8
            xf = v(XF + step * 4, 4)
            nr = qreads(step + 3) if step + 3 < 32 else []
            for sub in range(2):
                lg.need(("q", step, sub))
                A(f"v_mfma_f32_32x32x16_bf16 {v(ACC+16*sub,16)}, {v(b+4*sub,4)}, {xf}, {v(ACC+16*sub,16)}")
                for ins, tag in nr[2*sub:2*sub+2]: lg.issue(ins, tag)
        self.stamp(4)
        A(f"s_mov_b32 s64, {EPS:#x}", f"s_mov_b32 s65, {EPS:#x}")
        A("s_nop 7", "s_nop 3")
        self.phi_pack(ACC, 16, WF, TMP)
        self.phi_pack(ACC + 16, 16, WF + 8, TMP)
        self.stamp(5)
        A("s_barrier")
        self.stamp(6)
        A("v_lshlrev_b32 v12, 4, v0", f"v_add_u32 v13, {FIN}, v12")
        for hl in range(4):
            A(f"ds_read_b128 {v(WF+16+4*hl,4)}, v13 offset:{hl*1024}")
        A(f"s_lshl_b32 s64, s{S_RT}, 2", f"s_add_u32 s64, s64, s{S_W}", "s_lshl_b32 s64, s64, 5", f"s_lshl_b32 s65, s{S_G}, 2", "s_add_u32 s64, s64, s65", "s_lshl_b32 s64, s64, 10")
        for hl in range(4):
            hp, a_ = hl >> 1, hl & 1
            A(f"s_waitcnt lgkmcnt({3-hl})")
            A(f"v_mfma_f32_32x32x16_bf16 {v(ACC+16*hl,16)}, {v(WF+16+4*hl,4)}, {v(WF+8*hp+4*a_,4)}, 0")
        A("s_nop 7", "s_nop 3")
        for hl in range(4):
            d = ACC + 16 * hl
            A(f"v_add_f32 v{d+8}, {EPS:#x}, v{d+8}")
        for hl in range(4):
            d = ACC + 16 * hl
            A(f"v_rcp_f32 v{d+8}, v{d+8}")
        A("s_nop 0")
        for hl in range(4):
            d = ACC + 16 * hl
            for j in range(0, 8, 2):
                A(f"v_pk_mul_f32 v[{d+j}:{d+j+1}], v[{d+j}:{d+j+1}], v[{d+8}:{d+9}] op_sel_hi:[1,0]")
            for j in range(4):
                A(f"v_cvt_pk_bf16_f32 v{d+12+j}, v{d+2*j}, v{d+2*j+1}")
            A(f"buffer_store_dwordx4 {v(d+12,4)}, v12, {WSr}, s64 offen offset:{hl*1024} sc1")
        A("s_waitcnt vmcnt(0)")
        self.stamp(7)
        A("s_barrier")
        A("s_barrier")

    def bu_compute(self):
        A, L = self.A, self.L
        RE, IM, AF, BF = 16, 48, 80, 144
        C = 160
        lg = Lgkm(A)
        A("v_and_b32 v10, 15, v0", "v_lshrrev_b32 v11, 4, v0")
        A(f"s_lshl_b32 s64, s{S_G}, 6", f"s_lshl_b32 s65, s{S_W}, 4", "s_add_u32 s64, s64, s65", "s_lshl_b32 s64, s64, 1")
        A("v_lshlrev_b32 v12, 1, v10")
        A.srd(SRD_T0, 12, 1024); A.srd(SRD_T1, 14, 1024); A.srd(SRD_T2, 24, 1024)
        A(f"buffer_load_ushort v{C}, v12, {R4(SRD_T0)}, s64 offen")
        A(f"buffer_load_ushort v{C+1}, v12, {R4(SRD_T1)}, s64 offen")
        A(f"buffer_load_ushort v{C+2}, v12, {R4(SRD_T2)}, s64 offen")
        A("v_lshrrev_b32 v12, 1, v10", "v_xor_b32 v12, v12, v11", "v_lshlrev_b32 v12, 4, v12", "v_lshlrev_b32 v13, 7, v10", "v_add_u32 v4, v12, v13")
        A("v_xor_b32 v5, 64, v4")
        A(f"s_lshl_b32 s65, s{S_W}, 11", "s_add_u32 s65, s65, 16384")
        A("v_add_u32 v6, s65, v4", "v_add_u32 v7, s65, v5")
        for i in range(64): A(f"v_mov_b32 v{RE+i}, 0")
        A("s_waitcnt vmcnt(0)")
        self.lam_code(C, C + 8)
        A(f"v_mov_b32 v166, v{C+3}", f"v_mov_b32 v167, v{C+4}")
        A("v_add_f32 v163, -1.0, v163")
        A("v_mul_f32 v168, v160, v160", "v_fma_f32 v168, v161, v161, v168", "v_rcp_f32 v168, v168")
        A("v_mul_f32 v169, v163, v160", "v_fma_f32 v169, v167, v161, v169")
        A("v_mul_f32 v170, v167, v160", "v_fma_f32 v170, -v163, v161, v170")
        A("v_add_f32 v168, v168, v168")
        A("v_mul_f32 v164, v169, v168", "v_mul_f32 v165, v170, v168")
        self.csq(174, 166, 176); self.csq(178, 174, 176); self.csq(174, 178, 176); self.csq(168, 174, 176)
        self.csq(170, 168, 176)
        self.csq(174, 170, 176)
        self.csq(172, 174, 176)
        def reads(s_, k2):
            buf = (s_ * 2 + k2) & 1
            out = [(f"ds_read_b128 {v(BF + buf*8, 4)}, v{6+k2} offset:0", ("b", s_, k2, 0)),
                   (f"ds_read_b128 {v(BF + buf*8 + 4, 4)}, v{6+k2} offset:8192", ("b", s_, k2, 1))]
            for mt in range(8):
                out.append((f"ds_read_b128 {v(AF + buf*32 + mt*4, 4)}, v{4+k2} offset:{mt*2048}", ("a", s_, k2, mt)))
            return out
        A("s_barrier")
        self.stamp(1)
        for ins, tag in reads(0, 0): lg.issue(ins, tag)
        for s_ in range(8):
            for k2 in range(2):
                nxt = (s_, 1) if k2 == 0 else ((s_ + 1, 0) if s_ < 7 else None)
                if k2 == 1 and s_ < 7:
                    A("s_barrier")
                    d = SLOT if (s_ + 1) % NSLOT != 0 else -(NSLOT - 1) * SLOT
                    for r in range(4, 8):
                        A(f"v_add_u32 v{r}, {d & 0xffffffff:#x}, v{r}")
                nr = reads(*nxt) if nxt else []
                if 'nocomp' in EXP: continue
                buf = (s_ * 2 + k2) & 1
                for mt in range(8):
                    if mt == 0: lg.need(("b", s_, k2, 0), ("b", s_, k2, 1), ("a", s_, k2, 0))
                    else: lg.need(("a", s_, k2, mt))
                    af = v(AF + buf*32 + mt*4, 4)
                    A(f"v_mfma_f32_16x16x32_bf16 {v(RE+4*mt,4)}, {af}, {v(BF+buf*8,4)}, {v(RE+4*mt,4)}")
                    A(f"v_mfma_f32_16x16x32_bf16 {v(IM+4*mt,4)}, {af}, {v(BF+buf*8+4,4)}, {v(IM+4*mt,4)}")
                    if nr:
                        for ins, tag in (nr[0:3] if mt == 0 else [nr[2 + mt]]):
                            lg.issue(ins, tag)
        self.stamp(2)
        A(f"v_mov_b32 v12, {NONCE}", "ds_read_b64 v[224:225], v12")
        A("s_nop 5")
        def pr(base, sg): return base + 4 * (sg >> 1) + 2 * (sg & 1)
        E0, E1_ = 180, 184
        Lr = "v[166:167]"
        def step(dre, dim, sre, sim, ure, uim, M=Lr):
            A(f"v_pk_fma_f32 v[{dre}:{dre+1}], v[{sre}:{sre+1}], {M}, v[{ure}:{ure+1}] op_sel_hi:[1,0,1]")
            A(f"v_pk_fma_f32 v[{dim}:{dim+1}], v[{sim}:{sim+1}], {M}, v[{uim}:{uim+1}] op_sel_hi:[1,0,1]")
            A(f"v_pk_fma_f32 v[{dre}:{dre+1}], v[{sim}:{sim+1}], {M}, v[{dre}:{dre+1}] op_sel:[0,1,0] op_sel_hi:[1,1,1] neg_lo:[0,1,0] neg_hi:[0,1,0]")
            A(f"v_pk_fma_f32 v[{dim}:{dim+1}], v[{sre}:{sre+1}], {M}, v[{dim}:{dim+1}] op_sel:[0,1,0] op_sel_hi:[1,1,1]")
        cur = (pr(RE, 0), pr(IM, 0))
        for sg in range(1, 16):
            d = E0 if sg & 1 else E1_
            step(d, d + 2, cur[0], cur[1], pr(RE, sg), pr(IM, sg))
            cur = (d, d + 2)
        er, ei = cur
        self.cfma(188, 189, 168, 169, er, ei, er + 1, ei + 1)
        A("v_lshlrev_b32 v12, 2, v10")
        for qq in range(4):
            A(f"v_add_u32 v13, {64*qq}, v12")
            A(f"ds_bpermute_b32 v{190+2*qq}, v13, v188", f"ds_bpermute_b32 v{191+2*qq}, v13, v189")
        A("s_waitcnt lgkmcnt(0)")
        self.cfma(198, 199, 170, 171, 190, 191, 192, 193)
        self.cfma(200, 201, 170, 171, 198, 199, 194, 195)
        self.cfma(222, 223, 170, 171, 200, 201, 196, 197)
        A("v_mov_b32 v228, v222", "v_mov_b32 v229, v223", "v_mov_b32 v230, v224", "v_mov_b32 v231, v225")
        A(f"s_lshl_b32 s64, s{S_G}, 4", f"s_add_u32 s64, s64, s{S_RT}", "s_lshl_b32 s64, s64, 6", f"s_lshl_b32 s65, s{S_W}, 4", "s_add_u32 s64, s64, s65", "s_lshl_b32 s64, s64, 4", f"s_add_u32 s64, s64, {WS['ES']}")
        A("v_lshlrev_b32 v13, 4, v10")
        A("s_mov_b64 s[66:67], exec", "s_mov_b64 exec, 0xffff")
        A(f"buffer_store_dwordx4 v[228:231], v13, {WSr}, s64 offen sc1")
        A("s_mov_b64 exec, s[66:67]")
        self.stamp(3)
        A("s_barrier")
        K2 = "v[164:165]"
        for sg in range(16):
            r_, i_ = pr(RE, sg), pr(IM, sg)
            A(f"v_pk_mul_f32 v[232:233], v[{i_}:{i_+1}], {K2} op_sel:[0,1] op_sel_hi:[1,1]")
            A(f"v_pk_mul_f32 v[234:235], v[{r_}:{r_+1}], {K2} op_sel:[0,1] op_sel_hi:[1,1]")
            A(f"v_pk_fma_f32 v[{r_}:{r_+1}], v[{r_}:{r_+1}], {K2}, v[232:233] op_sel_hi:[1,0,1] neg_lo:[0,0,1] neg_hi:[0,0,1]")
            A(f"v_pk_fma_f32 v[{i_}:{i_+1}], v[{i_}:{i_+1}], {K2}, v[234:235] op_sel_hi:[1,0,1]")
        self.stamp(4)
        A(f"s_lshl_b32 s64, s{S_G}, 10", f"s_lshl_b32 s65, s{S_W}, 4", "s_add_u32 s64, s64, s65", "s_lshl_b32 s64, s64, 4", f"s_add_u32 s64, s64, {WS['ES']}")
        A("v_lshlrev_b32 v13, 4, v10")
        GB = 80
        lp, lgd, lok, lhd = L("e_poll"), L("e_gd"), L("e_ok"), L("e_hd")
        A(f"s_mov_b32 s72, {POLL_LIMIT}")
        A.label(lp)
        A("s_mov_b32 s65, s64")
        for j in range(15):
            A(f"s_cmp_le_u32 s{S_RT}, {j}", f"s_cbranch_scc1 {lgd}")
            A(f"buffer_load_dwordx4 v[{GB+4*j}:{GB+4*j+3}], v13, {WSr}, s65 offen sc1")
            if j < 14: A("s_add_u32 s65, s65, 1024")
        A.label(lgd)
        A("v_mov_b32 v204, 0", "v_mov_b32 v205, 0", "v_mov_b32 v236, 0")
        A("s_waitcnt vmcnt(0)")
        for j in range(15):
            A(f"s_cmp_le_u32 s{S_RT}, {j}", f"s_cbranch_scc1 {lhd}")
            A(f"v_xor_b32 v237, v224, v{GB+4*j+2}", f"v_xor_b32 v238, v225, v{GB+4*j+3}")
            A("v_or3_b32 v236, v236, v237, v238")
            self.cfma(206, 207, 172, 173, 204, 205, GB + 4*j, GB + 4*j + 1)
            A("v_mov_b32 v204, v206", "v_mov_b32 v205, v207")
        A.label(lhd)
        A("v_cmp_ne_u32 vcc, 0, v236")
        A("s_sub_u32 s72, s72, 1", f"s_cbranch_scc1 {lok}")
        A(f"s_cbranch_vccz {lok}")
        A("s_sleep 1", f"s_branch {lp}")
        A.label(lok)
        self.stamp(5)
        self.cfma(198, 199, 170, 171, 204, 205, 190, 191)
        self.cfma(200, 201, 170, 171, 198, 199, 192, 193)
        self.cfma(202, 203, 170, 171, 200, 201, 194, 195)
        for qq, (sr, si) in enumerate(((198, 199), (200, 201), (202, 203)), start=1):
            A(f"v_cmp_eq_u32 vcc, {qq}, v11", "s_nop 1")
            A(f"v_cndmask_b32 v204, v204, v{sr}, vcc", f"v_cndmask_b32 v205, v205, v{si}, vcc")
        self.cfma(206, 207, 168, 169, 204, 205, er, ei)
        def cmul(dr, di, ar, ai):
            A(f"v_mul_f32 v{dr}, v{ar}, v164", f"v_mul_f32 v{di}, v{ar}, v165")
            A(f"v_fma_f32 v{dr}, -v{ai}, v165, v{dr}", f"v_fma_f32 v{di}, v{ai}, v164, v{di}")
        cmul(208, 210, 204, 205)
        cmul(209, 211, 206, 207)
        cur = (208, 210)
        for sg in range(16):
            d = (pr(RE, sg), pr(IM, sg))
            step(d[0], d[1], cur[0], cur[1], d[0], d[1])
            cur = d
        self.stamp(6)
        for pl_, base, neg in ((0, RE, ""), (1, IM, "-")):
            for c in range(4):
                for j in range(4):
                    sg = 8 * (c & 1) + 2 * j
                    r0, r1 = pr(base, sg) + (c >> 1), pr(base, sg + 1) + (c >> 1)
                    A(f"v_cvt_pk_bf16_f32 v{80 + 16*pl_ + 4*c + j}, {neg}v{r0}, {neg}v{r1}")
        A(f"s_lshl_b32 s64, s{S_W}, 13", f"s_add_u32 s64, s64, {MISC}")
        A("v_lshlrev_b32 v12, 6, v11", "v_lshlrev_b32 v13, 4, v10", "v_xor_b32 v12, v12, v13", "v_lshlrev_b32 v13, 8, v10", "v_add_u32 v12, v12, v13", "v_add_u32 v12, s64, v12")
        for c in range(4):
            if c: A(f"v_xor_b32 v{212+c}, {16*c}, v12")
        for pl_ in range(2):
            for c in range(4):
                A(f"ds_write_b128 v{12 if c == 0 else 212+c}, {v(80 + 16*pl_ + 4*c, 4)} offset:{pl_*4096}")
        A("v_bfe_u32 v13, v0, 4, 1", "v_lshlrev_b32 v13, 5, v13", "v_and_b32 v14, 3, v0", "v_lshlrev_b32 v14, 3, v14", "v_add_u32 v13, v13, v14")
        A("v_bfe_u32 v14, v0, 2, 2", "v_lshlrev_b32 v15, 4, v14", "v_xor_b32 v13, v13, v15", "v_lshlrev_b32 v14, 8, v14", "v_add_u32 v13, v13, v14")
        A("v_lshrrev_b32 v14, 5, v0", "v_lshlrev_b32 v14, 12, v14", "v_add_u32 v13, v13, v14", "v_add_u32 v13, s64, v13")
        A("s_waitcnt lgkmcnt(0)")
        for rb in range(4):
            for ksl in range(2):
                for a_ in range(2):
                    off = (8 * ksl + 4 * a_) * 256 + ((64 * rb) ^ (128 * ksl + 64 * a_))
                    A(f"ds_read_b64_tr_b16 {v(16 + (rb*2+ksl)*4 + 2*a_, 2)}, v13 offset:{off}")
        A(f"s_lshl_b32 s64, s{S_RT}, 8", f"s_lshl_b32 s65, s{S_G}, 3", "s_add_u32 s64, s64, s65", f"s_lshl_b32 s65, s{S_W}, 1", "s_add_u32 s64, s64, s65", "s_lshl_b32 s64, s64, 10", f"s_add_u32 s64, s64, {WS['H']}")
        A("v_lshlrev_b32 v12, 4, v0")
        for rb in range(4):
            A(f"s_waitcnt lgkmcnt({min(15, 12-4*rb)})")
            for ksl in range(2):
                A(f"buffer_store_dwordx4 {v(16 + (rb*2+ksl)*4, 4)}, v12, {WSr}, s64 offen offset:{ksl*1024} sc1")
            if rb < 3: A("s_add_u32 s64, s64, 0x10000")
        self.stamp(7)
        A("s_waitcnt vmcnt(0)")
        self.stamp(8)
        A("s_barrier")
        A("s_barrier")

    def p2(self, role):
        A, L = self.A, self.L
        self.stamp(9)
        nk = 32 if role == "A" else 64
        nst = nk // 2
        abase = WS["O"] if role == "A" else WS["H"]
        ACC, BF, AF = 16, 48, 80
        XS = 112
        NBUF, LA = 4, 7
        A(f"s_lshr_b32 s64, s{S_WAVE}, 2")
        A(f"s_and_b32 s65, s{S_WAVE}, 3")
        A("v_lshlrev_b32 v2, 4, v0")
        A("v_and_b32 v5, 31, v0", "v_lshrrev_b32 v6, 5, v0")
        A(f"s_lshl_b32 s66, s{S_RT}, 2", "s_add_u32 s66, s66, s65", f"s_mul_i32 s66, s66, {nk*1024}")
        A(f"s_mul_i32 s67, s64, {nst*1024}", "s_add_u32 s66, s66, s67", f"s_add_u32 s66, s66, {abase}")
        na = [0]
        def aload(k):
            A(f"buffer_load_dwordx4 {v(AF + 4*(k % 8), 4)}, v2, {WSr}, s66 offen offset:{(k % 4)*1024}")
            if k % 4 == 3: A("s_add_u32 s66, s66, 4096")
        for k in range(LA): aload(k)
        A(f"s_lshl_b32 s68, s{S_RT}, 7", "s_lshl_b32 s69, s65, 5", "s_add_u32 s68, s68, s69")
        A(f"s_lshl_b32 s69, s{S_G}, 6", "s_lshl_b32 s70, s64, 5", "s_add_u32 s69, s69, s70")
        nskip = 0
        if role == "B":
            A.srd(SRD_T0, 10, 2097152); A.srd(SRD_T1, 26, 1024)
            A("s_lshl_b32 s70, s68, 10", "s_lshl_b32 s71, s69, 1", "s_add_u32 s70, s70, s71")
            A("v_lshlrev_b32 v7, 12, v6", "v_lshlrev_b32 v8, 1, v5", "v_add_u32 v7, v7, v8")
            for r in range(16):
                if r % 4 == 0 and r > 0: A("s_add_u32 s70, s70, 8192")
                A(f"buffer_load_ushort v{XS+r}, v7, {R4(SRD_T0)}, s70 offen offset:{(r%4)*1024}")
            A(f"buffer_load_ushort v{XS+16}, v8, {R4(SRD_T1)}, s71 offen")
            nskip = 17
        lg = Lgkm(A)
        if role == "A":
            A("v_lshlrev_b32 v12, 2, v6", "v_bfe_u32 v13, v0, 2, 2", "v_add_u32 v12, v12, v13", "v_lshlrev_b32 v12, 7, v12")
            A("v_bfe_u32 v13, v0, 3, 1", "v_lshlrev_b32 v13, 6, v13", "v_add_u32 v12, v12, v13")
            A("v_bfe_u32 v13, v0, 4, 1", "v_lshlrev_b32 v13, 5, v13", "v_add_u32 v12, v12, v13")
            A("v_and_b32 v13, 3, v0", "v_lshlrev_b32 v13, 3, v13", "v_add_u32 v12, v12, v13")
            A("s_lshl_b32 s70, s64, 15", f"s_add_u32 s70, s70, {2*SLOT}", "v_add_u32 v3, s70, v12", "v_xor_b32 v4, 64, v3")
            def bread(k):
                b = BF + 8 * (k % NBUF)
                for cb in range(2):
                    for a_ in range(2):
                        lg.issue(f"ds_read_b64_tr_b16 {v(b + 4*cb + 2*a_, 2)}, v{3+cb} offset:{(16*k + 8*a_)*128}", ("b", k))
        else:
            A("v_lshlrev_b32 v12, 16, v6", "v_lshlrev_b32 v13, 10, v5", "v_add_u32 v12, v12, v13")
            A("v_and_b32 v13, 15, v5", "v_lshlrev_b32 v13, 4, v13", "v_add_u32 v12, v12, v13")
            A("s_lshl_b32 s70, s64, 9", "v_add_u32 v3, s70, v12")
            def bread(k):
                b = BF + 8 * (k % NBUF)
                t = 8 + (k % 4)
                A(f"v_xor_b32 v{t}, {(k & 15) * 16}, v3")
                for cb in range(2):
                    lg.issue(f"ds_read_b128 {v(b + 4*cb, 4)}, v{t} offset:{(k >> 4) * 256 + cb * 32768}", ("b", k))
        for k in range(NBUF - 1): bread(k)
        if role == "B":
            A(f"s_waitcnt vmcnt(0)")
            A(f"v_lshlrev_b32 v{XS+16}, 16, v{XS+16}")
            for r in range(16): A(f"v_lshlrev_b32 v{XS+r}, 16, v{XS+r}")
            for r in range(16): A(f"v_mul_f32 v{XS+r}, v{XS+r}, v{XS+16}")
            for r in range(0, 16, 2): A(f"v_cvt_pk_bf16_f32 v{XS+r}, v{XS+r}, v{XS+r+1}")
            for r in range(0, 16, 2):
                A(f"v_and_b32 v{XS+r+1}, 0xffff0000, v{XS+r}", f"v_lshlrev_b32 v{XS+r}, 16, v{XS+r}")
            A("s_cmp_eq_u32 s64, 0", "s_cselect_b64 s[74:75], -1, 0")
            for r in range(16):
                A(f"v_cndmask_b32 v{ACC+r}, 0, v{XS+r}, s[74:75]", f"v_cndmask_b32 v{ACC+16+r}, v{XS+r}, 0, s[74:75]")
        else:
            for i in range(32): A(f"v_mov_b32 v{ACC+i}, 0")
        A("s_nop 1")
        self.stamp(10)
        for k in range(nst):
            if k + LA < nst: aload(k + LA)
            if k + NBUF - 1 < nst: bread(k + NBUF - 1)
            rem = min(nst - 1 - k, LA)
            A(f"s_waitcnt vmcnt({rem})")
            lg.need(("b", k))
            b = BF + 8 * (k % NBUF)
            A(f"v_mfma_f32_32x32x16_bf16 {v(ACC,16)}, {v(AF+4*(k%8),4)}, {v(b,4)}, {v(ACC,16)}")
            A(f"v_mfma_f32_32x32x16_bf16 {v(ACC+16,16)}, {v(AF+4*(k%8),4)}, {v(b+4,4)}, {v(ACC+16,16)}")
        self.stamp(11)
        A(f"s_lshl_b32 s70, s{S_WAVE}, 12", f"s_add_u32 s70, s70, {MISC}", "v_add_u32 v9, s70, v2")
        A(f"s_xor_b32 s71, s{S_WAVE}, 4", "s_lshl_b32 s71, s71, 12", f"s_add_u32 s71, s71, {MISC}", "v_add_u32 v10, s71, v2")
        A("s_lshl_b32 s68, s68, 12", "s_lshl_b32 s69, s69, 2", "s_add_u32 s68, s68, s69")
        if role == "B": A("s_add_u32 s68, s68, 2048")
        A("v_lshlrev_b32 v11, 14, v6", "v_lshlrev_b32 v12, 2, v5", "v_add_u32 v11, v11, v12")
        A.srd(SRD_T0, 28, 8388608)
        A("s_nop 3")
        lk, lj = L(f"kh1_{role}"), L(f"join_{role}")
        A("s_cmp_eq_u32 s64, 1", f"s_cbranch_scc1 {lk}")
        for i in range(4): A(f"ds_write_b128 v9, {v(ACC+16+4*i,4)} offset:{i*1024}")
        A(f"s_branch {lj}")
        A.label(lk)
        for i in range(4): A(f"ds_write_b128 v9, {v(ACC+4*i,4)} offset:{i*1024}")
        A("s_nop 1")
        for i in range(16): A(f"v_mov_b32 v{ACC+i}, v{ACC+16+i}")
        A.label(lj)
        A("s_waitcnt lgkmcnt(0)")
        A("s_barrier")
        for i in range(4): A(f"ds_read_b128 {v(48+4*i,4)}, v10 offset:{i*1024}")
        for i in range(4):
            A(f"s_waitcnt lgkmcnt({3-i})")
            for r in range(4*i, 4*i+4, 2):
                A(f"v_pk_add_f32 v[{ACC+r}:{ACC+r+1}], v[{ACC+r}:{ACC+r+1}], v[{48+r}:{49+r}]")
            for r in range(4*i, 4*i+4):
                row = (r & 3) + 8 * (r >> 2)
                A(f"s_add_u32 s69, s68, {row*4096}")
                A(f"buffer_store_dword v{ACC+r}, v11, {R4(SRD_T0)}, s69 offen {OUTF}")
        self.stamp(12)
        self.write_stamps()
        A("s_endpgm")

def build(out, stamps=False):
    A = Asm()
    K = NAME + "_kernel"
    A.raw(HEADER_COMMENT + f"; @launch grid=(256,1,1) block=(512,1,1) lds={LDS_BYTES}\n" + '.amdgcn_target "amdgcn-amd-amdhsa--gfx950"\n')
    G(A, K, stamps).gen()
    A.kernel_desc(K, 256, accum=256)
    open(out, "w").write(A.text())

if __name__ == "__main__":
    build(sys.argv[1], stamps=(len(sys.argv) > 2 and sys.argv[2] == "stamps"))
```

```python
NAME = "concat_heads__linear_attn_block__ssm_conv_s5__prompt"

def v(i, n=1):
    return f"v{i}" if n == 1 else f"v[{i}:{i+n-1}]"
def a(i, n=1):
    return f"a{i}" if n == 1 else f"a[{i}:{i+n-1}]"
def s(i, n=1):
    return f"s{i}" if n == 1 else f"s[{i}:{i+n-1}]"

HEADER_COMMENT = """; Kernarg layout for this problem (120 bytes, ptrs only, base s[0:1]):
"""
KA = dict(A_x=0, wqkv=8, wo=16, B_x=24, Lre=32, Lim=40, Bre=48, Bim=56, Cre=64, Cim=72, logdt=80, D=88, out=96, dbg=104, ws=112)
SIZES = dict(A_x=2097152, wqkv=1572864, wo=524288, B_x=2097152, Lre=1024, Lim=1024, Bre=524288, Bim=524288,
             Cre=524288, Cim=524288, logdt=1024, D=1024, out=8388608, dbg=256, ws=268435456)

class Asm:
    def __init__(self):
        self.lines = []
        self.nlabel = 0
    def __call__(self, s_, *more):
        self.lines.append("    " + s_)
        for m in more:
            self.lines.append("    " + m)
    def c(self, txt):
        self.lines.append("    ; " + txt)
    def label(self, name):
        self.lines.append(name + ":")
    def newlabel(self, base="L"):
        self.nlabel += 1
        return f"{base}_{self.nlabel}"
    def raw(self, txt):
        self.lines.append(txt)
    def text(self):
        return "\n".join(self.lines) + "\n"
    def srd(self, sd, sbase, nbytes):
        self(f"s_mov_b32 {s(sd)}, {s(sbase)}")
        self(f"s_and_b32 {s(sd+1)}, {s(sbase+1)}, 0xffff")
        self(f"s_mov_b32 {s(sd+2)}, {nbytes:#x}")
        self(f"s_mov_b32 {s(sd+3)}, 0x20000")
    def kernel_begin(self, name):
        self.raw(".text")
        self.raw(f".globl {name}")
        self.raw(".p2align 8")
        self.raw(f".type {name},@function")
        self.raw(f"{name}:")
    def kernel_desc(self, name, vgpr, sgpr=102, accum=None, wg_y=False):
        if accum is None:
            accum = (vgpr + 3) // 4 * 4
        self.raw('.section .rodata,"a"')
        self.raw(".p2align 6")
        self.raw(f".amdhsa_kernel {name}")
        self.raw(f"  .amdhsa_next_free_vgpr {vgpr}")
        self.raw(f"  .amdhsa_next_free_sgpr {sgpr}")
        self.raw(f"  .amdhsa_accum_offset {accum}")
        self.raw("  .amdhsa_group_segment_fixed_size 0")
        self.raw("  .amdhsa_kernarg_size 120")
        self.raw("  .amdhsa_user_sgpr_count 2")
        self.raw("  .amdhsa_user_sgpr_kernarg_segment_ptr 1")
        self.raw("  .amdhsa_system_sgpr_workgroup_id_x 1")
        if wg_y:
            self.raw("  .amdhsa_system_sgpr_workgroup_id_y 1")
        self.raw("  .amdhsa_float_denorm_mode_32 3")
        self.raw(".end_amdhsa_kernel")

def file_header(launches):
    t = HEADER_COMMENT
    for (k, g, b, l) in launches:
        t += f"; @launch kernel={k} grid=({g[0]},{g[1]},{g[2]}) block=({b[0]},{b[1]},{b[2]}) lds={l}\n"
    t += '.amdgcn_target "amdgcn-amd-amdhsa--gfx950"\n'
    return t

class Lgkm:
    def __init__(self, A):
        self.A = A
        self.q = []
    def issue(self, instr, tag):
        self.A(instr)
        self.q.append(tag)
    def need(self, *tags):
        idx = -1
        for t in tags:
            for i, x in enumerate(self.q):
                if x == t:
                    idx = max(idx, i)
        if idx < 0:
            return
        n = len(self.q) - 1 - idx
        self.A(f"s_waitcnt lgkmcnt({min(n, 15)})")
        self.q = self.q[idx+1:] if n <= 15 else self.q[len(self.q)-15:]
    def drain(self):
        self.A("s_waitcnt lgkmcnt(0)")
        self.q = []

class Vm:
    def __init__(self, A):
        self.A = A
        self.q = []
    def issue(self, instr, tag):
        self.A(instr)
        self.q.append(tag)
    def need(self, *tags):
        idx = -1
        for t in tags:
            for i, x in enumerate(self.q):
                if x == t: idx = max(idx, i)
        if idx < 0: return
        n = len(self.q) - 1 - idx
        self.A(f"s_waitcnt vmcnt({min(n, 63)})")
        self.q = self.q[idx+1:] if n <= 63 else self.q[len(self.q)-63:]
    def drain(self):
        self.A("s_waitcnt vmcnt(0)")
        self.q = []
```

```python
import sys
sys.path.insert(0, "gen"); sys.path.insert(0, "scratch")
from asmlib import *
WS = dict(O=0x000000, H=0x200000, KVP=0x600000, ES=0x700000, FLG=0x740000, ST=0x900000)
LDS_BYTES = 163840
SLOT = 32768
NSLOT = 5
MISC = 4 * SLOT
PART_STRIDE = 1152
PARTQ = 0
FIN = 20480
WOIMG = SLOT
NONCE = MISC + 24576 + 64
LOG2E = 0x3FB8AA3B
EPS = 0x358637BD
INV2PI = 0x3E22F983
POLL_LIMIT = 1 << 18
EXP = set(a for a in sys.argv[3:])
OUTF = 'nt'
FASTF = 'nt' if 'fnt' in EXP else 'sc0' if 'fsc0' in EXP else 'sc0 nt' if 'fsc0nt' in EXP else ''

S_W, S_WAVE, S_XCD, S_SLOT, S_RT, S_G, S_ROT = 3, 34, 35, 36, 37, 38, 39
SRD_X, SRD_W, SRD_WS, SRD_T0, SRD_T1, SRD_T2, SRD_T3 = 40, 44, 48, 52, 56, 60, 96
NON = 78
P2ACC, XS, XD = 128, 112, 239
def R4(n): return f"s[{n}:{n+3}]"
WSr = R4(SRD_WS)

class G:
    def __init__(self, A, K, stamps):
        self.A, self.K, self.stamps = A, K, stamps
    def L(self, n): return f"{self.K}_{n}"
    def stamp(self, i):
        if self.stamps:
            self.A("s_memtime s[100:101]", "s_waitcnt lgkmcnt(0)", f"s_mov_b32 s{80+i}, s100")
    def write_stamps(self):
        A = self.A
        if not self.stamps: return
        A("s_waitcnt vmcnt(0) lgkmcnt(0)")
        self.stamp(13)
        A("s_memrealtime s[100:101]", "s_waitcnt lgkmcnt(0)", "s_mov_b32 s95, s100")
        for j in range(16): A(f"v_mov_b32 v{16+j}, s{80+j}")
        A("s_lshl_b32 s64, s2, 3", f"s_add_u32 s64, s64, s{S_WAVE}", "s_lshl_b32 s64, s64, 6", f"s_add_u32 s64, s64, {WS['ST']}", "v_mov_b32 v2, s64")
        A("v_cmp_eq_u32 vcc, 0, v0", "s_and_saveexec_b64 s[66:67], vcc")
        for j in range(4):
            A(f"buffer_store_dwordx4 v[{16+4*j}:{19+4*j}], v2, {WSr}, 0 offen offset:{16*j}")

    def gen(self):
        A, L = self.A, self.L
        A.kernel_begin(self.K)
        if self.stamps:
            for j in range(16): A(f"s_mov_b32 s{80+j}, 0")
            A("s_memrealtime s[100:101]", "s_waitcnt lgkmcnt(0)", "s_mov_b32 s94, s100")
            self.stamp(0)
        A("s_cmp_ge_u32 s2, 256", f"s_cbranch_scc1 {L('end')}")
        A("s_load_dwordx4 s[4:7], s[0:1], 0", "s_load_dwordx4 s[8:11], s[0:1], 16", "s_load_dwordx4 s[16:19], s[0:1], 48")
        A("s_load_dwordx4 s[12:15], s[0:1], 32", "s_load_dwordx4 s[20:23], s[0:1], 64", "s_load_dwordx4 s[24:27], s[0:1], 80")
        A("s_load_dwordx4 s[28:31], s[0:1], 96", "s_load_dwordx2 s[32:33], s[0:1], 112")
        A("v_lshrrev_b32 v1, 6, v0", "v_and_b32 v0, 63, v0")
        A(f"v_readfirstlane_b32 s{S_WAVE}, v1")
        A(f"s_and_b32 s{S_XCD}, s2, 7", f"s_lshr_b32 s{S_SLOT}, s2, 3")
        A(f"s_and_b32 s64, s{S_XCD}, 3", f"s_lshl_b32 s{S_RT}, s64, 2", f"s_and_b32 s65, s{S_SLOT}, 3", f"s_add_u32 s{S_RT}, s{S_RT}, s65")
        A(f"s_lshr_b32 s{S_G}, s{S_SLOT}, 2")
        A("s_lshl_b32 s65, s65, 1", f"s_add_u32 s{S_ROT}, s{S_G}, s65", "s_and_b32 s64, s64, 1", f"s_add_u32 s{S_ROT}, s{S_ROT}, s64", f"s_and_b32 s{S_ROT}, s{S_ROT}, 7")
        A(f"s_and_b32 s{S_W}, s{S_WAVE}, 3")
        A(f"s_cmp_ge_u32 s{S_XCD}, 4", f"s_cbranch_scc1 {L('bu')}")
        A(f"s_cmp_ge_u32 s{S_WAVE}, 4", f"s_cbranch_scc1 {L('qkv_load')}")
        self.qkv_compute()
        A(f"s_branch {L('p2A')}")
        A.label(L("qkv_load"))
        self.loader("qkv")
        A.label(L("p2A"))
        self.p2("A")
        A.label(L("bu"))
        A(f"s_cmp_ge_u32 s{S_WAVE}, 4", f"s_cbranch_scc1 {L('bu_load')}")
        self.bu_compute()
        A(f"s_branch {L('p2B')}")
        A.label(L("bu_load"))
        self.loader("bu")
        A.label(L("p2B"))
        self.p2("B")
        A.label(L("end"))
        A("s_endpgm")

    def poll_lines(self, tag, nl, sbase, stride_log2, R=8):
        A, L = self.A, self.L
        lp, done = L(f"poll_{tag}"), L(f"polld_{tag}")
        A(f"s_mov_b32 s72, {POLL_LIMIT}")
        A(f"v_lshlrev_b32 v{R+2}, {stride_log2}, v0")
        A("s_mov_b64 s[74:75], exec", f"s_mov_b64 exec, {(1 << nl) - 1:#x}")
        A.label(lp)
        A(f"buffer_load_dwordx2 v[{R}:{R+1}], v{R+2}, {WSr}, s{sbase} offen sc1")
        A("s_waitcnt vmcnt(0)")
        A(f"v_xor_b32 v{R}, s{NON}, v{R}", f"v_xor_b32 v{R+1}, s{NON+1}, v{R+1}", f"v_or_b32 v{R}, v{R}, v{R+1}")
        A(f"v_cmp_ne_u32 vcc, 0, v{R}")
        A("s_sub_u32 s72, s72, 1")
        A(f"s_cbranch_scc1 {done}")
        A(f"s_cbranch_vccz {done}")
        A(f"s_branch {lp}")
        A.label(done)
        A("s_mov_b64 exec, s[74:75]")

    def store_flag(self, sbase, tag, R=8):
        A, L = self.A, self.L
        A(f"v_mov_b32 v{R}, s{NON}", f"v_mov_b32 v{R+1}, s{NON+1}", f"v_mov_b32 v{R+2}, 0")
        A("s_mov_b64 s[74:75], exec", "s_mov_b64 exec, 1")
        lf, lj = L(f"sf_fast_{tag}"), L(f"sf_j_{tag}")
        A("s_cmp_eq_u32 s73, 1", f"s_cbranch_scc1 {lf}")
        A(f"buffer_store_dwordx2 v[{R}:{R+1}], v{R+2}, {WSr}, s{sbase} offen sc1")
        A(f"s_branch {lj}")
        A.label(lf)
        A(f"buffer_store_dwordx2 v[{R}:{R+1}], v{R+2}, {WSr}, s{sbase} offen")
        A.label(lj)
        A("s_mov_b64 exec, s[74:75]")

    def skip_issue(self, vm=None):
        A = self.A
        A(f"s_lshr_b32 s64, s{S_WAVE}, 2")
        A(f"s_lshl_b32 s68, s{S_RT}, 7", f"s_lshl_b32 s69, s{S_W}, 5", "s_add_u32 s68, s68, s69")
        A(f"s_lshl_b32 s69, s{S_G}, 6", "s_lshl_b32 s70, s64, 5", "s_add_u32 s69, s69, s70")
        A.srd(SRD_T0, 10, 2097152); A.srd(SRD_T1, 26, 1024)
        A("s_lshl_b32 s70, s68, 10", "s_lshl_b32 s71, s69, 1", "s_add_u32 s70, s70, s71")
        A("v_and_b32 v8, 31, v0", "v_lshrrev_b32 v7, 5, v0", "v_lshlrev_b32 v7, 12, v7", "v_lshlrev_b32 v8, 1, v8", "v_add_u32 v7, v7, v8")
        for r in range(16):
            if r % 4 == 0 and r > 0: A("s_add_u32 s70, s70, 8192")
            ins = f"buffer_load_ushort v{XS+r}, v7, {R4(SRD_T0)}, s70 offen offset:{(r%4)*1024}"
            vm.issue(ins, "skip") if vm else A(ins)
        ins = f"buffer_load_ushort v{XD}, v8, {R4(SRD_T1)}, s71 offen"
        vm.issue(ins, "skip") if vm else A(ins)

    def skip_finish(self):
        A = self.A
        A(f"v_lshlrev_b32 v{XD}, 16, v{XD}")
        for r in range(16): A(f"v_lshlrev_b32 v{XS+r}, 16, v{XS+r}")
        for r in range(16): A(f"v_mul_f32 v{XS+r}, v{XS+r}, v{XD}")
        for r in range(0, 16, 2): A(f"v_cvt_pk_bf16_f32 v{XS+r}, v{XS+r}, v{XS+r+1}")
        for r in range(0, 16, 2):
            A(f"v_and_b32 v{XS+r+1}, 0xffff0000, v{XS+r}", f"v_lshlrev_b32 v{XS+r}, 16, v{XS+r}")

    def mode_announce(self, role, R=240):
        A, L = self.A, self.L
        lx = L(f"ann_{role}")
        A(f"s_cmp_lg_u32 s{S_W}, 0", f"s_cbranch_scc1 {lx}")
        A("s_getreg_b32 s64, hwreg(HW_REG_XCC_ID, 0, 3)", "s_lshl_b32 s64, 1, s64", f"s_lshl_b32 s65, 0x100, s{S_G}", "s_or_b32 s64, s64, s65")
        A(f"s_add_u32 s65, s{S_RT}, {0 if role == 'A' else 16}", "s_lshl_b32 s65, s65, 2")
        A(f"v_mov_b32 v{R}, s64", f"v_mov_b32 v{R+1}, s65")
        A.srd(SRD_T3, 30, 256)
        A("s_mov_b64 s[66:67], exec", "s_mov_b64 exec, 1")
        A(f"buffer_atomic_or v{R}, v{R+1}, {R4(SRD_T3)}, 0 offen sc1")
        A("s_mov_b64 exec, s[66:67]")
        A.label(lx)

    def mode_load(self, role, R):
        A = self.A
        A(f"s_add_u32 s65, s{S_RT}, {0 if role == 'A' else 16}", "s_lshl_b32 s65, s65, 2", f"v_mov_b32 v{R+1}, s65")
        A.srd(SRD_T3, 30, 256)
        A(f"buffer_load_dword v{R}, v{R+1}, {R4(SRD_T3)}, 0 offen sc1")

    def mode_resolve(self, role, R, tag):
        A, L = self.A, self.L
        lp, ok = L(f"mode_lp_{tag}"), L(f"mode_ok_{tag}")
        A(f"s_mov_b32 s72, {POLL_LIMIT}")
        A.label(lp)
        A(f"v_readfirstlane_b32 s73, v{R}", "s_nop 3")
        A("s_and_b32 s71, s73, 0xff00", "s_cmp_eq_u32 s71, 0xff00", f"s_cbranch_scc1 {ok}")
        A("s_sub_u32 s72, s72, 1", f"s_cbranch_scc1 {ok}")
        A(f"buffer_load_dword v{R}, v{R+1}, {R4(SRD_T3)}, 0 offen sc1", "s_waitcnt vmcnt(0)", f"s_branch {lp}")
        A.label(ok)
        A("s_and_b32 s70, s73, 0xff", "s_bcnt1_i32_b32 s70, s70", "s_cmp_eq_u32 s70, 1", "s_cselect_b32 s73, 1, 0")
        A("s_cmp_eq_u32 s71, 0xff00", "s_cselect_b32 s73, s73, 0")
        if 'slow' in EXP: A("s_mov_b32 s73, 0")

    def weight_touch(self, R):
        A = self.A
        if 'nowt' in EXP: return
        A("s_lshl_b32 s64, s2, 2", f"s_add_u32 s64, s64, s{S_W}", "s_mul_i32 s64, s64, 12")
        A(f"v_add_u32 v{R}, s64, v0", f"v_lshlrev_b32 v{R}, 7, v{R}")
        A.srd(SRD_T0, 8, 524288); A.srd(SRD_T1, 20, 524288); A.srd(SRD_T2, 22, 524288)
        A("s_mov_b64 s[74:75], exec", "s_mov_b64 exec, 0xfff")
        A(f"buffer_load_dword v{R+1}, v{R}, {R4(SRD_T0)}, 0 offen sc1")
        A(f"v_subrev_u32 v{R+2}, 0x80000, v{R}")
        A(f"buffer_load_dword v{R+1}, v{R+2}, {R4(SRD_T1)}, 0 offen sc1")
        A(f"v_subrev_u32 v{R+2}, 0x100000, v{R}")
        A(f"buffer_load_dword v{R+1}, v{R+2}, {R4(SRD_T2)}, 0 offen sc1")
        A("s_mov_b64 exec, s[74:75]")

    def loader(self, role):
        A, L = self.A, self.L
        last = 9 if role == "qkv" else 7
        vm = Vm(A)
        A("v_lshrrev_b32 v5, 3, v0", "v_and_b32 v6, 7, v0", "v_lshrrev_b32 v7, 4, v0")
        A("v_xor_b32 v8, v6, v7", "v_lshlrev_b32 v8, 4, v8")
        A("v_lshlrev_b32 v2, 10, v5", "v_add_u32 v2, v2, v8", "v_xor_b32 v3, 64, v2")
        if role == "qkv":
            A("v_and_b32 v9, 1, v7", "v_lshlrev_b32 v9, 2, v9", "v_xor_b32 v9, v6, v9", "v_lshlrev_b32 v9, 4, v9")
            A("v_mul_u32_u24 v4, 3072, v5", "v_add_u32 v4, v4, v9")
            A("v_lshlrev_b32 v12, 10, v5", "v_add_u32 v12, v12, v9")
            A(f"s_lshl_b32 s64, s{S_RT}, 7", f"s_lshl_b32 s65, s{S_W}, 5", "s_add_u32 s64, s64, s65", "s_lshl_b32 s68, s64, 10")
            A(f"s_mul_i32 s69, s{S_W}, {16*3072}", f"s_lshl_b32 s65, s{S_G}, 7", "s_add_u32 s69, s69, s65")
            A(f"s_lshl_b32 s70, s{S_W}, 12")
            A("s_waitcnt lgkmcnt(0)")
            A.srd(SRD_X, 4, 2097152); A.srd(SRD_W, 6, 1572864)
        else:
            A("v_lshrrev_b32 v9, 5, v0", "v_lshlrev_b32 v9, 5, v9", "v_and_b32 v10, 1, v5", "v_lshlrev_b32 v10, 4, v10", "v_add_u32 v9, v9, v10")
            A("v_and_b32 v10, 1, v7", "v_add_u32 v9, v9, v10", "v_lshlrev_b32 v4, 10, v9", "v_add_u32 v4, v4, v8")
            A("v_xor_b32 v11, 64, v4")
            A(f"s_lshl_b32 s64, s{S_RT}, 7", f"s_lshl_b32 s65, s{S_W}, 2", "s_add_u32 s64, s64, s65", "s_lshl_b32 s68, s64, 10")
            A(f"s_lshl_b32 s64, s{S_G}, 6", f"s_and_b32 s65, s{S_W}, 1", "s_lshl_b32 s65, s65, 5", "s_add_u32 s64, s64, s65", "s_lshl_b32 s69, s64, 10")
            A(f"s_lshl_b32 s70, s{S_W}, 12")
            A("s_waitcnt lgkmcnt(0)")
            A.srd(SRD_X, 10, 2097152)
            A(f"s_cmp_lt_u32 s{S_W}, 2", "s_cselect_b32 s64, s16, s18", "s_cselect_b32 s65, s17, s19")
            A.srd(SRD_W, 64, 524288)
        X, W = R4(SRD_X), R4(SRD_W)
        def issue(st):
            slot = (st % NSLOT) * SLOT
            tag = ("st", st)
            if st >= 8:
                a = st - 8
                A(f"s_add_u32 s64, s{S_ROT}, s{S_W}", f"s_add_u32 s64, s64, {4*a}", "s_and_b32 s64, s64, 7")
                A(f"s_mul_i32 s64, s64, {64*3072}", f"s_lshl_b32 s65, s{S_G}, 7", "s_add_u32 s64, s64, s65")
                A("s_lshl_b32 s66, s70, 1")
                for i in range(8):
                    A(f"s_add_u32 m0, s66, {slot + i*1024}", f"s_add_u32 s67, s64, {i*8*3072}")
                    vm.issue(f"buffer_load_dwordx4 v4, {W}, s67 offen lds", tag)
                return
            A(f"s_add_u32 s64, s{S_ROT}, {st}", "s_and_b32 s64, s64, 7")
            A("s_lshl_b32 s65, s64, 7", "s_add_u32 s65, s65, s68")
            if role == "qkv":
                A(f"s_mul_i32 s66, s64, {64*3072}", "s_add_u32 s66, s66, s69")
                for ii in range(4):
                    A(f"s_add_u32 m0, s70, {slot + ii*1024}", f"s_add_u32 s67, s65, {ii*8192}")
                    vm.issue(f"buffer_load_dwordx4 v{2 + (ii&1)}, {X}, s67 offen lds", tag)
                A("s_lshr_b32 s71, s70, 1")
                for part in range(2):
                    for ii in range(2):
                        A(f"s_add_u32 m0, s71, {slot + 16384 + part*8192 + ii*1024}", f"s_add_u32 s67, s66, {ii*8*3072 + (1+part)*1024}")
                        vm.issue(f"buffer_load_dwordx4 v4, {W}, s67 offen lds", tag)
            else:
                A("s_lshl_b32 s66, s64, 7", "s_add_u32 s66, s66, s69")
                for ii in range(4):
                    A(f"s_add_u32 m0, s70, {slot + ii*1024}", f"s_add_u32 s67, s65, {(64*(ii&1) + 2*(ii>>1))*1024}")
                    vm.issue(f"buffer_load_dwordx4 v{4 if (ii&1)==0 else 11}, {X}, s67 offen lds", tag)
                for ii in range(4):
                    A(f"s_add_u32 m0, s70, {slot + 16384 + ii*1024}", f"s_add_u32 s67, s66, {ii*8192}")
                    vm.issue(f"buffer_load_dwordx4 v{2 + (ii&1)}, {W}, s67 offen lds", tag)
        def cregion(R):
            part = R >> 1
            A.srd(SRD_T0, 20 + 2 * part, 524288)
            A(f"s_lshl_b32 s64, s{S_G}, 6", f"s_lshl_b32 s65, s{S_W}, 3", "s_add_u32 s64, s64, s65", f"s_add_u32 s64, s64, {32*(R&1)}", "s_lshl_b32 s64, s64, 10")
            A(f"s_lshl_b32 s65, s{S_W}, 13")
            A(f"s_and_b32 s66, s{S_W}, 1", "s_lshl_b32 s66, s66, 7", "v_lshlrev_b32 v13, 4, v0", "v_xor_b32 v13, s66, v13")
            for i in range(8):
                A(f"v_xor_b32 v{14+(i&1)}, {i*16}, v13")
                A(f"s_add_u32 m0, s65, {R*SLOT + i*1024}", f"s_add_u32 s67, s64, {i*1024}")
                vm.issue(f"buffer_load_dwordx4 v{14+(i&1)}, {R4(SRD_T0)}, s67 offen lds", ("c", R))
        self.cregion = cregion
        self.vm = vm
        issue(0); issue(1)
        A.srd(SRD_WS, 32, 268435456)
        if role == "qkv":
            ln = L("nononce")
            A("s_cmp_lg_u32 s2, 0", f"s_cbranch_scc1 {ln}", f"s_cmp_lg_u32 s{S_WAVE}, 4", f"s_cbranch_scc1 {ln}")
            A("s_memrealtime s[76:77]", "s_waitcnt lgkmcnt(0)", "s_or_b32 s76, s76, 1")
            A("v_mov_b32 v14, s76", "v_mov_b32 v15, s77", "v_mov_b32 v13, 0")
            A.srd(SRD_T0, 30, 256)
            A("s_mov_b64 s[74:75], exec", "s_mov_b64 exec, 1")
            A(f"buffer_store_dwordx2 v[14:15], v13, {R4(SRD_T0)}, 0 offen offset:128 sc1")
            A("s_mov_b64 exec, s[74:75]")
            A("s_waitcnt vmcnt(0)")
            A.label(ln)
        self.stamp(1)
        sched = {0: [2], 1: [3], 2: [4, 5], 3: [6], 4: [7], 5: [8], 6: [9], 7: []}
        for st in range(8):
            vm.need(("st", st))
            if st == 7:
                self.get_nonce(role)
            A("s_barrier")
            if st == 0: self.stamp(2)
            for x in sched[st]:
                if x <= last: issue(x)
            if role == "bu" and st == 5: cregion(3)
            if role == "bu" and st == 7: cregion(0)
            if st == (6 if role == "qkv" else 4) and 'notouch' not in EXP:
                A("v_lshlrev_b32 v13, 7, v0")
                if role == "qkv":
                    A(f"s_lshl_b32 s64, s{S_RT}, 2", f"s_add_u32 s64, s64, s{S_W}", "s_lshl_b32 s64, s64, 5", f"s_lshl_b32 s65, s{S_G}, 2", "s_add_u32 s64, s64, s65", "s_lshl_b32 s64, s64, 10")
                    A("s_mov_b64 s[74:75], exec", "s_mov_b32 exec_hi, 0")
                else:
                    A(f"s_lshl_b32 s64, s{S_RT}, 2", f"s_add_u32 s64, s64, s{S_W}", "s_lshl_b32 s64, s64, 6", f"s_lshl_b32 s65, s{S_G}, 3", "s_add_u32 s64, s64, s65", "s_lshl_b32 s64, s64, 10", f"s_add_u32 s64, s64, {WS['H']}")
                    A("s_mov_b64 s[74:75], exec")
                vm.issue(f"buffer_load_dword v250, v13, {WSr}, s64 offen sc1", "touch")
                A(f"s_add_u32 s64, s{S_RT}, {0 if role == 'qkv' else 16}", "s_lshl_b32 s64, s64, 10", f"s_lshl_b32 s65, s{S_G}, 7", "s_add_u32 s64, s64, s65", f"s_add_u32 s64, s64, {WS['FLG']}")
                A("s_mov_b64 exec, 1")
                vm.issue(f"buffer_load_dword v250, v13, {WSr}, s64 offen sc1", "touch")
                A("s_mov_b64 exec, s[74:75]")
            if st == 4:
                A(f"s_load_dwordx2 s[{NON}:{NON+1}], s[30:31], 128")
        if role == "qkv": self.qkv_loader_tail()
        else: self.bu_loader_tail()

    def get_nonce(self, role):
        A, L = self.A, self.L
        ok, lp = L(f"nok_{role}"), L(f"nlp_{role}")
        A("s_waitcnt lgkmcnt(0)")
        A(f"s_cmp_lg_u32 s{NON}, 0", f"s_cbranch_scc1 {ok}")
        A.srd(SRD_T0, 30, 256)
        A(f"s_mov_b32 s72, {POLL_LIMIT}", "v_mov_b32 v13, 0")
        A.label(lp)
        A(f"buffer_load_dwordx2 v[14:15], v13, {R4(SRD_T0)}, 0 offen offset:128 sc1", "s_waitcnt vmcnt(0)")
        A(f"v_readfirstlane_b32 s{NON}, v14", f"v_readfirstlane_b32 s{NON+1}, v15", "s_nop 3")
        A("s_sub_u32 s72, s72, 1", f"s_cbranch_scc1 {ok}")
        A(f"s_cmp_lg_u32 s{NON}, 0", f"s_cbranch_scc1 {ok}", "s_sleep 2", f"s_branch {lp}")
        A.label(ok)
        if role == "bu":
            A(f"v_mov_b32 v14, s{NON}", f"v_mov_b32 v15, s{NON+1}", f"v_mov_b32 v13, {NONCE}")
            A("ds_write_b64 v13, v[14:15]", "s_waitcnt lgkmcnt(0)")

    def qkv_loader_tail(self):
        A, L, vm = self.A, self.L, self.vm
        vm.need(("st", 9))
        self.stamp(3)
        A("s_barrier")
        A("s_setprio 3")
        self.stamp(4)
        A("v_mul_u32_u24 v7, 24, v0", f"s_mul_i32 s64, s{S_W}, {PART_STRIDE}", "v_add_u32 v7, s64, v7")
        for w in range(4):
            for j in range(3):
                A(f"ds_read_b64 v[{16+6*w+2*j}:{17+6*w+2*j}], v7 offset:{PARTQ + w*4*PART_STRIDE + 8*j}")
        A("v_lshlrev_b32 v3, 4, v0")
        A(f"s_lshl_b32 s64, s{S_G}, 4", f"s_add_u32 s64, s64, s{S_RT}", "s_lshl_b32 s64, s64, 2", f"s_add_u32 s64, s64, s{S_W}", "s_lshl_b32 s64, s64, 10", f"s_add_u32 s64, s64, {WS['KVP']}")
        A(f"v_mov_b32 v51, s{NON}")
        A("s_waitcnt lgkmcnt(6)")
        for j in range(0, 6, 2):
            A(f"v_pk_add_f32 v[{16+j}:{17+j}], v[{16+j}:{17+j}], v[{22+j}:{23+j}]")
        A("s_waitcnt lgkmcnt(0)")
        for j in range(0, 6, 2):
            A(f"v_pk_add_f32 v[{28+j}:{29+j}], v[{28+j}:{29+j}], v[{34+j}:{35+j}]")
        for j in range(0, 6, 2):
            A(f"v_pk_add_f32 v[{16+j}:{17+j}], v[{16+j}:{17+j}], v[{28+j}:{29+j}]")
        for j in range(3):
            A(f"v_cvt_pk_bf16_f32 v{48+j}, v{16+2*j}, v{17+2*j}")
        A("s_mov_b64 s[66:67], exec", "s_mov_b32 exec_lo, -1", "s_mov_b32 exec_hi, 0x3fff")
        A(f"buffer_store_dwordx4 v[48:51], v3, {WSr}, s64 offen sc1")
        self.stamp(5)
        A(f"s_lshl_b32 s68, s{S_G}, 6", f"s_add_u32 s68, s68, s{S_W}", "s_lshl_b32 s68, s68, 10", f"s_add_u32 s68, s68, {WS['KVP']}")
        lp, ok = L("kv_poll"), L("kv_ok")
        A(f"s_mov_b32 s72, {POLL_LIMIT}")
        first = True
        A.label(lp)
        A("s_mov_b32 s64, s68")
        for r in range(16):
            A(f"buffer_load_dwordx4 v[{64+4*r}:{67+4*r}], v3, {WSr}, s64 offen sc1")
            if r < 15: A("s_add_u32 s64, s64, 4096")
        A("s_waitcnt vmcnt(0)")
        A(f"v_xor_b32 v52, s{NON}, v67")
        for r in range(1, 16):
            A(f"v_xor_b32 v53, s{NON}, v{67+4*r}", "v_or_b32 v52, v52, v53")
        A("v_cmp_ne_u32 vcc, 0, v52")
        A("s_sub_u32 s72, s72, 1", f"s_cbranch_scc1 {ok}")
        A(f"s_cbranch_vccnz {lp}")
        A.label(ok)
        self.stamp(6)
        A("s_mov_b64 exec, s[66:67]")
        A.srd(SRD_T0, 8, 524288)
        A(f"s_lshl_b32 s64, s{S_W}, 17", f"s_lshl_b32 s65, s{S_G}, 7", "s_add_u32 s64, s64, s65")
        A(f"s_lshl_b32 s65, s{S_W}, 14")
        for j in range(6): A(f"v_mov_b32 v{16+j}, 0")
        A("v_mov_b32 v24, 0x00003f80", "v_mov_b32 v25, 0x3f800000")
        for r in range(16):
            for j in range(3):
                A(f"v_dot2c_f32_bf16 v{16+2*j}, v{64+4*r+j}, v24")
                A(f"v_dot2c_f32_bf16 v{17+2*j}, v{64+4*r+j}, v25")
        A("s_nop 2")
        for j in range(3):
            A(f"v_cvt_pk_bf16_f32 v{48+j}, v{16+2*j}, v{17+2*j}")
        A("v_mul_u32_u24 v4, 12, v0", f"s_lshl_b32 s66, s{S_W}, 10", f"s_add_u32 s66, s66, {FIN}", "v_add_u32 v4, s66, v4")
        A("s_mov_b64 s[66:67], exec", "s_mov_b32 exec_lo, -1", "s_mov_b32 exec_hi, 0x3fff")
        for j in range(3): A(f"ds_write_b32 v4, v{48+j} offset:{4*j}")
        A("s_mov_b64 exec, s[66:67]")
        A("s_waitcnt lgkmcnt(0)")
        self.stamp(7)
        A("s_barrier")
        A("s_setprio 0")
        for i in range(16):
            A(f"s_add_u32 m0, s65, {WOIMG + i*1024}", f"s_add_u32 s67, s64, {i*8192}")
            A(f"buffer_load_dwordx4 v12, {R4(SRD_T0)}, s67 offen lds")
        self.mode_load("A", 20)
        for i in range(32): A(f"v_mov_b32 v{P2ACC+i}, 0")
        A("s_waitcnt vmcnt(0)")
        self.mode_resolve("A", 20, "ql")
        A("s_barrier")
        self.stamp(8)
        self.p1p2_sync("A")

    def bu_loader_tail(self):
        A, L, vm = self.A, self.L, self.vm
        self.stamp(3)
        A("s_barrier")
        self.cregion(1); self.cregion(2)
        self.skip_issue(vm)
        self.mode_load("B", 20)
        vm.drain()
        self.mode_resolve("B", 20, "bl")
        self.skip_finish()
        for r in range(16):
            A(f"v_mov_b32 v{P2ACC+r}, 0", f"v_mov_b32 v{P2ACC+16+r}, v{XS+r}")
        self.stamp(4)
        A("s_barrier")
        self.stamp(8)
        self.p1p2_sync("B")

    def p1p2_sync(self, role):
        A, L = self.A, self.L
        rb = 0 if role == "A" else 1
        A(f"s_add_u32 s64, s{S_RT}, {16*rb}", "s_lshl_b32 s64, s64, 10", f"s_add_u32 s64, s64, {WS['FLG']}")
        lx = L(f"sync_{role}")
        A(f"s_cmp_lg_u32 s{S_W}, 0", f"s_cbranch_scc1 {lx}")
        A(f"s_lshl_b32 s65, s{S_G}, 7", "s_add_u32 s65, s65, s64")
        self.store_flag(65, role)
        self.poll_lines(f"p2{role}", 8, 64, 7)
        A.label(lx)
        A("s_barrier")

    def phi_pack(self, acc, n, dst, T):
        A = self.A
        for base in range(0, n, 8):
            for i in range(0, 8, 2):
                A(f"v_pk_mul_f32 v[{T+i}:{T+i+1}], v[{acc+base+i}:{acc+base+i+1}], s[76:77]")
            for i in range(8):
                A(f"v_exp_f32_e64 v{T+i}, v{T+i} clamp")
            for i in range(8):
                A(f"v_max_f32 v{acc+base+i}, 0, v{acc+base+i}")
            for i in range(0, 8, 2):
                A(f"v_pk_add_f32 v[{acc+base+i}:{acc+base+i+1}], v[{acc+base+i}:{acc+base+i+1}], v[{T+i}:{T+i+1}]")
            for i in range(0, 8, 2):
                A(f"v_pk_add_f32 v[{acc+base+i}:{acc+base+i+1}], v[{acc+base+i}:{acc+base+i+1}], s[64:65]")
            for i in range(0, 8, 2):
                A(f"v_cvt_pk_bf16_f32 v{dst+(base+i)//2}, v{acc+base+i}, v{acc+base+i+1}")

    def lam_code(self, P, T):
        A = self.A
        A(f"v_lshlrev_b32 v{P}, 16, v{P}", f"v_lshlrev_b32 v{P+1}, 16, v{P+1}", f"v_lshlrev_b32 v{P+2}, 16, v{P+2}")
        A(f"v_mul_f32 v{T}, {LOG2E:#x}, v{P+2}", f"v_exp_f32 v{T}, v{T}", "s_nop 0")
        A(f"v_cvt_pk_bf16_f32 v{T}, v{T}, v{T}", f"v_lshlrev_b32 v{T}, 16, v{T}")
        A(f"v_mul_f32 v{T+1}, v{T}, v{P}", f"v_mul_f32 v{T+2}, v{T}, v{P+1}")
        A(f"v_mul_f32 v{T+1}, {LOG2E:#x}, v{T+1}", f"v_mul_f32 v{T+2}, {INV2PI:#x}, v{T+2}")
        A(f"v_exp_f32 v{T+1}, v{T+1}", f"v_fract_f32 v{T+2}, v{T+2}", "s_nop 0")
        A(f"v_cos_f32 v{P+3}, v{T+2}", f"v_sin_f32 v{P+4}, v{T+2}", "s_nop 0")
        A(f"v_mul_f32 v{P+3}, v{P+3}, v{T+1}", f"v_mul_f32 v{P+4}, v{P+4}, v{T+1}")

    def csq(self, d, s_, t):
        A = self.A
        A(f"v_mul_f32 v{t}, v{s_+1}, v{s_+1}", f"v_mul_f32 v{d+1}, v{s_}, v{s_+1}")
        A(f"v_fma_f32 v{d}, v{s_}, v{s_}, -v{t}", f"v_add_f32 v{d+1}, v{d+1}, v{d+1}")

    def cfma(self, dr, di, ar, ai, br, bi, cr, ci):
        A = self.A
        A(f"v_fma_f32 v{dr}, v{ar}, v{br}, v{cr}", f"v_fma_f32 v{di}, v{ar}, v{bi}, v{ci}")
        A(f"v_fma_f32 v{dr}, -v{ai}, v{bi}, v{dr}", f"v_fma_f32 v{di}, v{ai}, v{br}, v{di}")

    def qkv_compute(self):
        A, L = self.A, self.L
        ACC, WF, XF, TMP = 16, 80, 112, 240
        VA, VW = 4, 8
        lg = Lgkm(A)
        A("v_and_b32 v10, 31, v0", "v_lshrrev_b32 v11, 5, v0")
        A(f"s_lshl_b32 s64, s{S_W}, 5", "v_add_u32 v12, s64, v10", "v_lshlrev_b32 v12, 7, v12")
        A("v_lshrrev_b32 v13, 1, v10", "v_and_b32 v13, 7, v13", "v_xor_b32 v13, v13, v11", "v_lshlrev_b32 v13, 4, v13")
        A(f"v_add_u32 v{VA}, v12, v13")
        for ks in range(1, 4): A(f"v_xor_b32 v{VA+ks}, {32*ks}, v{VA}")
        A("v_lshrrev_b32 v12, 5, v0", "v_lshlrev_b32 v12, 3, v12", "v_bfe_u32 v13, v0, 2, 2", "v_add_u32 v12, v12, v13", "v_lshlrev_b32 v12, 7, v12")
        A("v_bfe_u32 v13, v0, 3, 1", "v_lshlrev_b32 v13, 6, v13", "v_add_u32 v12, v12, v13")
        A("v_bfe_u32 v13, v0, 4, 1", "v_lshlrev_b32 v13, 5, v13", "v_add_u32 v12, v12, v13")
        A("v_and_b32 v13, 3, v0", "v_lshlrev_b32 v13, 3, v13", f"v_add_u32 v{VW}, v12, v13")
        A(f"v_xor_b32 v{VW+1}, 64, v{VW}")
        A(f"v_add_u32 v2, {3*SLOT}, v{VW}", f"v_add_u32 v3, {3*SLOT}, v{VW+1}")
        A(f"s_mov_b32 s76, {LOG2E:#x}", f"s_mov_b32 s77, {LOG2E:#x}")
        A("v_cmp_gt_u32 s[74:75], 16, v10")
        for i in range(64): A(f"v_mov_b32 v{ACC+i}, 0")
        A("v_and_b32 v12, 15, v10", "v_lshlrev_b32 v13, 4, v11", "v_add_u32 v12, v12, v13", "v_lshlrev_b32 v12, 5, v12")
        A("v_lshrrev_b32 v13, 4, v10", f"v_mul_u32_u24 v13, {PART_STRIDE}, v13", "v_add_u32 v12, v12, v13")
        A(f"s_mul_i32 s66, s{S_W}, {4*PART_STRIDE}", f"s_add_u32 s66, s66, {PARTQ}", "v_add_u32 v12, s66, v12")
        A("v_lshlrev_b32 v14, 5, v11", "v_add_u32 v14, v14, v13", "v_add_u32 v14, s66, v14", "v_add_u32 v14, 1024, v14")
        A("s_waitcnt lgkmcnt(0)")
        A.srd(SRD_WS, 32, 268435456)
        self.mode_announce("A")
        self.weight_touch(242)
        A("v_cmp_gt_u32 s[74:75], 16, v10")
        def reads(s_, ks):
            buf = (s_ * 4 + ks) & 1
            out = [(f"ds_read_b128 {v(XF + (s_*4+ks)*4, 4)}, v{VA+ks}", ("x", s_, ks))]
            for nt in range(4):
                part, sub = nt >> 1, nt & 1
                for a_ in range(2):
                    off = 16384 + part * 8192 + (16 * ks + 4 * a_) * 128
                    out.append((f"ds_read_b64_tr_b16 {v(WF + buf*16 + nt*4 + 2*a_, 2)}, v{VW+sub} offset:{off}", ("w", s_, ks, nt)))
            return out
        A("s_barrier")
        self.stamp(1)
        for ins, tag in reads(0, 0): lg.issue(ins, tag)
        for s_ in range(8):
            for ks in range(4):
                nxt = (s_, ks + 1) if ks < 3 else ((s_ + 1, 0) if s_ < 7 else None)
                if ks == 3 and s_ < 7:
                    A("s_barrier")
                    d = SLOT if (s_ + 1) % NSLOT != 0 else -(NSLOT - 1) * SLOT
                    for r in list(range(VA, VA + 4)) + [VW, VW + 1]:
                        A(f"v_add_u32 v{r}, {d & 0xffffffff:#x}, v{r}")
                nr = reads(*nxt) if nxt else []
                buf = (s_ * 4 + ks) & 1
                xf = v(XF + (s_ * 4 + ks) * 4, 4)
                for nt in range(4):
                    if nt == 0: lg.need(("x", s_, ks), ("w", s_, ks, 0))
                    else: lg.need(("w", s_, ks, nt))
                    A(f"v_mfma_f32_32x32x16_bf16 {v(ACC+16*nt,16)}, {xf}, {v(WF+buf*16+nt*4,4)}, {v(ACC+16*nt,16)}")
                    if nr:
                        for ins, tag in (nr[0:3] if nt == 0 else nr[1 + 2*nt: 3 + 2*nt]):
                            lg.issue(ins, tag)
        self.stamp(2)
        A("s_waitcnt vmcnt(0)")
        A(f"s_mov_b32 s64, {EPS:#x}", f"s_mov_b32 s65, {EPS:#x}")
        for i in range(4): A(f"v_mov_b32 v{TMP+8+i}, 0x3f803f80")
        A("s_nop 3")
        ONES = TMP + 8
        def kvm(hp):
            kv = ACC + 16 * hp; z = ACC + 32 + 16 * hp
            A(f"v_mfma_f32_32x32x16_bf16 {v(kv,16)}, {v(WF+8*hp,4)}, {v(WF+16+8*hp,4)}, 0")
            A(f"v_mfma_f32_32x32x16_bf16 {v(z,16)}, {v(WF+8*hp,4)}, {v(ONES,4)}, 0")
            A(f"v_mfma_f32_32x32x16_bf16 {v(kv,16)}, {v(WF+8*hp+4,4)}, {v(WF+16+8*hp+4,4)}, {v(kv,16)}")
            A(f"v_mfma_f32_32x32x16_bf16 {v(z,16)}, {v(WF+8*hp+4,4)}, {v(ONES,4)}, {v(z,16)}")
        def vpack(hp):
            for i in range(0, 16, 2):
                A(f"v_cvt_pk_bf16_f32 v{WF+16+8*hp+i//2}, v{ACC+32+16*hp+i}, v{ACC+33+16*hp+i}")
        def pwrite(hp):
            kv = ACC + 16 * hp; z = ACC + 32 + 16 * hp
            T0 = WF + 16 * hp if False else XF_FREE
            for j in range(8):
                A(f"v_cndmask_b32 v{T0+j}, v{kv+8+j}, v{kv+j}, s[74:75]")
            for j in range(8):
                A(f"v_cndmask_b32 v{T0+8+j}, v{z+8+j}, v{z+j}, s[74:75]")
            A(f"ds_write_b128 v12, {v(T0,4)} offset:{hp*2*PART_STRIDE}")
            A(f"ds_write_b128 v12, {v(T0+4,4)} offset:{hp*2*PART_STRIDE+16}")
            A("s_mov_b64 s[66:67], exec", "s_mov_b32 exec_lo, 0x00010001", "s_mov_b32 exec_hi, 0x00010001")
            A(f"ds_write_b128 v14, {v(T0+8,4)} offset:{hp*2*PART_STRIDE}")
            A(f"ds_write_b128 v14, {v(T0+12,4)} offset:{hp*2*PART_STRIDE+16}")
            A("s_mov_b64 exec, s[66:67]")
        self.phi_pack(ACC, 16, WF, TMP)
        vpack(0)
        A("s_nop 1")
        kvm(0)
        self.phi_pack(ACC + 16, 16, WF + 8, TMP)
        vpack(1)
        A("s_nop 1")
        kvm(1)
        XF_FREE = WF
        A("s_nop 1")
        pwrite(0)
        A("s_waitcnt lgkmcnt(0)")
        A("s_nop 4")
        pwrite(1)
        A("s_waitcnt lgkmcnt(0)")
        self.stamp(3)
        A("s_barrier")
        self.mode_load("A", 250)
        for i in range(32): A(f"v_mov_b32 v{ACC+i}, 0")
        lg = Lgkm(A)
        NB = 4
        def qreads(step):
            idx, ks = step >> 2, step & 3
            a9, u = idx >> 2, idx & 3
            b = WF + (step % NB) * 8
            out = []
            for sub in range(2):
                for a_ in range(2):
                    off = a9 * SLOT + u * 8192 + (16 * ks + 4 * a_) * 128
                    out.append((f"ds_read_b64_tr_b16 {v(b + sub*4 + 2*a_, 2)}, v{2+sub} offset:{off}", ("q", step, sub)))
            return out
        for st in range(3):
            for ins, tag in qreads(st): lg.issue(ins, tag)
        for step in range(32):
            b = WF + (step % NB) * 8
            xf = v(XF + step * 4, 4)
            nr = qreads(step + 3) if step + 3 < 32 else []
            for sub in range(2):
                lg.need(("q", step, sub))
                A(f"v_mfma_f32_32x32x16_bf16 {v(ACC+16*sub,16)}, {v(b+4*sub,4)}, {xf}, {v(ACC+16*sub,16)}")
                for ins, tag in nr[2*sub:2*sub+2]: lg.issue(ins, tag)
        self.stamp(4)
        A(f"s_mov_b32 s64, {EPS:#x}", f"s_mov_b32 s65, {EPS:#x}")
        for i in range(32): A(f"v_mov_b32 v{P2ACC+i}, 0")
        self.phi_pack(ACC, 16, WF, TMP)
        self.phi_pack(ACC + 16, 16, WF + 8, TMP)
        A("v_lshlrev_b32 v13, 4, v11", "v_add_u32 v13, v13, v10", "v_lshlrev_b32 v13, 4, v13")
        A("v_lshlrev_b32 v15, 4, v11", "v_add_u32 v15, 512, v15", "v_cndmask_b32 v13, v15, v13, s[74:75]", f"v_add_u32 v13, {FIN}, v13")
        A("v_lshlrev_b32 v12, 4, v0")
        A(f"s_lshl_b32 s64, s{S_RT}, 2", f"s_add_u32 s64, s64, s{S_W}", "s_lshl_b32 s64, s64, 5", f"s_lshl_b32 s65, s{S_G}, 2", "s_add_u32 s64, s64, s65", "s_lshl_b32 s64, s64, 10")
        A("s_waitcnt vmcnt(0)")
        self.mode_resolve("A", 250, "qc")
        self.stamp(5)
        A("s_barrier")
        self.stamp(6)
        for hl in range(4):
            A(f"ds_read_b128 {v(WF+16+4*hl,4)}, v13 offset:{hl*1024}")
        for hl in range(4):
            hp, a_ = hl >> 1, hl & 1
            A(f"s_waitcnt lgkmcnt({3-hl})")
            A(f"v_mfma_f32_32x32x16_bf16 {v(ACC+16*hl,16)}, {v(WF+16+4*hl,4)}, {v(WF+8*hp+4*a_,4)}, 0")
        A("s_nop 7")
        for hl in range(4):
            d = ACC + 16 * hl
            if hl == 3: A("s_nop 3")
            A(f"v_add_f32 v{d+8}, {EPS:#x}, v{d+8}")
        for hl in range(4):
            A(f"v_rcp_f32 v{ACC+16*hl+8}, v{ACC+16*hl+8}")
        A("s_nop 0")
        for hl in range(4):
            d = ACC + 16 * hl
            for j in range(0, 8, 2):
                A(f"v_pk_mul_f32 v[{d+j}:{d+j+1}], v[{d+j}:{d+j+1}], v[{d+8}:{d+9}] op_sel_hi:[1,0]")
            for j in range(4):
                A(f"v_cvt_pk_bf16_f32 v{d+12+j}, v{d+2*j}, v{d+2*j+1}")
        lf, lj = L("o_fast"), L("o_j")
        A("s_cmp_eq_u32 s73, 1", f"s_cbranch_scc1 {lf}")
        for hl in range(4):
            A(f"buffer_store_dwordx4 {v(ACC+16*hl+12,4)}, v12, {WSr}, s64 offen offset:{hl*1024} sc1")
        A(f"s_branch {lj}")
        A.label(lf)
        for hl in range(4):
            A(f"buffer_store_dwordx4 {v(ACC+16*hl+12,4)}, v12, {WSr}, s64 offen offset:{hl*1024} {FASTF}")
        A.label(lj)
        A("s_waitcnt vmcnt(0)")
        self.stamp(7)
        A("s_barrier")
        A("s_barrier")

    def bu_compute(self):
        A, L = self.A, self.L
        RE, IM, AF, BF = 16, 48, 80, 144
        C = 160
        lg = Lgkm(A)
        A("v_and_b32 v10, 15, v0", "v_lshrrev_b32 v11, 4, v0")
        A(f"s_lshl_b32 s64, s{S_G}, 6", f"s_lshl_b32 s65, s{S_W}, 4", "s_add_u32 s64, s64, s65", "s_lshl_b32 s64, s64, 1")
        A("v_lshlrev_b32 v12, 1, v10")
        A("v_lshrrev_b32 v13, 1, v10", "v_xor_b32 v13, v13, v11", "v_lshlrev_b32 v13, 4, v13", "v_lshlrev_b32 v14, 7, v10", "v_add_u32 v4, v13, v14")
        A("v_xor_b32 v5, 64, v4")
        A(f"s_lshl_b32 s65, s{S_W}, 11", "s_add_u32 s65, s65, 16384")
        A("v_add_u32 v6, s65, v4", "v_add_u32 v7, s65, v5")
        for i in range(64): A(f"v_mov_b32 v{RE+i}, 0")
        A("s_waitcnt lgkmcnt(0)")
        A.srd(SRD_WS, 32, 268435456)
        A.srd(SRD_T0, 12, 1024); A.srd(SRD_T1, 14, 1024); A.srd(SRD_T2, 24, 1024)
        A(f"buffer_load_ushort v{C}, v12, {R4(SRD_T0)}, s64 offen")
        A(f"buffer_load_ushort v{C+1}, v12, {R4(SRD_T1)}, s64 offen")
        A(f"buffer_load_ushort v{C+2}, v12, {R4(SRD_T2)}, s64 offen")
        A("s_waitcnt vmcnt(0)")
        self.mode_announce("B")
        self.weight_touch(240)
        self.lam_code(C, C + 8)
        A(f"v_mov_b32 v166, v{C+3}", f"v_mov_b32 v167, v{C+4}")
        A("v_add_f32 v163, -1.0, v163")
        A("v_mul_f32 v168, v160, v160", "v_fma_f32 v168, v161, v161, v168", "v_rcp_f32 v168, v168")
        A("v_mul_f32 v169, v163, v160", "v_fma_f32 v169, v167, v161, v169")
        A("v_mul_f32 v170, v167, v160", "v_fma_f32 v170, -v163, v161, v170")
        A("v_add_f32 v168, v168, v168")
        A("v_mul_f32 v164, v169, v168", "v_mul_f32 v165, v170, v168")
        self.csq(174, 166, 176); self.csq(178, 174, 176); self.csq(174, 178, 176); self.csq(168, 174, 176)
        self.csq(170, 168, 176); self.csq(174, 170, 176); self.csq(172, 174, 176)
        def reads(s_, k2):
            buf = (s_ * 2 + k2) & 1
            out = [(f"ds_read_b128 {v(BF + buf*8, 4)}, v{6+k2} offset:0", ("b", s_, k2, 0)),
                   (f"ds_read_b128 {v(BF + buf*8 + 4, 4)}, v{6+k2} offset:8192", ("b", s_, k2, 1))]
            for mt in range(8):
                out.append((f"ds_read_b128 {v(AF + buf*32 + mt*4, 4)}, v{4+k2} offset:{mt*2048}", ("a", s_, k2, mt)))
            return out
        A("s_barrier")
        self.stamp(1)
        for ins, tag in reads(0, 0): lg.issue(ins, tag)
        for s_ in range(8):
            for k2 in range(2):
                nxt = (s_, 1) if k2 == 0 else ((s_ + 1, 0) if s_ < 7 else None)
                if k2 == 1 and s_ < 7:
                    A("s_barrier")
                    d = SLOT if (s_ + 1) % NSLOT != 0 else -(NSLOT - 1) * SLOT
                    for r in range(4, 8):
                        A(f"v_add_u32 v{r}, {d & 0xffffffff:#x}, v{r}")
                nr = reads(*nxt) if nxt else []
                if nxt is None:
                    nr = []
                buf = (s_ * 2 + k2) & 1
                for mt in range(8):
                    if mt == 0: lg.need(("b", s_, k2, 0), ("b", s_, k2, 1), ("a", s_, k2, 0))
                    else: lg.need(("a", s_, k2, mt))
                    af = v(AF + buf*32 + mt*4, 4)
                    A(f"v_mfma_f32_16x16x32_bf16 {v(RE+4*mt,4)}, {af}, {v(BF+buf*8,4)}, {v(RE+4*mt,4)}")
                    A(f"v_mfma_f32_16x16x32_bf16 {v(IM+4*mt,4)}, {af}, {v(BF+buf*8+4,4)}, {v(IM+4*mt,4)}")
                    if nr:
                        for ins, tag in (nr[0:3] if mt == 0 else [nr[2 + mt]]):
                            lg.issue(ins, tag)
                    if nxt is None and mt == 0:
                        A(f"v_mov_b32 v12, {NONCE}")
                        lg.issue("ds_read_b64 v[230:231], v12", "nonce")
        self.stamp(2)
        def pr(base, sg): return base + 4 * (sg >> 1) + 2 * (sg & 1)
        E0, E1_ = 180, 184
        Lr = "v[166:167]"
        def step(dre, dim, sre, sim, ure, uim, M=Lr):
            A(f"v_pk_fma_f32 v[{dre}:{dre+1}], v[{sre}:{sre+1}], {M}, v[{ure}:{ure+1}] op_sel_hi:[1,0,1]")
            A(f"v_pk_fma_f32 v[{dim}:{dim+1}], v[{sim}:{sim+1}], {M}, v[{uim}:{uim+1}] op_sel_hi:[1,0,1]")
            A(f"v_pk_fma_f32 v[{dre}:{dre+1}], v[{sim}:{sim+1}], {M}, v[{dre}:{dre+1}] op_sel:[0,1,0] op_sel_hi:[1,1,1] neg_lo:[0,1,0] neg_hi:[0,1,0]")
            A(f"v_pk_fma_f32 v[{dim}:{dim+1}], v[{sre}:{sre+1}], {M}, v[{dim}:{dim+1}] op_sel:[0,1,0] op_sel_hi:[1,1,1]")
        A(f"s_lshl_b32 s64, s{S_G}, 4", f"s_add_u32 s64, s64, s{S_RT}", "s_lshl_b32 s64, s64, 6", f"s_lshl_b32 s65, s{S_W}, 4", "s_add_u32 s64, s64, s65", "s_lshl_b32 s64, s64, 4", f"s_add_u32 s64, s64, {WS['ES']}")
        A("v_lshlrev_b32 v13, 4, v10", "v_lshlrev_b32 v12, 2, v10")
        cur = (pr(RE, 0), pr(IM, 0))
        for sg in range(1, 16):
            d = E0 if sg & 1 else E1_
            step(d, d + 2, cur[0], cur[1], pr(RE, sg), pr(IM, sg))
            cur = (d, d + 2)
        er, ei = cur
        self.cfma(188, 189, 168, 169, er, ei, er + 1, ei + 1)
        for qq in range(4):
            A(f"v_add_u32 v{14 + (qq&1)}, {64*qq}, v12")
            A(f"ds_bpermute_b32 v{190+2*qq}, v{14 + (qq&1)}, v188", f"ds_bpermute_b32 v{191+2*qq}, v{14 + (qq&1)}, v189")
        A("s_waitcnt lgkmcnt(0)")
        self.cfma(198, 199, 170, 171, 190, 191, 192, 193)
        self.cfma(200, 201, 170, 171, 198, 199, 194, 195)
        self.cfma(228, 229, 170, 171, 200, 201, 196, 197)
        A("s_mov_b64 s[66:67], exec", "s_mov_b64 exec, 0xffff")
        A(f"buffer_store_dwordx4 v[228:231], v13, {WSr}, s64 offen sc1")
        A("s_mov_b64 exec, s[66:67]")
        self.stamp(3)
        A("s_barrier")
        self.skip_issue()
        self.mode_load("B", 224)
        K2 = "v[164:165]"
        for sg in range(16):
            r_, i_ = pr(RE, sg), pr(IM, sg)
            A(f"v_pk_mul_f32 v[232:233], v[{i_}:{i_+1}], {K2} op_sel:[0,1] op_sel_hi:[1,1]")
            A(f"v_pk_mul_f32 v[234:235], v[{r_}:{r_+1}], {K2} op_sel:[0,1] op_sel_hi:[1,1]")
            A(f"v_pk_fma_f32 v[{r_}:{r_+1}], v[{r_}:{r_+1}], {K2}, v[232:233] op_sel_hi:[1,0,1] neg_lo:[0,0,1] neg_hi:[0,0,1]")
            A(f"v_pk_fma_f32 v[{i_}:{i_+1}], v[{i_}:{i_+1}], {K2}, v[234:235] op_sel_hi:[1,0,1]")
        self.stamp(4)
        A(f"s_lshl_b32 s64, s{S_G}, 10", f"s_lshl_b32 s65, s{S_W}, 4", "s_add_u32 s64, s64, s65", "s_lshl_b32 s64, s64, 4", f"s_add_u32 s64, s64, {WS['ES']}")
        A("v_lshlrev_b32 v13, 4, v10")
        GB = 16 + 64 + 0
        def greg(j):
            if j < 8: return 80 + 4 * j
            if j < 12: return 144 + 4 * (j - 8)
            return 212 + 4 * (j - 12)
        lp, lgd, lok, lhd = L("e_poll"), L("e_gd"), L("e_ok"), L("e_hd")
        A(f"s_mov_b32 s72, {POLL_LIMIT}")
        A.label(lp)
        A("s_mov_b32 s65, s64")
        for j in range(15):
            A(f"s_cmp_le_u32 s{S_RT}, {j}", f"s_cbranch_scc1 {lgd}")
            A(f"buffer_load_dwordx4 v[{greg(j)}:{greg(j)+3}], v13, {WSr}, s65 offen sc1")
            if j < 14: A("s_add_u32 s65, s65, 1024")
        A.label(lgd)
        A("v_mov_b32 v204, 0", "v_mov_b32 v205, 0", "v_mov_b32 v236, 0")
        A("s_waitcnt vmcnt(0)")
        for j in range(15):
            A(f"s_cmp_le_u32 s{S_RT}, {j}", f"s_cbranch_scc1 {lhd}")
            A(f"v_xor_b32 v237, v230, v{greg(j)+2}", f"v_xor_b32 v238, v231, v{greg(j)+3}")
            self.cfma(206, 207, 172, 173, 204, 205, greg(j), greg(j) + 1)
            A("v_or3_b32 v236, v236, v237, v238")
            A("v_mov_b32 v204, v206", "v_mov_b32 v205, v207")
        A.label(lhd)
        A("v_cmp_ne_u32 vcc, 0, v236")
        A("s_sub_u32 s72, s72, 1", f"s_cbranch_scc1 {lok}")
        A(f"s_cbranch_vccnz {lp}")
        A.label(lok)
        self.mode_resolve("B", 224, "bc")
        self.stamp(5)
        self.cfma(198, 199, 170, 171, 204, 205, 190, 191)
        self.cfma(200, 201, 170, 171, 198, 199, 192, 193)
        self.cfma(202, 203, 170, 171, 200, 201, 194, 195)
        for qq, (sr, si) in enumerate(((198, 199), (200, 201), (202, 203)), start=1):
            A(f"v_cmp_eq_u32 vcc, {qq}, v11", "s_nop 1")
            A(f"v_cndmask_b32 v204, v204, v{sr}, vcc", f"v_cndmask_b32 v205, v205, v{si}, vcc")
        self.cfma(206, 207, 168, 169, 204, 205, er, ei)
        def cmul(dr, di, ar, ai):
            A(f"v_mul_f32 v{dr}, v{ar}, v164", f"v_mul_f32 v{di}, v{ar}, v165")
            A(f"v_fma_f32 v{dr}, -v{ai}, v165, v{dr}", f"v_fma_f32 v{di}, v{ai}, v164, v{di}")
        cmul(208, 210, 204, 205)
        cmul(209, 211, 206, 207)
        A(f"s_lshl_b32 s64, s{S_W}, 13", f"s_add_u32 s64, s64, {MISC}")
        A("v_lshlrev_b32 v12, 6, v11", "v_lshlrev_b32 v13, 4, v10", "v_xor_b32 v12, v12, v13", "v_lshlrev_b32 v13, 8, v10", "v_add_u32 v12, v12, v13", "v_add_u32 v12, s64, v12")
        for c in range(1, 4): A(f"v_xor_b32 v{212+c}, {16*c}, v12")
        A("v_bfe_u32 v13, v0, 4, 1", "v_lshlrev_b32 v13, 5, v13", "v_and_b32 v14, 3, v0", "v_lshlrev_b32 v14, 3, v14", "v_add_u32 v13, v13, v14")
        A("v_bfe_u32 v14, v0, 2, 2", "v_lshlrev_b32 v15, 4, v14", "v_xor_b32 v13, v13, v15", "v_lshlrev_b32 v14, 8, v14", "v_add_u32 v13, v13, v14")
        A("v_lshrrev_b32 v14, 5, v0", "v_lshlrev_b32 v14, 12, v14", "v_add_u32 v13, v13, v14", "v_add_u32 v13, s64, v13")
        cur = (208, 210)
        def pack(pl_, c):
            base, neg = (RE, "") if pl_ == 0 else (IM, "-")
            for j in range(4):
                sg = 8 * (c & 1) + 2 * j
                r0, r1 = pr(base, sg) + (c >> 1), pr(base, sg + 1) + (c >> 1)
                A(f"v_cvt_pk_bf16_f32 v{80 + 16*pl_ + 4*c + j}, {neg}v{r0}, {neg}v{r1}")
            A(f"ds_write_b128 v{12 if c == 0 else 212+c}, {v(80 + 16*pl_ + 4*c, 4)} offset:{pl_*4096}")
        for sg in range(16):
            d = (pr(RE, sg), pr(IM, sg))
            step(d[0], d[1], cur[0], cur[1], d[0], d[1])
            cur = d
            if sg == 8:
                for pl_ in range(2):
                    pack(pl_, 0); pack(pl_, 2)
        self.stamp(6)
        for pl_ in range(2):
            pack(pl_, 1); pack(pl_, 3)
        A(f"s_lshl_b32 s64, s{S_RT}, 8", f"s_lshl_b32 s65, s{S_G}, 3", "s_add_u32 s64, s64, s65", f"s_lshl_b32 s65, s{S_W}, 1", "s_add_u32 s64, s64, s65", "s_lshl_b32 s64, s64, 10", f"s_add_u32 s64, s64, {WS['H']}")
        A("v_lshlrev_b32 v12, 4, v0")
        A("s_waitcnt lgkmcnt(0)")
        for rb in range(4):
            for ksl in range(2):
                for a_ in range(2):
                    off = (8 * ksl + 4 * a_) * 256 + ((64 * rb) ^ (128 * ksl + 64 * a_))
                    A(f"ds_read_b64_tr_b16 {v(16 + (rb*2+ksl)*4 + 2*a_, 2)}, v13 offset:{off}")
        lf, lj = L("h_fast"), L("h_j")
        A("s_cmp_eq_u32 s73, 1", f"s_cbranch_scc1 {lf}")
        for fl in ("sc1", FASTF + " "):
            if fl != "sc1": A.label(lf)
            A("s_mov_b32 s65, s64")
            for rb in range(4):
                A(f"s_waitcnt lgkmcnt({min(15, 12-4*rb)})")
                for ksl in range(2):
                    A(f"buffer_store_dwordx4 {v(16 + (rb*2+ksl)*4, 4)}, v12, {WSr}, s65 offen offset:{ksl*1024} {fl}")
                if rb < 3: A("s_add_u32 s65, s65, 0x10000")
            if fl == "sc1": A(f"s_branch {lj}")
        A.label(lj)
        self.stamp(7)
        self.skip_finish()
        for r in range(16):
            A(f"v_mov_b32 v{P2ACC+r}, v{XS+r}", f"v_mov_b32 v{P2ACC+16+r}, 0")
        A("s_waitcnt vmcnt(0)")
        self.stamp(8)
        A("s_barrier")
        A("s_barrier")

    def p2(self, role):
        A, L = self.A, self.L
        self.stamp(9)
        nk = 32 if role == "A" else 64
        nst = nk // 2
        abase = WS["O"] if role == "A" else WS["H"]
        ACC, BF, AF = P2ACC, 48, 80
        NBUF, LA = 4, 7
        A(f"s_lshr_b32 s64, s{S_WAVE}, 2", f"s_and_b32 s65, s{S_WAVE}, 3")
        A("v_lshlrev_b32 v2, 4, v0")
        A(f"s_lshl_b32 s66, s{S_RT}, 2", "s_add_u32 s66, s66, s65", f"s_mul_i32 s66, s66, {nk*1024}")
        A(f"s_mul_i32 s67, s64, {nst*1024}", "s_add_u32 s66, s66, s67", f"s_add_u32 s66, s66, {abase}")
        def aload(k):
            A(f"buffer_load_dwordx4 {v(AF + 4*(k % 8), 4)}, v2, {WSr}, s66 offen offset:{(k % 4)*1024}")
            if k % 4 == 3: A("s_add_u32 s66, s66, 4096")
        for k in range(LA): aload(k)
        A("v_and_b32 v5, 31, v0", "v_lshrrev_b32 v6, 5, v0")
        A(f"s_lshl_b32 s68, s{S_RT}, 7", "s_lshl_b32 s69, s65, 5", "s_add_u32 s68, s68, s69")
        A(f"s_lshl_b32 s69, s{S_G}, 6", "s_lshl_b32 s70, s64, 5", "s_add_u32 s69, s69, s70")
        lg = Lgkm(A)
        if role == "A":
            A("v_lshlrev_b32 v12, 2, v6", "v_bfe_u32 v13, v0, 2, 2", "v_add_u32 v12, v12, v13", "v_lshlrev_b32 v12, 7, v12")
            A("v_bfe_u32 v13, v0, 3, 1", "v_lshlrev_b32 v13, 6, v13", "v_add_u32 v12, v12, v13")
            A("v_bfe_u32 v13, v0, 4, 1", "v_lshlrev_b32 v13, 5, v13", "v_add_u32 v12, v12, v13")
            A("v_and_b32 v13, 3, v0", "v_lshlrev_b32 v13, 3, v13", "v_add_u32 v12, v12, v13")
            A("s_lshl_b32 s70, s64, 15", f"s_add_u32 s70, s70, {WOIMG}", "v_add_u32 v3, s70, v12", "v_xor_b32 v4, 64, v3")
            def bread(k):
                b = BF + 8 * (k % NBUF)
                for cb in range(2):
                    for a_ in range(2):
                        lg.issue(f"ds_read_b64_tr_b16 {v(b + 4*cb + 2*a_, 2)}, v{3+cb} offset:{(16*k + 8*a_)*128}", ("b", k))
        else:
            A("v_lshlrev_b32 v12, 16, v6", "v_lshlrev_b32 v13, 10, v5", "v_add_u32 v12, v12, v13")
            A("v_and_b32 v13, 15, v5", "v_lshlrev_b32 v13, 4, v13", "v_add_u32 v12, v12, v13")
            A("s_lshl_b32 s70, s64, 9", "v_add_u32 v3, s70, v12")
            def bread(k):
                b = BF + 8 * (k % NBUF)
                t = 8 + (k % 4)
                A(f"v_xor_b32 v{t}, {(k & 15) * 16}, v3")
                for cb in range(2):
                    lg.issue(f"ds_read_b128 {v(b + 4*cb, 4)}, v{t} offset:{(k >> 4) * 256 + cb * 32768}", ("b", k))
        for k in range(NBUF - 1): bread(k)
        self.stamp(10)
        for k in range(nst):
            if k + LA < nst: aload(k + LA)
            if k + NBUF - 1 < nst: bread(k + NBUF - 1)
            rem = min(nst - 1 - k, LA)
            A(f"s_waitcnt vmcnt({rem})")
            lg.need(("b", k))
            b = BF + 8 * (k % NBUF)
            A(f"v_mfma_f32_32x32x16_bf16 {v(ACC,16)}, {v(AF+4*(k%8),4)}, {v(b,4)}, {v(ACC,16)}")
            A(f"v_mfma_f32_32x32x16_bf16 {v(ACC+16,16)}, {v(AF+4*(k%8),4)}, {v(b+4,4)}, {v(ACC+16,16)}")
        self.stamp(11)
        A(f"s_lshl_b32 s70, s{S_WAVE}, 12", f"s_add_u32 s70, s70, {MISC}", "v_add_u32 v9, s70, v2")
        A(f"s_xor_b32 s71, s{S_WAVE}, 4", "s_lshl_b32 s71, s71, 12", f"s_add_u32 s71, s71, {MISC}", "v_add_u32 v10, s71, v2")
        A("s_lshl_b32 s68, s68, 12", "s_lshl_b32 s69, s69, 2", "s_add_u32 s68, s68, s69")
        if role == "B": A("s_add_u32 s68, s68, 2048")
        A("v_lshlrev_b32 v11, 14, v6", "v_lshlrev_b32 v12, 2, v5", "v_add_u32 v11, v11, v12")
        A.srd(SRD_T0, 28, 8388608)
        lk, lj = L(f"kh1_{role}"), L(f"join_{role}")
        A("s_cmp_eq_u32 s64, 1", f"s_cbranch_scc1 {lk}")
        for i in range(4): A(f"ds_write_b128 v9, {v(ACC+16+4*i,4)} offset:{i*1024}")
        A(f"s_mov_b32 s71, 0")
        A(f"s_branch {lj}")
        A.label(lk)
        for i in range(4): A(f"ds_write_b128 v9, {v(ACC+4*i,4)} offset:{i*1024}")
        A("s_nop 1")
        for i in range(16): A(f"v_mov_b32 v{ACC+i}, v{ACC+16+i}")
        A.label(lj)
        A("s_waitcnt lgkmcnt(0)")
        A("s_barrier")
        for i in range(4): A(f"ds_read_b128 {v(48+4*i,4)}, v10 offset:{i*1024}")
        for i in range(4):
            A(f"s_waitcnt lgkmcnt({3-i})")
            for r in range(4*i, 4*i+4, 2):
                A(f"v_pk_add_f32 v[{ACC+r}:{ACC+r+1}], v[{ACC+r}:{ACC+r+1}], v[{48+r}:{49+r}]")
            for r in range(4*i, 4*i+4):
                row = (r & 3) + 8 * (r >> 2)
                A(f"s_add_u32 s69, s68, {row*4096}")
                A(f"buffer_store_dword v{ACC+r}, v11, {R4(SRD_T0)}, s69 offen {OUTF}")
        self.stamp(12)
        self.write_stamps()
        A("s_endpgm")

def build(out, stamps=False):
    A = Asm()
    K = NAME + "_kernel"
    A.raw(HEADER_COMMENT + f"; @launch grid=(256,1,1) block=(512,1,1) lds={LDS_BYTES}\n" + '.amdgcn_target "amdgcn-amd-amdhsa--gfx950"\n')
    G(A, K, stamps).gen()
    A.kernel_desc(K, 256, accum=256)
    open(out, "w").write(A.text())

if __name__ == "__main__":
    build(sys.argv[1], stamps=(len(sys.argv) > 2 and sys.argv[2] == "stamps"))
```

```python
import sys
sys.path.insert(0, "gen"); sys.path.insert(0, "scratch")
from asmlib import *
WS = dict(O=0x000000, H=0x200000, KVP=0x600000, ES=0x700000, FLG=0x740000, ST=0x900000)
LDS_BYTES = 163840
SLOT = 32768
NSLOT = 5
MISC = 4 * SLOT
PART_STRIDE = 1152
PARTQ = 0
FIN = 20480
WOIMG = SLOT
NONCE = MISC + 24576 + 64
LOG2E = 0x3FB8AA3B
EPS = 0x358637BD
INV2PI = 0x3E22F983
POLL_LIMIT = 1 << 18
EXP = set(a for a in sys.argv[3:])
OUTF = 'nt'
FASTF = 'nt' if 'fnt' in EXP else 'sc0' if 'fsc0' in EXP else 'sc0 nt' if 'fsc0nt' in EXP else ''

S_W, S_WAVE, S_XCD, S_SLOT, S_RT, S_G, S_ROT = 3, 34, 35, 36, 37, 38, 39
SRD_X, SRD_W, SRD_WS, SRD_T0, SRD_T1, SRD_T2, SRD_T3 = 40, 44, 48, 52, 56, 60, 96
NON = 78
P2ACC, XS, XD = 128, 112, 239
def R4(n): return f"s[{n}:{n+3}]"
WSr = R4(SRD_WS)

class G:
    def __init__(self, A, K, stamps):
        self.A, self.K, self.stamps = A, K, stamps
    def L(self, n): return f"{self.K}_{n}"
    def stamp(self, i):
        if self.stamps:
            if 'pro' in EXP and 9 <= i <= 12 and not getattr(self, 'inpro', False): return
            self.A("s_memtime s[100:101]", "s_waitcnt lgkmcnt(0)", f"s_mov_b32 s{80+i}, s100")
    def pstamp(self, i):
        if 'pro' in EXP:
            self.inpro = True; self.stamp(i); self.inpro = False
    def write_stamps(self):
        A = self.A
        if not self.stamps: return
        A("s_waitcnt vmcnt(0) lgkmcnt(0)")
        self.stamp(13)
        A("s_memrealtime s[100:101]", "s_waitcnt lgkmcnt(0)", "s_mov_b32 s95, s100")
        for j in range(16): A(f"v_mov_b32 v{16+j}, s{80+j}")
        A("s_lshl_b32 s64, s2, 3", f"s_add_u32 s64, s64, s{S_WAVE}", "s_lshl_b32 s64, s64, 6", f"s_add_u32 s64, s64, {WS['ST']}", "v_mov_b32 v2, s64")
        A("v_cmp_eq_u32 vcc, 0, v0", "s_and_saveexec_b64 s[66:67], vcc")
        for j in range(4):
            A(f"buffer_store_dwordx4 v[{16+4*j}:{19+4*j}], v2, {WSr}, 0 offen offset:{16*j}")

    def gen(self):
        A, L = self.A, self.L
        A.kernel_begin(self.K)
        A.label(L("start"))
        if self.stamps:
            for j in range(16): A(f"s_mov_b32 s{80+j}, 0")
            A("s_memrealtime s[100:101]", "s_waitcnt lgkmcnt(0)", "s_mov_b32 s94, s100")
            self.stamp(0)
        A("s_cmp_ge_u32 s2, 256", f"s_cbranch_scc1 {L('end')}")
        A("s_load_dwordx4 s[4:7], s[0:1], 0", "s_load_dwordx4 s[8:11], s[0:1], 16", "s_load_dwordx4 s[16:19], s[0:1], 48")
        if 'nocode' not in EXP:
            lc = L("nocode")
            A("s_getpc_b64 s[64:65]")
            A.label(L("pcref"))
            A(f"s_lshr_b32 s66, s2, 3", "s_mul_i32 s66, s66, 9", "v_add_u32 v2, s66, v0", "v_lshlrev_b32 v2, 7, v2")
            A(f"v_cmp_gt_u32 vcc, 9, v0", "s_and_saveexec_b64 s[66:67], vcc", f"s_cbranch_execz {lc}")
            A(f"v_min_u32 v2, {L('end')}-{L('pcref')}, v2")
            A("global_load_dword v255, v2, s[64:65]")
            A.label(lc)
            A("s_mov_b64 exec, s[66:67]")
        A("v_lshrrev_b32 v1, 6, v0", "v_and_b32 v0, 63, v0")
        A(f"v_readfirstlane_b32 s{S_WAVE}, v1")
        A(f"s_and_b32 s{S_XCD}, s2, 7", f"s_lshr_b32 s{S_SLOT}, s2, 3")
        A(f"s_and_b32 s64, s{S_XCD}, 3", f"s_lshl_b32 s{S_RT}, s64, 2", f"s_and_b32 s65, s{S_SLOT}, 3", f"s_add_u32 s{S_RT}, s{S_RT}, s65")
        A(f"s_lshr_b32 s{S_G}, s{S_SLOT}, 2")
        A("s_lshl_b32 s65, s65, 1", f"s_add_u32 s{S_ROT}, s{S_G}, s65", "s_and_b32 s64, s64, 1", f"s_add_u32 s{S_ROT}, s{S_ROT}, s64", f"s_and_b32 s{S_ROT}, s{S_ROT}, 7")
        A(f"s_and_b32 s{S_W}, s{S_WAVE}, 3")
        A(f"s_cmp_lt_u32 s{S_WAVE}, 4", f"s_cbranch_scc1 {L('compute')}")
        self.loader_prologue()
        A(f"s_cmp_ge_u32 s{S_XCD}, 4", f"s_cbranch_scc1 {L('bu_load')}")
        self.loader("qkv")
        A.label(L("p2A"))
        self.p2("A")
        A.label(L("bu_load"))
        self.loader("bu")
        A.label(L("p2B"))
        self.p2("B")
        A.label(L("compute"))
        self.rest_kernargs()
        A(f"s_cmp_ge_u32 s{S_XCD}, 4", f"s_cbranch_scc1 {L('bu')}")
        self.qkv_compute()
        A(f"s_branch {L('p2A')}")
        A.label(L("bu"))
        self.bu_compute()
        A(f"s_branch {L('p2B')}")
        A.label(L("end"))
        A("s_endpgm")

    def rest_kernargs(self):
        A = self.A
        A("s_load_dwordx4 s[12:15], s[0:1], 32", "s_load_dwordx4 s[20:23], s[0:1], 64", "s_load_dwordx4 s[24:27], s[0:1], 80")
        A("s_load_dwordx4 s[28:31], s[0:1], 96", "s_load_dwordx2 s[32:33], s[0:1], 112")

    def loader_prologue(self):
        A, L = self.A, self.L
        A("v_lshrrev_b32 v5, 3, v0", "v_and_b32 v6, 7, v0", "v_lshrrev_b32 v7, 4, v0")
        A("v_xor_b32 v8, v6, v7", "v_lshlrev_b32 v8, 4, v8")
        A("v_lshlrev_b32 v2, 10, v5", "v_add_u32 v2, v2, v8", "v_xor_b32 v3, 64, v2")
        A(f"s_lshl_b32 s70, s{S_W}, 12")
        lb, lj = L("pro_b"), L("pro_j")
        A(f"s_cmp_ge_u32 s{S_XCD}, 4", f"s_cbranch_scc1 {lb}")
        A("v_and_b32 v9, 1, v7", "v_lshlrev_b32 v9, 2, v9", "v_xor_b32 v9, v6, v9", "v_lshlrev_b32 v9, 4, v9")
        A("v_mul_u32_u24 v4, 3072, v5", "v_add_u32 v4, v4, v9", "v_lshlrev_b32 v12, 10, v5", "v_add_u32 v12, v12, v9")
        A("v_mov_b32 v20, v2", "v_mov_b32 v21, v3", "v_mov_b32 v22, v4", "v_mov_b32 v23, v4", "v_mov_b32 v11, v3")
        A(f"s_lshl_b32 s64, s{S_RT}, 7", f"s_lshl_b32 s65, s{S_W}, 5", "s_add_u32 s64, s64, s65", "s_lshl_b32 s68, s64, 10")
        A(f"s_mul_i32 s69, s{S_W}, {16*3072}", f"s_lshl_b32 s65, s{S_G}, 7", "s_add_u32 s69, s69, s65")
        A(f"s_mov_b32 s76, {64*3072}", "s_lshr_b32 s71, s70, 1")
        A("s_movk_i32 s52, 0x2000", "s_movk_i32 s53, 0x4000")
        A("s_movk_i32 s56, 0x2000")
        A("s_movk_i32 s60, 1024", "s_movk_i32 s61, 25600", "s_movk_i32 s62, 2048", "s_movk_i32 s63, 26624")
        A("s_waitcnt lgkmcnt(0)")
        A.srd(SRD_X, 4, 2097152); A.srd(SRD_W, 6, 1572864)
        A(f"s_branch {lj}")
        A.label(lb)
        A("v_lshrrev_b32 v9, 5, v0", "v_lshlrev_b32 v9, 5, v9", "v_and_b32 v10, 1, v5", "v_lshlrev_b32 v10, 4, v10", "v_add_u32 v9, v9, v10")
        A("v_and_b32 v10, 1, v7", "v_add_u32 v9, v9, v10", "v_lshlrev_b32 v4, 10, v9", "v_add_u32 v4, v4, v8", "v_xor_b32 v11, 64, v4")
        A("v_mov_b32 v20, v4", "v_mov_b32 v21, v11", "v_mov_b32 v22, v2", "v_mov_b32 v23, v3", "v_mov_b32 v12, v2")
        A(f"s_lshl_b32 s64, s{S_RT}, 7", f"s_lshl_b32 s65, s{S_W}, 2", "s_add_u32 s64, s64, s65", "s_lshl_b32 s68, s64, 10")
        A(f"s_lshl_b32 s64, s{S_G}, 6", f"s_and_b32 s65, s{S_W}, 1", "s_lshl_b32 s65, s65, 5", "s_add_u32 s64, s64, s65", "s_lshl_b32 s69, s64, 10")
        A("s_movk_i32 s76, 128", "s_mov_b32 s71, s70")
        A("s_mov_b32 s52, 0x10000", "s_movk_i32 s53, 0x800")
        A("s_movk_i32 s56, 0x800")
        A("s_movk_i32 s60, 0", "s_movk_i32 s61, 0x2000", "s_movk_i32 s62, 0x4000", "s_movk_i32 s63, 0x6000")
        A("s_waitcnt lgkmcnt(0)")
        A.srd(SRD_X, 10, 2097152)
        A(f"s_cmp_lt_u32 s{S_W}, 2", "s_cselect_b32 s64, s16, s18", "s_cselect_b32 s65, s17, s19")
        A.srd(SRD_W, 64, 524288)
        A.label(lj)
        A("s_add_u32 s54, s52, s53", "s_add_u32 s57, s56, 1024")
        self.pstamp(10)
        X, W = R4(SRD_X), R4(SRD_W)
        for st in range(2):
            slot = st * SLOT
            A(f"s_add_u32 s64, s{S_ROT}, {st}", "s_and_b32 s64, s64, 7")
            A("s_lshl_b32 s65, s64, 7", "s_add_u32 s65, s65, s68", "s_mul_i32 s66, s64, s76", "s_add_u32 s66, s66, s69")
            xo = [None, "s52", "s53", "s54"]
            for ii in range(4):
                A(f"s_add_u32 m0, s70, {slot + ii*1024}")
                A(f"s_add_u32 s67, s65, {xo[ii]}" if xo[ii] else "s_mov_b32 s67, s65")
                A(f"buffer_load_dwordx4 v{20 + (ii&1)}, {X}, s67 offen lds")
            A(f"s_add_u32 s72, s71, {slot + 16384}")
            wl = ["0", "1024", "s56", "s57"]
            for ii in range(4):
                A(f"s_add_u32 m0, s72, {wl[ii]}", f"s_add_u32 s67, s66, s{60+ii}")
                A(f"buffer_load_dwordx4 v{22 + (ii&1)}, {W}, s67 offen lds")
            self.pstamp(11 + st)
        self.rest_kernargs()

    def poll_lines(self, tag, nl, sbase, stride_log2, R=8):
        A, L = self.A, self.L
        lp, done = L(f"poll_{tag}"), L(f"polld_{tag}")
        A(f"s_mov_b32 s72, {POLL_LIMIT}")
        A(f"v_lshlrev_b32 v{R+2}, {stride_log2}, v0")
        A("s_mov_b64 s[74:75], exec", f"s_mov_b64 exec, {(1 << nl) - 1:#x}")
        A.label(lp)
        A(f"buffer_load_dwordx2 v[{R}:{R+1}], v{R+2}, {WSr}, s{sbase} offen sc1")
        A("s_waitcnt vmcnt(0)")
        A(f"v_xor_b32 v{R}, s{NON}, v{R}", f"v_xor_b32 v{R+1}, s{NON+1}, v{R+1}", f"v_or_b32 v{R}, v{R}, v{R+1}")
        A(f"v_cmp_ne_u32 vcc, 0, v{R}")
        A("s_sub_u32 s72, s72, 1")
        A(f"s_cbranch_scc1 {done}")
        A(f"s_cbranch_vccz {done}")
        A(f"s_branch {lp}")
        A.label(done)
        A("s_mov_b64 exec, s[74:75]")

    def store_flag(self, sbase, tag, R=8):
        A, L = self.A, self.L
        A(f"v_mov_b32 v{R}, s{NON}", f"v_mov_b32 v{R+1}, s{NON+1}", f"v_mov_b32 v{R+2}, 0")
        A("s_mov_b64 s[74:75], exec", "s_mov_b64 exec, 1")
        lf, lj = L(f"sf_fast_{tag}"), L(f"sf_j_{tag}")
        A("s_cmp_eq_u32 s73, 1", f"s_cbranch_scc1 {lf}")
        A(f"buffer_store_dwordx2 v[{R}:{R+1}], v{R+2}, {WSr}, s{sbase} offen sc1")
        A(f"s_branch {lj}")
        A.label(lf)
        A(f"buffer_store_dwordx2 v[{R}:{R+1}], v{R+2}, {WSr}, s{sbase} offen")
        A.label(lj)
        A("s_mov_b64 exec, s[74:75]")

    def skip_issue(self, vm=None):
        A = self.A
        A(f"s_lshr_b32 s64, s{S_WAVE}, 2")
        A(f"s_lshl_b32 s68, s{S_RT}, 7", f"s_lshl_b32 s69, s{S_W}, 5", "s_add_u32 s68, s68, s69")
        A(f"s_lshl_b32 s69, s{S_G}, 6", "s_lshl_b32 s70, s64, 5", "s_add_u32 s69, s69, s70")
        A.srd(SRD_T0, 10, 2097152); A.srd(SRD_T1, 26, 1024)
        A("s_lshl_b32 s70, s68, 10", "s_lshl_b32 s71, s69, 1", "s_add_u32 s70, s70, s71")
        A("v_and_b32 v8, 31, v0", "v_lshrrev_b32 v7, 5, v0", "v_lshlrev_b32 v7, 12, v7", "v_lshlrev_b32 v8, 1, v8", "v_add_u32 v7, v7, v8")
        for r in range(16):
            if r % 4 == 0 and r > 0: A("s_add_u32 s70, s70, 8192")
            ins = f"buffer_load_ushort v{XS+r}, v7, {R4(SRD_T0)}, s70 offen offset:{(r%4)*1024}"
            vm.issue(ins, "skip") if vm else A(ins)
        ins = f"buffer_load_ushort v{XD}, v8, {R4(SRD_T1)}, s71 offen"
        vm.issue(ins, "skip") if vm else A(ins)

    def skip_finish(self):
        A = self.A
        A(f"v_lshlrev_b32 v{XD}, 16, v{XD}")
        for r in range(16): A(f"v_lshlrev_b32 v{XS+r}, 16, v{XS+r}")
        for r in range(16): A(f"v_mul_f32 v{XS+r}, v{XS+r}, v{XD}")
        for r in range(0, 16, 2): A(f"v_cvt_pk_bf16_f32 v{XS+r}, v{XS+r}, v{XS+r+1}")
        for r in range(0, 16, 2):
            A(f"v_and_b32 v{XS+r+1}, 0xffff0000, v{XS+r}", f"v_lshlrev_b32 v{XS+r}, 16, v{XS+r}")

    def mode_announce(self, role, R=240):
        A, L = self.A, self.L
        lx = L(f"ann_{role}")
        A(f"s_cmp_lg_u32 s{S_W}, 0", f"s_cbranch_scc1 {lx}")
        A("s_getreg_b32 s64, hwreg(HW_REG_XCC_ID, 0, 3)", "s_lshl_b32 s64, 1, s64", f"s_lshl_b32 s65, 0x100, s{S_G}", "s_or_b32 s64, s64, s65")
        A(f"s_add_u32 s65, s{S_RT}, {0 if role == 'A' else 16}", "s_lshl_b32 s65, s65, 2")
        A(f"v_mov_b32 v{R}, s64", f"v_mov_b32 v{R+1}, s65")
        A.srd(SRD_T3, 30, 256)
        A("s_mov_b64 s[66:67], exec", "s_mov_b64 exec, 1")
        A(f"buffer_atomic_or v{R}, v{R+1}, {R4(SRD_T3)}, 0 offen sc1")
        A("s_mov_b64 exec, s[66:67]")
        A.label(lx)

    def mode_load(self, role, R):
        A = self.A
        A(f"s_add_u32 s65, s{S_RT}, {0 if role == 'A' else 16}", "s_lshl_b32 s65, s65, 2", f"v_mov_b32 v{R+1}, s65")
        A.srd(SRD_T3, 30, 256)
        A(f"buffer_load_dword v{R}, v{R+1}, {R4(SRD_T3)}, 0 offen sc1")

    def mode_resolve(self, role, R, tag):
        A, L = self.A, self.L
        lp, ok = L(f"mode_lp_{tag}"), L(f"mode_ok_{tag}")
        A(f"s_mov_b32 s72, {POLL_LIMIT}")
        A.label(lp)
        A(f"v_readfirstlane_b32 s73, v{R}", "s_nop 3")
        A("s_and_b32 s71, s73, 0xff00", "s_cmp_eq_u32 s71, 0xff00", f"s_cbranch_scc1 {ok}")
        A("s_sub_u32 s72, s72, 1", f"s_cbranch_scc1 {ok}")
        A(f"buffer_load_dword v{R}, v{R+1}, {R4(SRD_T3)}, 0 offen sc1", "s_waitcnt vmcnt(0)", f"s_branch {lp}")
        A.label(ok)
        A("s_and_b32 s70, s73, 0xff", "s_bcnt1_i32_b32 s70, s70", "s_cmp_eq_u32 s70, 1", "s_cselect_b32 s73, 1, 0")
        A("s_cmp_eq_u32 s71, 0xff00", "s_cselect_b32 s73, s73, 0")
        if 'slow' in EXP: A("s_mov_b32 s73, 0")

    def weight_touch(self, R):
        A = self.A
        if 'nowt' in EXP: return
        A("s_lshl_b32 s64, s2, 2", f"s_add_u32 s64, s64, s{S_W}", "s_mul_i32 s64, s64, 12")
        A(f"v_add_u32 v{R}, s64, v0", f"v_lshlrev_b32 v{R}, 7, v{R}")
        A.srd(SRD_T0, 8, 524288); A.srd(SRD_T1, 20, 524288); A.srd(SRD_T2, 22, 524288)
        A("s_mov_b64 s[74:75], exec", "s_mov_b64 exec, 0xfff")
        A(f"buffer_load_dword v{R+1}, v{R}, {R4(SRD_T0)}, 0 offen sc1")
        A(f"v_subrev_u32 v{R+2}, 0x80000, v{R}")
        A(f"buffer_load_dword v{R+1}, v{R+2}, {R4(SRD_T1)}, 0 offen sc1")
        A(f"v_subrev_u32 v{R+2}, 0x100000, v{R}")
        A(f"buffer_load_dword v{R+1}, v{R+2}, {R4(SRD_T2)}, 0 offen sc1")
        A("s_mov_b64 exec, s[74:75]")

    def loader(self, role):
        A, L = self.A, self.L
        last = 9 if role == "qkv" else 7
        vm = Vm(A)
        vm.q = [('st', 0)] * 8 + [('st', 1)] * 8
        X, W = R4(SRD_X), R4(SRD_W)
        def issue(st):
            slot = (st % NSLOT) * SLOT
            tag = ("st", st)
            if st >= 8:
                a = st - 8
                A(f"s_add_u32 s64, s{S_ROT}, s{S_W}", f"s_add_u32 s64, s64, {4*a}", "s_and_b32 s64, s64, 7")
                A(f"s_mul_i32 s64, s64, {64*3072}", f"s_lshl_b32 s65, s{S_G}, 7", "s_add_u32 s64, s64, s65")
                A("s_lshl_b32 s66, s70, 1")
                for i in range(8):
                    A(f"s_add_u32 m0, s66, {slot + i*1024}", f"s_add_u32 s67, s64, {i*8*3072}")
                    vm.issue(f"buffer_load_dwordx4 v4, {W}, s67 offen lds", tag)
                return
            A(f"s_add_u32 s64, s{S_ROT}, {st}", "s_and_b32 s64, s64, 7")
            A("s_lshl_b32 s65, s64, 7", "s_add_u32 s65, s65, s68")
            if role == "qkv":
                A(f"s_mul_i32 s66, s64, {64*3072}", "s_add_u32 s66, s66, s69")
                for ii in range(4):
                    A(f"s_add_u32 m0, s70, {slot + ii*1024}", f"s_add_u32 s67, s65, {ii*8192}")
                    vm.issue(f"buffer_load_dwordx4 v{2 + (ii&1)}, {X}, s67 offen lds", tag)
                A("s_lshr_b32 s71, s70, 1")
                for part in range(2):
                    for ii in range(2):
                        A(f"s_add_u32 m0, s71, {slot + 16384 + part*8192 + ii*1024}", f"s_add_u32 s67, s66, {ii*8*3072 + (1+part)*1024}")
                        vm.issue(f"buffer_load_dwordx4 v4, {W}, s67 offen lds", tag)
            else:
                A("s_lshl_b32 s66, s64, 7", "s_add_u32 s66, s66, s69")
                for ii in range(4):
                    A(f"s_add_u32 m0, s70, {slot + ii*1024}", f"s_add_u32 s67, s65, {(64*(ii&1) + 2*(ii>>1))*1024}")
                    vm.issue(f"buffer_load_dwordx4 v{4 if (ii&1)==0 else 11}, {X}, s67 offen lds", tag)
                for ii in range(4):
                    A(f"s_add_u32 m0, s70, {slot + 16384 + ii*1024}", f"s_add_u32 s67, s66, {ii*8192}")
                    vm.issue(f"buffer_load_dwordx4 v{2 + (ii&1)}, {W}, s67 offen lds", tag)
        def cregion(R):
            part = R >> 1
            A.srd(SRD_T0, 20 + 2 * part, 524288)
            A(f"s_lshl_b32 s64, s{S_G}, 6", f"s_lshl_b32 s65, s{S_W}, 3", "s_add_u32 s64, s64, s65", f"s_add_u32 s64, s64, {32*(R&1)}", "s_lshl_b32 s64, s64, 10")
            A(f"s_lshl_b32 s65, s{S_W}, 13")
            A(f"s_and_b32 s66, s{S_W}, 1", "s_lshl_b32 s66, s66, 7", "v_lshlrev_b32 v13, 4, v0", "v_xor_b32 v13, s66, v13")
            for i in range(8):
                A(f"v_xor_b32 v{14+(i&1)}, {i*16}, v13")
                A(f"s_add_u32 m0, s65, {R*SLOT + i*1024}", f"s_add_u32 s67, s64, {i*1024}")
                vm.issue(f"buffer_load_dwordx4 v{14+(i&1)}, {R4(SRD_T0)}, s67 offen lds", ("c", R))
        self.cregion = cregion
        self.vm = vm
        A("s_waitcnt lgkmcnt(0)")
        A.srd(SRD_WS, 32, 268435456)
        if role == "qkv":
            ln = L("nononce")
            A("s_cmp_lg_u32 s2, 0", f"s_cbranch_scc1 {ln}", f"s_cmp_lg_u32 s{S_WAVE}, 4", f"s_cbranch_scc1 {ln}")
            A("s_memrealtime s[76:77]", "s_waitcnt lgkmcnt(0)", "s_or_b32 s76, s76, 1")
            A("v_mov_b32 v14, s76", "v_mov_b32 v15, s77", "v_mov_b32 v13, 0")
            A.srd(SRD_T0, 30, 256)
            A("s_mov_b64 s[74:75], exec", "s_mov_b64 exec, 1")
            A(f"buffer_store_dwordx2 v[14:15], v13, {R4(SRD_T0)}, 0 offen offset:128 sc1")
            A("s_mov_b64 exec, s[74:75]")
            A("s_waitcnt vmcnt(0)")
            A.label(ln)
        self.stamp(1)
        sched = {0: [2], 1: [3], 2: [4, 5], 3: [6], 4: [7], 5: [8], 6: [9], 7: []}
        for st in range(8):
            vm.need(("st", st))
            if st == 7:
                self.get_nonce(role)
            A("s_barrier")
            if st == 0: self.stamp(2)
            for x in sched[st]:
                if x <= last: issue(x)
            if role == "bu" and st == 5: cregion(3)
            if role == "bu" and st == 7: cregion(0)
            if st == (6 if role == "qkv" else 4) and 'notouch' not in EXP:
                A("v_lshlrev_b32 v13, 7, v0")
                if role == "qkv":
                    A(f"s_lshl_b32 s64, s{S_RT}, 2", f"s_add_u32 s64, s64, s{S_W}", "s_lshl_b32 s64, s64, 5", f"s_lshl_b32 s65, s{S_G}, 2", "s_add_u32 s64, s64, s65", "s_lshl_b32 s64, s64, 10")
                    A("s_mov_b64 s[74:75], exec", "s_mov_b32 exec_hi, 0")
                else:
                    A(f"s_lshl_b32 s64, s{S_RT}, 2", f"s_add_u32 s64, s64, s{S_W}", "s_lshl_b32 s64, s64, 6", f"s_lshl_b32 s65, s{S_G}, 3", "s_add_u32 s64, s64, s65", "s_lshl_b32 s64, s64, 10", f"s_add_u32 s64, s64, {WS['H']}")
                    A("s_mov_b64 s[74:75], exec")
                vm.issue(f"buffer_load_dword v250, v13, {WSr}, s64 offen sc1", "touch")
                A(f"s_add_u32 s64, s{S_RT}, {0 if role == 'qkv' else 16}", "s_lshl_b32 s64, s64, 10", f"s_lshl_b32 s65, s{S_G}, 7", "s_add_u32 s64, s64, s65", f"s_add_u32 s64, s64, {WS['FLG']}")
                A("s_mov_b64 exec, 1")
                vm.issue(f"buffer_load_dword v250, v13, {WSr}, s64 offen sc1", "touch")
                A("s_mov_b64 exec, s[74:75]")
            if st == 4:
                A(f"s_load_dwordx2 s[{NON}:{NON+1}], s[30:31], 128")
        if role == "qkv": self.qkv_loader_tail()
        else: self.bu_loader_tail()

    def get_nonce(self, role):
        A, L = self.A, self.L
        ok, lp = L(f"nok_{role}"), L(f"nlp_{role}")
        A("s_waitcnt lgkmcnt(0)")
        A(f"s_cmp_lg_u32 s{NON}, 0", f"s_cbranch_scc1 {ok}")
        A.srd(SRD_T0, 30, 256)
        A(f"s_mov_b32 s72, {POLL_LIMIT}", "v_mov_b32 v13, 0")
        A.label(lp)
        A(f"buffer_load_dwordx2 v[14:15], v13, {R4(SRD_T0)}, 0 offen offset:128 sc1", "s_waitcnt vmcnt(0)")
        A(f"v_readfirstlane_b32 s{NON}, v14", f"v_readfirstlane_b32 s{NON+1}, v15", "s_nop 3")
        A("s_sub_u32 s72, s72, 1", f"s_cbranch_scc1 {ok}")
        A(f"s_cmp_lg_u32 s{NON}, 0", f"s_cbranch_scc1 {ok}", "s_sleep 2", f"s_branch {lp}")
        A.label(ok)
        if role == "bu":
            A(f"v_mov_b32 v14, s{NON}", f"v_mov_b32 v15, s{NON+1}", f"v_mov_b32 v13, {NONCE}")
            A("ds_write_b64 v13, v[14:15]", "s_waitcnt lgkmcnt(0)")

    def qkv_loader_tail(self):
        A, L, vm = self.A, self.L, self.vm
        vm.need(("st", 9))
        self.stamp(3)
        A("s_barrier")
        A("s_setprio 3")
        self.stamp(4)
        A("v_mul_u32_u24 v7, 24, v0", f"s_mul_i32 s64, s{S_W}, {PART_STRIDE}", "v_add_u32 v7, s64, v7")
        for w in range(4):
            for j in range(3):
                A(f"ds_read_b64 v[{16+6*w+2*j}:{17+6*w+2*j}], v7 offset:{PARTQ + w*4*PART_STRIDE + 8*j}")
        A("v_lshlrev_b32 v3, 4, v0")
        A(f"s_lshl_b32 s64, s{S_G}, 4", f"s_add_u32 s64, s64, s{S_RT}", "s_lshl_b32 s64, s64, 2", f"s_add_u32 s64, s64, s{S_W}", "s_lshl_b32 s64, s64, 10", f"s_add_u32 s64, s64, {WS['KVP']}")
        A(f"v_mov_b32 v51, s{NON}")
        A("s_waitcnt lgkmcnt(6)")
        for j in range(0, 6, 2):
            A(f"v_pk_add_f32 v[{16+j}:{17+j}], v[{16+j}:{17+j}], v[{22+j}:{23+j}]")
        A("s_waitcnt lgkmcnt(0)")
        for j in range(0, 6, 2):
            A(f"v_pk_add_f32 v[{28+j}:{29+j}], v[{28+j}:{29+j}], v[{34+j}:{35+j}]")
        for j in range(0, 6, 2):
            A(f"v_pk_add_f32 v[{16+j}:{17+j}], v[{16+j}:{17+j}], v[{28+j}:{29+j}]")
        for j in range(3):
            A(f"v_cvt_pk_bf16_f32 v{48+j}, v{16+2*j}, v{17+2*j}")
        A("s_mov_b64 s[66:67], exec", "s_mov_b32 exec_lo, -1", "s_mov_b32 exec_hi, 0x3fff")
        A(f"buffer_store_dwordx4 v[48:51], v3, {WSr}, s64 offen sc1")
        self.stamp(5)
        A(f"s_lshl_b32 s68, s{S_G}, 6", f"s_add_u32 s68, s68, s{S_W}", "s_lshl_b32 s68, s68, 10", f"s_add_u32 s68, s68, {WS['KVP']}")
        lp, ok = L("kv_poll"), L("kv_ok")
        A(f"s_mov_b32 s72, {POLL_LIMIT}")
        first = True
        A.label(lp)
        A("s_mov_b32 s64, s68")
        for r in range(16):
            A(f"buffer_load_dwordx4 v[{64+4*r}:{67+4*r}], v3, {WSr}, s64 offen sc1")
            if r < 15: A("s_add_u32 s64, s64, 4096")
        A("s_waitcnt vmcnt(0)")
        A(f"v_xor_b32 v52, s{NON}, v67")
        for r in range(1, 16):
            A(f"v_xor_b32 v53, s{NON}, v{67+4*r}", "v_or_b32 v52, v52, v53")
        A("v_cmp_ne_u32 vcc, 0, v52")
        A("s_sub_u32 s72, s72, 1", f"s_cbranch_scc1 {ok}")
        A(f"s_cbranch_vccnz {lp}")
        A.label(ok)
        self.stamp(6)
        A("s_mov_b64 exec, s[66:67]")
        A.srd(SRD_T0, 8, 524288)
        A(f"s_lshl_b32 s64, s{S_W}, 17", f"s_lshl_b32 s65, s{S_G}, 7", "s_add_u32 s64, s64, s65")
        A(f"s_lshl_b32 s65, s{S_W}, 14")
        for j in range(6): A(f"v_mov_b32 v{16+j}, 0")
        A("v_mov_b32 v24, 0x00003f80", "v_mov_b32 v25, 0x3f800000")
        for r in range(16):
            for j in range(3):
                A(f"v_dot2c_f32_bf16 v{16+2*j}, v{64+4*r+j}, v24")
                A(f"v_dot2c_f32_bf16 v{17+2*j}, v{64+4*r+j}, v25")
        A("s_nop 2")
        for j in range(3):
            A(f"v_cvt_pk_bf16_f32 v{48+j}, v{16+2*j}, v{17+2*j}")
        A("v_mul_u32_u24 v4, 12, v0", f"s_lshl_b32 s66, s{S_W}, 10", f"s_add_u32 s66, s66, {FIN}", "v_add_u32 v4, s66, v4")
        A("s_mov_b64 s[66:67], exec", "s_mov_b32 exec_lo, -1", "s_mov_b32 exec_hi, 0x3fff")
        for j in range(3): A(f"ds_write_b32 v4, v{48+j} offset:{4*j}")
        A("s_mov_b64 exec, s[66:67]")
        A("s_waitcnt lgkmcnt(0)")
        self.stamp(7)
        A("s_barrier")
        A("s_setprio 0")
        for i in range(16):
            A(f"s_add_u32 m0, s65, {WOIMG + i*1024}", f"s_add_u32 s67, s64, {i*8192}")
            A(f"buffer_load_dwordx4 v12, {R4(SRD_T0)}, s67 offen lds")
        self.mode_load("A", 20)
        for i in range(32): A(f"v_mov_b32 v{P2ACC+i}, 0")
        A("s_waitcnt vmcnt(0)")
        self.mode_resolve("A", 20, "ql")
        A("s_barrier")
        self.stamp(8)
        self.p1p2_sync("A")

    def bu_loader_tail(self):
        A, L, vm = self.A, self.L, self.vm
        self.stamp(3)
        A("s_barrier")
        self.cregion(1); self.cregion(2)
        self.skip_issue(vm)
        self.mode_load("B", 20)
        vm.drain()
        self.mode_resolve("B", 20, "bl")
        self.skip_finish()
        for r in range(16):
            A(f"v_mov_b32 v{P2ACC+r}, 0", f"v_mov_b32 v{P2ACC+16+r}, v{XS+r}")
        self.stamp(4)
        A("s_barrier")
        self.stamp(8)
        self.p1p2_sync("B")

    def p1p2_sync(self, role):
        A, L = self.A, self.L
        rb = 0 if role == "A" else 1
        A(f"s_add_u32 s64, s{S_RT}, {16*rb}", "s_lshl_b32 s64, s64, 10", f"s_add_u32 s64, s64, {WS['FLG']}")
        lx = L(f"sync_{role}")
        A(f"s_cmp_lg_u32 s{S_W}, 0", f"s_cbranch_scc1 {lx}")
        A(f"s_lshl_b32 s65, s{S_G}, 7", "s_add_u32 s65, s65, s64")
        self.store_flag(65, role)
        self.poll_lines(f"p2{role}", 8, 64, 7)
        A.label(lx)
        A("s_barrier")

    def phi_pack(self, acc, n, dst, T):
        A = self.A
        for base in range(0, n, 8):
            for i in range(0, 8, 2):
                A(f"v_pk_mul_f32 v[{T+i}:{T+i+1}], v[{acc+base+i}:{acc+base+i+1}], s[76:77]")
            for i in range(8):
                A(f"v_exp_f32_e64 v{T+i}, v{T+i} clamp")
            for i in range(8):
                A(f"v_max_f32 v{acc+base+i}, 0, v{acc+base+i}")
            for i in range(0, 8, 2):
                A(f"v_pk_add_f32 v[{acc+base+i}:{acc+base+i+1}], v[{acc+base+i}:{acc+base+i+1}], v[{T+i}:{T+i+1}]")
            for i in range(0, 8, 2):
                A(f"v_pk_add_f32 v[{acc+base+i}:{acc+base+i+1}], v[{acc+base+i}:{acc+base+i+1}], s[64:65]")
            for i in range(0, 8, 2):
                A(f"v_cvt_pk_bf16_f32 v{dst+(base+i)//2}, v{acc+base+i}, v{acc+base+i+1}")

    def lam_code(self, P, T):
        A = self.A
        A(f"v_lshlrev_b32 v{P}, 16, v{P}", f"v_lshlrev_b32 v{P+1}, 16, v{P+1}", f"v_lshlrev_b32 v{P+2}, 16, v{P+2}")
        A(f"v_mul_f32 v{T}, {LOG2E:#x}, v{P+2}", f"v_exp_f32 v{T}, v{T}", "s_nop 0")
        A(f"v_cvt_pk_bf16_f32 v{T}, v{T}, v{T}", f"v_lshlrev_b32 v{T}, 16, v{T}")
        A(f"v_mul_f32 v{T+1}, v{T}, v{P}", f"v_mul_f32 v{T+2}, v{T}, v{P+1}")
        A(f"v_mul_f32 v{T+1}, {LOG2E:#x}, v{T+1}", f"v_mul_f32 v{T+2}, {INV2PI:#x}, v{T+2}")
        A(f"v_exp_f32 v{T+1}, v{T+1}", f"v_fract_f32 v{T+2}, v{T+2}", "s_nop 0")
        A(f"v_cos_f32 v{P+3}, v{T+2}", f"v_sin_f32 v{P+4}, v{T+2}", "s_nop 0")
        A(f"v_mul_f32 v{P+3}, v{P+3}, v{T+1}", f"v_mul_f32 v{P+4}, v{P+4}, v{T+1}")

    def csq(self, d, s_, t):
        A = self.A
        A(f"v_mul_f32 v{t}, v{s_+1}, v{s_+1}", f"v_mul_f32 v{d+1}, v{s_}, v{s_+1}")
        A(f"v_fma_f32 v{d}, v{s_}, v{s_}, -v{t}", f"v_add_f32 v{d+1}, v{d+1}, v{d+1}")

    def cfma(self, dr, di, ar, ai, br, bi, cr, ci):
        A = self.A
        A(f"v_fma_f32 v{dr}, v{ar}, v{br}, v{cr}", f"v_fma_f32 v{di}, v{ar}, v{bi}, v{ci}")
        A(f"v_fma_f32 v{dr}, -v{ai}, v{bi}, v{dr}", f"v_fma_f32 v{di}, v{ai}, v{br}, v{di}")

    def qkv_compute(self):
        A, L = self.A, self.L
        ACC, WF, XF, TMP = 16, 80, 112, 240
        VA, VW = 4, 8
        lg = Lgkm(A)
        A("v_and_b32 v10, 31, v0", "v_lshrrev_b32 v11, 5, v0")
        A(f"s_lshl_b32 s64, s{S_W}, 5", "v_add_u32 v12, s64, v10", "v_lshlrev_b32 v12, 7, v12")
        A("v_lshrrev_b32 v13, 1, v10", "v_and_b32 v13, 7, v13", "v_xor_b32 v13, v13, v11", "v_lshlrev_b32 v13, 4, v13")
        A(f"v_add_u32 v{VA}, v12, v13")
        for ks in range(1, 4): A(f"v_xor_b32 v{VA+ks}, {32*ks}, v{VA}")
        A("v_lshrrev_b32 v12, 5, v0", "v_lshlrev_b32 v12, 3, v12", "v_bfe_u32 v13, v0, 2, 2", "v_add_u32 v12, v12, v13", "v_lshlrev_b32 v12, 7, v12")
        A("v_bfe_u32 v13, v0, 3, 1", "v_lshlrev_b32 v13, 6, v13", "v_add_u32 v12, v12, v13")
        A("v_bfe_u32 v13, v0, 4, 1", "v_lshlrev_b32 v13, 5, v13", "v_add_u32 v12, v12, v13")
        A("v_and_b32 v13, 3, v0", "v_lshlrev_b32 v13, 3, v13", f"v_add_u32 v{VW}, v12, v13")
        A(f"v_xor_b32 v{VW+1}, 64, v{VW}")
        A(f"v_add_u32 v2, {3*SLOT}, v{VW}", f"v_add_u32 v3, {3*SLOT}, v{VW+1}")
        A(f"s_mov_b32 s76, {LOG2E:#x}", f"s_mov_b32 s77, {LOG2E:#x}")
        A("v_cmp_gt_u32 s[74:75], 16, v10")
        for i in range(64): A(f"v_mov_b32 v{ACC+i}, 0")
        A("v_and_b32 v12, 15, v10", "v_lshlrev_b32 v13, 4, v11", "v_add_u32 v12, v12, v13", "v_lshlrev_b32 v12, 5, v12")
        A("v_lshrrev_b32 v13, 4, v10", f"v_mul_u32_u24 v13, {PART_STRIDE}, v13", "v_add_u32 v12, v12, v13")
        A(f"s_mul_i32 s66, s{S_W}, {4*PART_STRIDE}", f"s_add_u32 s66, s66, {PARTQ}", "v_add_u32 v12, s66, v12")
        A("v_lshlrev_b32 v14, 5, v11", "v_add_u32 v14, v14, v13", "v_add_u32 v14, s66, v14", "v_add_u32 v14, 1024, v14")
        A("s_waitcnt lgkmcnt(0)")
        A.srd(SRD_WS, 32, 268435456)
        self.mode_announce("A")
        self.weight_touch(242)
        A("v_cmp_gt_u32 s[74:75], 16, v10")
        def reads(s_, ks):
            buf = (s_ * 4 + ks) & 1
            out = [(f"ds_read_b128 {v(XF + (s_*4+ks)*4, 4)}, v{VA+ks}", ("x", s_, ks))]
            for nt in range(4):
                part, sub = nt >> 1, nt & 1
                for a_ in range(2):
                    off = 16384 + part * 8192 + (16 * ks + 4 * a_) * 128
                    out.append((f"ds_read_b64_tr_b16 {v(WF + buf*16 + nt*4 + 2*a_, 2)}, v{VW+sub} offset:{off}", ("w", s_, ks, nt)))
            return out
        A("s_barrier")
        self.stamp(1)
        for ins, tag in reads(0, 0): lg.issue(ins, tag)
        for s_ in range(8):
            for ks in range(4):
                nxt = (s_, ks + 1) if ks < 3 else ((s_ + 1, 0) if s_ < 7 else None)
                if ks == 3 and s_ < 7:
                    A("s_barrier")
                    d = SLOT if (s_ + 1) % NSLOT != 0 else -(NSLOT - 1) * SLOT
                    for r in list(range(VA, VA + 4)) + [VW, VW + 1]:
                        A(f"v_add_u32 v{r}, {d & 0xffffffff:#x}, v{r}")
                nr = reads(*nxt) if nxt else []
                buf = (s_ * 4 + ks) & 1
                xf = v(XF + (s_ * 4 + ks) * 4, 4)
                for nt in range(4):
                    if nt == 0: lg.need(("x", s_, ks), ("w", s_, ks, 0))
                    else: lg.need(("w", s_, ks, nt))
                    A(f"v_mfma_f32_32x32x16_bf16 {v(ACC+16*nt,16)}, {xf}, {v(WF+buf*16+nt*4,4)}, {v(ACC+16*nt,16)}")
                    if nr:
                        for ins, tag in (nr[0:3] if nt == 0 else nr[1 + 2*nt: 3 + 2*nt]):
                            lg.issue(ins, tag)
        self.stamp(2)
        A("s_waitcnt vmcnt(0)")
        A(f"s_mov_b32 s64, {EPS:#x}", f"s_mov_b32 s65, {EPS:#x}")
        for i in range(4): A(f"v_mov_b32 v{TMP+8+i}, 0x3f803f80")
        A("s_nop 3")
        ONES = TMP + 8
        def kvm(hp):
            kv = ACC + 16 * hp; z = ACC + 32 + 16 * hp
            A(f"v_mfma_f32_32x32x16_bf16 {v(kv,16)}, {v(WF+8*hp,4)}, {v(WF+16+8*hp,4)}, 0")
            A(f"v_mfma_f32_32x32x16_bf16 {v(z,16)}, {v(WF+8*hp,4)}, {v(ONES,4)}, 0")
            A(f"v_mfma_f32_32x32x16_bf16 {v(kv,16)}, {v(WF+8*hp+4,4)}, {v(WF+16+8*hp+4,4)}, {v(kv,16)}")
            A(f"v_mfma_f32_32x32x16_bf16 {v(z,16)}, {v(WF+8*hp+4,4)}, {v(ONES,4)}, {v(z,16)}")
        def vpack(hp):
            for i in range(0, 16, 2):
                A(f"v_cvt_pk_bf16_f32 v{WF+16+8*hp+i//2}, v{ACC+32+16*hp+i}, v{ACC+33+16*hp+i}")
        def pwrite(hp):
            kv = ACC + 16 * hp; z = ACC + 32 + 16 * hp
            T0 = WF + 16 * hp if False else XF_FREE
            for j in range(8):
                A(f"v_cndmask_b32 v{T0+j}, v{kv+8+j}, v{kv+j}, s[74:75]")
            for j in range(8):
                A(f"v_cndmask_b32 v{T0+8+j}, v{z+8+j}, v{z+j}, s[74:75]")
            A(f"ds_write_b128 v12, {v(T0,4)} offset:{hp*2*PART_STRIDE}")
            A(f"ds_write_b128 v12, {v(T0+4,4)} offset:{hp*2*PART_STRIDE+16}")
            A("s_mov_b64 s[66:67], exec", "s_mov_b32 exec_lo, 0x00010001", "s_mov_b32 exec_hi, 0x00010001")
            A(f"ds_write_b128 v14, {v(T0+8,4)} offset:{hp*2*PART_STRIDE}")
            A(f"ds_write_b128 v14, {v(T0+12,4)} offset:{hp*2*PART_STRIDE+16}")
            A("s_mov_b64 exec, s[66:67]")
        self.phi_pack(ACC, 16, WF, TMP)
        vpack(0)
        A("s_nop 1")
        kvm(0)
        self.phi_pack(ACC + 16, 16, WF + 8, TMP)
        vpack(1)
        A("s_nop 1")
        kvm(1)
        XF_FREE = WF
        A("s_nop 1")
        pwrite(0)
        A("s_waitcnt lgkmcnt(0)")
        A("s_nop 4")
        pwrite(1)
        A("s_waitcnt lgkmcnt(0)")
        self.stamp(3)
        A("s_barrier")
        self.mode_load("A", 250)
        for i in range(32): A(f"v_mov_b32 v{ACC+i}, 0")
        lg = Lgkm(A)
        NB = 4
        def qreads(step):
            idx, ks = step >> 2, step & 3
            a9, u = idx >> 2, idx & 3
            b = WF + (step % NB) * 8
            out = []
            for sub in range(2):
                for a_ in range(2):
                    off = a9 * SLOT + u * 8192 + (16 * ks + 4 * a_) * 128
                    out.append((f"ds_read_b64_tr_b16 {v(b + sub*4 + 2*a_, 2)}, v{2+sub} offset:{off}", ("q", step, sub)))
            return out
        for st in range(3):
            for ins, tag in qreads(st): lg.issue(ins, tag)
        for step in range(32):
            b = WF + (step % NB) * 8
            xf = v(XF + step * 4, 4)
            nr = qreads(step + 3) if step + 3 < 32 else []
            for sub in range(2):
                lg.need(("q", step, sub))
                A(f"v_mfma_f32_32x32x16_bf16 {v(ACC+16*sub,16)}, {v(b+4*sub,4)}, {xf}, {v(ACC+16*sub,16)}")
                for ins, tag in nr[2*sub:2*sub+2]: lg.issue(ins, tag)
        self.stamp(4)
        A(f"s_mov_b32 s64, {EPS:#x}", f"s_mov_b32 s65, {EPS:#x}")
        for i in range(32): A(f"v_mov_b32 v{P2ACC+i}, 0")
        self.phi_pack(ACC, 16, WF, TMP)
        self.phi_pack(ACC + 16, 16, WF + 8, TMP)
        A("v_lshlrev_b32 v13, 4, v11", "v_add_u32 v13, v13, v10", "v_lshlrev_b32 v13, 4, v13")
        A("v_lshlrev_b32 v15, 4, v11", "v_add_u32 v15, 512, v15", "v_cndmask_b32 v13, v15, v13, s[74:75]", f"v_add_u32 v13, {FIN}, v13")
        A("v_lshlrev_b32 v12, 4, v0")
        A(f"s_lshl_b32 s64, s{S_RT}, 2", f"s_add_u32 s64, s64, s{S_W}", "s_lshl_b32 s64, s64, 5", f"s_lshl_b32 s65, s{S_G}, 2", "s_add_u32 s64, s64, s65", "s_lshl_b32 s64, s64, 10")
        A("s_waitcnt vmcnt(0)")
        self.mode_resolve("A", 250, "qc")
        self.stamp(5)
        A("s_barrier")
        self.stamp(6)
        for hl in range(4):
            A(f"ds_read_b128 {v(WF+16+4*hl,4)}, v13 offset:{hl*1024}")
        for hl in range(4):
            hp, a_ = hl >> 1, hl & 1
            A(f"s_waitcnt lgkmcnt({3-hl})")
            A(f"v_mfma_f32_32x32x16_bf16 {v(ACC+16*hl,16)}, {v(WF+16+4*hl,4)}, {v(WF+8*hp+4*a_,4)}, 0")
        A("s_nop 7")
        for hl in range(4):
            d = ACC + 16 * hl
            if hl == 3: A("s_nop 3")
            A(f"v_add_f32 v{d+8}, {EPS:#x}, v{d+8}")
        for hl in range(4):
            A(f"v_rcp_f32 v{ACC+16*hl+8}, v{ACC+16*hl+8}")
        A("s_nop 0")
        for hl in range(4):
            d = ACC + 16 * hl
            for j in range(0, 8, 2):
                A(f"v_pk_mul_f32 v[{d+j}:{d+j+1}], v[{d+j}:{d+j+1}], v[{d+8}:{d+9}] op_sel_hi:[1,0]")
            for j in range(4):
                A(f"v_cvt_pk_bf16_f32 v{d+12+j}, v{d+2*j}, v{d+2*j+1}")
        lf, lj = L("o_fast"), L("o_j")
        A("s_cmp_eq_u32 s73, 1", f"s_cbranch_scc1 {lf}")
        for hl in range(4):
            A(f"buffer_store_dwordx4 {v(ACC+16*hl+12,4)}, v12, {WSr}, s64 offen offset:{hl*1024} sc1")
        A(f"s_branch {lj}")
        A.label(lf)
        for hl in range(4):
            A(f"buffer_store_dwordx4 {v(ACC+16*hl+12,4)}, v12, {WSr}, s64 offen offset:{hl*1024} {FASTF}")
        A.label(lj)
        A("s_waitcnt vmcnt(0)")
        self.stamp(7)
        A("s_barrier")
        A("s_barrier")

    def bu_compute(self):
        A, L = self.A, self.L
        RE, IM, AF, BF = 16, 48, 80, 144
        C = 160
        lg = Lgkm(A)
        A("v_and_b32 v10, 15, v0", "v_lshrrev_b32 v11, 4, v0")
        A(f"s_lshl_b32 s64, s{S_G}, 6", f"s_lshl_b32 s65, s{S_W}, 4", "s_add_u32 s64, s64, s65", "s_lshl_b32 s64, s64, 1")
        A("v_lshlrev_b32 v12, 1, v10")
        A("v_lshrrev_b32 v13, 1, v10", "v_xor_b32 v13, v13, v11", "v_lshlrev_b32 v13, 4, v13", "v_lshlrev_b32 v14, 7, v10", "v_add_u32 v4, v13, v14")
        A("v_xor_b32 v5, 64, v4")
        A(f"s_lshl_b32 s65, s{S_W}, 11", "s_add_u32 s65, s65, 16384")
        A("v_add_u32 v6, s65, v4", "v_add_u32 v7, s65, v5")
        for i in range(64): A(f"v_mov_b32 v{RE+i}, 0")
        A("s_waitcnt lgkmcnt(0)")
        A.srd(SRD_WS, 32, 268435456)
        A.srd(SRD_T0, 12, 1024); A.srd(SRD_T1, 14, 1024); A.srd(SRD_T2, 24, 1024)
        A(f"buffer_load_ushort v{C}, v12, {R4(SRD_T0)}, s64 offen")
        A(f"buffer_load_ushort v{C+1}, v12, {R4(SRD_T1)}, s64 offen")
        A(f"buffer_load_ushort v{C+2}, v12, {R4(SRD_T2)}, s64 offen")
        A("s_waitcnt vmcnt(0)")
        self.mode_announce("B")
        self.weight_touch(240)
        self.lam_code(C, C + 8)
        A(f"v_mov_b32 v166, v{C+3}", f"v_mov_b32 v167, v{C+4}")
        A("v_add_f32 v163, -1.0, v163")
        A("v_mul_f32 v168, v160, v160", "v_fma_f32 v168, v161, v161, v168", "v_rcp_f32 v168, v168")
        A("v_mul_f32 v169, v163, v160", "v_fma_f32 v169, v167, v161, v169")
        A("v_mul_f32 v170, v167, v160", "v_fma_f32 v170, -v163, v161, v170")
        A("v_add_f32 v168, v168, v168")
        A("v_mul_f32 v164, v169, v168", "v_mul_f32 v165, v170, v168")
        self.csq(174, 166, 176); self.csq(178, 174, 176); self.csq(174, 178, 176); self.csq(168, 174, 176)
        self.csq(170, 168, 176); self.csq(174, 170, 176); self.csq(172, 174, 176)
        def reads(s_, k2):
            buf = (s_ * 2 + k2) & 1
            out = [(f"ds_read_b128 {v(BF + buf*8, 4)}, v{6+k2} offset:0", ("b", s_, k2, 0)),
                   (f"ds_read_b128 {v(BF + buf*8 + 4, 4)}, v{6+k2} offset:8192", ("b", s_, k2, 1))]
            for mt in range(8):
                out.append((f"ds_read_b128 {v(AF + buf*32 + mt*4, 4)}, v{4+k2} offset:{mt*2048}", ("a", s_, k2, mt)))
            return out
        A("s_barrier")
        self.stamp(1)
        for ins, tag in reads(0, 0): lg.issue(ins, tag)
        for s_ in range(8):
            for k2 in range(2):
                nxt = (s_, 1) if k2 == 0 else ((s_ + 1, 0) if s_ < 7 else None)
                if k2 == 1 and s_ < 7:
                    A("s_barrier")
                    d = SLOT if (s_ + 1) % NSLOT != 0 else -(NSLOT - 1) * SLOT
                    for r in range(4, 8):
                        A(f"v_add_u32 v{r}, {d & 0xffffffff:#x}, v{r}")
                nr = reads(*nxt) if nxt else []
                if nxt is None:
                    nr = []
                buf = (s_ * 2 + k2) & 1
                for mt in range(8):
                    if mt == 0: lg.need(("b", s_, k2, 0), ("b", s_, k2, 1), ("a", s_, k2, 0))
                    else: lg.need(("a", s_, k2, mt))
                    af = v(AF + buf*32 + mt*4, 4)
                    A(f"v_mfma_f32_16x16x32_bf16 {v(RE+4*mt,4)}, {af}, {v(BF+buf*8,4)}, {v(RE+4*mt,4)}")
                    A(f"v_mfma_f32_16x16x32_bf16 {v(IM+4*mt,4)}, {af}, {v(BF+buf*8+4,4)}, {v(IM+4*mt,4)}")
                    if nr:
                        for ins, tag in (nr[0:3] if mt == 0 else [nr[2 + mt]]):
                            lg.issue(ins, tag)
                    if nxt is None and mt == 0:
                        A(f"v_mov_b32 v12, {NONCE}")
                        lg.issue("ds_read_b64 v[230:231], v12", "nonce")
        self.stamp(2)
        def pr(base, sg): return base + 4 * (sg >> 1) + 2 * (sg & 1)
        E0, E1_ = 180, 184
        Lr = "v[166:167]"
        def step(dre, dim, sre, sim, ure, uim, M=Lr):
            A(f"v_pk_fma_f32 v[{dre}:{dre+1}], v[{sre}:{sre+1}], {M}, v[{ure}:{ure+1}] op_sel_hi:[1,0,1]")
            A(f"v_pk_fma_f32 v[{dim}:{dim+1}], v[{sim}:{sim+1}], {M}, v[{uim}:{uim+1}] op_sel_hi:[1,0,1]")
            A(f"v_pk_fma_f32 v[{dre}:{dre+1}], v[{sim}:{sim+1}], {M}, v[{dre}:{dre+1}] op_sel:[0,1,0] op_sel_hi:[1,1,1] neg_lo:[0,1,0] neg_hi:[0,1,0]")
            A(f"v_pk_fma_f32 v[{dim}:{dim+1}], v[{sre}:{sre+1}], {M}, v[{dim}:{dim+1}] op_sel:[0,1,0] op_sel_hi:[1,1,1]")
        A(f"s_lshl_b32 s64, s{S_G}, 4", f"s_add_u32 s64, s64, s{S_RT}", "s_lshl_b32 s64, s64, 6", f"s_lshl_b32 s65, s{S_W}, 4", "s_add_u32 s64, s64, s65", "s_lshl_b32 s64, s64, 4", f"s_add_u32 s64, s64, {WS['ES']}")
        A("v_lshlrev_b32 v13, 4, v10", "v_lshlrev_b32 v12, 2, v10")
        cur = (pr(RE, 0), pr(IM, 0))
        for sg in range(1, 16):
            d = E0 if sg & 1 else E1_
            step(d, d + 2, cur[0], cur[1], pr(RE, sg), pr(IM, sg))
            cur = (d, d + 2)
        er, ei = cur
        self.cfma(188, 189, 168, 169, er, ei, er + 1, ei + 1)
        for qq in range(4):
            A(f"v_add_u32 v{14 + (qq&1)}, {64*qq}, v12")
            A(f"ds_bpermute_b32 v{190+2*qq}, v{14 + (qq&1)}, v188", f"ds_bpermute_b32 v{191+2*qq}, v{14 + (qq&1)}, v189")
        A("s_waitcnt lgkmcnt(0)")
        self.cfma(198, 199, 170, 171, 190, 191, 192, 193)
        self.cfma(200, 201, 170, 171, 198, 199, 194, 195)
        self.cfma(228, 229, 170, 171, 200, 201, 196, 197)
        A("s_mov_b64 s[66:67], exec", "s_mov_b64 exec, 0xffff")
        A(f"buffer_store_dwordx4 v[228:231], v13, {WSr}, s64 offen sc1")
        A("s_mov_b64 exec, s[66:67]")
        self.stamp(3)
        A("s_barrier")
        self.skip_issue()
        self.mode_load("B", 224)
        K2 = "v[164:165]"
        for sg in range(16):
            r_, i_ = pr(RE, sg), pr(IM, sg)
            A(f"v_pk_mul_f32 v[232:233], v[{i_}:{i_+1}], {K2} op_sel:[0,1] op_sel_hi:[1,1]")
            A(f"v_pk_mul_f32 v[234:235], v[{r_}:{r_+1}], {K2} op_sel:[0,1] op_sel_hi:[1,1]")
            A(f"v_pk_fma_f32 v[{r_}:{r_+1}], v[{r_}:{r_+1}], {K2}, v[232:233] op_sel_hi:[1,0,1] neg_lo:[0,0,1] neg_hi:[0,0,1]")
            A(f"v_pk_fma_f32 v[{i_}:{i_+1}], v[{i_}:{i_+1}], {K2}, v[234:235] op_sel_hi:[1,0,1]")
        self.stamp(4)
        A(f"s_lshl_b32 s64, s{S_G}, 10", f"s_lshl_b32 s65, s{S_W}, 4", "s_add_u32 s64, s64, s65", "s_lshl_b32 s64, s64, 4", f"s_add_u32 s64, s64, {WS['ES']}")
        A("v_lshlrev_b32 v13, 4, v10")
        GB = 16 + 64 + 0
        def greg(j):
            if j < 8: return 80 + 4 * j
            if j < 12: return 144 + 4 * (j - 8)
            return 212 + 4 * (j - 12)
        lp, lgd, lok, lhd = L("e_poll"), L("e_gd"), L("e_ok"), L("e_hd")
        A(f"s_mov_b32 s72, {POLL_LIMIT}")
        A.label(lp)
        A("s_mov_b32 s65, s64")
        for j in range(15):
            A(f"s_cmp_le_u32 s{S_RT}, {j}", f"s_cbranch_scc1 {lgd}")
            A(f"buffer_load_dwordx4 v[{greg(j)}:{greg(j)+3}], v13, {WSr}, s65 offen sc1")
            if j < 14: A("s_add_u32 s65, s65, 1024")
        A.label(lgd)
        A("v_mov_b32 v204, 0", "v_mov_b32 v205, 0", "v_mov_b32 v236, 0")
        A("s_waitcnt vmcnt(0)")
        for j in range(15):
            A(f"s_cmp_le_u32 s{S_RT}, {j}", f"s_cbranch_scc1 {lhd}")
            A(f"v_xor_b32 v237, v230, v{greg(j)+2}", f"v_xor_b32 v238, v231, v{greg(j)+3}")
            self.cfma(206, 207, 172, 173, 204, 205, greg(j), greg(j) + 1)
            A("v_or3_b32 v236, v236, v237, v238")
            A("v_mov_b32 v204, v206", "v_mov_b32 v205, v207")
        A.label(lhd)
        A("v_cmp_ne_u32 vcc, 0, v236")
        A("s_sub_u32 s72, s72, 1", f"s_cbranch_scc1 {lok}")
        A(f"s_cbranch_vccnz {lp}")
        A.label(lok)
        self.mode_resolve("B", 224, "bc")
        self.stamp(5)
        self.cfma(198, 199, 170, 171, 204, 205, 190, 191)
        self.cfma(200, 201, 170, 171, 198, 199, 192, 193)
        self.cfma(202, 203, 170, 171, 200, 201, 194, 195)
        for qq, (sr, si) in enumerate(((198, 199), (200, 201), (202, 203)), start=1):
            A(f"v_cmp_eq_u32 vcc, {qq}, v11", "s_nop 1")
            A(f"v_cndmask_b32 v204, v204, v{sr}, vcc", f"v_cndmask_b32 v205, v205, v{si}, vcc")
        self.cfma(206, 207, 168, 169, 204, 205, er, ei)
        def cmul(dr, di, ar, ai):
            A(f"v_mul_f32 v{dr}, v{ar}, v164", f"v_mul_f32 v{di}, v{ar}, v165")
            A(f"v_fma_f32 v{dr}, -v{ai}, v165, v{dr}", f"v_fma_f32 v{di}, v{ai}, v164, v{di}")
        cmul(208, 210, 204, 205)
        cmul(209, 211, 206, 207)
        A(f"s_lshl_b32 s64, s{S_W}, 13", f"s_add_u32 s64, s64, {MISC}")
        A("v_lshlrev_b32 v12, 6, v11", "v_lshlrev_b32 v13, 4, v10", "v_xor_b32 v12, v12, v13", "v_lshlrev_b32 v13, 8, v10", "v_add_u32 v12, v12, v13", "v_add_u32 v12, s64, v12")
        for c in range(1, 4): A(f"v_xor_b32 v{212+c}, {16*c}, v12")
        A("v_bfe_u32 v13, v0, 4, 1", "v_lshlrev_b32 v13, 5, v13", "v_and_b32 v14, 3, v0", "v_lshlrev_b32 v14, 3, v14", "v_add_u32 v13, v13, v14")
        A("v_bfe_u32 v14, v0, 2, 2", "v_lshlrev_b32 v15, 4, v14", "v_xor_b32 v13, v13, v15", "v_lshlrev_b32 v14, 8, v14", "v_add_u32 v13, v13, v14")
        A("v_lshrrev_b32 v14, 5, v0", "v_lshlrev_b32 v14, 12, v14", "v_add_u32 v13, v13, v14", "v_add_u32 v13, s64, v13")
        cur = (208, 210)
        def pack(pl_, c):
            base, neg = (RE, "") if pl_ == 0 else (IM, "-")
            for j in range(4):
                sg = 8 * (c & 1) + 2 * j
                r0, r1 = pr(base, sg) + (c >> 1), pr(base, sg + 1) + (c >> 1)
                A(f"v_cvt_pk_bf16_f32 v{80 + 16*pl_ + 4*c + j}, {neg}v{r0}, {neg}v{r1}")
            A(f"ds_write_b128 v{12 if c == 0 else 212+c}, {v(80 + 16*pl_ + 4*c, 4)} offset:{pl_*4096}")
        for sg in range(16):
            d = (pr(RE, sg), pr(IM, sg))
            step(d[0], d[1], cur[0], cur[1], d[0], d[1])
            cur = d
            if sg == 8:
                for pl_ in range(2):
                    pack(pl_, 0); pack(pl_, 2)
        self.stamp(6)
        for pl_ in range(2):
            pack(pl_, 1); pack(pl_, 3)
        A(f"s_lshl_b32 s64, s{S_RT}, 8", f"s_lshl_b32 s65, s{S_G}, 3", "s_add_u32 s64, s64, s65", f"s_lshl_b32 s65, s{S_W}, 1", "s_add_u32 s64, s64, s65", "s_lshl_b32 s64, s64, 10", f"s_add_u32 s64, s64, {WS['H']}")
        A("v_lshlrev_b32 v12, 4, v0")
        A("s_waitcnt lgkmcnt(0)")
        for rb in range(4):
            for ksl in range(2):
                for a_ in range(2):
                    off = (8 * ksl + 4 * a_) * 256 + ((64 * rb) ^ (128 * ksl + 64 * a_))
                    A(f"ds_read_b64_tr_b16 {v(16 + (rb*2+ksl)*4 + 2*a_, 2)}, v13 offset:{off}")
        lf, lj = L("h_fast"), L("h_j")
        A("s_cmp_eq_u32 s73, 1", f"s_cbranch_scc1 {lf}")
        for fl in ("sc1", FASTF + " "):
            if fl != "sc1": A.label(lf)
            A("s_mov_b32 s65, s64")
            for rb in range(4):
                A(f"s_waitcnt lgkmcnt({min(15, 12-4*rb)})")
                for ksl in range(2):
                    A(f"buffer_store_dwordx4 {v(16 + (rb*2+ksl)*4, 4)}, v12, {WSr}, s65 offen offset:{ksl*1024} {fl}")
                if rb < 3: A("s_add_u32 s65, s65, 0x10000")
            if fl == "sc1": A(f"s_branch {lj}")
        A.label(lj)
        self.stamp(7)
        self.skip_finish()
        for r in range(16):
            A(f"v_mov_b32 v{P2ACC+r}, v{XS+r}", f"v_mov_b32 v{P2ACC+16+r}, 0")
        A("s_waitcnt vmcnt(0)")
        self.stamp(8)
        A("s_barrier")
        A("s_barrier")

    def p2(self, role):
        A, L = self.A, self.L
        self.stamp(9)
        nk = 32 if role == "A" else 64
        nst = nk // 2
        abase = WS["O"] if role == "A" else WS["H"]
        ACC, BF, AF = P2ACC, 48, 80
        NBUF, LA = 4, 7
        A(f"s_lshr_b32 s64, s{S_WAVE}, 2", f"s_and_b32 s65, s{S_WAVE}, 3")
        A("v_lshlrev_b32 v2, 4, v0")
        A(f"s_lshl_b32 s66, s{S_RT}, 2", "s_add_u32 s66, s66, s65", f"s_mul_i32 s66, s66, {nk*1024}")
        A(f"s_mul_i32 s67, s64, {nst*1024}", "s_add_u32 s66, s66, s67", f"s_add_u32 s66, s66, {abase}")
        def aload(k):
            A(f"buffer_load_dwordx4 {v(AF + 4*(k % 8), 4)}, v2, {WSr}, s66 offen offset:{(k % 4)*1024}")
            if k % 4 == 3: A("s_add_u32 s66, s66, 4096")
        for k in range(LA): aload(k)
        A("v_and_b32 v5, 31, v0", "v_lshrrev_b32 v6, 5, v0")
        A(f"s_lshl_b32 s68, s{S_RT}, 7", "s_lshl_b32 s69, s65, 5", "s_add_u32 s68, s68, s69")
        A(f"s_lshl_b32 s69, s{S_G}, 6", "s_lshl_b32 s70, s64, 5", "s_add_u32 s69, s69, s70")
        lg = Lgkm(A)
        if role == "A":
            A("v_lshlrev_b32 v12, 2, v6", "v_bfe_u32 v13, v0, 2, 2", "v_add_u32 v12, v12, v13", "v_lshlrev_b32 v12, 7, v12")
            A("v_bfe_u32 v13, v0, 3, 1", "v_lshlrev_b32 v13, 6, v13", "v_add_u32 v12, v12, v13")
            A("v_bfe_u32 v13, v0, 4, 1", "v_lshlrev_b32 v13, 5, v13", "v_add_u32 v12, v12, v13")
            A("v_and_b32 v13, 3, v0", "v_lshlrev_b32 v13, 3, v13", "v_add_u32 v12, v12, v13")
            A("s_lshl_b32 s70, s64, 15", f"s_add_u32 s70, s70, {WOIMG}", "v_add_u32 v3, s70, v12", "v_xor_b32 v4, 64, v3")
            def bread(k):
                b = BF + 8 * (k % NBUF)
                for cb in range(2):
                    for a_ in range(2):
                        lg.issue(f"ds_read_b64_tr_b16 {v(b + 4*cb + 2*a_, 2)}, v{3+cb} offset:{(16*k + 8*a_)*128}", ("b", k))
        else:
            A("v_lshlrev_b32 v12, 16, v6", "v_lshlrev_b32 v13, 10, v5", "v_add_u32 v12, v12, v13")
            A("v_and_b32 v13, 15, v5", "v_lshlrev_b32 v13, 4, v13", "v_add_u32 v12, v12, v13")
            A("s_lshl_b32 s70, s64, 9", "v_add_u32 v3, s70, v12")
            def bread(k):
                b = BF + 8 * (k % NBUF)
                t = 8 + (k % 4)
                A(f"v_xor_b32 v{t}, {(k & 15) * 16}, v3")
                for cb in range(2):
                    lg.issue(f"ds_read_b128 {v(b + 4*cb, 4)}, v{t} offset:{(k >> 4) * 256 + cb * 32768}", ("b", k))
        for k in range(NBUF - 1): bread(k)
        self.stamp(10)
        for k in range(nst):
            if k + LA < nst: aload(k + LA)
            if k + NBUF - 1 < nst: bread(k + NBUF - 1)
            rem = min(nst - 1 - k, LA)
            A(f"s_waitcnt vmcnt({rem})")
            lg.need(("b", k))
            b = BF + 8 * (k % NBUF)
            A(f"v_mfma_f32_32x32x16_bf16 {v(ACC,16)}, {v(AF+4*(k%8),4)}, {v(b,4)}, {v(ACC,16)}")
            A(f"v_mfma_f32_32x32x16_bf16 {v(ACC+16,16)}, {v(AF+4*(k%8),4)}, {v(b+4,4)}, {v(ACC+16,16)}")
        self.stamp(11)
        A(f"s_lshl_b32 s70, s{S_WAVE}, 12", f"s_add_u32 s70, s70, {MISC}", "v_add_u32 v9, s70, v2")
        A(f"s_xor_b32 s71, s{S_WAVE}, 4", "s_lshl_b32 s71, s71, 12", f"s_add_u32 s71, s71, {MISC}", "v_add_u32 v10, s71, v2")
        A("s_lshl_b32 s68, s68, 12", "s_lshl_b32 s69, s69, 2", "s_add_u32 s68, s68, s69")
        if role == "B": A("s_add_u32 s68, s68, 2048")
        A("v_lshlrev_b32 v11, 14, v6", "v_lshlrev_b32 v12, 2, v5", "v_add_u32 v11, v11, v12")
        A.srd(SRD_T0, 28, 8388608)
        lk, lj = L(f"kh1_{role}"), L(f"join_{role}")
        A("s_cmp_eq_u32 s64, 1", f"s_cbranch_scc1 {lk}")
        for i in range(4): A(f"ds_write_b128 v9, {v(ACC+16+4*i,4)} offset:{i*1024}")
        A(f"s_mov_b32 s71, 0")
        A(f"s_branch {lj}")
        A.label(lk)
        for i in range(4): A(f"ds_write_b128 v9, {v(ACC+4*i,4)} offset:{i*1024}")
        A("s_nop 1")
        for i in range(16): A(f"v_mov_b32 v{ACC+i}, v{ACC+16+i}")
        A.label(lj)
        A("s_waitcnt lgkmcnt(0)")
        A("s_barrier")
        for i in range(4): A(f"ds_read_b128 {v(48+4*i,4)}, v10 offset:{i*1024}")
        for i in range(4):
            A(f"s_waitcnt lgkmcnt({3-i})")
            for r in range(4*i, 4*i+4, 2):
                A(f"v_pk_add_f32 v[{ACC+r}:{ACC+r+1}], v[{ACC+r}:{ACC+r+1}], v[{48+r}:{49+r}]")
            for r in range(4*i, 4*i+4):
                row = (r & 3) + 8 * (r >> 2)
                A(f"s_add_u32 s69, s68, {row*4096}")
                A(f"buffer_store_dword v{ACC+r}, v11, {R4(SRD_T0)}, s69 offen {OUTF}")
        self.stamp(12)
        self.write_stamps()
        A("s_endpgm")

def build(out, stamps=False):
    A = Asm()
    K = NAME + "_kernel"
    A.raw(HEADER_COMMENT + f"; @launch grid=(256,1,1) block=(512,1,1) lds={LDS_BYTES}\n" + '.amdgcn_target "amdgcn-amd-amdhsa--gfx950"\n')
    G(A, K, stamps).gen()
    A.kernel_desc(K, 256, accum=256)
    open(out, "w").write(A.text())

if __name__ == "__main__":
    build(sys.argv[1], stamps=(len(sys.argv) > 2 and sys.argv[2] == "stamps"))
```

```python
import sys
sys.path.insert(0, "gen"); sys.path.insert(0, "scratch")
from asmlib import *
WS = dict(O=0x000000, H=0x200000, KVP=0x600000, ES=0x700000, FLG=0x740000, ST=0x900000)
LDS_BYTES = 163840
SLOT = 32768
NSLOT = 5
MISC = 4 * SLOT
PART_STRIDE = 1152
PARTQ = 0
FIN = 20480
WOIMG = SLOT
NONCE = MISC + 24576 + 64
NONCEQ = 28672
LOG2E = 0x3FB8AA3B
EPS = 0x358637BD
INV2PI = 0x3E22F983
POLL_LIMIT = 1 << 18
EXP = set(a for a in sys.argv[3:])
OUTF = 'nt'
FASTF = 'nt' if 'fnt' in EXP else 'sc0' if 'fsc0' in EXP else 'sc0 nt' if 'fsc0nt' in EXP else ''

S_W, S_WAVE, S_XCD, S_SLOT, S_RT, S_G, S_ROT = 3, 34, 35, 36, 37, 38, 39
SRD_X, SRD_W, SRD_WS, SRD_T0, SRD_T1, SRD_T2, SRD_T3 = 40, 44, 48, 52, 56, 60, 96
NON = 78
P2ACC, XS, XD = 128, 112, 239
def R4(n): return f"s[{n}:{n+3}]"
def creg(R, i):
    n = R * 8 + i
    return 24 + 4 * n if n < 22 else 160 + 4 * (n - 22)
WSr = R4(SRD_WS)

class G:
    def __init__(self, A, K, stamps):
        self.A, self.K, self.stamps = A, K, stamps
    def L(self, n): return f"{self.K}_{n}"
    def stamp(self, i):
        if self.stamps:
            if 'pro' in EXP and 9 <= i <= 12 and not getattr(self, 'inpro', False): return
            if 'stg' in EXP and 3 <= i <= 12 and not getattr(self, 'instg', False): return
            self.A("s_memtime s[100:101]", "s_waitcnt lgkmcnt(0)", f"s_mov_b32 s{80+i}, s100")
    def sstamp(self, i):
        if 'stg' in EXP:
            self.instg = True
            self.A("s_memtime s[100:101]")
            self.A("s_waitcnt lgkmcnt(0)", f"s_mov_b32 s{80+i}, s100")
            self.instg = False
    def pstamp(self, i):
        if 'pro' in EXP:
            self.inpro = True; self.stamp(i); self.inpro = False
    def write_stamps(self):
        A = self.A
        if not self.stamps: return
        A("s_waitcnt vmcnt(0) lgkmcnt(0)")
        self.stamp(13)
        A("s_memrealtime s[100:101]", "s_waitcnt lgkmcnt(0)", "s_mov_b32 s95, s100")
        for j in range(16): A(f"v_mov_b32 v{16+j}, s{80+j}")
        A("s_lshl_b32 s64, s2, 3", f"s_add_u32 s64, s64, s{S_WAVE}", "s_lshl_b32 s64, s64, 6", f"s_add_u32 s64, s64, {WS['ST']}", "v_mov_b32 v2, s64")
        A("v_cmp_eq_u32 vcc, 0, v0", "s_and_saveexec_b64 s[66:67], vcc")
        for j in range(4):
            A(f"buffer_store_dwordx4 v[{16+4*j}:{19+4*j}], v2, {WSr}, 0 offen offset:{16*j}")

    def gen(self):
        A, L = self.A, self.L
        A.kernel_begin(self.K)
        A.label(L("start"))
        if self.stamps:
            for j in range(16): A(f"s_mov_b32 s{80+j}, 0")
            A("s_memrealtime s[100:101]", "s_waitcnt lgkmcnt(0)", "s_mov_b32 s94, s100")
            self.stamp(0)
        A("s_cmp_ge_u32 s2, 256", f"s_cbranch_scc1 {L('end')}")
        A("s_load_dwordx4 s[4:7], s[0:1], 0", "s_load_dwordx4 s[8:11], s[0:1], 16", "s_load_dwordx4 s[16:19], s[0:1], 48")
        if 'nocode' not in EXP:
            lc = L("nocode")
            A("s_getpc_b64 s[64:65]")
            A.label(L("pcref"))
            A(f"s_lshr_b32 s66, s2, 3", "s_mul_i32 s66, s66, 9", "v_add_u32 v2, s66, v0", "v_lshlrev_b32 v2, 7, v2")
            A(f"v_cmp_gt_u32 vcc, 9, v0", "s_and_saveexec_b64 s[66:67], vcc", f"s_cbranch_execz {lc}")
            A(f"v_min_u32 v2, {L('end')}-{L('pcref')}, v2")
            A("global_load_dword v255, v2, s[64:65]")
            A.label(lc)
            A("s_mov_b64 exec, s[66:67]")
        A("v_lshrrev_b32 v1, 6, v0", "v_and_b32 v0, 63, v0")
        A(f"v_readfirstlane_b32 s{S_WAVE}, v1")
        A(f"s_and_b32 s{S_XCD}, s2, 7", f"s_lshr_b32 s{S_SLOT}, s2, 3")
        A(f"s_and_b32 s64, s{S_XCD}, 3", f"s_lshl_b32 s{S_RT}, s64, 2", f"s_and_b32 s65, s{S_SLOT}, 3", f"s_add_u32 s{S_RT}, s{S_RT}, s65")
        A(f"s_lshr_b32 s{S_G}, s{S_SLOT}, 2")
        A("s_lshl_b32 s65, s65, 1", f"s_add_u32 s{S_ROT}, s{S_G}, s65", "s_and_b32 s64, s64, 1", f"s_add_u32 s{S_ROT}, s{S_ROT}, s64", f"s_and_b32 s{S_ROT}, s{S_ROT}, 7")
        A(f"s_and_b32 s{S_W}, s{S_WAVE}, 3")
        A(f"s_cmp_lt_u32 s{S_WAVE}, 4", f"s_cbranch_scc1 {L('compute')}")
        self.loader_prologue()
        A(f"s_cmp_ge_u32 s{S_XCD}, 4", f"s_cbranch_scc1 {L('bu_load')}")
        self.loader("qkv")
        A.label(L("p2A"))
        self.p2("A")
        A.label(L("bu_load"))
        self.loader("bu")
        A.label(L("p2B"))
        self.p2("B")
        A.label(L("compute"))
        self.rest_kernargs()
        A(f"s_cmp_ge_u32 s{S_XCD}, 4", f"s_cbranch_scc1 {L('bu')}")
        self.qkv_compute()
        A(f"s_branch {L('p2A')}")
        A.label(L("bu"))
        self.bu_compute()
        A(f"s_branch {L('p2B')}")
        A.label(L("end"))
        A("s_endpgm")

    def rest_kernargs(self):
        A = self.A
        A("s_load_dwordx4 s[12:15], s[0:1], 32", "s_load_dwordx4 s[20:23], s[0:1], 64", "s_load_dwordx4 s[24:27], s[0:1], 80")
        A("s_load_dwordx4 s[28:31], s[0:1], 96", "s_load_dwordx2 s[32:33], s[0:1], 112")

    def loader_prologue(self):
        A, L = self.A, self.L
        A("v_lshrrev_b32 v5, 3, v0", "v_and_b32 v6, 7, v0", "v_lshrrev_b32 v7, 4, v0")
        A("v_xor_b32 v8, v6, v7", "v_lshlrev_b32 v8, 4, v8")
        A("v_lshlrev_b32 v2, 10, v5", "v_add_u32 v2, v2, v8", "v_xor_b32 v3, 64, v2")
        A(f"s_lshl_b32 s70, s{S_W}, 12")
        lb, lj = L("pro_b"), L("pro_j")
        A(f"s_cmp_ge_u32 s{S_XCD}, 4", f"s_cbranch_scc1 {lb}")
        A("v_and_b32 v9, 1, v7", "v_lshlrev_b32 v9, 2, v9", "v_xor_b32 v9, v6, v9", "v_lshlrev_b32 v9, 4, v9")
        A("v_mul_u32_u24 v4, 3072, v5", "v_add_u32 v4, v4, v9", "v_lshlrev_b32 v12, 10, v5", "v_add_u32 v12, v12, v9")
        A("v_mov_b32 v20, v2", "v_mov_b32 v21, v3", "v_mov_b32 v22, v4", "v_mov_b32 v23, v4", "v_mov_b32 v11, v3")
        A(f"s_lshl_b32 s64, s{S_RT}, 7", f"s_lshl_b32 s65, s{S_W}, 5", "s_add_u32 s64, s64, s65", "s_lshl_b32 s68, s64, 10")
        A(f"s_mul_i32 s69, s{S_W}, {16*3072}", f"s_lshl_b32 s65, s{S_G}, 7", "s_add_u32 s69, s69, s65")
        A(f"s_mov_b32 s76, {64*3072}", "s_lshr_b32 s71, s70, 1")
        A("s_movk_i32 s52, 0x2000", "s_movk_i32 s53, 0x4000")
        A("s_movk_i32 s56, 0x2000")
        A("s_movk_i32 s60, 1024", "s_movk_i32 s61, 25600", "s_movk_i32 s62, 2048", "s_movk_i32 s63, 26624")
        A("s_waitcnt lgkmcnt(0)")
        A.srd(SRD_X, 4, 2097152); A.srd(SRD_W, 6, 1572864)
        A(f"s_branch {lj}")
        A.label(lb)
        A("v_lshrrev_b32 v9, 5, v0", "v_lshlrev_b32 v9, 5, v9", "v_and_b32 v10, 1, v5", "v_lshlrev_b32 v10, 4, v10", "v_add_u32 v9, v9, v10")
        A("v_and_b32 v10, 1, v7", "v_add_u32 v9, v9, v10", "v_lshlrev_b32 v4, 10, v9", "v_add_u32 v4, v4, v8", "v_xor_b32 v11, 64, v4")
        A("v_mov_b32 v20, v4", "v_mov_b32 v21, v11", "v_mov_b32 v22, v2", "v_mov_b32 v23, v3", "v_mov_b32 v12, v2")
        A(f"s_lshl_b32 s64, s{S_RT}, 7", f"s_lshl_b32 s65, s{S_W}, 2", "s_add_u32 s64, s64, s65", "s_lshl_b32 s68, s64, 10")
        A(f"s_lshl_b32 s64, s{S_G}, 6", f"s_and_b32 s65, s{S_W}, 1", "s_lshl_b32 s65, s65, 5", "s_add_u32 s64, s64, s65", "s_lshl_b32 s69, s64, 10")
        A("s_movk_i32 s76, 128", "s_mov_b32 s71, s70")
        A("s_mov_b32 s52, 0x10000", "s_movk_i32 s53, 0x800")
        A("s_movk_i32 s56, 0x800")
        A("s_movk_i32 s60, 0", "s_movk_i32 s61, 0x2000", "s_movk_i32 s62, 0x4000", "s_movk_i32 s63, 0x6000")
        A("s_waitcnt lgkmcnt(0)")
        A.srd(SRD_X, 10, 2097152)
        A(f"s_cmp_lt_u32 s{S_W}, 2", "s_cselect_b32 s64, s16, s18", "s_cselect_b32 s65, s17, s19")
        A.srd(SRD_W, 64, 524288)
        A.label(lj)
        A("s_add_u32 s54, s52, s53", "s_add_u32 s57, s56, 1024")
        self.pstamp(10)
        X, W = R4(SRD_X), R4(SRD_W)
        for st in range(2):
            slot = st * SLOT
            A(f"s_add_u32 s64, s{S_ROT}, {st}", "s_and_b32 s64, s64, 7")
            A("s_lshl_b32 s65, s64, 7", "s_add_u32 s65, s65, s68", "s_mul_i32 s66, s64, s76", "s_add_u32 s66, s66, s69")
            xo = [None, "s52", "s53", "s54"]
            for ii in range(4):
                A(f"s_add_u32 m0, s70, {slot + ii*1024}")
                A(f"s_add_u32 s67, s65, {xo[ii]}" if xo[ii] else "s_mov_b32 s67, s65")
                A(f"buffer_load_dwordx4 v{20 + (ii&1)}, {X}, s67 offen lds")
            A(f"s_add_u32 s72, s71, {slot + 16384}")
            wl = ["0", "1024", "s56", "s57"]
            for ii in range(4):
                A(f"s_add_u32 m0, s72, {wl[ii]}", f"s_add_u32 s67, s66, s{60+ii}")
                A(f"buffer_load_dwordx4 v{22 + (ii&1)}, {W}, s67 offen lds")
            self.pstamp(11 + st)
        self.rest_kernargs()

    def poll_lines(self, tag, nl, sbase, stride_log2, R=8):
        A, L = self.A, self.L
        lp, done = L(f"poll_{tag}"), L(f"polld_{tag}")
        A(f"s_mov_b32 s72, {POLL_LIMIT}")
        A(f"v_lshlrev_b32 v{R+2}, {stride_log2}, v0")
        A("s_mov_b64 s[74:75], exec", f"s_mov_b64 exec, {(1 << nl) - 1:#x}")
        A.label(lp)
        A(f"buffer_load_dwordx2 v[{R}:{R+1}], v{R+2}, {WSr}, s{sbase} offen sc1")
        A("s_waitcnt vmcnt(0)")
        A(f"v_xor_b32 v{R}, s{NON}, v{R}", f"v_xor_b32 v{R+1}, s{NON+1}, v{R+1}", f"v_or_b32 v{R}, v{R}, v{R+1}")
        A(f"v_cmp_ne_u32 vcc, 0, v{R}")
        A("s_sub_u32 s72, s72, 1")
        A(f"s_cbranch_scc1 {done}")
        A(f"s_cbranch_vccz {done}")
        A(f"s_branch {lp}")
        A.label(done)
        A("s_mov_b64 exec, s[74:75]")

    def store_flag(self, sbase, tag, R=8):
        A, L = self.A, self.L
        A(f"v_mov_b32 v{R}, s{NON}", f"v_mov_b32 v{R+1}, s{NON+1}", f"v_mov_b32 v{R+2}, 0")
        A("s_mov_b64 s[74:75], exec", "s_mov_b64 exec, 1")
        lf, lj = L(f"sf_fast_{tag}"), L(f"sf_j_{tag}")
        A("s_cmp_eq_u32 s73, 1", f"s_cbranch_scc1 {lf}")
        A(f"buffer_store_dwordx2 v[{R}:{R+1}], v{R+2}, {WSr}, s{sbase} offen sc1")
        A(f"s_branch {lj}")
        A.label(lf)
        A(f"buffer_store_dwordx2 v[{R}:{R+1}], v{R+2}, {WSr}, s{sbase} offen")
        A.label(lj)
        A("s_mov_b64 exec, s[74:75]")

    def skip_issue(self, vm=None):
        A = self.A
        A(f"s_lshr_b32 s64, s{S_WAVE}, 2")
        A(f"s_lshl_b32 s68, s{S_RT}, 7", f"s_lshl_b32 s69, s{S_W}, 5", "s_add_u32 s68, s68, s69")
        A(f"s_lshl_b32 s69, s{S_G}, 6", "s_lshl_b32 s70, s64, 5", "s_add_u32 s69, s69, s70")
        A.srd(SRD_T0, 10, 2097152); A.srd(SRD_T1, 26, 1024)
        A("s_lshl_b32 s70, s68, 10", "s_lshl_b32 s71, s69, 1", "s_add_u32 s70, s70, s71")
        A("v_and_b32 v8, 31, v0", "v_lshrrev_b32 v7, 5, v0", "v_lshlrev_b32 v7, 12, v7", "v_lshlrev_b32 v8, 1, v8", "v_add_u32 v7, v7, v8")
        for r in range(16):
            if r % 4 == 0 and r > 0: A("s_add_u32 s70, s70, 8192")
            ins = f"buffer_load_ushort v{XS+r}, v7, {R4(SRD_T0)}, s70 offen offset:{(r%4)*1024}"
            vm.issue(ins, "skip") if vm else A(ins)
        ins = f"buffer_load_ushort v{XD}, v8, {R4(SRD_T1)}, s71 offen"
        vm.issue(ins, "skip") if vm else A(ins)

    def skip_finish(self):
        A = self.A
        A(f"v_lshlrev_b32 v{XD}, 16, v{XD}")
        for r in range(16): A(f"v_lshlrev_b32 v{XS+r}, 16, v{XS+r}")
        for r in range(16): A(f"v_mul_f32 v{XS+r}, v{XS+r}, v{XD}")
        for r in range(0, 16, 2): A(f"v_cvt_pk_bf16_f32 v{XS+r}, v{XS+r}, v{XS+r+1}")
        for r in range(0, 16, 2):
            A(f"v_and_b32 v{XS+r+1}, 0xffff0000, v{XS+r}", f"v_lshlrev_b32 v{XS+r}, 16, v{XS+r}")

    def mode_announce(self, role, R=240):
        A, L = self.A, self.L
        lx = L(f"ann_{role}")
        A(f"s_cmp_lg_u32 s{S_W}, 0", f"s_cbranch_scc1 {lx}")
        A("s_getreg_b32 s64, hwreg(HW_REG_XCC_ID, 0, 3)", "s_lshl_b32 s64, 1, s64", f"s_lshl_b32 s65, 0x100, s{S_G}", "s_or_b32 s64, s64, s65")
        A(f"s_add_u32 s65, s{S_RT}, {0 if role == 'A' else 16}", "s_lshl_b32 s65, s65, 2")
        A(f"v_mov_b32 v{R}, s64", f"v_mov_b32 v{R+1}, s65")
        A.srd(SRD_T3, 30, 256)
        A("s_mov_b64 s[66:67], exec", "s_mov_b64 exec, 1")
        A(f"buffer_atomic_or v{R}, v{R+1}, {R4(SRD_T3)}, 0 offen sc1")
        A("s_mov_b64 exec, s[66:67]")
        A.label(lx)

    def mode_load(self, role, R):
        A = self.A
        A(f"s_add_u32 s65, s{S_RT}, {0 if role == 'A' else 16}", "s_lshl_b32 s65, s65, 2", f"v_mov_b32 v{R+1}, s65")
        A.srd(SRD_T3, 30, 256)
        A(f"buffer_load_dword v{R}, v{R+1}, {R4(SRD_T3)}, 0 offen sc1")

    def mode_resolve(self, role, R, tag):
        A, L = self.A, self.L
        lp, ok = L(f"mode_lp_{tag}"), L(f"mode_ok_{tag}")
        A(f"s_mov_b32 s72, {POLL_LIMIT}")
        A.label(lp)
        A(f"v_readfirstlane_b32 s73, v{R}", "s_nop 3")
        A("s_and_b32 s71, s73, 0xff00", "s_cmp_eq_u32 s71, 0xff00", f"s_cbranch_scc1 {ok}")
        A("s_sub_u32 s72, s72, 1", f"s_cbranch_scc1 {ok}")
        A(f"buffer_load_dword v{R}, v{R+1}, {R4(SRD_T3)}, 0 offen sc1", "s_waitcnt vmcnt(0)", f"s_branch {lp}")
        A.label(ok)
        A("s_and_b32 s70, s73, 0xff", "s_bcnt1_i32_b32 s70, s70", "s_cmp_eq_u32 s70, 1", "s_cselect_b32 s73, 1, 0")
        A("s_cmp_eq_u32 s71, 0xff00", "s_cselect_b32 s73, s73, 0")
        if 'slow' in EXP: A("s_mov_b32 s73, 0")

    def flag_touch(self, role, R):
        A = self.A
        self.flag_addr(role, 64)
        A(f"s_lshl_b32 s65, s{S_G}, 7", "s_add_u32 s64, s64, s65", f"v_mov_b32 v{R}, 0")
        A("s_mov_b64 s[74:75], exec", "s_mov_b64 exec, 1")
        A(f"buffer_load_dword v{R+1}, v{R}, {WSr}, s64 offen sc1")
        A("s_mov_b64 exec, s[74:75]")

    def weight_touch(self, R):
        A = self.A
        if 'nowt' in EXP: return
        A("s_lshl_b32 s64, s2, 2", f"s_add_u32 s64, s64, s{S_W}", "s_mul_i32 s64, s64, 12")
        A(f"v_add_u32 v{R}, s64, v0", f"v_lshlrev_b32 v{R}, 7, v{R}")
        A.srd(SRD_T0, 8, 524288); A.srd(SRD_T1, 20, 524288); A.srd(SRD_T2, 22, 524288)
        A("s_mov_b64 s[74:75], exec", "s_mov_b64 exec, 0xfff")
        A(f"buffer_load_dword v{R+1}, v{R}, {R4(SRD_T0)}, 0 offen sc1")
        A(f"v_subrev_u32 v{R+2}, 0x80000, v{R}")
        A(f"buffer_load_dword v{R+1}, v{R+2}, {R4(SRD_T1)}, 0 offen sc1")
        A(f"v_subrev_u32 v{R+2}, 0x100000, v{R}")
        A(f"buffer_load_dword v{R+1}, v{R+2}, {R4(SRD_T2)}, 0 offen sc1")
        A("s_mov_b64 exec, s[74:75]")

    def loader(self, role):
        A, L = self.A, self.L
        last = 9 if role == "qkv" else 7
        vm = Vm(A)
        vm.q = [('st', 0)] * 8 + [('st', 1)] * 8
        X, W = R4(SRD_X), R4(SRD_W)
        def issue(st):
            slot = (st % NSLOT) * SLOT
            tag = ("st", st)
            if st >= 8:
                a = st - 8
                A(f"s_add_u32 s64, s{S_ROT}, s{S_W}", f"s_add_u32 s64, s64, {4*a}", "s_and_b32 s64, s64, 7")
                A(f"s_mul_i32 s64, s64, {64*3072}", f"s_lshl_b32 s65, s{S_G}, 7", "s_add_u32 s64, s64, s65")
                A("s_lshl_b32 s66, s70, 1")
                for i in range(8):
                    A(f"s_add_u32 m0, s66, {slot + i*1024}", f"s_add_u32 s67, s64, {i*8*3072}")
                    vm.issue(f"buffer_load_dwordx4 v4, {W}, s67 offen lds", tag)
                return
            A(f"s_add_u32 s64, s{S_ROT}, {st}", "s_and_b32 s64, s64, 7")
            A("s_lshl_b32 s65, s64, 7", "s_add_u32 s65, s65, s68")
            if role == "qkv":
                A(f"s_mul_i32 s66, s64, {64*3072}", "s_add_u32 s66, s66, s69")
                for ii in range(4):
                    A(f"s_add_u32 m0, s70, {slot + ii*1024}", f"s_add_u32 s67, s65, {ii*8192}")
                    vm.issue(f"buffer_load_dwordx4 v{2 + (ii&1)}, {X}, s67 offen lds", tag)
                A("s_lshr_b32 s71, s70, 1")
                for part in range(2):
                    for ii in range(2):
                        A(f"s_add_u32 m0, s71, {slot + 16384 + part*8192 + ii*1024}", f"s_add_u32 s67, s66, {ii*8*3072 + (1+part)*1024}")
                        vm.issue(f"buffer_load_dwordx4 v4, {W}, s67 offen lds", tag)
            else:
                A("s_lshl_b32 s66, s64, 7", "s_add_u32 s66, s66, s69")
                for ii in range(4):
                    A(f"s_add_u32 m0, s70, {slot + ii*1024}", f"s_add_u32 s67, s65, {(64*(ii&1) + 2*(ii>>1))*1024}")
                    vm.issue(f"buffer_load_dwordx4 v{4 if (ii&1)==0 else 11}, {X}, s67 offen lds", tag)
                for ii in range(4):
                    A(f"s_add_u32 m0, s70, {slot + 16384 + ii*1024}", f"s_add_u32 s67, s66, {ii*8192}")
                    vm.issue(f"buffer_load_dwordx4 v{2 + (ii&1)}, {W}, s67 offen lds", tag)
        def cregion(R):
            part = R >> 1
            A.srd(SRD_T0, 20 + 2 * part, 524288)
            A(f"s_lshl_b32 s64, s{S_G}, 6", f"s_lshl_b32 s65, s{S_W}, 3", "s_add_u32 s64, s64, s65", f"s_add_u32 s64, s64, {32*(R&1)}", "s_lshl_b32 s64, s64, 10")
            A(f"s_and_b32 s66, s{S_W}, 1", "s_lshl_b32 s66, s66, 7", "v_lshlrev_b32 v13, 4, v0", "v_xor_b32 v13, s66, v13")
            for i in range(8):
                A(f"v_xor_b32 v{14+(i&1)}, {i*16}, v13")
                A(f"s_add_u32 s67, s64, {i*1024}")
                vm.issue(f"buffer_load_dwordx4 {v(creg(R, i),4)}, v{14+(i&1)}, {R4(SRD_T0)}, s67 offen", ("c", R))
        self.cregion = cregion
        self.vm = vm
        A("s_waitcnt lgkmcnt(0)")
        A.srd(SRD_WS, 32, 268435456)
        if role == "qkv":
            ln = L("nononce")
            A("s_cmp_lg_u32 s2, 0", f"s_cbranch_scc1 {ln}", f"s_cmp_lg_u32 s{S_WAVE}, 4", f"s_cbranch_scc1 {ln}")
            A("s_memrealtime s[76:77]", "s_waitcnt lgkmcnt(0)", "s_or_b32 s76, s76, 1")
            A("v_mov_b32 v14, s76", "v_mov_b32 v15, s77", "v_mov_b32 v13, 0")
            A.srd(SRD_T0, 30, 256)
            A("s_mov_b64 s[74:75], exec", "s_mov_b64 exec, 1")
            A(f"buffer_store_dwordx2 v[14:15], v13, {R4(SRD_T0)}, 0 offen offset:128 sc1")
            A("s_mov_b64 exec, s[74:75]")
            A("s_waitcnt vmcnt(0)")
            A.label(ln)
        self.stamp(1)
        sched = {0: [2], 1: [3], 2: [4], 3: [5], 4: [6], 5: [7], 6: [8], 7: [9]} if 'l3' not in EXP else {0: [2], 1: [3], 2: [4, 5], 3: [6], 4: [7], 5: [8], 6: [9], 7: []}
        for st in range(8):
            vm.need(("st", st))
            if st == 7:
                self.get_nonce(role)
            A("s_barrier")
            if st == 0: self.stamp(2)
            for x in sched[st]:
                if x <= last: issue(x)
            if role == "bu" and st == 7:
                for R_ in range(2): cregion(R_)
            if st == 4:
                A(f"s_load_dwordx2 s[{NON}:{NON+1}], s[30:31], 128")
        if role == "qkv": self.qkv_loader_tail()
        else: self.bu_loader_tail()

    def get_nonce(self, role):
        A, L = self.A, self.L
        ok, lp = L(f"nok_{role}"), L(f"nlp_{role}")
        A("s_waitcnt lgkmcnt(0)")
        A(f"s_cmp_lg_u32 s{NON}, 0", f"s_cbranch_scc1 {ok}")
        A.srd(SRD_T0, 30, 256)
        A(f"s_mov_b32 s72, {POLL_LIMIT}", "v_mov_b32 v13, 0")
        A.label(lp)
        A(f"buffer_load_dwordx2 v[14:15], v13, {R4(SRD_T0)}, 0 offen offset:128 sc1", "s_waitcnt vmcnt(0)")
        A(f"v_readfirstlane_b32 s{NON}, v14", f"v_readfirstlane_b32 s{NON+1}, v15", "s_nop 3")
        A("s_sub_u32 s72, s72, 1", f"s_cbranch_scc1 {ok}")
        A(f"s_cmp_lg_u32 s{NON}, 0", f"s_cbranch_scc1 {ok}", "s_sleep 2", f"s_branch {lp}")
        A.label(ok)
        if role == "bu":
            A(f"v_mov_b32 v14, s{NON}", f"v_mov_b32 v15, s{NON+1}", f"v_mov_b32 v13, {NONCE}")
            A("ds_write_b64 v13, v[14:15]", "s_waitcnt lgkmcnt(0)")

    def qkv_loader_tail(self):
        A, L, vm = self.A, self.L, self.vm
        A(f"v_mov_b32 v14, s{NON}", f"v_mov_b32 v15, s{NON+1}", f"v_mov_b32 v13, {NONCEQ}")
        A("ds_write_b64 v13, v[14:15]")
        vm.need(("st", 9))
        A("s_waitcnt lgkmcnt(0)")
        self.stamp(3)
        A("s_barrier")
        A("s_setprio 3")
        self.stamp(4)
        A("v_mul_u32_u24 v7, 24, v0", f"s_mul_i32 s64, s{S_W}, {PART_STRIDE}", "v_add_u32 v7, s64, v7")
        for w in range(4):
            for j in range(3):
                A(f"ds_read_b64 v[{16+6*w+2*j}:{17+6*w+2*j}], v7 offset:{PARTQ + w*4*PART_STRIDE + 8*j}")
        A("v_lshlrev_b32 v3, 4, v0")
        A(f"s_lshl_b32 s64, s{S_G}, 4", f"s_add_u32 s64, s64, s{S_RT}", "s_lshl_b32 s64, s64, 2", f"s_add_u32 s64, s64, s{S_W}", "s_lshl_b32 s64, s64, 10", f"s_add_u32 s64, s64, {WS['KVP']}")
        A(f"v_mov_b32 v51, s{NON}")
        A("s_waitcnt lgkmcnt(6)")
        for j in range(0, 6, 2):
            A(f"v_pk_add_f32 v[{16+j}:{17+j}], v[{16+j}:{17+j}], v[{22+j}:{23+j}]")
        A("s_waitcnt lgkmcnt(0)")
        for j in range(0, 6, 2):
            A(f"v_pk_add_f32 v[{28+j}:{29+j}], v[{28+j}:{29+j}], v[{34+j}:{35+j}]")
        for j in range(0, 6, 2):
            A(f"v_pk_add_f32 v[{16+j}:{17+j}], v[{16+j}:{17+j}], v[{28+j}:{29+j}]")
        for j in range(3):
            A(f"v_cvt_pk_bf16_f32 v{48+j}, v{16+2*j}, v{17+2*j}")
        A("s_mov_b64 s[66:67], exec", "s_mov_b32 exec_lo, -1", "s_mov_b32 exec_hi, 0x3fff")
        A(f"buffer_store_dwordx4 v[48:51], v3, {WSr}, s64 offen sc1")
        self.stamp(5)
        A("s_mov_b64 exec, s[66:67]")
        A.srd(SRD_T0, 8, 524288)
        A(f"s_lshl_b32 s64, s{S_W}, 17", f"s_lshl_b32 s65, s{S_G}, 7", "s_add_u32 s64, s64, s65")
        A(f"s_lshl_b32 s65, s{S_W}, 14")
        for i in range(16):
            A(f"s_add_u32 m0, s65, {WOIMG + i*1024}", f"s_add_u32 s69, s64, {i*8192}")
            A(f"buffer_load_dwordx4 v12, {R4(SRD_T0)}, s69 offen lds")
        if 'kvd' in EXP: A("s_waitcnt vmcnt(0)")
        A("s_mov_b32 exec_lo, -1", "s_mov_b32 exec_hi, 0x3fff")
        A(f"s_lshl_b32 s68, s{S_G}, 6", f"s_add_u32 s68, s68, s{S_W}", "s_lshl_b32 s68, s68, 10", f"s_add_u32 s68, s68, {WS['KVP']}")
        lp, ok = L("kv_poll"), L("kv_ok")
        A(f"s_mov_b32 s72, {POLL_LIMIT}")
        first = True
        A.label(lp)
        A("s_mov_b32 s64, s68")
        for r in range(16):
            A(f"buffer_load_dwordx4 v[{64+4*r}:{67+4*r}], v3, {WSr}, s64 offen sc1")
            if r < 15: A("s_add_u32 s64, s64, 4096")
        A("s_waitcnt vmcnt(0)")
        A(f"v_xor_b32 v52, s{NON}, v67")
        for r in range(1, 16):
            A(f"v_xor_b32 v53, s{NON}, v{67+4*r}", "v_or_b32 v52, v52, v53")
        A("v_cmp_ne_u32 vcc, 0, v52")
        A("s_sub_u32 s72, s72, 1", f"s_cbranch_scc1 {ok}")
        A(f"s_cbranch_vccnz {lp}")
        A.label(ok)
        self.stamp(6)
        A("s_mov_b64 exec, s[66:67]")
        for j in range(6): A(f"v_mov_b32 v{16+j}, 0")
        A("v_mov_b32 v24, 0x00003f80", "v_mov_b32 v25, 0x3f800000")
        for r in range(16):
            for j in range(3):
                A(f"v_dot2c_f32_bf16 v{16+2*j}, v{64+4*r+j}, v24")
                A(f"v_dot2c_f32_bf16 v{17+2*j}, v{64+4*r+j}, v25")
        A("s_nop 2")
        for j in range(3):
            A(f"v_cvt_pk_bf16_f32 v{48+j}, v{16+2*j}, v{17+2*j}")
        A("v_mul_u32_u24 v4, 12, v0", f"s_lshl_b32 s66, s{S_W}, 10", f"s_add_u32 s66, s66, {FIN}", "v_add_u32 v4, s66, v4")
        A("s_mov_b64 s[66:67], exec", "s_mov_b32 exec_lo, -1", "s_mov_b32 exec_hi, 0x3fff")
        for j in range(3): A(f"ds_write_b32 v4, v{48+j} offset:{4*j}")
        A("s_mov_b64 exec, s[66:67]")
        A("s_waitcnt lgkmcnt(0)")
        self.stamp(7)
        A("s_barrier")
        A("s_setprio 0")
        for i in range(32): A(f"v_mov_b32 v{P2ACC+i}, 0")
        A("s_waitcnt vmcnt(0)")
        self.stamp(8)
        self.p1p2_sync("A")

    def bu_loader_tail(self):
        A, L, vm = self.A, self.L, self.vm
        self.stamp(3)
        A("s_barrier")
        self.cregion(2); self.cregion(3)
        self.skip_issue(vm)
        A("v_lshlrev_b32 v13, 4, v0", f"s_lshl_b32 s65, s{S_W}, 13", "v_add_u32 v13, s65, v13")
        for R_ in range(4):
            vm.need(("c", R_))
            if R_ == 2: A("v_add_u32 v13, 0x10000, v13")
            for i in range(8):
                A(f"ds_write_b128 v13, {v(creg(R_, i),4)} offset:{(R_&1)*SLOT + i*1024}")
        A("s_waitcnt lgkmcnt(0)")
        vm.drain()
        self.skip_finish()
        for r in range(16):
            A(f"v_mov_b32 v{P2ACC+r}, 0", f"v_mov_b32 v{P2ACC+16+r}, v{XS+r}")
        self.stamp(4)
        self.p1p2_sync("B")

    def flag_addr(self, role, dst):
        A = self.A
        A(f"s_add_u32 s{dst}, s{S_RT}, {0 if role == 'A' else 16}", f"s_lshl_b32 s{dst}, s{dst}, 10", f"s_add_u32 s{dst}, s{dst}, {WS['FLG']}")

    def wave_flag(self, role, vn):
        A = self.A
        self.flag_addr(role, 64)
        A(f"s_lshl_b32 s65, s{S_G}, 7", "s_add_u32 s64, s64, s65", f"s_lshl_b32 s65, s{S_W}, 3", "s_add_u32 s64, s64, s65", "v_mov_b32 v12, 0")
        A("s_mov_b64 s[74:75], exec", "s_mov_b64 exec, 1")
        lf, lj = self.L(f"wf_fast_{role}"), self.L(f"wf_j_{role}")
        A("s_cmp_eq_u32 s73, 1", f"s_cbranch_scc1 {lf}")
        A(f"buffer_store_dwordx2 v[{vn}:{vn+1}], v12, {WSr}, s64 offen sc1")
        A(f"s_branch {lj}")
        A.label(lf)
        A(f"buffer_store_dwordx2 v[{vn}:{vn+1}], v12, {WSr}, s64 offen")
        A.label(lj)
        A("s_mov_b64 exec, s[74:75]")

    def p1p2_sync(self, role):
        A, L = self.A, self.L
        lx = L(f"sync_{role}")
        A(f"s_cmp_lg_u32 s{S_W}, 0", f"s_cbranch_scc1 {lx}")
        self.flag_addr(role, 64)
        lp, done = L(f"fpoll_{role}"), L(f"fpolld_{role}")
        A(f"s_mov_b32 s72, {POLL_LIMIT}")
        A("v_lshrrev_b32 v10, 2, v0", "v_lshlrev_b32 v10, 7, v10", "v_and_b32 v11, 3, v0", "v_lshlrev_b32 v11, 3, v11", "v_add_u32 v10, v10, v11")
        A("s_mov_b64 s[74:75], exec", "s_mov_b32 exec_hi, 0")
        A.label(lp)
        A(f"buffer_load_dwordx2 v[8:9], v10, {WSr}, s64 offen sc1")
        A("s_waitcnt vmcnt(0)")
        A(f"v_xor_b32 v8, s{NON}, v8", f"v_xor_b32 v9, s{NON+1}, v9", "v_or_b32 v8, v8, v9")
        A("v_cmp_ne_u32 vcc, 0, v8")
        A("s_sub_u32 s72, s72, 1", f"s_cbranch_scc1 {done}")
        A(f"s_cbranch_vccnz {lp}")
        A.label(done)
        A("s_mov_b64 exec, s[74:75]")
        A.label(lx)
        A("s_barrier")

    def phi_pack(self, acc, n, dst, T):
        A = self.A
        for base in range(0, n, 8):
            for i in range(0, 8, 2):
                A(f"v_pk_mul_f32 v[{T+i}:{T+i+1}], v[{acc+base+i}:{acc+base+i+1}], s[76:77]")
            for i in range(8):
                A(f"v_exp_f32_e64 v{T+i}, v{T+i} clamp")
            for i in range(8):
                A(f"v_max_f32 v{acc+base+i}, 0, v{acc+base+i}")
            for i in range(0, 8, 2):
                A(f"v_pk_add_f32 v[{acc+base+i}:{acc+base+i+1}], v[{acc+base+i}:{acc+base+i+1}], v[{T+i}:{T+i+1}]")
            for i in range(0, 8, 2):
                A(f"v_pk_add_f32 v[{acc+base+i}:{acc+base+i+1}], v[{acc+base+i}:{acc+base+i+1}], s[64:65]")
            for i in range(0, 8, 2):
                A(f"v_cvt_pk_bf16_f32 v{dst+(base+i)//2}, v{acc+base+i}, v{acc+base+i+1}")

    def lam_code(self, P, T):
        A = self.A
        A(f"v_lshlrev_b32 v{P}, 16, v{P}", f"v_lshlrev_b32 v{P+1}, 16, v{P+1}", f"v_lshlrev_b32 v{P+2}, 16, v{P+2}")
        A(f"v_mul_f32 v{T}, {LOG2E:#x}, v{P+2}", f"v_exp_f32 v{T}, v{T}", "s_nop 0")
        A(f"v_cvt_pk_bf16_f32 v{T}, v{T}, v{T}", f"v_lshlrev_b32 v{T}, 16, v{T}")
        A(f"v_mul_f32 v{T+1}, v{T}, v{P}", f"v_mul_f32 v{T+2}, v{T}, v{P+1}")
        A(f"v_mul_f32 v{T+1}, {LOG2E:#x}, v{T+1}", f"v_mul_f32 v{T+2}, {INV2PI:#x}, v{T+2}")
        A(f"v_exp_f32 v{T+1}, v{T+1}", f"v_fract_f32 v{T+2}, v{T+2}", "s_nop 0")
        A(f"v_cos_f32 v{P+3}, v{T+2}", f"v_sin_f32 v{P+4}, v{T+2}", "s_nop 0")
        A(f"v_mul_f32 v{P+3}, v{P+3}, v{T+1}", f"v_mul_f32 v{P+4}, v{P+4}, v{T+1}")

    def csq(self, d, s_, t):
        A = self.A
        A(f"v_mul_f32 v{t}, v{s_+1}, v{s_+1}", f"v_mul_f32 v{d+1}, v{s_}, v{s_+1}")
        A(f"v_fma_f32 v{d}, v{s_}, v{s_}, -v{t}", f"v_add_f32 v{d+1}, v{d+1}, v{d+1}")

    def cfma(self, dr, di, ar, ai, br, bi, cr, ci):
        A = self.A
        A(f"v_fma_f32 v{dr}, v{ar}, v{br}, v{cr}", f"v_fma_f32 v{di}, v{ar}, v{bi}, v{ci}")
        A(f"v_fma_f32 v{dr}, -v{ai}, v{bi}, v{dr}", f"v_fma_f32 v{di}, v{ai}, v{br}, v{di}")

    def qkv_compute(self):
        A, L = self.A, self.L
        ACC, WF, XF, TMP = 16, 80, 112, 240
        VA, VW = 4, 8
        lg = Lgkm(A)
        A("v_and_b32 v10, 31, v0", "v_lshrrev_b32 v11, 5, v0")
        A(f"s_lshl_b32 s64, s{S_W}, 5", "v_add_u32 v12, s64, v10", "v_lshlrev_b32 v12, 7, v12")
        A("v_lshrrev_b32 v13, 1, v10", "v_and_b32 v13, 7, v13", "v_xor_b32 v13, v13, v11", "v_lshlrev_b32 v13, 4, v13")
        A(f"v_add_u32 v{VA}, v12, v13")
        for ks in range(1, 4): A(f"v_xor_b32 v{VA+ks}, {32*ks}, v{VA}")
        A("v_lshrrev_b32 v12, 5, v0", "v_lshlrev_b32 v12, 3, v12", "v_bfe_u32 v13, v0, 2, 2", "v_add_u32 v12, v12, v13", "v_lshlrev_b32 v12, 7, v12")
        A("v_bfe_u32 v13, v0, 3, 1", "v_lshlrev_b32 v13, 6, v13", "v_add_u32 v12, v12, v13")
        A("v_bfe_u32 v13, v0, 4, 1", "v_lshlrev_b32 v13, 5, v13", "v_add_u32 v12, v12, v13")
        A("v_and_b32 v13, 3, v0", "v_lshlrev_b32 v13, 3, v13", f"v_add_u32 v{VW}, v12, v13")
        A(f"v_xor_b32 v{VW+1}, 64, v{VW}")
        A(f"v_add_u32 v2, {3*SLOT}, v{VW}", f"v_add_u32 v3, {3*SLOT}, v{VW+1}")
        A(f"s_mov_b32 s76, {LOG2E:#x}", f"s_mov_b32 s77, {LOG2E:#x}")
        A("v_cmp_gt_u32 s[74:75], 16, v10")
        for i in range(64): A(f"v_mov_b32 v{ACC+i}, 0")
        A("v_and_b32 v12, 15, v10", "v_lshlrev_b32 v13, 4, v11", "v_add_u32 v12, v12, v13", "v_lshlrev_b32 v12, 5, v12")
        A("v_lshrrev_b32 v13, 4, v10", f"v_mul_u32_u24 v13, {PART_STRIDE}, v13", "v_add_u32 v12, v12, v13")
        A(f"s_mul_i32 s66, s{S_W}, {4*PART_STRIDE}", f"s_add_u32 s66, s66, {PARTQ}", "v_add_u32 v12, s66, v12")
        A("v_lshlrev_b32 v14, 5, v11", "v_add_u32 v14, v14, v13", "v_add_u32 v14, s66, v14", "v_add_u32 v14, 1024, v14")
        A("s_waitcnt lgkmcnt(0)")
        A.srd(SRD_WS, 32, 268435456)
        self.mode_announce("A")
        self.flag_touch("A", 245)
        self.weight_touch(242)
        A("v_cmp_gt_u32 s[74:75], 16, v10")
        def reads(s_, ks):
            buf = (s_ * 4 + ks) & 1
            out = [(f"ds_read_b128 {v(XF + (s_*4+ks)*4, 4)}, v{VA+ks}", ("x", s_, ks))]
            for nt in range(4):
                part, sub = nt >> 1, nt & 1
                for a_ in range(2):
                    off = 16384 + part * 8192 + (16 * ks + 4 * a_) * 128
                    out.append((f"ds_read_b64_tr_b16 {v(WF + buf*16 + nt*4 + 2*a_, 2)}, v{VW+sub} offset:{off}", ("w", s_, ks, nt)))
            return out
        A("s_barrier")
        self.stamp(1)
        for ins, tag in reads(0, 0): lg.issue(ins, tag)
        for s_ in range(8):
            for ks in range(4):
                nxt = (s_, ks + 1) if ks < 3 else ((s_ + 1, 0) if s_ < 7 else None)
                if ks == 3 and s_ < 7:
                    A("s_barrier")
                    self.sstamp(3 + s_)
                    d = SLOT if (s_ + 1) % NSLOT != 0 else -(NSLOT - 1) * SLOT
                    for r in list(range(VA, VA + 4)) + [VW, VW + 1]:
                        A(f"v_add_u32 v{r}, {d & 0xffffffff:#x}, v{r}")
                nr = reads(*nxt) if nxt else []
                buf = (s_ * 4 + ks) & 1
                xf = v(XF + (s_ * 4 + ks) * 4, 4)
                for nt in range(4):
                    if nt == 0: lg.need(("x", s_, ks), ("w", s_, ks, 0))
                    else: lg.need(("w", s_, ks, nt))
                    A(f"v_mfma_f32_32x32x16_bf16 {v(ACC+16*nt,16)}, {xf}, {v(WF+buf*16+nt*4,4)}, {v(ACC+16*nt,16)}")
                    if nr:
                        for ins, tag in (nr[0:3] if nt == 0 else nr[1 + 2*nt: 3 + 2*nt]):
                            lg.issue(ins, tag)
        self.stamp(2)
        A("s_waitcnt vmcnt(0)")
        A(f"s_mov_b32 s64, {EPS:#x}", f"s_mov_b32 s65, {EPS:#x}")
        for i in range(4): A(f"v_mov_b32 v{TMP+8+i}, 0x3f803f80")
        A("s_nop 3")
        ONES = TMP + 8
        def kvm(hp):
            kv = ACC + 16 * hp; z = ACC + 32 + 16 * hp
            A(f"v_mfma_f32_32x32x16_bf16 {v(kv,16)}, {v(WF+8*hp,4)}, {v(WF+16+8*hp,4)}, 0")
            A(f"v_mfma_f32_32x32x16_bf16 {v(z,16)}, {v(WF+8*hp,4)}, {v(ONES,4)}, 0")
            A(f"v_mfma_f32_32x32x16_bf16 {v(kv,16)}, {v(WF+8*hp+4,4)}, {v(WF+16+8*hp+4,4)}, {v(kv,16)}")
            A(f"v_mfma_f32_32x32x16_bf16 {v(z,16)}, {v(WF+8*hp+4,4)}, {v(ONES,4)}, {v(z,16)}")
        def vpack(hp):
            for i in range(0, 16, 2):
                A(f"v_cvt_pk_bf16_f32 v{WF+16+8*hp+i//2}, v{ACC+32+16*hp+i}, v{ACC+33+16*hp+i}")
        def pwrite(hp):
            kv = ACC + 16 * hp; z = ACC + 32 + 16 * hp
            T0 = WF + 16 * hp if False else XF_FREE
            for j in range(8):
                A(f"v_cndmask_b32 v{T0+j}, v{kv+8+j}, v{kv+j}, s[74:75]")
            for j in range(8):
                A(f"v_cndmask_b32 v{T0+8+j}, v{z+8+j}, v{z+j}, s[74:75]")
            A(f"ds_write_b128 v12, {v(T0,4)} offset:{hp*2*PART_STRIDE}")
            A(f"ds_write_b128 v12, {v(T0+4,4)} offset:{hp*2*PART_STRIDE+16}")
            A("s_mov_b64 s[66:67], exec", "s_mov_b32 exec_lo, 0x00010001", "s_mov_b32 exec_hi, 0x00010001")
            A(f"ds_write_b128 v14, {v(T0+8,4)} offset:{hp*2*PART_STRIDE}")
            A(f"ds_write_b128 v14, {v(T0+12,4)} offset:{hp*2*PART_STRIDE+16}")
            A("s_mov_b64 exec, s[66:67]")
        self.phi_pack(ACC, 16, WF, TMP)
        vpack(0)
        A("s_nop 1")
        kvm(0)
        self.phi_pack(ACC + 16, 16, WF + 8, TMP)
        vpack(1)
        A("s_nop 1")
        kvm(1)
        XF_FREE = WF
        A("s_nop 1")
        pwrite(0)
        A("s_waitcnt lgkmcnt(0)")
        A("s_nop 4")
        pwrite(1)
        A("s_waitcnt lgkmcnt(0)")
        self.stamp(3)
        A("s_barrier")
        self.mode_load("A", 250)
        for i in range(32): A(f"v_mov_b32 v{ACC+i}, 0")
        lg = Lgkm(A)
        NB = 4
        def qreads(step):
            idx, ks = step >> 2, step & 3
            a9, u = idx >> 2, idx & 3
            b = WF + (step % NB) * 8
            out = []
            for sub in range(2):
                for a_ in range(2):
                    off = a9 * SLOT + u * 8192 + (16 * ks + 4 * a_) * 128
                    out.append((f"ds_read_b64_tr_b16 {v(b + sub*4 + 2*a_, 2)}, v{2+sub} offset:{off}", ("q", step, sub)))
            return out
        for st in range(3):
            for ins, tag in qreads(st): lg.issue(ins, tag)
        for step in range(32):
            b = WF + (step % NB) * 8
            xf = v(XF + step * 4, 4)
            nr = qreads(step + 3) if step + 3 < 32 else []
            for sub in range(2):
                lg.need(("q", step, sub))
                A(f"v_mfma_f32_32x32x16_bf16 {v(ACC+16*sub,16)}, {v(b+4*sub,4)}, {xf}, {v(ACC+16*sub,16)}")
                for ins, tag in nr[2*sub:2*sub+2]: lg.issue(ins, tag)
        self.stamp(4)
        A(f"s_mov_b32 s64, {EPS:#x}", f"s_mov_b32 s65, {EPS:#x}")
        for i in range(32): A(f"v_mov_b32 v{P2ACC+i}, 0")
        self.phi_pack(ACC, 16, WF, TMP)
        self.phi_pack(ACC + 16, 16, WF + 8, TMP)
        A("v_lshlrev_b32 v13, 4, v11", "v_add_u32 v13, v13, v10", "v_lshlrev_b32 v13, 4, v13")
        A("v_lshlrev_b32 v15, 4, v11", "v_add_u32 v15, 512, v15", "v_cndmask_b32 v13, v15, v13, s[74:75]", f"v_add_u32 v13, {FIN}, v13")
        A("v_lshlrev_b32 v12, 4, v0")
        A(f"s_lshl_b32 s64, s{S_RT}, 2", f"s_add_u32 s64, s64, s{S_W}", "s_lshl_b32 s64, s64, 5", f"s_lshl_b32 s65, s{S_G}, 2", "s_add_u32 s64, s64, s65", "s_lshl_b32 s64, s64, 10")
        A("s_waitcnt vmcnt(0)")
        self.mode_resolve("A", 250, "qc")
        self.stamp(5)
        A("s_barrier")
        self.stamp(6)
        A(f"v_mov_b32 v15, {NONCEQ}", "ds_read_b64 v[250:251], v15")
        for hl in range(4):
            A(f"ds_read_b128 {v(WF+16+4*hl,4)}, v13 offset:{hl*1024}")
        for hl in range(4):
            hp, a_ = hl >> 1, hl & 1
            A(f"s_waitcnt lgkmcnt({3-hl})")
            A(f"v_mfma_f32_32x32x16_bf16 {v(ACC+16*hl,16)}, {v(WF+16+4*hl,4)}, {v(WF+8*hp+4*a_,4)}, 0")
        A("s_nop 7")
        for hl in range(4):
            d = ACC + 16 * hl
            if hl == 3: A("s_nop 3")
            A(f"v_add_f32 v{d+8}, {EPS:#x}, v{d+8}")
        for hl in range(4):
            A(f"v_rcp_f32 v{ACC+16*hl+8}, v{ACC+16*hl+8}")
        A("s_nop 0")
        for hl in range(4):
            d = ACC + 16 * hl
            for j in range(0, 8, 2):
                A(f"v_pk_mul_f32 v[{d+j}:{d+j+1}], v[{d+j}:{d+j+1}], v[{d+8}:{d+9}] op_sel_hi:[1,0]")
            for j in range(4):
                A(f"v_cvt_pk_bf16_f32 v{d+12+j}, v{d+2*j}, v{d+2*j+1}")
        for hl in range(4):
            A(f"buffer_store_dwordx4 {v(ACC+16*hl+12,4)}, v12, {WSr}, s64 offen offset:{hl*1024} sc1")
        A("s_waitcnt vmcnt(0)")
        self.wave_flag("A", 250)
        self.stamp(7)
        A("s_barrier")

    def bu_compute(self):
        A, L = self.A, self.L
        RE, IM, AF, BF = 16, 48, 80, 144
        C = 160
        lg = Lgkm(A)
        A("v_and_b32 v10, 15, v0", "v_lshrrev_b32 v11, 4, v0")
        A(f"s_lshl_b32 s64, s{S_G}, 6", f"s_lshl_b32 s65, s{S_W}, 4", "s_add_u32 s64, s64, s65", "s_lshl_b32 s64, s64, 1")
        A("v_lshlrev_b32 v12, 1, v10")
        A("v_lshrrev_b32 v13, 1, v10", "v_xor_b32 v13, v13, v11", "v_lshlrev_b32 v13, 4, v13", "v_lshlrev_b32 v14, 7, v10", "v_add_u32 v4, v13, v14")
        A("v_xor_b32 v5, 64, v4")
        A(f"s_lshl_b32 s65, s{S_W}, 11", "s_add_u32 s65, s65, 16384")
        A("v_add_u32 v6, s65, v4", "v_add_u32 v7, s65, v5")
        for i in range(64): A(f"v_mov_b32 v{RE+i}, 0")
        A("s_waitcnt lgkmcnt(0)")
        A.srd(SRD_WS, 32, 268435456)
        A.srd(SRD_T0, 12, 1024); A.srd(SRD_T1, 14, 1024); A.srd(SRD_T2, 24, 1024)
        A(f"buffer_load_ushort v{C}, v12, {R4(SRD_T0)}, s64 offen")
        A(f"buffer_load_ushort v{C+1}, v12, {R4(SRD_T1)}, s64 offen")
        A(f"buffer_load_ushort v{C+2}, v12, {R4(SRD_T2)}, s64 offen")
        A("s_waitcnt vmcnt(0)")
        self.mode_announce("B")
        self.flag_touch("B", 243)
        self.weight_touch(240)
        self.lam_code(C, C + 8)
        A(f"v_mov_b32 v166, v{C+3}", f"v_mov_b32 v167, v{C+4}")
        A("v_add_f32 v163, -1.0, v163")
        A("v_mul_f32 v168, v160, v160", "v_fma_f32 v168, v161, v161, v168", "v_rcp_f32 v168, v168")
        A("v_mul_f32 v169, v163, v160", "v_fma_f32 v169, v167, v161, v169")
        A("v_mul_f32 v170, v167, v160", "v_fma_f32 v170, -v163, v161, v170")
        A("v_add_f32 v168, v168, v168")
        A("v_mul_f32 v164, v169, v168", "v_mul_f32 v165, v170, v168")
        self.csq(174, 166, 176); self.csq(178, 174, 176); self.csq(174, 178, 176); self.csq(168, 174, 176)
        self.csq(170, 168, 176); self.csq(174, 170, 176); self.csq(172, 174, 176)
        def reads(s_, k2):
            buf = (s_ * 2 + k2) & 1
            out = [(f"ds_read_b128 {v(BF + buf*8, 4)}, v{6+k2} offset:0", ("b", s_, k2, 0)),
                   (f"ds_read_b128 {v(BF + buf*8 + 4, 4)}, v{6+k2} offset:8192", ("b", s_, k2, 1))]
            for mt in range(8):
                out.append((f"ds_read_b128 {v(AF + buf*32 + mt*4, 4)}, v{4+k2} offset:{mt*2048}", ("a", s_, k2, mt)))
            return out
        A("s_barrier")
        self.stamp(1)
        for ins, tag in reads(0, 0): lg.issue(ins, tag)
        for s_ in range(8):
            for k2 in range(2):
                nxt = (s_, 1) if k2 == 0 else ((s_ + 1, 0) if s_ < 7 else None)
                if k2 == 1 and s_ < 7:
                    A("s_barrier")
                    self.sstamp(3 + s_)
                    d = SLOT if (s_ + 1) % NSLOT != 0 else -(NSLOT - 1) * SLOT
                    for r in range(4, 8):
                        A(f"v_add_u32 v{r}, {d & 0xffffffff:#x}, v{r}")
                nr = reads(*nxt) if nxt else []
                if nxt is None:
                    nr = []
                buf = (s_ * 2 + k2) & 1
                for mt in range(8):
                    if mt == 0: lg.need(("b", s_, k2, 0), ("b", s_, k2, 1), ("a", s_, k2, 0))
                    else: lg.need(("a", s_, k2, mt))
                    af = v(AF + buf*32 + mt*4, 4)
                    A(f"v_mfma_f32_16x16x32_bf16 {v(RE+4*mt,4)}, {af}, {v(BF+buf*8,4)}, {v(RE+4*mt,4)}")
                    A(f"v_mfma_f32_16x16x32_bf16 {v(IM+4*mt,4)}, {af}, {v(BF+buf*8+4,4)}, {v(IM+4*mt,4)}")
                    if nr:
                        for ins, tag in (nr[0:3] if mt == 0 else [nr[2 + mt]]):
                            lg.issue(ins, tag)
                    if nxt is None and mt == 0:
                        A(f"v_mov_b32 v12, {NONCE}")
                        lg.issue("ds_read_b64 v[230:231], v12", "nonce")
        self.stamp(2)
        def pr(base, sg): return base + 4 * (sg >> 1) + 2 * (sg & 1)
        E0, E1_ = 180, 184
        Lr = "v[166:167]"
        def step(dre, dim, sre, sim, ure, uim, M=Lr):
            A(f"v_pk_fma_f32 v[{dre}:{dre+1}], v[{sre}:{sre+1}], {M}, v[{ure}:{ure+1}] op_sel_hi:[1,0,1]")
            A(f"v_pk_fma_f32 v[{dim}:{dim+1}], v[{sim}:{sim+1}], {M}, v[{uim}:{uim+1}] op_sel_hi:[1,0,1]")
            A(f"v_pk_fma_f32 v[{dre}:{dre+1}], v[{sim}:{sim+1}], {M}, v[{dre}:{dre+1}] op_sel:[0,1,0] op_sel_hi:[1,1,1] neg_lo:[0,1,0] neg_hi:[0,1,0]")
            A(f"v_pk_fma_f32 v[{dim}:{dim+1}], v[{sre}:{sre+1}], {M}, v[{dim}:{dim+1}] op_sel:[0,1,0] op_sel_hi:[1,1,1]")
        A(f"s_lshl_b32 s64, s{S_G}, 4", f"s_add_u32 s64, s64, s{S_RT}", "s_lshl_b32 s64, s64, 6", f"s_lshl_b32 s65, s{S_W}, 4", "s_add_u32 s64, s64, s65", "s_lshl_b32 s64, s64, 4", f"s_add_u32 s64, s64, {WS['ES']}")
        A("v_lshlrev_b32 v13, 4, v10", "v_lshlrev_b32 v12, 2, v10")
        cur = (pr(RE, 0), pr(IM, 0))
        for sg in range(1, 16):
            d = E0 if sg & 1 else E1_
            step(d, d + 2, cur[0], cur[1], pr(RE, sg), pr(IM, sg))
            cur = (d, d + 2)
        er, ei = cur
        self.cfma(188, 189, 168, 169, er, ei, er + 1, ei + 1)
        for qq in range(4):
            A(f"v_add_u32 v{14 + (qq&1)}, {64*qq}, v12")
            A(f"ds_bpermute_b32 v{190+2*qq}, v{14 + (qq&1)}, v188", f"ds_bpermute_b32 v{191+2*qq}, v{14 + (qq&1)}, v189")
        A("s_waitcnt lgkmcnt(0)")
        self.cfma(198, 199, 170, 171, 190, 191, 192, 193)
        self.cfma(200, 201, 170, 171, 198, 199, 194, 195)
        self.cfma(228, 229, 170, 171, 200, 201, 196, 197)
        A("s_mov_b64 s[66:67], exec", "s_mov_b64 exec, 0xffff")
        A(f"buffer_store_dwordx4 v[228:231], v13, {WSr}, s64 offen sc1")
        A("s_mov_b64 exec, s[66:67]")
        self.stamp(3)
        A("s_barrier")
        self.skip_issue()
        self.mode_load("B", 224)
        K2 = "v[164:165]"
        for sg in range(16):
            r_, i_ = pr(RE, sg), pr(IM, sg)
            A(f"v_pk_mul_f32 v[232:233], v[{i_}:{i_+1}], {K2} op_sel:[0,1] op_sel_hi:[1,1]")
            A(f"v_pk_mul_f32 v[234:235], v[{r_}:{r_+1}], {K2} op_sel:[0,1] op_sel_hi:[1,1]")
            A(f"v_pk_fma_f32 v[{r_}:{r_+1}], v[{r_}:{r_+1}], {K2}, v[232:233] op_sel_hi:[1,0,1] neg_lo:[0,0,1] neg_hi:[0,0,1]")
            A(f"v_pk_fma_f32 v[{i_}:{i_+1}], v[{i_}:{i_+1}], {K2}, v[234:235] op_sel_hi:[1,0,1]")
        if 'epre' in EXP:
            A("s_waitcnt vmcnt(0)")
            self.skip_finish()
            for r in range(16):
                A(f"v_mov_b32 v{P2ACC+r}, v{XS+r}", f"v_mov_b32 v{P2ACC+16+r}, 0")
        self.stamp(4)
        A(f"s_lshl_b32 s64, s{S_G}, 10", f"s_lshl_b32 s65, s{S_W}, 4", "s_add_u32 s64, s64, s65", "s_lshl_b32 s64, s64, 4", f"s_add_u32 s64, s64, {WS['ES']}")
        A("v_lshlrev_b32 v13, 4, v10")
        GB = 16 + 64 + 0
        def greg(j):
            if j < 8: return 80 + 4 * j
            if j < 12: return (112 if 'epre' in EXP else 144) + 4 * (j - 8)
            return 212 + 4 * (j - 12)
        lp, lgd, lok, lhd = L("e_poll"), L("e_gd"), L("e_ok"), L("e_hd")
        A(f"s_mov_b32 s72, {POLL_LIMIT}")
        A.label(lp)
        A("s_mov_b32 s65, s64")
        for j in range(15):
            A(f"s_cmp_le_u32 s{S_RT}, {j}", f"s_cbranch_scc1 {lgd}")
            A(f"buffer_load_dwordx4 v[{greg(j)}:{greg(j)+3}], v13, {WSr}, s65 offen sc1")
            if j < 14: A("s_add_u32 s65, s65, 1024")
        A.label(lgd)
        A("v_mov_b32 v236, 0")
        A("s_waitcnt vmcnt(0)")
        ltd = L("e_td")
        for j in range(15):
            A(f"s_cmp_le_u32 s{S_RT}, {j}", f"s_cbranch_scc1 {ltd}")
            A(f"v_xor_b32 v237, v230, v{greg(j)+2}", f"v_xor_b32 v238, v231, v{greg(j)+3}")
            A("v_or3_b32 v236, v236, v237, v238")
        A.label(ltd)
        A("v_cmp_ne_u32 vcc, 0, v236")
        A("s_sub_u32 s72, s72, 1", f"s_cbranch_scc1 {lok}")
        A(f"s_cbranch_vccnz {lp}")
        A.label(lok)
        A("v_mov_b32 v204, 0", "v_mov_b32 v205, 0")
        for j in range(15):
            A(f"s_cmp_le_u32 s{S_RT}, {j}", f"s_cbranch_scc1 {lhd}")
            self.cfma(206, 207, 172, 173, 204, 205, greg(j), greg(j) + 1)
            A("v_mov_b32 v204, v206", "v_mov_b32 v205, v207")
        A.label(lhd)
        self.mode_resolve("B", 224, "bc")
        self.stamp(5)
        self.cfma(198, 199, 170, 171, 204, 205, 190, 191)
        self.cfma(200, 201, 170, 171, 198, 199, 192, 193)
        self.cfma(202, 203, 170, 171, 200, 201, 194, 195)
        for qq, (sr, si) in enumerate(((198, 199), (200, 201), (202, 203)), start=1):
            A(f"v_cmp_eq_u32 vcc, {qq}, v11", "s_nop 1")
            A(f"v_cndmask_b32 v204, v204, v{sr}, vcc", f"v_cndmask_b32 v205, v205, v{si}, vcc")
        self.cfma(206, 207, 168, 169, 204, 205, er, ei)
        def cmul(dr, di, ar, ai):
            A(f"v_mul_f32 v{dr}, v{ar}, v164", f"v_mul_f32 v{di}, v{ar}, v165")
            A(f"v_fma_f32 v{dr}, -v{ai}, v165, v{dr}", f"v_fma_f32 v{di}, v{ai}, v164, v{di}")
        cmul(208, 210, 204, 205)
        cmul(209, 211, 206, 207)
        A(f"s_lshl_b32 s64, s{S_W}, 13", f"s_add_u32 s64, s64, {MISC}")
        A("v_lshlrev_b32 v12, 6, v11", "v_lshlrev_b32 v13, 4, v10", "v_xor_b32 v12, v12, v13", "v_lshlrev_b32 v13, 8, v10", "v_add_u32 v12, v12, v13", "v_add_u32 v12, s64, v12")
        for c in range(1, 4): A(f"v_xor_b32 v{212+c}, {16*c}, v12")
        A("v_bfe_u32 v13, v0, 4, 1", "v_lshlrev_b32 v13, 5, v13", "v_and_b32 v14, 3, v0", "v_lshlrev_b32 v14, 3, v14", "v_add_u32 v13, v13, v14")
        A("v_bfe_u32 v14, v0, 2, 2", "v_lshlrev_b32 v15, 4, v14", "v_xor_b32 v13, v13, v15", "v_lshlrev_b32 v14, 8, v14", "v_add_u32 v13, v13, v14")
        A("v_lshrrev_b32 v14, 5, v0", "v_lshlrev_b32 v14, 12, v14", "v_add_u32 v13, v13, v14", "v_add_u32 v13, s64, v13")
        cur = (208, 210)
        def pack(pl_, c):
            base, neg = (RE, "") if pl_ == 0 else (IM, "-")
            for j in range(4):
                sg = 8 * (c & 1) + 2 * j
                r0, r1 = pr(base, sg) + (c >> 1), pr(base, sg + 1) + (c >> 1)
                A(f"v_cvt_pk_bf16_f32 v{80 + 16*pl_ + 4*c + j}, {neg}v{r0}, {neg}v{r1}")
            A(f"ds_write_b128 v{12 if c == 0 else 212+c}, {v(80 + 16*pl_ + 4*c, 4)} offset:{pl_*4096}")
        for sg in range(16):
            d = (pr(RE, sg), pr(IM, sg))
            step(d[0], d[1], cur[0], cur[1], d[0], d[1])
            cur = d
            if sg == 8:
                for pl_ in range(2):
                    pack(pl_, 0); pack(pl_, 2)
        self.stamp(6)
        for pl_ in range(2):
            pack(pl_, 1); pack(pl_, 3)
        A(f"s_lshl_b32 s64, s{S_RT}, 8", f"s_lshl_b32 s65, s{S_G}, 3", "s_add_u32 s64, s64, s65", f"s_lshl_b32 s65, s{S_W}, 1", "s_add_u32 s64, s64, s65", "s_lshl_b32 s64, s64, 10", f"s_add_u32 s64, s64, {WS['H']}")
        A("v_lshlrev_b32 v12, 4, v0")
        A("s_waitcnt lgkmcnt(0)")
        for rb in range(4):
            for ksl in range(2):
                for a_ in range(2):
                    off = (8 * ksl + 4 * a_) * 256 + ((64 * rb) ^ (128 * ksl + 64 * a_))
                    A(f"ds_read_b64_tr_b16 {v(16 + (rb*2+ksl)*4 + 2*a_, 2)}, v13 offset:{off}")
        for rb in range(4):
            A(f"s_waitcnt lgkmcnt({min(15, 12-4*rb)})")
            for ksl in range(2):
                A(f"buffer_store_dwordx4 {v(16 + (rb*2+ksl)*4, 4)}, v12, {WSr}, s64 offen offset:{ksl*1024} sc1")
            if rb < 3: A("s_add_u32 s64, s64, 0x10000")
        self.stamp(7)
        if 'epre' not in EXP:
            self.skip_finish()
            for r in range(16):
                A(f"v_mov_b32 v{P2ACC+r}, v{XS+r}", f"v_mov_b32 v{P2ACC+16+r}, 0")
        A("s_waitcnt vmcnt(0)")
        self.wave_flag("B", 230)
        self.stamp(8)
        A("s_barrier")

    def p2(self, role):
        A, L = self.A, self.L
        self.stamp(9)
        nk = 32 if role == "A" else 64
        nst = nk // 2
        abase = WS["O"] if role == "A" else WS["H"]
        ACC, BF, AF = P2ACC, 48, 80
        NBUF, LA = 4, 7
        A(f"s_lshr_b32 s64, s{S_WAVE}, 2", f"s_and_b32 s65, s{S_WAVE}, 3")
        A("v_lshlrev_b32 v2, 4, v0")
        A(f"s_lshl_b32 s66, s{S_RT}, 2", "s_add_u32 s66, s66, s65", f"s_mul_i32 s66, s66, {nk*1024}")
        A(f"s_mul_i32 s67, s64, {nst*1024}", "s_add_u32 s66, s66, s67", f"s_add_u32 s66, s66, {abase}")
        def aload(k):
            A(f"buffer_load_dwordx4 {v(AF + 4*(k % 8), 4)}, v2, {WSr}, s66 offen offset:{(k % 4)*1024}")
            if k % 4 == 3: A("s_add_u32 s66, s66, 4096")
        for k in range(LA): aload(k)
        A("v_and_b32 v5, 31, v0", "v_lshrrev_b32 v6, 5, v0")
        A(f"s_lshl_b32 s68, s{S_RT}, 7", "s_lshl_b32 s69, s65, 5", "s_add_u32 s68, s68, s69")
        A(f"s_lshl_b32 s69, s{S_G}, 6", "s_lshl_b32 s70, s64, 5", "s_add_u32 s69, s69, s70")
        lg = Lgkm(A)
        if role == "A":
            A("v_lshlrev_b32 v12, 2, v6", "v_bfe_u32 v13, v0, 2, 2", "v_add_u32 v12, v12, v13", "v_lshlrev_b32 v12, 7, v12")
            A("v_bfe_u32 v13, v0, 3, 1", "v_lshlrev_b32 v13, 6, v13", "v_add_u32 v12, v12, v13")
            A("v_bfe_u32 v13, v0, 4, 1", "v_lshlrev_b32 v13, 5, v13", "v_add_u32 v12, v12, v13")
            A("v_and_b32 v13, 3, v0", "v_lshlrev_b32 v13, 3, v13", "v_add_u32 v12, v12, v13")
            A("s_lshl_b32 s70, s64, 15", f"s_add_u32 s70, s70, {WOIMG}", "v_add_u32 v3, s70, v12", "v_xor_b32 v4, 64, v3")
            def bread(k):
                b = BF + 8 * (k % NBUF)
                for cb in range(2):
                    for a_ in range(2):
                        lg.issue(f"ds_read_b64_tr_b16 {v(b + 4*cb + 2*a_, 2)}, v{3+cb} offset:{(16*k + 8*a_)*128}", ("b", k))
        else:
            A("v_lshlrev_b32 v12, 16, v6", "v_lshlrev_b32 v13, 10, v5", "v_add_u32 v12, v12, v13")
            A("v_and_b32 v13, 15, v5", "v_lshlrev_b32 v13, 4, v13", "v_add_u32 v12, v12, v13")
            A("s_lshl_b32 s70, s64, 9", "v_add_u32 v3, s70, v12")
            def bread(k):
                b = BF + 8 * (k % NBUF)
                t = 8 + (k % 4)
                A(f"v_xor_b32 v{t}, {(k & 15) * 16}, v3")
                for cb in range(2):
                    lg.issue(f"ds_read_b128 {v(b + 4*cb, 4)}, v{t} offset:{(k >> 4) * 256 + cb * 32768}", ("b", k))
        for k in range(NBUF - 1): bread(k)
        self.stamp(10)
        for k in range(nst):
            if k + LA < nst: aload(k + LA)
            if k + NBUF - 1 < nst: bread(k + NBUF - 1)
            rem = min(nst - 1 - k, LA)
            A(f"s_waitcnt vmcnt({rem})")
            lg.need(("b", k))
            b = BF + 8 * (k % NBUF)
            A(f"v_mfma_f32_32x32x16_bf16 {v(ACC,16)}, {v(AF+4*(k%8),4)}, {v(b,4)}, {v(ACC,16)}")
            A(f"v_mfma_f32_32x32x16_bf16 {v(ACC+16,16)}, {v(AF+4*(k%8),4)}, {v(b+4,4)}, {v(ACC+16,16)}")
        self.stamp(11)
        A(f"s_lshl_b32 s70, s{S_WAVE}, 12", f"s_add_u32 s70, s70, {MISC}", "v_add_u32 v9, s70, v2")
        A(f"s_xor_b32 s71, s{S_WAVE}, 4", "s_lshl_b32 s71, s71, 12", f"s_add_u32 s71, s71, {MISC}", "v_add_u32 v10, s71, v2")
        A("s_lshl_b32 s68, s68, 12", "s_lshl_b32 s69, s69, 2", "s_add_u32 s68, s68, s69")
        if role == "B": A("s_add_u32 s68, s68, 2048")
        A("v_lshlrev_b32 v11, 14, v6", "v_lshlrev_b32 v12, 2, v5", "v_add_u32 v11, v11, v12")
        A.srd(SRD_T0, 28, 8388608)
        lk, lj = L(f"kh1_{role}"), L(f"join_{role}")
        A("s_cmp_eq_u32 s64, 1", f"s_cbranch_scc1 {lk}")
        for i in range(4): A(f"ds_write_b128 v9, {v(ACC+16+4*i,4)} offset:{i*1024}")
        A(f"s_mov_b32 s71, 0")
        A(f"s_branch {lj}")
        A.label(lk)
        for i in range(4): A(f"ds_write_b128 v9, {v(ACC+4*i,4)} offset:{i*1024}")
        A("s_nop 1")
        for i in range(16): A(f"v_mov_b32 v{ACC+i}, v{ACC+16+i}")
        A.label(lj)
        A("s_waitcnt lgkmcnt(0)")
        A("s_barrier")
        for i in range(4): A(f"ds_read_b128 {v(48+4*i,4)}, v10 offset:{i*1024}")
        for i in range(4):
            A(f"s_waitcnt lgkmcnt({3-i})")
            for r in range(4*i, 4*i+4, 2):
                A(f"v_pk_add_f32 v[{ACC+r}:{ACC+r+1}], v[{ACC+r}:{ACC+r+1}], v[{48+r}:{49+r}]")
            for r in range(4*i, 4*i+4):
                row = (r & 3) + 8 * (r >> 2)
                A(f"s_add_u32 s69, s68, {row*4096}")
                A(f"buffer_store_dword v{ACC+r}, v11, {R4(SRD_T0)}, s69 offen {OUTF}")
        self.stamp(12)
        self.write_stamps()
        A("s_endpgm")

def build(out, stamps=False):
    A = Asm()
    K = NAME + "_kernel"
    A.raw(HEADER_COMMENT + f"; @launch grid=(256,1,1) block=(512,1,1) lds={LDS_BYTES}\n" + '.amdgcn_target "amdgcn-amd-amdhsa--gfx950"\n')
    G(A, K, stamps).gen()
    A.kernel_desc(K, 256, accum=256)
    open(out, "w").write(A.text())

if __name__ == "__main__":
    build(sys.argv[1], stamps=(len(sys.argv) > 2 and sys.argv[2] == "stamps"))
```

```python
import sys
sys.path.insert(0, "gen"); sys.path.insert(0, "scratch")
from asmlib import *
WS = dict(O=0x000000, H=0x200000, KVP=0x600000, ES=0x700000, FLG=0x740000, ST=0x900000)
LDS_BYTES = 163840
SLOT = 32768
NSLOT = 5
MISC = 4 * SLOT
PART_STRIDE = 1152
PARTQ = 0
FIN = 20480
WOIMG = SLOT
NONCE = MISC + 24576 + 64
NONCEQ = 28672
LOG2E = 0x3FB8AA3B
EPS = 0x358637BD
INV2PI = 0x3E22F983
POLL_LIMIT = 1 << 18
EXP = set(a for a in sys.argv[3:])
OUTF = 'nt'
FASTF = 'nt' if 'fnt' in EXP else 'sc0' if 'fsc0' in EXP else 'sc0 nt' if 'fsc0nt' in EXP else ''

S_W, S_WAVE, S_XCD, S_SLOT, S_RT, S_G, S_ROT = 3, 34, 35, 36, 37, 38, 39
SRD_X, SRD_W, SRD_WS, SRD_T0, SRD_T1, SRD_T2, SRD_T3 = 40, 44, 48, 52, 56, 60, 96
NON = 78
P2ACC, XS, XD = 128, 112, 239
def R4(n): return f"s[{n}:{n+3}]"
def creg(R, i):
    n = R * 8 + i
    return 24 + 4 * n if n < 22 else 160 + 4 * (n - 22)
WSr = R4(SRD_WS)

class G:
    def __init__(self, A, K, stamps):
        self.A, self.K, self.stamps = A, K, stamps
    def L(self, n): return f"{self.K}_{n}"
    def stamp(self, i):
        if self.stamps:
            if 'pro' in EXP and 9 <= i <= 12 and not getattr(self, 'inpro', False): return
            if 'stg' in EXP and 3 <= i <= 12 and not getattr(self, 'instg', False): return
            self.A("s_memtime s[100:101]", "s_waitcnt lgkmcnt(0)", f"s_mov_b32 s{80+i}, s100")
    def sstamp(self, i):
        if 'stg' in EXP:
            self.instg = True
            self.A("s_memtime s[100:101]")
            self.A("s_waitcnt lgkmcnt(0)", f"s_mov_b32 s{80+i}, s100")
            self.instg = False
    def pstamp(self, i):
        if 'pro' in EXP:
            self.inpro = True; self.stamp(i); self.inpro = False
    def write_stamps(self):
        A = self.A
        if not self.stamps: return
        A("s_waitcnt vmcnt(0) lgkmcnt(0)")
        self.stamp(13)
        A("s_memrealtime s[100:101]", "s_waitcnt lgkmcnt(0)", "s_mov_b32 s95, s100")
        for j in range(16): A(f"v_mov_b32 v{16+j}, s{80+j}")
        A("s_lshl_b32 s64, s2, 3", f"s_add_u32 s64, s64, s{S_WAVE}", "s_lshl_b32 s64, s64, 6", f"s_add_u32 s64, s64, {WS['ST']}", "v_mov_b32 v2, s64")
        A("v_cmp_eq_u32 vcc, 0, v0", "s_and_saveexec_b64 s[66:67], vcc")
        for j in range(4):
            A(f"buffer_store_dwordx4 v[{16+4*j}:{19+4*j}], v2, {WSr}, 0 offen offset:{16*j}")

    def gen(self):
        A, L = self.A, self.L
        A.kernel_begin(self.K)
        A.label(L("start"))
        if self.stamps:
            for j in range(16): A(f"s_mov_b32 s{80+j}, 0")
            A("s_memrealtime s[100:101]", "s_waitcnt lgkmcnt(0)", "s_mov_b32 s94, s100")
            self.stamp(0)
        if 'clk' in EXP:
            A("s_memtime s[84:85]", "s_memrealtime s[86:87]")
        A("s_cmp_ge_u32 s2, 256", f"s_cbranch_scc1 {L('end')}")
        A("s_load_dwordx4 s[4:7], s[0:1], 0", "s_load_dwordx4 s[8:11], s[0:1], 16", "s_load_dwordx4 s[16:19], s[0:1], 48")
        if 'nocode' not in EXP:
            lc = L("nocode")
            A("s_getpc_b64 s[64:65]")
            A.label(L("pcref"))
            A(f"s_lshr_b32 s66, s2, 3", "s_mul_i32 s66, s66, 9", "v_add_u32 v2, s66, v0", "v_lshlrev_b32 v2, 7, v2")
            A(f"v_cmp_gt_u32 vcc, 9, v0", "s_and_saveexec_b64 s[66:67], vcc", f"s_cbranch_execz {lc}")
            A(f"v_min_u32 v2, {L('end')}-{L('pcref')}, v2")
            A("global_load_dword v255, v2, s[64:65]")
            A.label(lc)
            A("s_mov_b64 exec, s[66:67]")
        A("v_lshrrev_b32 v1, 6, v0", "v_and_b32 v0, 63, v0")
        A(f"v_readfirstlane_b32 s{S_WAVE}, v1")
        A(f"s_and_b32 s{S_XCD}, s2, 7", f"s_lshr_b32 s{S_SLOT}, s2, 3")
        A(f"s_and_b32 s64, s{S_XCD}, 3", f"s_lshl_b32 s{S_RT}, s64, 2", f"s_and_b32 s65, s{S_SLOT}, 3", f"s_add_u32 s{S_RT}, s{S_RT}, s65")
        A(f"s_lshr_b32 s{S_G}, s{S_SLOT}, 2")
        A("s_lshl_b32 s65, s65, 1", f"s_add_u32 s{S_ROT}, s{S_G}, s65", "s_and_b32 s64, s64, 1", f"s_add_u32 s{S_ROT}, s{S_ROT}, s64", f"s_and_b32 s{S_ROT}, s{S_ROT}, 7")
        A(f"s_and_b32 s{S_W}, s{S_WAVE}, 3")
        A(f"s_cmp_lt_u32 s{S_WAVE}, 4", f"s_cbranch_scc1 {L('compute')}")
        self.loader_prologue()
        A(f"s_cmp_ge_u32 s{S_XCD}, 4", f"s_cbranch_scc1 {L('bu_load')}")
        self.loader("qkv")
        A.label(L("p2A"))
        self.p2("A")
        A.label(L("bu_load"))
        self.loader("bu")
        A.label(L("p2B"))
        self.p2("B")
        A.label(L("compute"))
        self.rest_kernargs()
        A(f"s_cmp_ge_u32 s{S_XCD}, 4", f"s_cbranch_scc1 {L('bu')}")
        self.qkv_compute()
        A(f"s_branch {L('p2A')}")
        A.label(L("bu"))
        self.bu_compute()
        A(f"s_branch {L('p2B')}")
        A.label(L("end"))
        A("s_endpgm")

    def rest_kernargs(self):
        A = self.A
        A("s_load_dwordx4 s[12:15], s[0:1], 32", "s_load_dwordx4 s[20:23], s[0:1], 64", "s_load_dwordx4 s[24:27], s[0:1], 80")
        A("s_load_dwordx4 s[28:31], s[0:1], 96", "s_load_dwordx2 s[32:33], s[0:1], 112")

    def loader_prologue(self):
        A, L = self.A, self.L
        A("v_lshrrev_b32 v5, 3, v0", "v_and_b32 v6, 7, v0", "v_lshrrev_b32 v7, 4, v0")
        A("v_xor_b32 v8, v6, v7", "v_lshlrev_b32 v8, 4, v8")
        A("v_lshlrev_b32 v2, 10, v5", "v_add_u32 v2, v2, v8", "v_xor_b32 v3, 64, v2")
        A(f"s_lshl_b32 s70, s{S_W}, 12")
        lb, lj = L("pro_b"), L("pro_j")
        A(f"s_cmp_ge_u32 s{S_XCD}, 4", f"s_cbranch_scc1 {lb}")
        A("v_and_b32 v9, 1, v7", "v_lshlrev_b32 v9, 2, v9", "v_xor_b32 v9, v6, v9", "v_lshlrev_b32 v9, 4, v9")
        A("v_mul_u32_u24 v4, 3072, v5", "v_add_u32 v4, v4, v9", "v_lshlrev_b32 v12, 10, v5", "v_add_u32 v12, v12, v9")
        A("v_mov_b32 v20, v2", "v_mov_b32 v21, v3", "v_mov_b32 v22, v4", "v_mov_b32 v23, v4", "v_mov_b32 v11, v3")
        A(f"s_lshl_b32 s64, s{S_RT}, 7", f"s_lshl_b32 s65, s{S_W}, 5", "s_add_u32 s64, s64, s65", "s_lshl_b32 s68, s64, 10")
        A(f"s_mul_i32 s69, s{S_W}, {16*3072}", f"s_lshl_b32 s65, s{S_G}, 7", "s_add_u32 s69, s69, s65")
        A(f"s_mov_b32 s76, {64*3072}", "s_lshr_b32 s71, s70, 1")
        A("s_movk_i32 s52, 0x2000", "s_movk_i32 s53, 0x4000")
        A("s_movk_i32 s56, 0x2000")
        A("s_movk_i32 s60, 1024", "s_movk_i32 s61, 25600", "s_movk_i32 s62, 2048", "s_movk_i32 s63, 26624")
        A("s_waitcnt lgkmcnt(0)")
        A.srd(SRD_X, 4, 2097152); A.srd(SRD_W, 6, 1572864)
        A(f"s_branch {lj}")
        A.label(lb)
        A("v_lshrrev_b32 v9, 5, v0", "v_lshlrev_b32 v9, 5, v9", "v_and_b32 v10, 1, v5", "v_lshlrev_b32 v10, 4, v10", "v_add_u32 v9, v9, v10")
        A("v_and_b32 v10, 1, v7", "v_add_u32 v9, v9, v10", "v_lshlrev_b32 v4, 10, v9", "v_add_u32 v4, v4, v8", "v_xor_b32 v11, 64, v4")
        A("v_mov_b32 v20, v4", "v_mov_b32 v21, v11", "v_mov_b32 v22, v2", "v_mov_b32 v23, v3", "v_mov_b32 v12, v2")
        A(f"s_lshl_b32 s64, s{S_RT}, 7", f"s_lshl_b32 s65, s{S_W}, 2", "s_add_u32 s64, s64, s65", "s_lshl_b32 s68, s64, 10")
        A(f"s_lshl_b32 s64, s{S_G}, 6", f"s_and_b32 s65, s{S_W}, 1", "s_lshl_b32 s65, s65, 5", "s_add_u32 s64, s64, s65", "s_lshl_b32 s69, s64, 10")
        A("s_movk_i32 s76, 128", "s_mov_b32 s71, s70")
        A("s_mov_b32 s52, 0x10000", "s_movk_i32 s53, 0x800")
        A("s_movk_i32 s56, 0x800")
        A("s_movk_i32 s60, 0", "s_movk_i32 s61, 0x2000", "s_movk_i32 s62, 0x4000", "s_movk_i32 s63, 0x6000")
        A("s_waitcnt lgkmcnt(0)")
        A.srd(SRD_X, 10, 2097152)
        A(f"s_cmp_lt_u32 s{S_W}, 2", "s_cselect_b32 s64, s16, s18", "s_cselect_b32 s65, s17, s19")
        A.srd(SRD_W, 64, 524288)
        A.label(lj)
        A("s_add_u32 s54, s52, s53", "s_add_u32 s57, s56, 1024")
        self.pstamp(10)
        X, W = R4(SRD_X), R4(SRD_W)
        for st in range(2):
            slot = st * SLOT
            A(f"s_add_u32 s64, s{S_ROT}, {st}", "s_and_b32 s64, s64, 7")
            A("s_lshl_b32 s65, s64, 7", "s_add_u32 s65, s65, s68", "s_mul_i32 s66, s64, s76", "s_add_u32 s66, s66, s69")
            xo = [None, "s52", "s53", "s54"]
            for ii in range(4):
                A(f"s_add_u32 m0, s70, {slot + ii*1024}")
                A(f"s_add_u32 s67, s65, {xo[ii]}" if xo[ii] else "s_mov_b32 s67, s65")
                A(f"buffer_load_dwordx4 v{20 + (ii&1)}, {X}, s67 offen lds")
            A(f"s_add_u32 s72, s71, {slot + 16384}")
            wl = ["0", "1024", "s56", "s57"]
            for ii in range(4):
                A(f"s_add_u32 m0, s72, {wl[ii]}", f"s_add_u32 s67, s66, s{60+ii}")
                A(f"buffer_load_dwordx4 v{22 + (ii&1)}, {W}, s67 offen lds")
            self.pstamp(11 + st)
        self.rest_kernargs()

    def poll_lines(self, tag, nl, sbase, stride_log2, R=8):
        A, L = self.A, self.L
        lp, done = L(f"poll_{tag}"), L(f"polld_{tag}")
        A(f"s_mov_b32 s72, {POLL_LIMIT}")
        A(f"v_lshlrev_b32 v{R+2}, {stride_log2}, v0")
        A("s_mov_b64 s[74:75], exec", f"s_mov_b64 exec, {(1 << nl) - 1:#x}")
        A.label(lp)
        A(f"buffer_load_dwordx2 v[{R}:{R+1}], v{R+2}, {WSr}, s{sbase} offen sc1")
        A("s_waitcnt vmcnt(0)")
        A(f"v_xor_b32 v{R}, s{NON}, v{R}", f"v_xor_b32 v{R+1}, s{NON+1}, v{R+1}", f"v_or_b32 v{R}, v{R}, v{R+1}")
        A(f"v_cmp_ne_u32 vcc, 0, v{R}")
        A("s_sub_u32 s72, s72, 1")
        A(f"s_cbranch_scc1 {done}")
        A(f"s_cbranch_vccz {done}")
        A(f"s_branch {lp}")
        A.label(done)
        A("s_mov_b64 exec, s[74:75]")

    def store_flag(self, sbase, tag, R=8):
        A, L = self.A, self.L
        A(f"v_mov_b32 v{R}, s{NON}", f"v_mov_b32 v{R+1}, s{NON+1}", f"v_mov_b32 v{R+2}, 0")
        A("s_mov_b64 s[74:75], exec", "s_mov_b64 exec, 1")
        lf, lj = L(f"sf_fast_{tag}"), L(f"sf_j_{tag}")
        A("s_cmp_eq_u32 s73, 1", f"s_cbranch_scc1 {lf}")
        A(f"buffer_store_dwordx2 v[{R}:{R+1}], v{R+2}, {WSr}, s{sbase} offen sc1")
        A(f"s_branch {lj}")
        A.label(lf)
        A(f"buffer_store_dwordx2 v[{R}:{R+1}], v{R+2}, {WSr}, s{sbase} offen")
        A.label(lj)
        A("s_mov_b64 exec, s[74:75]")

    def skip_issue(self, vm=None):
        A = self.A
        A(f"s_lshr_b32 s64, s{S_WAVE}, 2")
        A(f"s_lshl_b32 s68, s{S_RT}, 7", f"s_lshl_b32 s69, s{S_W}, 5", "s_add_u32 s68, s68, s69")
        A(f"s_lshl_b32 s69, s{S_G}, 6", "s_lshl_b32 s70, s64, 5", "s_add_u32 s69, s69, s70")
        A.srd(SRD_T0, 10, 2097152); A.srd(SRD_T1, 26, 1024)
        A("s_lshl_b32 s70, s68, 10", "s_lshl_b32 s71, s69, 1", "s_add_u32 s70, s70, s71")
        A("v_and_b32 v8, 31, v0", "v_lshrrev_b32 v7, 5, v0", "v_lshlrev_b32 v7, 12, v7", "v_lshlrev_b32 v8, 1, v8", "v_add_u32 v7, v7, v8")
        for r in range(16):
            if r % 4 == 0 and r > 0: A("s_add_u32 s70, s70, 8192")
            ins = f"buffer_load_ushort v{XS+r}, v7, {R4(SRD_T0)}, s70 offen offset:{(r%4)*1024}"
            vm.issue(ins, "skip") if vm else A(ins)
        ins = f"buffer_load_ushort v{XD}, v8, {R4(SRD_T1)}, s71 offen"
        vm.issue(ins, "skip") if vm else A(ins)

    def skip_finish(self):
        A = self.A
        A(f"v_lshlrev_b32 v{XD}, 16, v{XD}")
        for r in range(16): A(f"v_lshlrev_b32 v{XS+r}, 16, v{XS+r}")
        for r in range(16): A(f"v_mul_f32 v{XS+r}, v{XS+r}, v{XD}")
        for r in range(0, 16, 2): A(f"v_cvt_pk_bf16_f32 v{XS+r}, v{XS+r}, v{XS+r+1}")
        for r in range(0, 16, 2):
            A(f"v_and_b32 v{XS+r+1}, 0xffff0000, v{XS+r}", f"v_lshlrev_b32 v{XS+r}, 16, v{XS+r}")

    def mode_announce(self, role, R=240):
        A, L = self.A, self.L
        lx = L(f"ann_{role}")
        A(f"s_cmp_lg_u32 s{S_W}, 0", f"s_cbranch_scc1 {lx}")
        A("s_getreg_b32 s64, hwreg(HW_REG_XCC_ID, 0, 3)", "s_lshl_b32 s64, 1, s64", f"s_lshl_b32 s65, 0x100, s{S_G}", "s_or_b32 s64, s64, s65")
        A(f"s_add_u32 s65, s{S_RT}, {0 if role == 'A' else 16}", "s_lshl_b32 s65, s65, 2")
        A(f"v_mov_b32 v{R}, s64", f"v_mov_b32 v{R+1}, s65")
        A.srd(SRD_T3, 30, 256)
        A("s_mov_b64 s[66:67], exec", "s_mov_b64 exec, 1")
        A(f"buffer_atomic_or v{R}, v{R+1}, {R4(SRD_T3)}, 0 offen sc1")
        A("s_mov_b64 exec, s[66:67]")
        A.label(lx)

    def mode_load(self, role, R):
        A = self.A
        A(f"s_add_u32 s65, s{S_RT}, {0 if role == 'A' else 16}", "s_lshl_b32 s65, s65, 2", f"v_mov_b32 v{R+1}, s65")
        A.srd(SRD_T3, 30, 256)
        A(f"buffer_load_dword v{R}, v{R+1}, {R4(SRD_T3)}, 0 offen sc1")

    def mode_resolve(self, role, R, tag):
        A, L = self.A, self.L
        lp, ok = L(f"mode_lp_{tag}"), L(f"mode_ok_{tag}")
        A(f"s_mov_b32 s72, {POLL_LIMIT}")
        A.label(lp)
        A(f"v_readfirstlane_b32 s73, v{R}", "s_nop 3")
        A("s_and_b32 s71, s73, 0xff00", "s_cmp_eq_u32 s71, 0xff00", f"s_cbranch_scc1 {ok}")
        A("s_sub_u32 s72, s72, 1", f"s_cbranch_scc1 {ok}")
        A(f"buffer_load_dword v{R}, v{R+1}, {R4(SRD_T3)}, 0 offen sc1", "s_waitcnt vmcnt(0)", f"s_branch {lp}")
        A.label(ok)
        A("s_and_b32 s70, s73, 0xff", "s_bcnt1_i32_b32 s70, s70", "s_cmp_eq_u32 s70, 1", "s_cselect_b32 s73, 1, 0")
        A("s_cmp_eq_u32 s71, 0xff00", "s_cselect_b32 s73, s73, 0")
        if 'slow' in EXP: A("s_mov_b32 s73, 0")

    def flag_touch(self, role, R):
        A = self.A
        self.flag_addr(role, 64)
        A(f"s_lshl_b32 s65, s{S_G}, 7", "s_add_u32 s64, s64, s65", f"v_mov_b32 v{R}, 0")
        A("s_mov_b64 s[74:75], exec", "s_mov_b64 exec, 1")
        A(f"buffer_load_dword v{R+1}, v{R}, {WSr}, s64 offen sc1")
        A("s_mov_b64 exec, s[74:75]")

    def weight_touch(self, R):
        A = self.A
        if 'nowt' in EXP: return
        A("s_lshl_b32 s64, s2, 2", f"s_add_u32 s64, s64, s{S_W}", "s_mul_i32 s64, s64, 12")
        A(f"v_add_u32 v{R}, s64, v0", f"v_lshlrev_b32 v{R}, 7, v{R}")
        A.srd(SRD_T0, 8, 524288); A.srd(SRD_T1, 20, 524288); A.srd(SRD_T2, 22, 524288)
        A("s_mov_b64 s[74:75], exec", "s_mov_b64 exec, 0xfff")
        A(f"buffer_load_dword v{R+1}, v{R}, {R4(SRD_T0)}, 0 offen sc1")
        A(f"v_subrev_u32 v{R+2}, 0x80000, v{R}")
        A(f"buffer_load_dword v{R+1}, v{R+2}, {R4(SRD_T1)}, 0 offen sc1")
        A(f"v_subrev_u32 v{R+2}, 0x100000, v{R}")
        A(f"buffer_load_dword v{R+1}, v{R+2}, {R4(SRD_T2)}, 0 offen sc1")
        A("s_mov_b64 exec, s[74:75]")

    def loader(self, role):
        A, L = self.A, self.L
        last = 9 if role == "qkv" else 7
        vm = Vm(A)
        vm.q = [('st', 0)] * 8 + [('st', 1)] * 8
        X, W = R4(SRD_X), R4(SRD_W)
        def issue(st):
            slot = (st % NSLOT) * SLOT
            tag = ("st", st)
            if st >= 8:
                a = st - 8
                A(f"s_add_u32 s64, s{S_ROT}, s{S_W}", f"s_add_u32 s64, s64, {4*a}", "s_and_b32 s64, s64, 7")
                A(f"s_mul_i32 s64, s64, {64*3072}", f"s_lshl_b32 s65, s{S_G}, 7", "s_add_u32 s64, s64, s65")
                A("s_lshl_b32 s66, s70, 1")
                for i in range(8):
                    A(f"s_add_u32 m0, s66, {slot + i*1024}", f"s_add_u32 s67, s64, {i*8*3072}")
                    vm.issue(f"buffer_load_dwordx4 v4, {W}, s67 offen lds", tag)
                return
            A(f"s_add_u32 s64, s{S_ROT}, {st}", "s_and_b32 s64, s64, 7")
            A("s_lshl_b32 s65, s64, 7", "s_add_u32 s65, s65, s68")
            if role == "qkv":
                A(f"s_mul_i32 s66, s64, {64*3072}", "s_add_u32 s66, s66, s69")
                for ii in range(4):
                    A(f"s_add_u32 m0, s70, {slot + ii*1024}", f"s_add_u32 s67, s65, {ii*8192}")
                    vm.issue(f"buffer_load_dwordx4 v{2 + (ii&1)}, {X}, s67 offen lds", tag)
                A("s_lshr_b32 s71, s70, 1")
                for part in range(2):
                    for ii in range(2):
                        A(f"s_add_u32 m0, s71, {slot + 16384 + part*8192 + ii*1024}", f"s_add_u32 s67, s66, {ii*8*3072 + (1+part)*1024}")
                        vm.issue(f"buffer_load_dwordx4 v4, {W}, s67 offen lds", tag)
            else:
                A("s_lshl_b32 s66, s64, 7", "s_add_u32 s66, s66, s69")
                for ii in range(4):
                    A(f"s_add_u32 m0, s70, {slot + ii*1024}", f"s_add_u32 s67, s65, {(64*(ii&1) + 2*(ii>>1))*1024}")
                    vm.issue(f"buffer_load_dwordx4 v{4 if (ii&1)==0 else 11}, {X}, s67 offen lds", tag)
                for ii in range(4):
                    A(f"s_add_u32 m0, s70, {slot + 16384 + ii*1024}", f"s_add_u32 s67, s66, {ii*8192}")
                    vm.issue(f"buffer_load_dwordx4 v{2 + (ii&1)}, {W}, s67 offen lds", tag)
        def cregion(R):
            part = R >> 1
            A.srd(SRD_T0, 20 + 2 * part, 524288)
            A(f"s_lshl_b32 s64, s{S_G}, 6", f"s_lshl_b32 s65, s{S_W}, 3", "s_add_u32 s64, s64, s65", f"s_add_u32 s64, s64, {32*(R&1)}", "s_lshl_b32 s64, s64, 10")
            A(f"s_and_b32 s66, s{S_W}, 1", "s_lshl_b32 s66, s66, 7", "v_lshlrev_b32 v13, 4, v0", "v_xor_b32 v13, s66, v13")
            for i in range(8):
                A(f"v_xor_b32 v{14+(i&1)}, {i*16}, v13")
                A(f"s_add_u32 s67, s64, {i*1024}")
                vm.issue(f"buffer_load_dwordx4 {v(creg(R, i),4)}, v{14+(i&1)}, {R4(SRD_T0)}, s67 offen", ("c", R))
        self.cregion = cregion
        self.vm = vm
        A("s_waitcnt lgkmcnt(0)")
        A.srd(SRD_WS, 32, 268435456)
        if role == "qkv":
            ln = L("nononce")
            A("s_cmp_lg_u32 s2, 0", f"s_cbranch_scc1 {ln}", f"s_cmp_lg_u32 s{S_WAVE}, 4", f"s_cbranch_scc1 {ln}")
            A("s_memrealtime s[76:77]", "s_waitcnt lgkmcnt(0)", "s_or_b32 s76, s76, 1")
            A("v_mov_b32 v14, s76", "v_mov_b32 v15, s77", "v_mov_b32 v13, 0")
            A.srd(SRD_T0, 30, 256)
            A("s_mov_b64 s[74:75], exec", "s_mov_b64 exec, 1")
            A(f"buffer_store_dwordx2 v[14:15], v13, {R4(SRD_T0)}, 0 offen offset:128 sc1")
            A("s_mov_b64 exec, s[74:75]")
            A("s_waitcnt vmcnt(0)")
            A.label(ln)
        self.stamp(1)
        sched = {0: [2], 1: [3], 2: [4], 3: [5], 4: [6], 5: [7], 6: [8], 7: [9]} if 'l3' not in EXP else {0: [2], 1: [3], 2: [4, 5], 3: [6], 4: [7], 5: [8], 6: [9], 7: []}
        for st in range(8):
            vm.need(("st", st))
            if st == 7:
                self.get_nonce(role)
            A("s_barrier")
            if st == 0: self.stamp(2)
            for x in sched[st]:
                if x <= last: issue(x)
            if role == "bu" and st == 7:
                for R_ in range(2): cregion(R_)
            if st == 4:
                A(f"s_load_dwordx2 s[{NON}:{NON+1}], s[30:31], 128")
        if role == "qkv": self.qkv_loader_tail()
        else: self.bu_loader_tail()

    def get_nonce(self, role):
        A, L = self.A, self.L
        ok, lp = L(f"nok_{role}"), L(f"nlp_{role}")
        A("s_waitcnt lgkmcnt(0)")
        A(f"s_cmp_lg_u32 s{NON}, 0", f"s_cbranch_scc1 {ok}")
        A.srd(SRD_T0, 30, 256)
        A(f"s_mov_b32 s72, {POLL_LIMIT}", "v_mov_b32 v13, 0")
        A.label(lp)
        A(f"buffer_load_dwordx2 v[14:15], v13, {R4(SRD_T0)}, 0 offen offset:128 sc1", "s_waitcnt vmcnt(0)")
        A(f"v_readfirstlane_b32 s{NON}, v14", f"v_readfirstlane_b32 s{NON+1}, v15", "s_nop 3")
        A("s_sub_u32 s72, s72, 1", f"s_cbranch_scc1 {ok}")
        A(f"s_cmp_lg_u32 s{NON}, 0", f"s_cbranch_scc1 {ok}", "s_sleep 2", f"s_branch {lp}")
        A.label(ok)
        if role == "bu":
            A(f"v_mov_b32 v14, s{NON}", f"v_mov_b32 v15, s{NON+1}", f"v_mov_b32 v13, {NONCE}")
            A("ds_write_b64 v13, v[14:15]", "s_waitcnt lgkmcnt(0)")

    def qkv_loader_tail(self):
        A, L, vm = self.A, self.L, self.vm
        A(f"v_mov_b32 v14, s{NON}", f"v_mov_b32 v15, s{NON+1}", f"v_mov_b32 v13, {NONCEQ}")
        A("ds_write_b64 v13, v[14:15]")
        vm.need(("st", 9))
        A("s_waitcnt lgkmcnt(0)")
        self.stamp(3)
        A("s_barrier")
        A("s_setprio 3")
        self.stamp(4)
        A("v_mul_u32_u24 v7, 24, v0", f"s_mul_i32 s64, s{S_W}, {PART_STRIDE}", "v_add_u32 v7, s64, v7")
        for w in range(4):
            for j in range(3):
                A(f"ds_read_b64 v[{16+6*w+2*j}:{17+6*w+2*j}], v7 offset:{PARTQ + w*4*PART_STRIDE + 8*j}")
        A("v_lshlrev_b32 v3, 4, v0")
        A(f"s_lshl_b32 s64, s{S_G}, 4", f"s_add_u32 s64, s64, s{S_RT}", "s_lshl_b32 s64, s64, 2", f"s_add_u32 s64, s64, s{S_W}", "s_lshl_b32 s64, s64, 10", f"s_add_u32 s64, s64, {WS['KVP']}")
        A(f"v_mov_b32 v51, s{NON}")
        A("s_waitcnt lgkmcnt(6)")
        for j in range(0, 6, 2):
            A(f"v_pk_add_f32 v[{16+j}:{17+j}], v[{16+j}:{17+j}], v[{22+j}:{23+j}]")
        A("s_waitcnt lgkmcnt(0)")
        for j in range(0, 6, 2):
            A(f"v_pk_add_f32 v[{28+j}:{29+j}], v[{28+j}:{29+j}], v[{34+j}:{35+j}]")
        for j in range(0, 6, 2):
            A(f"v_pk_add_f32 v[{16+j}:{17+j}], v[{16+j}:{17+j}], v[{28+j}:{29+j}]")
        for j in range(3):
            A(f"v_cvt_pk_bf16_f32 v{48+j}, v{16+2*j}, v{17+2*j}")
        A("s_mov_b64 s[66:67], exec", "s_mov_b32 exec_lo, -1", "s_mov_b32 exec_hi, 0x3fff")
        A(f"buffer_store_dwordx4 v[48:51], v3, {WSr}, s64 offen sc1")
        self.stamp(5)
        A("s_mov_b64 exec, s[66:67]")
        A.srd(SRD_T0, 8, 524288)
        A(f"s_lshl_b32 s64, s{S_W}, 17", f"s_lshl_b32 s65, s{S_G}, 7", "s_add_u32 s64, s64, s65")
        A(f"s_lshl_b32 s65, s{S_W}, 14")
        for i in range(16):
            A(f"s_add_u32 m0, s65, {WOIMG + i*1024}", f"s_add_u32 s69, s64, {i*8192}")
            A(f"buffer_load_dwordx4 v12, {R4(SRD_T0)}, s69 offen lds")
        if 'kvd' in EXP: A("s_waitcnt vmcnt(0)")
        A("s_mov_b32 exec_lo, -1", "s_mov_b32 exec_hi, 0x3fff")
        A(f"s_lshl_b32 s68, s{S_G}, 6", f"s_add_u32 s68, s68, s{S_W}", "s_lshl_b32 s68, s68, 10", f"s_add_u32 s68, s68, {WS['KVP']}")
        lp, ok = L("kv_poll"), L("kv_ok")
        A(f"s_mov_b32 s72, {POLL_LIMIT}")
        first = True
        A.label(lp)
        A("s_mov_b32 s64, s68")
        for r in range(16):
            A(f"buffer_load_dwordx4 v[{64+4*r}:{67+4*r}], v3, {WSr}, s64 offen sc1")
            if r < 15: A("s_add_u32 s64, s64, 4096")
        A("s_waitcnt vmcnt(0)")
        A(f"v_xor_b32 v52, s{NON}, v67")
        for r in range(1, 16):
            A(f"v_xor_b32 v53, s{NON}, v{67+4*r}", "v_or_b32 v52, v52, v53")
        A("v_cmp_ne_u32 vcc, 0, v52")
        A("s_sub_u32 s72, s72, 1", f"s_cbranch_scc1 {ok}")
        A(f"s_cbranch_vccnz {lp}")
        A.label(ok)
        self.stamp(6)
        A("s_mov_b64 exec, s[66:67]")
        for j in range(6): A(f"v_mov_b32 v{16+j}, 0")
        A("v_mov_b32 v24, 0x00003f80", "v_mov_b32 v25, 0x3f800000")
        for r in range(16):
            for j in range(3):
                A(f"v_dot2c_f32_bf16 v{16+2*j}, v{64+4*r+j}, v24")
                A(f"v_dot2c_f32_bf16 v{17+2*j}, v{64+4*r+j}, v25")
        A("s_nop 2")
        for j in range(3):
            A(f"v_cvt_pk_bf16_f32 v{48+j}, v{16+2*j}, v{17+2*j}")
        A("v_mul_u32_u24 v4, 12, v0", f"s_lshl_b32 s66, s{S_W}, 10", f"s_add_u32 s66, s66, {FIN}", "v_add_u32 v4, s66, v4")
        A("s_mov_b64 s[66:67], exec", "s_mov_b32 exec_lo, -1", "s_mov_b32 exec_hi, 0x3fff")
        for j in range(3): A(f"ds_write_b32 v4, v{48+j} offset:{4*j}")
        A("s_mov_b64 exec, s[66:67]")
        A("s_waitcnt lgkmcnt(0)")
        self.stamp(7)
        A("s_barrier")
        A("s_setprio 0")
        for i in range(32): A(f"v_mov_b32 v{P2ACC+i}, 0")
        A("s_waitcnt vmcnt(0)")
        self.stamp(8)
        self.p1p2_sync("A")

    def bu_loader_tail(self):
        A, L, vm = self.A, self.L, self.vm
        self.stamp(3)
        A("s_barrier")
        self.cregion(2); self.cregion(3)
        self.skip_issue(vm)
        A("v_lshlrev_b32 v13, 4, v0", f"s_lshl_b32 s65, s{S_W}, 13", "v_add_u32 v13, s65, v13")
        for R_ in range(4):
            vm.need(("c", R_))
            if R_ == 2: A("v_add_u32 v13, 0x10000, v13")
            for i in range(8):
                A(f"ds_write_b128 v13, {v(creg(R_, i),4)} offset:{(R_&1)*SLOT + i*1024}")
        A("s_waitcnt lgkmcnt(0)")
        vm.drain()
        self.skip_finish()
        for r in range(16):
            A(f"v_mov_b32 v{P2ACC+r}, 0", f"v_mov_b32 v{P2ACC+16+r}, v{XS+r}")
        self.stamp(4)
        self.p1p2_sync("B")

    def flag_addr(self, role, dst):
        A = self.A
        A(f"s_add_u32 s{dst}, s{S_RT}, {0 if role == 'A' else 16}", f"s_lshl_b32 s{dst}, s{dst}, 10", f"s_add_u32 s{dst}, s{dst}, {WS['FLG']}")

    def wave_flag(self, role, vn):
        A = self.A
        self.flag_addr(role, 64)
        A(f"s_lshl_b32 s65, s{S_G}, 7", "s_add_u32 s64, s64, s65", f"s_lshl_b32 s65, s{S_W}, 3", "s_add_u32 s64, s64, s65", "v_mov_b32 v12, 0")
        A("s_mov_b64 s[74:75], exec", "s_mov_b64 exec, 1")
        lf, lj = self.L(f"wf_fast_{role}"), self.L(f"wf_j_{role}")
        A("s_cmp_eq_u32 s73, 1", f"s_cbranch_scc1 {lf}")
        A(f"buffer_store_dwordx2 v[{vn}:{vn+1}], v12, {WSr}, s64 offen sc1")
        A(f"s_branch {lj}")
        A.label(lf)
        A(f"buffer_store_dwordx2 v[{vn}:{vn+1}], v12, {WSr}, s64 offen")
        A.label(lj)
        A("s_mov_b64 exec, s[74:75]")

    def p1p2_sync(self, role):
        A, L = self.A, self.L
        lx = L(f"sync_{role}")
        A(f"s_cmp_lg_u32 s{S_W}, 0", f"s_cbranch_scc1 {lx}")
        self.flag_addr(role, 64)
        lp, done = L(f"fpoll_{role}"), L(f"fpolld_{role}")
        A(f"s_mov_b32 s72, {POLL_LIMIT}")
        A("v_lshrrev_b32 v10, 2, v0", "v_lshlrev_b32 v10, 7, v10", "v_and_b32 v11, 3, v0", "v_lshlrev_b32 v11, 3, v11", "v_add_u32 v10, v10, v11")
        A("s_mov_b64 s[74:75], exec", "s_mov_b32 exec_hi, 0")
        A.label(lp)
        A(f"buffer_load_dwordx2 v[8:9], v10, {WSr}, s64 offen sc1")
        A("s_waitcnt vmcnt(0)")
        A(f"v_xor_b32 v8, s{NON}, v8", f"v_xor_b32 v9, s{NON+1}, v9", "v_or_b32 v8, v8, v9")
        A("v_cmp_ne_u32 vcc, 0, v8")
        A("s_sub_u32 s72, s72, 1", f"s_cbranch_scc1 {done}")
        A(f"s_cbranch_vccnz {lp}")
        A.label(done)
        A("s_mov_b64 exec, s[74:75]")
        A.label(lx)
        A("s_barrier")

    def phi_pack(self, acc, n, dst, T):
        A = self.A
        for base in range(0, n, 8):
            for i in range(0, 8, 2):
                A(f"v_pk_mul_f32 v[{T+i}:{T+i+1}], v[{acc+base+i}:{acc+base+i+1}], s[76:77]")
            for i in range(8):
                A(f"v_exp_f32_e64 v{T+i}, v{T+i} clamp")
            for i in range(8):
                A(f"v_max_f32 v{acc+base+i}, 0, v{acc+base+i}")
            for i in range(0, 8, 2):
                A(f"v_pk_add_f32 v[{acc+base+i}:{acc+base+i+1}], v[{acc+base+i}:{acc+base+i+1}], v[{T+i}:{T+i+1}]")
            for i in range(0, 8, 2):
                A(f"v_pk_add_f32 v[{acc+base+i}:{acc+base+i+1}], v[{acc+base+i}:{acc+base+i+1}], s[64:65]")
            for i in range(0, 8, 2):
                A(f"v_cvt_pk_bf16_f32 v{dst+(base+i)//2}, v{acc+base+i}, v{acc+base+i+1}")

    def lam_code(self, P, T):
        A = self.A
        A(f"v_lshlrev_b32 v{P}, 16, v{P}", f"v_lshlrev_b32 v{P+1}, 16, v{P+1}", f"v_lshlrev_b32 v{P+2}, 16, v{P+2}")
        A(f"v_mul_f32 v{T}, {LOG2E:#x}, v{P+2}", f"v_exp_f32 v{T}, v{T}", "s_nop 0")
        A(f"v_cvt_pk_bf16_f32 v{T}, v{T}, v{T}", f"v_lshlrev_b32 v{T}, 16, v{T}")
        A(f"v_mul_f32 v{T+1}, v{T}, v{P}", f"v_mul_f32 v{T+2}, v{T}, v{P+1}")
        A(f"v_mul_f32 v{T+1}, {LOG2E:#x}, v{T+1}", f"v_mul_f32 v{T+2}, {INV2PI:#x}, v{T+2}")
        A(f"v_exp_f32 v{T+1}, v{T+1}", f"v_fract_f32 v{T+2}, v{T+2}", "s_nop 0")
        A(f"v_cos_f32 v{P+3}, v{T+2}", f"v_sin_f32 v{P+4}, v{T+2}", "s_nop 0")
        A(f"v_mul_f32 v{P+3}, v{P+3}, v{T+1}", f"v_mul_f32 v{P+4}, v{P+4}, v{T+1}")

    def csq(self, d, s_, t):
        A = self.A
        A(f"v_mul_f32 v{t}, v{s_+1}, v{s_+1}", f"v_mul_f32 v{d+1}, v{s_}, v{s_+1}")
        A(f"v_fma_f32 v{d}, v{s_}, v{s_}, -v{t}", f"v_add_f32 v{d+1}, v{d+1}, v{d+1}")

    def cfma(self, dr, di, ar, ai, br, bi, cr, ci):
        A = self.A
        A(f"v_fma_f32 v{dr}, v{ar}, v{br}, v{cr}", f"v_fma_f32 v{di}, v{ar}, v{bi}, v{ci}")
        A(f"v_fma_f32 v{dr}, -v{ai}, v{bi}, v{dr}", f"v_fma_f32 v{di}, v{ai}, v{br}, v{di}")

    def qkv_compute(self):
        A, L = self.A, self.L
        ACC, WF, XF, TMP = 16, 80, 112, 240
        VA, VW = 4, 8
        lg = Lgkm(A)
        A("v_and_b32 v10, 31, v0", "v_lshrrev_b32 v11, 5, v0")
        A(f"s_lshl_b32 s64, s{S_W}, 5", "v_add_u32 v12, s64, v10", "v_lshlrev_b32 v12, 7, v12")
        A("v_lshrrev_b32 v13, 1, v10", "v_and_b32 v13, 7, v13", "v_xor_b32 v13, v13, v11", "v_lshlrev_b32 v13, 4, v13")
        A(f"v_add_u32 v{VA}, v12, v13")
        for ks in range(1, 4): A(f"v_xor_b32 v{VA+ks}, {32*ks}, v{VA}")
        A("v_lshrrev_b32 v12, 5, v0", "v_lshlrev_b32 v12, 3, v12", "v_bfe_u32 v13, v0, 2, 2", "v_add_u32 v12, v12, v13", "v_lshlrev_b32 v12, 7, v12")
        A("v_bfe_u32 v13, v0, 3, 1", "v_lshlrev_b32 v13, 6, v13", "v_add_u32 v12, v12, v13")
        A("v_bfe_u32 v13, v0, 4, 1", "v_lshlrev_b32 v13, 5, v13", "v_add_u32 v12, v12, v13")
        A("v_and_b32 v13, 3, v0", "v_lshlrev_b32 v13, 3, v13", f"v_add_u32 v{VW}, v12, v13")
        A(f"v_xor_b32 v{VW+1}, 64, v{VW}")
        A(f"v_add_u32 v2, {3*SLOT}, v{VW}", f"v_add_u32 v3, {3*SLOT}, v{VW+1}")
        A(f"s_mov_b32 s76, {LOG2E:#x}", f"s_mov_b32 s77, {LOG2E:#x}")
        A("v_cmp_gt_u32 s[74:75], 16, v10")
        for i in range(64): A(f"v_mov_b32 v{ACC+i}, 0")
        A("v_and_b32 v12, 15, v10", "v_lshlrev_b32 v13, 4, v11", "v_add_u32 v12, v12, v13", "v_lshlrev_b32 v12, 5, v12")
        A("v_lshrrev_b32 v13, 4, v10", f"v_mul_u32_u24 v13, {PART_STRIDE}, v13", "v_add_u32 v12, v12, v13")
        A(f"s_mul_i32 s66, s{S_W}, {4*PART_STRIDE}", f"s_add_u32 s66, s66, {PARTQ}", "v_add_u32 v12, s66, v12")
        A("v_lshlrev_b32 v14, 5, v11", "v_add_u32 v14, v14, v13", "v_add_u32 v14, s66, v14", "v_add_u32 v14, 1024, v14")
        A("s_waitcnt lgkmcnt(0)")
        A.srd(SRD_WS, 32, 268435456)
        self.mode_announce("A")
        self.flag_touch("A", 245)
        self.weight_touch(242)
        A("v_cmp_gt_u32 s[74:75], 16, v10")
        def reads(s_, ks):
            buf = (s_ * 4 + ks) & 1
            out = [(f"ds_read_b128 {v(XF + (s_*4+ks)*4, 4)}, v{VA+ks}", ("x", s_, ks))]
            for nt in range(4):
                part, sub = nt >> 1, nt & 1
                for a_ in range(2):
                    off = 16384 + part * 8192 + (16 * ks + 4 * a_) * 128
                    out.append((f"ds_read_b64_tr_b16 {v(WF + buf*16 + nt*4 + 2*a_, 2)}, v{VW+sub} offset:{off}", ("w", s_, ks, nt)))
            return out
        A("s_barrier")
        self.stamp(1)
        for ins, tag in reads(0, 0): lg.issue(ins, tag)
        for s_ in range(8):
            for ks in range(4):
                nxt = (s_, ks + 1) if ks < 3 else ((s_ + 1, 0) if s_ < 7 else None)
                if ks == 3 and s_ < 7:
                    A("s_barrier")
                    self.sstamp(3 + s_)
                    d = SLOT if (s_ + 1) % NSLOT != 0 else -(NSLOT - 1) * SLOT
                    for r in list(range(VA, VA + 4)) + [VW, VW + 1]:
                        A(f"v_add_u32 v{r}, {d & 0xffffffff:#x}, v{r}")
                nr = reads(*nxt) if nxt else []
                buf = (s_ * 4 + ks) & 1
                xf = v(XF + (s_ * 4 + ks) * 4, 4)
                for nt in range(4):
                    if nt == 0: lg.need(("x", s_, ks), ("w", s_, ks, 0))
                    else: lg.need(("w", s_, ks, nt))
                    A(f"v_mfma_f32_32x32x16_bf16 {v(ACC+16*nt,16)}, {xf}, {v(WF+buf*16+nt*4,4)}, {v(ACC+16*nt,16)}")
                    if nr:
                        for ins, tag in (nr[0:3] if nt == 0 else nr[1 + 2*nt: 3 + 2*nt]):
                            lg.issue(ins, tag)
        self.stamp(2)
        A("s_waitcnt vmcnt(0)")
        A(f"s_mov_b32 s64, {EPS:#x}", f"s_mov_b32 s65, {EPS:#x}")
        for i in range(4): A(f"v_mov_b32 v{TMP+8+i}, 0x3f803f80")
        A("s_nop 3")
        ONES = TMP + 8
        def kvm(hp):
            kv = ACC + 16 * hp; z = ACC + 32 + 16 * hp
            A(f"v_mfma_f32_32x32x16_bf16 {v(kv,16)}, {v(WF+8*hp,4)}, {v(WF+16+8*hp,4)}, 0")
            A(f"v_mfma_f32_32x32x16_bf16 {v(z,16)}, {v(WF+8*hp,4)}, {v(ONES,4)}, 0")
            A(f"v_mfma_f32_32x32x16_bf16 {v(kv,16)}, {v(WF+8*hp+4,4)}, {v(WF+16+8*hp+4,4)}, {v(kv,16)}")
            A(f"v_mfma_f32_32x32x16_bf16 {v(z,16)}, {v(WF+8*hp+4,4)}, {v(ONES,4)}, {v(z,16)}")
        def vpack(hp):
            for i in range(0, 16, 2):
                A(f"v_cvt_pk_bf16_f32 v{WF+16+8*hp+i//2}, v{ACC+32+16*hp+i}, v{ACC+33+16*hp+i}")
        def pwrite(hp):
            kv = ACC + 16 * hp; z = ACC + 32 + 16 * hp
            T0 = WF + 16 * hp if False else XF_FREE
            for j in range(8):
                A(f"v_cndmask_b32 v{T0+j}, v{kv+8+j}, v{kv+j}, s[74:75]")
            for j in range(8):
                A(f"v_cndmask_b32 v{T0+8+j}, v{z+8+j}, v{z+j}, s[74:75]")
            A(f"ds_write_b128 v12, {v(T0,4)} offset:{hp*2*PART_STRIDE}")
            A(f"ds_write_b128 v12, {v(T0+4,4)} offset:{hp*2*PART_STRIDE+16}")
            A("s_mov_b64 s[66:67], exec", "s_mov_b32 exec_lo, 0x00010001", "s_mov_b32 exec_hi, 0x00010001")
            A(f"ds_write_b128 v14, {v(T0+8,4)} offset:{hp*2*PART_STRIDE}")
            A(f"ds_write_b128 v14, {v(T0+12,4)} offset:{hp*2*PART_STRIDE+16}")
            A("s_mov_b64 exec, s[66:67]")
        self.phi_pack(ACC, 16, WF, TMP)
        vpack(0)
        A("s_nop 1")
        kvm(0)
        self.phi_pack(ACC + 16, 16, WF + 8, TMP)
        vpack(1)
        A("s_nop 1")
        kvm(1)
        XF_FREE = WF
        A("s_nop 1")
        pwrite(0)
        A("s_waitcnt lgkmcnt(0)")
        A("s_nop 4")
        pwrite(1)
        A("s_waitcnt lgkmcnt(0)")
        self.stamp(3)
        A("s_barrier")
        self.mode_load("A", 250)
        for i in range(32): A(f"v_mov_b32 v{ACC+i}, 0")
        lg = Lgkm(A)
        NB = 4
        def qreads(step):
            idx, ks = step >> 2, step & 3
            a9, u = idx >> 2, idx & 3
            b = WF + (step % NB) * 8
            out = []
            for sub in range(2):
                for a_ in range(2):
                    off = a9 * SLOT + u * 8192 + (16 * ks + 4 * a_) * 128
                    out.append((f"ds_read_b64_tr_b16 {v(b + sub*4 + 2*a_, 2)}, v{2+sub} offset:{off}", ("q", step, sub)))
            return out
        for st in range(3):
            for ins, tag in qreads(st): lg.issue(ins, tag)
        for step in range(32):
            b = WF + (step % NB) * 8
            xf = v(XF + step * 4, 4)
            nr = qreads(step + 3) if step + 3 < 32 else []
            for sub in range(2):
                lg.need(("q", step, sub))
                A(f"v_mfma_f32_32x32x16_bf16 {v(ACC+16*sub,16)}, {v(b+4*sub,4)}, {xf}, {v(ACC+16*sub,16)}")
                for ins, tag in nr[2*sub:2*sub+2]: lg.issue(ins, tag)
        self.stamp(4)
        A(f"s_mov_b32 s64, {EPS:#x}", f"s_mov_b32 s65, {EPS:#x}")
        for i in range(32): A(f"v_mov_b32 v{P2ACC+i}, 0")
        self.phi_pack(ACC, 16, WF, TMP)
        self.phi_pack(ACC + 16, 16, WF + 8, TMP)
        A("v_lshlrev_b32 v13, 4, v11", "v_add_u32 v13, v13, v10", "v_lshlrev_b32 v13, 4, v13")
        A("v_lshlrev_b32 v15, 4, v11", "v_add_u32 v15, 512, v15", "v_cndmask_b32 v13, v15, v13, s[74:75]", f"v_add_u32 v13, {FIN}, v13")
        A("v_lshlrev_b32 v12, 4, v0")
        A(f"s_lshl_b32 s64, s{S_RT}, 2", f"s_add_u32 s64, s64, s{S_W}", "s_lshl_b32 s64, s64, 5", f"s_lshl_b32 s65, s{S_G}, 2", "s_add_u32 s64, s64, s65", "s_lshl_b32 s64, s64, 10")
        A("s_waitcnt vmcnt(0)")
        self.mode_resolve("A", 250, "qc")
        self.stamp(5)
        A("s_barrier")
        self.stamp(6)
        A(f"v_mov_b32 v15, {NONCEQ}", "ds_read_b64 v[250:251], v15")
        for hl in range(4):
            A(f"ds_read_b128 {v(WF+16+4*hl,4)}, v13 offset:{hl*1024}")
        for hl in range(4):
            hp, a_ = hl >> 1, hl & 1
            A(f"s_waitcnt lgkmcnt({3-hl})")
            A(f"v_mfma_f32_32x32x16_bf16 {v(ACC+16*hl,16)}, {v(WF+16+4*hl,4)}, {v(WF+8*hp+4*a_,4)}, 0")
        A("s_nop 7")
        for hl in range(4):
            d = ACC + 16 * hl
            if hl == 3: A("s_nop 3")
            A(f"v_add_f32 v{d+8}, {EPS:#x}, v{d+8}")
        for hl in range(4):
            A(f"v_rcp_f32 v{ACC+16*hl+8}, v{ACC+16*hl+8}")
        A("s_nop 0")
        for hl in range(4):
            d = ACC + 16 * hl
            for j in range(0, 8, 2):
                A(f"v_pk_mul_f32 v[{d+j}:{d+j+1}], v[{d+j}:{d+j+1}], v[{d+8}:{d+9}] op_sel_hi:[1,0]")
            for j in range(4):
                A(f"v_cvt_pk_bf16_f32 v{d+12+j}, v{d+2*j}, v{d+2*j+1}")
        for hl in range(4):
            A(f"buffer_store_dwordx4 {v(ACC+16*hl+12,4)}, v12, {WSr}, s64 offen offset:{hl*1024} sc1")
        A("s_waitcnt vmcnt(0)")
        self.wave_flag("A", 250)
        self.stamp(7)
        A("s_barrier")

    def bu_compute(self):
        A, L = self.A, self.L
        RE, IM, AF, BF = 16, 48, 80, 144
        C = 160
        lg = Lgkm(A)
        A("v_and_b32 v10, 15, v0", "v_lshrrev_b32 v11, 4, v0")
        A(f"s_lshl_b32 s64, s{S_G}, 6", f"s_lshl_b32 s65, s{S_W}, 4", "s_add_u32 s64, s64, s65", "s_lshl_b32 s64, s64, 1")
        A("v_lshlrev_b32 v12, 1, v10")
        A("v_lshrrev_b32 v13, 1, v10", "v_xor_b32 v13, v13, v11", "v_lshlrev_b32 v13, 4, v13", "v_lshlrev_b32 v14, 7, v10", "v_add_u32 v4, v13, v14")
        A("v_xor_b32 v5, 64, v4")
        A(f"s_lshl_b32 s65, s{S_W}, 11", "s_add_u32 s65, s65, 16384")
        A("v_add_u32 v6, s65, v4", "v_add_u32 v7, s65, v5")
        for i in range(64): A(f"v_mov_b32 v{RE+i}, 0")
        A("s_waitcnt lgkmcnt(0)")
        A.srd(SRD_WS, 32, 268435456)
        A.srd(SRD_T0, 12, 1024); A.srd(SRD_T1, 14, 1024); A.srd(SRD_T2, 24, 1024)
        A(f"buffer_load_ushort v{C}, v12, {R4(SRD_T0)}, s64 offen")
        A(f"buffer_load_ushort v{C+1}, v12, {R4(SRD_T1)}, s64 offen")
        A(f"buffer_load_ushort v{C+2}, v12, {R4(SRD_T2)}, s64 offen")
        A("s_waitcnt vmcnt(0)")
        self.mode_announce("B")
        self.flag_touch("B", 243)
        self.weight_touch(240)
        self.lam_code(C, C + 8)
        A(f"v_mov_b32 v166, v{C+3}", f"v_mov_b32 v167, v{C+4}")
        A("v_add_f32 v163, -1.0, v163")
        A("v_mul_f32 v168, v160, v160", "v_fma_f32 v168, v161, v161, v168", "v_rcp_f32 v168, v168")
        A("v_mul_f32 v169, v163, v160", "v_fma_f32 v169, v167, v161, v169")
        A("v_mul_f32 v170, v167, v160", "v_fma_f32 v170, -v163, v161, v170")
        A("v_add_f32 v168, v168, v168")
        A("v_mul_f32 v164, v169, v168", "v_mul_f32 v165, v170, v168")
        self.csq(174, 166, 176); self.csq(178, 174, 176); self.csq(174, 178, 176); self.csq(168, 174, 176)
        self.csq(170, 168, 176); self.csq(174, 170, 176); self.csq(172, 174, 176)
        def reads(s_, k2):
            buf = (s_ * 2 + k2) & 1
            out = [(f"ds_read_b128 {v(BF + buf*8, 4)}, v{6+k2} offset:0", ("b", s_, k2, 0)),
                   (f"ds_read_b128 {v(BF + buf*8 + 4, 4)}, v{6+k2} offset:8192", ("b", s_, k2, 1))]
            for mt in range(8):
                out.append((f"ds_read_b128 {v(AF + buf*32 + mt*4, 4)}, v{4+k2} offset:{mt*2048}", ("a", s_, k2, mt)))
            return out
        A("s_barrier")
        self.stamp(1)
        for ins, tag in reads(0, 0): lg.issue(ins, tag)
        for s_ in range(8):
            for k2 in range(2):
                nxt = (s_, 1) if k2 == 0 else ((s_ + 1, 0) if s_ < 7 else None)
                if k2 == 1 and s_ < 7:
                    A("s_barrier")
                    self.sstamp(3 + s_)
                    d = SLOT if (s_ + 1) % NSLOT != 0 else -(NSLOT - 1) * SLOT
                    for r in range(4, 8):
                        A(f"v_add_u32 v{r}, {d & 0xffffffff:#x}, v{r}")
                nr = reads(*nxt) if nxt else []
                if nxt is None:
                    nr = []
                buf = (s_ * 2 + k2) & 1
                for mt in range(8):
                    if mt == 0: lg.need(("b", s_, k2, 0), ("b", s_, k2, 1), ("a", s_, k2, 0))
                    else: lg.need(("a", s_, k2, mt))
                    af = v(AF + buf*32 + mt*4, 4)
                    A(f"v_mfma_f32_16x16x32_bf16 {v(RE+4*mt,4)}, {af}, {v(BF+buf*8,4)}, {v(RE+4*mt,4)}")
                    A(f"v_mfma_f32_16x16x32_bf16 {v(IM+4*mt,4)}, {af}, {v(BF+buf*8+4,4)}, {v(IM+4*mt,4)}")
                    if nr:
                        for ins, tag in (nr[0:3] if mt == 0 else [nr[2 + mt]]):
                            lg.issue(ins, tag)
                    if nxt is None and mt == 0:
                        A(f"v_mov_b32 v12, {NONCE}")
                        lg.issue("ds_read_b64 v[230:231], v12", "nonce")
        self.stamp(2)
        def pr(base, sg): return base + 4 * (sg >> 1) + 2 * (sg & 1)
        E0, E1_ = 180, 184
        Lr = "v[166:167]"
        def step(dre, dim, sre, sim, ure, uim, M=Lr):
            A(f"v_pk_fma_f32 v[{dre}:{dre+1}], v[{sre}:{sre+1}], {M}, v[{ure}:{ure+1}] op_sel_hi:[1,0,1]")
            A(f"v_pk_fma_f32 v[{dim}:{dim+1}], v[{sim}:{sim+1}], {M}, v[{uim}:{uim+1}] op_sel_hi:[1,0,1]")
            A(f"v_pk_fma_f32 v[{dre}:{dre+1}], v[{sim}:{sim+1}], {M}, v[{dre}:{dre+1}] op_sel:[0,1,0] op_sel_hi:[1,1,1] neg_lo:[0,1,0] neg_hi:[0,1,0]")
            A(f"v_pk_fma_f32 v[{dim}:{dim+1}], v[{sre}:{sre+1}], {M}, v[{dim}:{dim+1}] op_sel:[0,1,0] op_sel_hi:[1,1,1]")
        A(f"s_lshl_b32 s64, s{S_G}, 4", f"s_add_u32 s64, s64, s{S_RT}", "s_lshl_b32 s64, s64, 6", f"s_lshl_b32 s65, s{S_W}, 4", "s_add_u32 s64, s64, s65", "s_lshl_b32 s64, s64, 4", f"s_add_u32 s64, s64, {WS['ES']}")
        A("v_lshlrev_b32 v13, 4, v10", "v_lshlrev_b32 v12, 2, v10")
        cur = (pr(RE, 0), pr(IM, 0))
        for sg in range(1, 16):
            d = E0 if sg & 1 else E1_
            step(d, d + 2, cur[0], cur[1], pr(RE, sg), pr(IM, sg))
            cur = (d, d + 2)
        er, ei = cur
        self.cfma(188, 189, 168, 169, er, ei, er + 1, ei + 1)
        for qq in range(4):
            A(f"v_add_u32 v{14 + (qq&1)}, {64*qq}, v12")
            A(f"ds_bpermute_b32 v{190+2*qq}, v{14 + (qq&1)}, v188", f"ds_bpermute_b32 v{191+2*qq}, v{14 + (qq&1)}, v189")
        A("s_waitcnt lgkmcnt(0)")
        self.cfma(198, 199, 170, 171, 190, 191, 192, 193)
        self.cfma(200, 201, 170, 171, 198, 199, 194, 195)
        self.cfma(228, 229, 170, 171, 200, 201, 196, 197)
        A("s_mov_b64 s[66:67], exec", "s_mov_b64 exec, 0xffff")
        A(f"buffer_store_dwordx4 v[228:231], v13, {WSr}, s64 offen sc1")
        A("s_mov_b64 exec, s[66:67]")
        self.stamp(3)
        A("s_barrier")
        self.skip_issue()
        self.mode_load("B", 224)
        K2 = "v[164:165]"
        for sg in range(16):
            r_, i_ = pr(RE, sg), pr(IM, sg)
            A(f"v_pk_mul_f32 v[232:233], v[{i_}:{i_+1}], {K2} op_sel:[0,1] op_sel_hi:[1,1]")
            A(f"v_pk_mul_f32 v[234:235], v[{r_}:{r_+1}], {K2} op_sel:[0,1] op_sel_hi:[1,1]")
            A(f"v_pk_fma_f32 v[{r_}:{r_+1}], v[{r_}:{r_+1}], {K2}, v[232:233] op_sel_hi:[1,0,1] neg_lo:[0,0,1] neg_hi:[0,0,1]")
            A(f"v_pk_fma_f32 v[{i_}:{i_+1}], v[{i_}:{i_+1}], {K2}, v[234:235] op_sel_hi:[1,0,1]")
        if 'epre' in EXP:
            A("s_waitcnt vmcnt(0)")
            self.skip_finish()
            for r in range(16):
                A(f"v_mov_b32 v{P2ACC+r}, v{XS+r}", f"v_mov_b32 v{P2ACC+16+r}, 0")
        self.stamp(4)
        A(f"s_lshl_b32 s64, s{S_G}, 10", f"s_lshl_b32 s65, s{S_W}, 4", "s_add_u32 s64, s64, s65", "s_lshl_b32 s64, s64, 4", f"s_add_u32 s64, s64, {WS['ES']}")
        A("v_lshlrev_b32 v13, 4, v10")
        GB = 16 + 64 + 0
        def greg(j):
            if j < 8: return 80 + 4 * j
            if j < 12: return (112 if 'epre' in EXP else 144) + 4 * (j - 8)
            return 212 + 4 * (j - 12)
        lp, lgd, lok, lhd = L("e_poll"), L("e_gd"), L("e_ok"), L("e_hd")
        A(f"s_mov_b32 s72, {POLL_LIMIT}")
        A.label(lp)
        A("s_mov_b32 s65, s64")
        for j in range(15):
            A(f"s_cmp_le_u32 s{S_RT}, {j}", f"s_cbranch_scc1 {lgd}")
            A(f"buffer_load_dwordx4 v[{greg(j)}:{greg(j)+3}], v13, {WSr}, s65 offen sc1")
            if j < 14: A("s_add_u32 s65, s65, 1024")
        A.label(lgd)
        A("v_mov_b32 v236, 0")
        A("s_waitcnt vmcnt(0)")
        ltd = L("e_td")
        for j in range(15):
            A(f"s_cmp_le_u32 s{S_RT}, {j}", f"s_cbranch_scc1 {ltd}")
            A(f"v_xor_b32 v237, v230, v{greg(j)+2}", f"v_xor_b32 v238, v231, v{greg(j)+3}")
            A("v_or3_b32 v236, v236, v237, v238")
        A.label(ltd)
        A("v_cmp_ne_u32 vcc, 0, v236")
        A("s_sub_u32 s72, s72, 1", f"s_cbranch_scc1 {lok}")
        A(f"s_cbranch_vccnz {lp}")
        A.label(lok)
        A("v_mov_b32 v204, 0", "v_mov_b32 v205, 0")
        for j in range(15):
            A(f"s_cmp_le_u32 s{S_RT}, {j}", f"s_cbranch_scc1 {lhd}")
            self.cfma(206, 207, 172, 173, 204, 205, greg(j), greg(j) + 1)
            A("v_mov_b32 v204, v206", "v_mov_b32 v205, v207")
        A.label(lhd)
        self.mode_resolve("B", 224, "bc")
        self.stamp(5)
        self.cfma(198, 199, 170, 171, 204, 205, 190, 191)
        self.cfma(200, 201, 170, 171, 198, 199, 192, 193)
        self.cfma(202, 203, 170, 171, 200, 201, 194, 195)
        for qq, (sr, si) in enumerate(((198, 199), (200, 201), (202, 203)), start=1):
            A(f"v_cmp_eq_u32 vcc, {qq}, v11", "s_nop 1")
            A(f"v_cndmask_b32 v204, v204, v{sr}, vcc", f"v_cndmask_b32 v205, v205, v{si}, vcc")
        self.cfma(206, 207, 168, 169, 204, 205, er, ei)
        def cmul(dr, di, ar, ai):
            A(f"v_mul_f32 v{dr}, v{ar}, v164", f"v_mul_f32 v{di}, v{ar}, v165")
            A(f"v_fma_f32 v{dr}, -v{ai}, v165, v{dr}", f"v_fma_f32 v{di}, v{ai}, v164, v{di}")
        cmul(208, 210, 204, 205)
        cmul(209, 211, 206, 207)
        A(f"s_lshl_b32 s64, s{S_W}, 13", f"s_add_u32 s64, s64, {MISC}")
        A("v_lshlrev_b32 v12, 6, v11", "v_lshlrev_b32 v13, 4, v10", "v_xor_b32 v12, v12, v13", "v_lshlrev_b32 v13, 8, v10", "v_add_u32 v12, v12, v13", "v_add_u32 v12, s64, v12")
        for c in range(1, 4): A(f"v_xor_b32 v{212+c}, {16*c}, v12")
        A("v_bfe_u32 v13, v0, 4, 1", "v_lshlrev_b32 v13, 5, v13", "v_and_b32 v14, 3, v0", "v_lshlrev_b32 v14, 3, v14", "v_add_u32 v13, v13, v14")
        A("v_bfe_u32 v14, v0, 2, 2", "v_lshlrev_b32 v15, 4, v14", "v_xor_b32 v13, v13, v15", "v_lshlrev_b32 v14, 8, v14", "v_add_u32 v13, v13, v14")
        A("v_lshrrev_b32 v14, 5, v0", "v_lshlrev_b32 v14, 12, v14", "v_add_u32 v13, v13, v14", "v_add_u32 v13, s64, v13")
        cur = (208, 210)
        def pack(pl_, c):
            base, neg = (RE, "") if pl_ == 0 else (IM, "-")
            for j in range(4):
                sg = 8 * (c & 1) + 2 * j
                r0, r1 = pr(base, sg) + (c >> 1), pr(base, sg + 1) + (c >> 1)
                A(f"v_cvt_pk_bf16_f32 v{80 + 16*pl_ + 4*c + j}, {neg}v{r0}, {neg}v{r1}")
            A(f"ds_write_b128 v{12 if c == 0 else 212+c}, {v(80 + 16*pl_ + 4*c, 4)} offset:{pl_*4096}")
        for sg in range(16):
            d = (pr(RE, sg), pr(IM, sg))
            step(d[0], d[1], cur[0], cur[1], d[0], d[1])
            cur = d
            if sg == 8:
                for pl_ in range(2):
                    pack(pl_, 0); pack(pl_, 2)
        self.stamp(6)
        for pl_ in range(2):
            pack(pl_, 1); pack(pl_, 3)
        A(f"s_lshl_b32 s64, s{S_RT}, 8", f"s_lshl_b32 s65, s{S_G}, 3", "s_add_u32 s64, s64, s65", f"s_lshl_b32 s65, s{S_W}, 1", "s_add_u32 s64, s64, s65", "s_lshl_b32 s64, s64, 10", f"s_add_u32 s64, s64, {WS['H']}")
        A("v_lshlrev_b32 v12, 4, v0")
        A("s_waitcnt lgkmcnt(0)")
        for rb in range(4):
            for ksl in range(2):
                for a_ in range(2):
                    off = (8 * ksl + 4 * a_) * 256 + ((64 * rb) ^ (128 * ksl + 64 * a_))
                    A(f"ds_read_b64_tr_b16 {v(16 + (rb*2+ksl)*4 + 2*a_, 2)}, v13 offset:{off}")
        for rb in range(4):
            A(f"s_waitcnt lgkmcnt({min(15, 12-4*rb)})")
            for ksl in range(2):
                A(f"buffer_store_dwordx4 {v(16 + (rb*2+ksl)*4, 4)}, v12, {WSr}, s64 offen offset:{ksl*1024} sc1")
            if rb < 3: A("s_add_u32 s64, s64, 0x10000")
        self.stamp(7)
        if 'epre' not in EXP:
            self.skip_finish()
            for r in range(16):
                A(f"v_mov_b32 v{P2ACC+r}, v{XS+r}", f"v_mov_b32 v{P2ACC+16+r}, 0")
        A("s_waitcnt vmcnt(0)")
        self.wave_flag("B", 230)
        self.stamp(8)
        A("s_barrier")

    def p2(self, role):
        A, L = self.A, self.L
        self.stamp(9)
        nk = 32 if role == "A" else 64
        nst = nk // 2
        abase = WS["O"] if role == "A" else WS["H"]
        ACC, BF, AF = P2ACC, 48, 80
        NBUF, LA = 4, 7
        A(f"s_lshr_b32 s64, s{S_WAVE}, 2", f"s_and_b32 s65, s{S_WAVE}, 3")
        A("v_lshlrev_b32 v2, 4, v0")
        A(f"s_lshl_b32 s66, s{S_RT}, 2", "s_add_u32 s66, s66, s65", f"s_mul_i32 s66, s66, {nk*1024}")
        A(f"s_mul_i32 s67, s64, {nst*1024}", "s_add_u32 s66, s66, s67", f"s_add_u32 s66, s66, {abase}")
        def aload(k):
            A(f"buffer_load_dwordx4 {v(AF + 4*(k % 8), 4)}, v2, {WSr}, s66 offen offset:{(k % 4)*1024}")
            if k % 4 == 3: A("s_add_u32 s66, s66, 4096")
        for k in range(LA): aload(k)
        A("v_and_b32 v5, 31, v0", "v_lshrrev_b32 v6, 5, v0")
        A(f"s_lshl_b32 s68, s{S_RT}, 7", "s_lshl_b32 s69, s65, 5", "s_add_u32 s68, s68, s69")
        A(f"s_lshl_b32 s69, s{S_G}, 6", "s_lshl_b32 s70, s64, 5", "s_add_u32 s69, s69, s70")
        lg = Lgkm(A)
        if role == "A":
            A("v_lshlrev_b32 v12, 2, v6", "v_bfe_u32 v13, v0, 2, 2", "v_add_u32 v12, v12, v13", "v_lshlrev_b32 v12, 7, v12")
            A("v_bfe_u32 v13, v0, 3, 1", "v_lshlrev_b32 v13, 6, v13", "v_add_u32 v12, v12, v13")
            A("v_bfe_u32 v13, v0, 4, 1", "v_lshlrev_b32 v13, 5, v13", "v_add_u32 v12, v12, v13")
            A("v_and_b32 v13, 3, v0", "v_lshlrev_b32 v13, 3, v13", "v_add_u32 v12, v12, v13")
            A("s_lshl_b32 s70, s64, 15", f"s_add_u32 s70, s70, {WOIMG}", "v_add_u32 v3, s70, v12", "v_xor_b32 v4, 64, v3")
            def bread(k):
                b = BF + 8 * (k % NBUF)
                for cb in range(2):
                    for a_ in range(2):
                        lg.issue(f"ds_read_b64_tr_b16 {v(b + 4*cb + 2*a_, 2)}, v{3+cb} offset:{(16*k + 8*a_)*128}", ("b", k))
        else:
            A("v_lshlrev_b32 v12, 16, v6", "v_lshlrev_b32 v13, 10, v5", "v_add_u32 v12, v12, v13")
            A("v_and_b32 v13, 15, v5", "v_lshlrev_b32 v13, 4, v13", "v_add_u32 v12, v12, v13")
            A("s_lshl_b32 s70, s64, 9", "v_add_u32 v3, s70, v12")
            def bread(k):
                b = BF + 8 * (k % NBUF)
                t = 8 + (k % 4)
                A(f"v_xor_b32 v{t}, {(k & 15) * 16}, v3")
                for cb in range(2):
                    lg.issue(f"ds_read_b128 {v(b + 4*cb, 4)}, v{t} offset:{(k >> 4) * 256 + cb * 32768}", ("b", k))
        for k in range(NBUF - 1): bread(k)
        self.stamp(10)
        for k in range(nst):
            if k + LA < nst: aload(k + LA)
            if k + NBUF - 1 < nst: bread(k + NBUF - 1)
            rem = min(nst - 1 - k, LA)
            A(f"s_waitcnt vmcnt({rem})")
            lg.need(("b", k))
            b = BF + 8 * (k % NBUF)
            A(f"v_mfma_f32_32x32x16_bf16 {v(ACC,16)}, {v(AF+4*(k%8),4)}, {v(b,4)}, {v(ACC,16)}")
            A(f"v_mfma_f32_32x32x16_bf16 {v(ACC+16,16)}, {v(AF+4*(k%8),4)}, {v(b+4,4)}, {v(ACC+16,16)}")
        self.stamp(11)
        A(f"s_lshl_b32 s70, s{S_WAVE}, 12", f"s_add_u32 s70, s70, {MISC}", "v_add_u32 v9, s70, v2")
        A(f"s_xor_b32 s71, s{S_WAVE}, 4", "s_lshl_b32 s71, s71, 12", f"s_add_u32 s71, s71, {MISC}", "v_add_u32 v10, s71, v2")
        A("s_lshl_b32 s68, s68, 12", "s_lshl_b32 s69, s69, 2", "s_add_u32 s68, s68, s69")
        if role == "B": A("s_add_u32 s68, s68, 2048")
        A("v_lshlrev_b32 v11, 14, v6", "v_lshlrev_b32 v12, 2, v5", "v_add_u32 v11, v11, v12")
        A.srd(SRD_T0, 28, 8388608)
        lk, lj = L(f"kh1_{role}"), L(f"join_{role}")
        A("s_cmp_eq_u32 s64, 1", f"s_cbranch_scc1 {lk}")
        for i in range(4): A(f"ds_write_b128 v9, {v(ACC+16+4*i,4)} offset:{i*1024}")
        A(f"s_mov_b32 s71, 0")
        A(f"s_branch {lj}")
        A.label(lk)
        for i in range(4): A(f"ds_write_b128 v9, {v(ACC+4*i,4)} offset:{i*1024}")
        A("s_nop 1")
        for i in range(16): A(f"v_mov_b32 v{ACC+i}, v{ACC+16+i}")
        A.label(lj)
        A("s_waitcnt lgkmcnt(0)")
        A("s_barrier")
        for i in range(4): A(f"ds_read_b128 {v(48+4*i,4)}, v10 offset:{i*1024}")
        for i in range(4):
            A(f"s_waitcnt lgkmcnt({3-i})")
            for r in range(4*i, 4*i+4, 2):
                A(f"v_pk_add_f32 v[{ACC+r}:{ACC+r+1}], v[{ACC+r}:{ACC+r+1}], v[{48+r}:{49+r}]")
            for r in range(4*i, 4*i+4):
                row = (r & 3) + 8 * (r >> 2)
                A(f"s_add_u32 s69, s68, {row*4096}")
                A(f"buffer_store_dword v{ACC+r}, v11, {R4(SRD_T0)}, s69 offen {OUTF}")
        self.stamp(12)
        if 'clk' in EXP:
            lx = L(f"clk_{role}")
            A("s_waitcnt vmcnt(0)")
            A(f"s_cmp_lg_u32 s2, {0 if role == 'A' else 4}", f"s_cbranch_scc1 {lx}", f"s_cmp_lg_u32 s{S_WAVE}, 0", f"s_cbranch_scc1 {lx}")
            A("s_memtime s[88:89]", "s_memrealtime s[90:91]", "s_waitcnt lgkmcnt(0)")
            A("s_sub_u32 s88, s88, s84", "s_sub_u32 s90, s90, s86", "v_mov_b32 v16, s88", "v_mov_b32 v17, s90")
            A(f"v_mov_b32 v18, {0 if role == 'A' else 8}")
            A.srd(SRD_T0, 30, 256)
            A("s_mov_b64 exec, 1")
            A(f"buffer_store_dwordx2 v[16:17], v18, {R4(SRD_T0)}, 0 offen sc1")
            A.label(lx)
        self.write_stamps()
        A("s_endpgm")

def build(out, stamps=False):
    A = Asm()
    K = NAME + "_kernel"
    A.raw(HEADER_COMMENT + f"; @launch grid=(256,1,1) block=(512,1,1) lds={LDS_BYTES}\n" + '.amdgcn_target "amdgcn-amd-amdhsa--gfx950"\n')
    G(A, K, stamps).gen()
    A.kernel_desc(K, 256, accum=256)
    open(out, "w").write(A.text())

if __name__ == "__main__":
    build(sys.argv[1], stamps=(len(sys.argv) > 2 and sys.argv[2] == "stamps"))
```

```python
import sys
sys.path.insert(0, "gen"); sys.path.insert(0, "scratch")
from asmlib import *
WS = dict(O=0x000000, H=0x200000, KVP=0x600000, ES=0x700000, FLG=0x740000, ST=0x900000)
LDS_BYTES = 163840
SLOT = 32768
NSLOT = 5
MISC = 4 * SLOT
PART_STRIDE = 1152
PARTQ = 0
FIN = 20480
WOIMG = SLOT
NONCE = MISC + 24576 + 64
NONCEQ = 28672
LOG2E = 0x3FB8AA3B
EPS = 0x358637BD
INV2PI = 0x3E22F983
POLL_LIMIT = 1 << 18
EXP = set(a for a in sys.argv[3:]) | {'kvd', 'epre'}
OUTF = 'nt'
FASTF = 'nt' if 'fnt' in EXP else 'sc0' if 'fsc0' in EXP else 'sc0 nt' if 'fsc0nt' in EXP else ''

S_W, S_WAVE, S_XCD, S_SLOT, S_RT, S_G, S_ROT = 3, 34, 35, 36, 37, 38, 39
SRD_X, SRD_W, SRD_WS, SRD_T0, SRD_T1, SRD_T2, SRD_T3 = 40, 44, 48, 52, 56, 60, 96
NON = 78
P2ACC, XS, XD = 128, 112, 239
def R4(n): return f"s[{n}:{n+3}]"
def creg(R, i):
    n = R * 8 + i
    return 24 + 4 * n if n < 22 else 160 + 4 * (n - 22)
WSr = R4(SRD_WS)

class G:
    def __init__(self, A, K, stamps):
        self.A, self.K, self.stamps = A, K, stamps
    def L(self, n): return f"{self.K}_{n}"
    def stamp(self, i):
        if self.stamps:
            if 'pro' in EXP and 9 <= i <= 12 and not getattr(self, 'inpro', False): return
            if 'stg' in EXP and 3 <= i <= 12 and not getattr(self, 'instg', False): return
            self.A("s_memtime s[100:101]", "s_waitcnt lgkmcnt(0)", f"s_mov_b32 s{80+i}, s100")
    def sstamp(self, i):
        if 'stg' in EXP:
            self.instg = True
            self.A("s_memtime s[100:101]")
            self.A("s_waitcnt lgkmcnt(0)", f"s_mov_b32 s{80+i}, s100")
            self.instg = False
    def pstamp(self, i):
        if 'pro' in EXP:
            self.inpro = True; self.stamp(i); self.inpro = False
    def write_stamps(self):
        A = self.A
        if not self.stamps: return
        A("s_waitcnt vmcnt(0) lgkmcnt(0)")
        self.stamp(13)
        A("s_memrealtime s[100:101]", "s_waitcnt lgkmcnt(0)", "s_mov_b32 s95, s100")
        for j in range(16): A(f"v_mov_b32 v{16+j}, s{80+j}")
        A("s_lshl_b32 s64, s2, 3", f"s_add_u32 s64, s64, s{S_WAVE}", "s_lshl_b32 s64, s64, 6", f"s_add_u32 s64, s64, {WS['ST']}", "v_mov_b32 v2, s64")
        A("v_cmp_eq_u32 vcc, 0, v0", "s_and_saveexec_b64 s[66:67], vcc")
        for j in range(4):
            A(f"buffer_store_dwordx4 v[{16+4*j}:{19+4*j}], v2, {WSr}, 0 offen offset:{16*j}")

    def gen(self):
        A, L = self.A, self.L
        A.kernel_begin(self.K)
        A.label(L("start"))
        if self.stamps:
            for j in range(16): A(f"s_mov_b32 s{80+j}, 0")
            A("s_memrealtime s[100:101]", "s_waitcnt lgkmcnt(0)", "s_mov_b32 s94, s100")
            self.stamp(0)
        if 'clk' in EXP:
            A("s_memtime s[84:85]", "s_memrealtime s[86:87]")
        A("s_cmp_ge_u32 s2, 256", f"s_cbranch_scc1 {L('end')}")
        A("s_load_dwordx4 s[4:7], s[0:1], 0", "s_load_dwordx4 s[8:11], s[0:1], 16", "s_load_dwordx4 s[16:19], s[0:1], 48")
        if 'nocode' not in EXP:
            lc = L("nocode")
            A("s_getpc_b64 s[64:65]")
            A.label(L("pcref"))
            A(f"s_lshr_b32 s66, s2, 3", "s_mul_i32 s66, s66, 9", "v_add_u32 v2, s66, v0", "v_lshlrev_b32 v2, 7, v2")
            A(f"v_min_u32 v2, {L('end')}-{L('pcref')}, v2")
            A(f"v_cmp_gt_u32 vcc, 9, v0", "s_and_saveexec_b64 s[66:67], vcc", f"s_cbranch_execz {lc}")
            A("global_load_dword v255, v2, s[64:65]")
            A.label(lc)
            A("s_mov_b64 exec, s[66:67]")
        A("v_lshrrev_b32 v1, 6, v0", "v_and_b32 v0, 63, v0")
        A(f"v_readfirstlane_b32 s{S_WAVE}, v1")
        A(f"s_and_b32 s{S_XCD}, s2, 7", f"s_lshr_b32 s{S_SLOT}, s2, 3")
        A(f"s_and_b32 s64, s{S_XCD}, 3", f"s_lshl_b32 s{S_RT}, s64, 2", f"s_and_b32 s65, s{S_SLOT}, 3", f"s_add_u32 s{S_RT}, s{S_RT}, s65")
        A(f"s_lshr_b32 s{S_G}, s{S_SLOT}, 2")
        A("s_lshl_b32 s65, s65, 1", f"s_add_u32 s{S_ROT}, s{S_G}, s65", "s_and_b32 s64, s64, 1", f"s_add_u32 s{S_ROT}, s{S_ROT}, s64", f"s_and_b32 s{S_ROT}, s{S_ROT}, 7")
        if 'rot0' in EXP: A(f"s_mov_b32 s{S_ROT}, 0")
        A(f"s_and_b32 s{S_W}, s{S_WAVE}, 3")
        A(f"s_cmp_lt_u32 s{S_WAVE}, 4", f"s_cbranch_scc1 {L('compute')}")
        self.loader_prologue()
        A(f"s_cmp_ge_u32 s{S_XCD}, 4", f"s_cbranch_scc1 {L('bu_load')}")
        self.loader("qkv")
        A.label(L("p2A"))
        self.p2("A")
        A.label(L("bu_load"))
        self.loader("bu")
        A.label(L("p2B"))
        self.p2("B")
        A.label(L("compute"))
        self.rest_kernargs()
        A(f"s_cmp_ge_u32 s{S_XCD}, 4", f"s_cbranch_scc1 {L('bu')}")
        self.qkv_compute()
        A(f"s_branch {L('p2A')}")
        A.label(L("bu"))
        self.bu_compute()
        A(f"s_branch {L('p2B')}")
        A.label(L("end"))
        A("s_endpgm")

    def rest_kernargs(self):
        A = self.A
        A("s_load_dwordx4 s[12:15], s[0:1], 32", "s_load_dwordx4 s[20:23], s[0:1], 64", "s_load_dwordx4 s[24:27], s[0:1], 80")
        A("s_load_dwordx4 s[28:31], s[0:1], 96", "s_load_dwordx2 s[32:33], s[0:1], 112")

    def loader_prologue(self):
        A, L = self.A, self.L
        A("v_lshrrev_b32 v5, 3, v0", "v_and_b32 v6, 7, v0", "v_lshrrev_b32 v7, 4, v0")
        A("v_xor_b32 v8, v6, v7", "v_lshlrev_b32 v8, 4, v8")
        A("v_lshlrev_b32 v2, 10, v5", "v_add_u32 v2, v2, v8", "v_xor_b32 v3, 64, v2")
        A(f"s_lshl_b32 s70, s{S_W}, 12")
        lb, lj = L("pro_b"), L("pro_j")
        A(f"s_cmp_ge_u32 s{S_XCD}, 4", f"s_cbranch_scc1 {lb}")
        A("v_and_b32 v9, 1, v7", "v_lshlrev_b32 v9, 2, v9", "v_xor_b32 v9, v6, v9", "v_lshlrev_b32 v9, 4, v9")
        A("v_mul_u32_u24 v4, 3072, v5", "v_add_u32 v4, v4, v9", "v_lshlrev_b32 v12, 10, v5", "v_add_u32 v12, v12, v9")
        A("v_mov_b32 v20, v2", "v_mov_b32 v21, v3", "v_mov_b32 v22, v4", "v_mov_b32 v23, v4", "v_mov_b32 v11, v3")
        A(f"s_lshl_b32 s64, s{S_RT}, 7", f"s_lshl_b32 s65, s{S_W}, 5", "s_add_u32 s64, s64, s65", "s_lshl_b32 s68, s64, 10")
        A(f"s_mul_i32 s69, s{S_W}, {16*3072}", f"s_lshl_b32 s65, s{S_G}, 7", "s_add_u32 s69, s69, s65")
        A(f"s_mov_b32 s76, {64*3072}", "s_lshr_b32 s71, s70, 1")
        A("s_movk_i32 s52, 0x2000", "s_movk_i32 s53, 0x4000")
        A("s_movk_i32 s56, 0x2000")
        A("s_movk_i32 s60, 1024", "s_movk_i32 s61, 25600", "s_movk_i32 s62, 2048", "s_movk_i32 s63, 26624")
        A("s_waitcnt lgkmcnt(0)")
        A.srd(SRD_X, 4, 2097152); A.srd(SRD_W, 6, 1572864)
        A(f"s_branch {lj}")
        A.label(lb)
        A("v_lshrrev_b32 v9, 5, v0", "v_lshlrev_b32 v9, 5, v9", "v_and_b32 v10, 1, v5", "v_lshlrev_b32 v10, 4, v10", "v_add_u32 v9, v9, v10")
        A("v_and_b32 v10, 1, v7", "v_add_u32 v9, v9, v10", "v_lshlrev_b32 v4, 10, v9", "v_add_u32 v4, v4, v8", "v_xor_b32 v11, 64, v4")
        A("v_mov_b32 v20, v4", "v_mov_b32 v21, v11", "v_mov_b32 v22, v2", "v_mov_b32 v23, v3", "v_mov_b32 v12, v2")
        A(f"s_lshl_b32 s64, s{S_RT}, 7", f"s_lshl_b32 s65, s{S_W}, 2", "s_add_u32 s64, s64, s65", "s_lshl_b32 s68, s64, 10")
        A(f"s_lshl_b32 s64, s{S_G}, 6", f"s_and_b32 s65, s{S_W}, 1", "s_lshl_b32 s65, s65, 5", "s_add_u32 s64, s64, s65", "s_lshl_b32 s69, s64, 10")
        A("s_movk_i32 s76, 128", "s_mov_b32 s71, s70")
        A("s_mov_b32 s52, 0x10000", "s_movk_i32 s53, 0x800")
        A("s_movk_i32 s56, 0x800")
        A("s_movk_i32 s60, 0", "s_movk_i32 s61, 0x2000", "s_movk_i32 s62, 0x4000", "s_movk_i32 s63, 0x6000")
        A("s_waitcnt lgkmcnt(0)")
        A.srd(SRD_X, 10, 2097152)
        A(f"s_cmp_lt_u32 s{S_W}, 2", "s_cselect_b32 s64, s16, s18", "s_cselect_b32 s65, s17, s19")
        A.srd(SRD_W, 64, 524288)
        A.label(lj)
        A("s_add_u32 s54, s52, s53", "s_add_u32 s57, s56, 1024")
        self.pstamp(10)
        X, W = R4(SRD_X), R4(SRD_W)
        for st in range(2):
            slot = st * SLOT
            A(f"s_add_u32 s64, s{S_ROT}, {st}", "s_and_b32 s64, s64, 7")
            A("s_lshl_b32 s65, s64, 7", "s_add_u32 s65, s65, s68", "s_mul_i32 s66, s64, s76", "s_add_u32 s66, s66, s69")
            xo = [None, "s52", "s53", "s54"]
            for ii in range(4):
                A(f"s_add_u32 m0, s70, {slot + ii*1024}")
                A(f"s_add_u32 s67, s65, {xo[ii]}" if xo[ii] else "s_mov_b32 s67, s65")
                A(f"buffer_load_dwordx4 v{20 + (ii&1)}, {X}, s67 offen lds")
            A(f"s_add_u32 s72, s71, {slot + 16384}")
            wl = ["0", "1024", "s56", "s57"]
            for ii in range(4):
                A(f"s_add_u32 m0, s72, {wl[ii]}", f"s_add_u32 s67, s66, s{60+ii}")
                A(f"buffer_load_dwordx4 v{22 + (ii&1)}, {W}, s67 offen lds")
            self.pstamp(11 + st)
        self.rest_kernargs()

    def poll_lines(self, tag, nl, sbase, stride_log2, R=8):
        A, L = self.A, self.L
        lp, done = L(f"poll_{tag}"), L(f"polld_{tag}")
        A(f"s_mov_b32 s72, {POLL_LIMIT}")
        A(f"v_lshlrev_b32 v{R+2}, {stride_log2}, v0")
        A("s_mov_b64 s[74:75], exec", f"s_mov_b64 exec, {(1 << nl) - 1:#x}")
        A.label(lp)
        A(f"buffer_load_dwordx2 v[{R}:{R+1}], v{R+2}, {WSr}, s{sbase} offen sc1")
        A("s_waitcnt vmcnt(0)")
        A(f"v_xor_b32 v{R}, s{NON}, v{R}", f"v_xor_b32 v{R+1}, s{NON+1}, v{R+1}", f"v_or_b32 v{R}, v{R}, v{R+1}")
        A(f"v_cmp_ne_u32 vcc, 0, v{R}")
        A("s_sub_u32 s72, s72, 1")
        A(f"s_cbranch_scc1 {done}")
        A(f"s_cbranch_vccz {done}")
        A(f"s_branch {lp}")
        A.label(done)
        A("s_mov_b64 exec, s[74:75]")

    def store_flag(self, sbase, tag, R=8):
        A, L = self.A, self.L
        A(f"v_mov_b32 v{R}, s{NON}", f"v_mov_b32 v{R+1}, s{NON+1}", f"v_mov_b32 v{R+2}, 0")
        A("s_mov_b64 s[74:75], exec", "s_mov_b64 exec, 1")
        lf, lj = L(f"sf_fast_{tag}"), L(f"sf_j_{tag}")
        A("s_cmp_eq_u32 s73, 1", f"s_cbranch_scc1 {lf}")
        A(f"buffer_store_dwordx2 v[{R}:{R+1}], v{R+2}, {WSr}, s{sbase} offen sc1")
        A(f"s_branch {lj}")
        A.label(lf)
        A(f"buffer_store_dwordx2 v[{R}:{R+1}], v{R+2}, {WSr}, s{sbase} offen")
        A.label(lj)
        A("s_mov_b64 exec, s[74:75]")

    def skip_issue(self, vm=None):
        A = self.A
        A(f"s_lshr_b32 s64, s{S_WAVE}, 2")
        A(f"s_lshl_b32 s68, s{S_RT}, 7", f"s_lshl_b32 s69, s{S_W}, 5", "s_add_u32 s68, s68, s69")
        A(f"s_lshl_b32 s69, s{S_G}, 6", "s_lshl_b32 s70, s64, 5", "s_add_u32 s69, s69, s70")
        A.srd(SRD_T0, 10, 2097152); A.srd(SRD_T1, 26, 1024)
        A("s_lshl_b32 s70, s68, 10", "s_lshl_b32 s71, s69, 1", "s_add_u32 s70, s70, s71")
        A("v_and_b32 v8, 31, v0", "v_lshrrev_b32 v7, 5, v0", "v_lshlrev_b32 v7, 12, v7", "v_lshlrev_b32 v8, 1, v8", "v_add_u32 v7, v7, v8")
        for r in range(16):
            if r % 4 == 0 and r > 0: A("s_add_u32 s70, s70, 8192")
            ins = f"buffer_load_ushort v{XS+r}, v7, {R4(SRD_T0)}, s70 offen offset:{(r%4)*1024}"
            vm.issue(ins, "skip") if vm else A(ins)
        ins = f"buffer_load_ushort v{XD}, v8, {R4(SRD_T1)}, s71 offen"
        vm.issue(ins, "skip") if vm else A(ins)

    def skip_finish(self):
        A = self.A
        A(f"v_lshlrev_b32 v{XD}, 16, v{XD}")
        for r in range(16): A(f"v_lshlrev_b32 v{XS+r}, 16, v{XS+r}")
        for r in range(16): A(f"v_mul_f32 v{XS+r}, v{XS+r}, v{XD}")
        for r in range(0, 16, 2): A(f"v_cvt_pk_bf16_f32 v{XS+r}, v{XS+r}, v{XS+r+1}")
        for r in range(0, 16, 2):
            A(f"v_and_b32 v{XS+r+1}, 0xffff0000, v{XS+r}", f"v_lshlrev_b32 v{XS+r}, 16, v{XS+r}")

    def mode_announce(self, role, R=240):
        A, L = self.A, self.L
        lx = L(f"ann_{role}")
        A(f"s_cmp_lg_u32 s{S_W}, 0", f"s_cbranch_scc1 {lx}")
        A("s_getreg_b32 s64, hwreg(HW_REG_XCC_ID, 0, 3)", "s_lshl_b32 s64, 1, s64", f"s_lshl_b32 s65, 0x100, s{S_G}", "s_or_b32 s64, s64, s65")
        A(f"s_add_u32 s65, s{S_RT}, {0 if role == 'A' else 16}", "s_lshl_b32 s65, s65, 2")
        A(f"v_mov_b32 v{R}, s64", f"v_mov_b32 v{R+1}, s65")
        A.srd(SRD_T3, 30, 256)
        A("s_mov_b64 s[66:67], exec", "s_mov_b64 exec, 1")
        A(f"buffer_atomic_or v{R}, v{R+1}, {R4(SRD_T3)}, 0 offen sc1")
        A("s_mov_b64 exec, s[66:67]")
        A.label(lx)

    def mode_load(self, role, R):
        A = self.A
        A(f"s_add_u32 s65, s{S_RT}, {0 if role == 'A' else 16}", "s_lshl_b32 s65, s65, 2", f"v_mov_b32 v{R+1}, s65")
        A.srd(SRD_T3, 30, 256)
        A(f"buffer_load_dword v{R}, v{R+1}, {R4(SRD_T3)}, 0 offen sc1")

    def mode_resolve(self, role, R, tag):
        A, L = self.A, self.L
        lp, ok = L(f"mode_lp_{tag}"), L(f"mode_ok_{tag}")
        A(f"s_mov_b32 s72, {POLL_LIMIT}")
        A.label(lp)
        A(f"v_readfirstlane_b32 s73, v{R}", "s_nop 3")
        A("s_and_b32 s71, s73, 0xff00", "s_cmp_eq_u32 s71, 0xff00", f"s_cbranch_scc1 {ok}")
        A("s_sub_u32 s72, s72, 1", f"s_cbranch_scc1 {ok}")
        A(f"buffer_load_dword v{R}, v{R+1}, {R4(SRD_T3)}, 0 offen sc1", "s_waitcnt vmcnt(0)", f"s_branch {lp}")
        A.label(ok)
        A("s_and_b32 s70, s73, 0xff", "s_bcnt1_i32_b32 s70, s70", "s_cmp_eq_u32 s70, 1", "s_cselect_b32 s73, 1, 0")
        A("s_cmp_eq_u32 s71, 0xff00", "s_cselect_b32 s73, s73, 0")
        if 'slow' in EXP: A("s_mov_b32 s73, 0")

    def flag_touch(self, role, R):
        A = self.A
        self.flag_addr(role, 64)
        A(f"s_lshl_b32 s65, s{S_G}, 7", "s_add_u32 s64, s64, s65", f"v_mov_b32 v{R}, 0")
        A("s_mov_b64 s[74:75], exec", "s_mov_b64 exec, 1")
        A(f"buffer_load_dword v{R+1}, v{R}, {WSr}, s64 offen sc1")
        A("s_mov_b64 exec, s[74:75]")

    def weight_touch(self, R):
        A = self.A
        if 'nowt' in EXP: return
        A("s_lshl_b32 s64, s2, 2", f"s_add_u32 s64, s64, s{S_W}", "s_mul_i32 s64, s64, 12")
        A(f"v_add_u32 v{R}, s64, v0", f"v_lshlrev_b32 v{R}, 7, v{R}")
        A.srd(SRD_T0, 8, 524288); A.srd(SRD_T1, 20, 524288); A.srd(SRD_T2, 22, 524288)
        A("s_mov_b64 s[74:75], exec", "s_mov_b64 exec, 0xfff")
        A(f"buffer_load_dword v{R+1}, v{R}, {R4(SRD_T0)}, 0 offen sc1")
        A(f"v_subrev_u32 v{R+2}, 0x80000, v{R}")
        A(f"buffer_load_dword v{R+1}, v{R+2}, {R4(SRD_T1)}, 0 offen sc1")
        A(f"v_subrev_u32 v{R+2}, 0x100000, v{R}")
        A(f"buffer_load_dword v{R+1}, v{R+2}, {R4(SRD_T2)}, 0 offen sc1")
        A("s_mov_b64 exec, s[74:75]")

    def l2_prefetch(self, role, base, R):
        A = self.A
        if 'pf' not in EXP: return
        A(f"s_add_u32 s64, s{S_W}, {base}")
        A(f"s_and_b32 s65, s{S_XCD}, 3", "s_lshl_b32 s65, s65, 9", f"s_lshl_b32 s66, s{S_SLOT}, 4", "s_add_u32 s65, s65, s66")
        A("s_lshl_b32 s65, s65, 10", "s_lshl_b32 s66, s64, 7", "s_add_u32 s65, s65, s66")
        A(f"v_and_b32 v{R+2}, 15, v0", f"v_lshlrev_b32 v{R}, 10, v{R+2}")
        A(f"buffer_load_dword v{R+1}, v{R}, {R4(SRD_T0)}, s65 offen sc1")
        if role == "A":
            A(f"v_bfe_u32 v{R+3}, v0, 4, 1", f"v_mul_u32_u24 v{R+3}, 3072, v{R+3}", f"v_lshlrev_b32 v{R+2}, 7, v{R+2}", f"v_add_u32 v{R+2}, v{R+2}, v{R+3}")
            A("s_lshl_b32 s70, s64, 6", f"s_lshl_b32 s66, s{S_SLOT}, 1", "s_add_u32 s70, s70, s66", "s_mul_i32 s70, s70, 3072", "s_add_u32 s70, s70, 1024")
            A(f"buffer_load_dword v{R+1}, v{R+2}, {R4(SRD_T1)}, s70 offen sc1")
        else:
            A(f"s_lshl_b32 s70, s{S_SLOT}, 14", "s_lshl_b32 s66, s64, 7", "s_add_u32 s70, s70, s66")
            A(f"buffer_load_dword v{R+1}, v{R}, {R4(SRD_T1)}, s70 offen sc1")
            A(f"buffer_load_dword v{R+1}, v{R}, {R4(SRD_T2)}, s70 offen sc1")

    def pf_srds(self, role):
        A = self.A
        if 'pf' not in EXP: return
        if role == "A":
            A.srd(SRD_T0, 4, 2097152); A.srd(SRD_T1, 6, 1572864)
        else:
            A.srd(SRD_T0, 10, 2097152); A.srd(SRD_T1, 16, 524288); A.srd(SRD_T2, 18, 524288)

    def loader(self, role):
        A, L = self.A, self.L
        last = 9 if role == "qkv" else 7
        vm = Vm(A)
        vm.q = [('st', 0)] * 8 + [('st', 1)] * 8
        X, W = R4(SRD_X), R4(SRD_W)
        def issue(st):
            slot = (st % NSLOT) * SLOT
            tag = ("st", st)
            if st >= 8:
                a = st - 8
                A(f"s_add_u32 s64, s{S_ROT}, s{S_W}", f"s_add_u32 s64, s64, {4*a}", "s_and_b32 s64, s64, 7")
                A(f"s_mul_i32 s64, s64, {64*3072}", f"s_lshl_b32 s65, s{S_G}, 7", "s_add_u32 s64, s64, s65")
                A("s_lshl_b32 s66, s70, 1")
                for i in range(8):
                    A(f"s_add_u32 m0, s66, {slot + i*1024}", f"s_add_u32 s67, s64, {i*8*3072}")
                    vm.issue(f"buffer_load_dwordx4 v4, {W}, s67 offen lds", tag)
                return
            A(f"s_add_u32 s64, s{S_ROT}, {st}", "s_and_b32 s64, s64, 7")
            A("s_lshl_b32 s65, s64, 7", "s_add_u32 s65, s65, s68")
            if role == "qkv":
                A(f"s_mul_i32 s66, s64, {64*3072}", "s_add_u32 s66, s66, s69")
                for ii in range(4):
                    A(f"s_add_u32 m0, s70, {slot + ii*1024}", f"s_add_u32 s67, s65, {ii*8192}")
                    vm.issue(f"buffer_load_dwordx4 v{2 + (ii&1)}, {X}, s67 offen lds", tag)
                A("s_lshr_b32 s71, s70, 1")
                for part in range(2):
                    for ii in range(2):
                        A(f"s_add_u32 m0, s71, {slot + 16384 + part*8192 + ii*1024}", f"s_add_u32 s67, s66, {ii*8*3072 + (1+part)*1024}")
                        vm.issue(f"buffer_load_dwordx4 v4, {W}, s67 offen lds", tag)
            else:
                A("s_lshl_b32 s66, s64, 7", "s_add_u32 s66, s66, s69")
                for ii in range(4):
                    A(f"s_add_u32 m0, s70, {slot + ii*1024}", f"s_add_u32 s67, s65, {(64*(ii&1) + 2*(ii>>1))*1024}")
                    vm.issue(f"buffer_load_dwordx4 v{4 if (ii&1)==0 else 11}, {X}, s67 offen lds", tag)
                for ii in range(4):
                    A(f"s_add_u32 m0, s70, {slot + 16384 + ii*1024}", f"s_add_u32 s67, s66, {ii*8192}")
                    vm.issue(f"buffer_load_dwordx4 v{2 + (ii&1)}, {W}, s67 offen lds", tag)
        def cregion(R):
            part = R >> 1
            A.srd(SRD_T0, 20 + 2 * part, 524288)
            A(f"s_lshl_b32 s64, s{S_G}, 6", f"s_lshl_b32 s65, s{S_W}, 3", "s_add_u32 s64, s64, s65", f"s_add_u32 s64, s64, {32*(R&1)}", "s_lshl_b32 s64, s64, 10")
            A(f"s_and_b32 s66, s{S_W}, 1", "s_lshl_b32 s66, s66, 7", "v_lshlrev_b32 v13, 4, v0", "v_xor_b32 v13, s66, v13")
            for i in range(8):
                A(f"v_xor_b32 v{14+(i&1)}, {i*16}, v13")
                A(f"s_add_u32 s67, s64, {i*1024}")
                vm.issue(f"buffer_load_dwordx4 {v(creg(R, i),4)}, v{14+(i&1)}, {R4(SRD_T0)}, s67 offen", ("c", R))
        self.cregion = cregion
        self.vm = vm
        A("s_waitcnt lgkmcnt(0)")
        A.srd(SRD_WS, 32, 268435456)
        if role == "qkv":
            ln = L("nononce")
            A("s_cmp_lg_u32 s2, 0", f"s_cbranch_scc1 {ln}", f"s_cmp_lg_u32 s{S_WAVE}, 4", f"s_cbranch_scc1 {ln}")
            A("s_memrealtime s[76:77]", "s_waitcnt lgkmcnt(0)", "s_or_b32 s76, s76, 1")
            A("v_mov_b32 v14, s76", "v_mov_b32 v15, s77", "v_mov_b32 v13, 0")
            A.srd(SRD_T0, 30, 256)
            A("s_mov_b64 s[74:75], exec", "s_mov_b64 exec, 1")
            A(f"buffer_store_dwordx2 v[14:15], v13, {R4(SRD_T0)}, 0 offen offset:128 sc1")
            A("s_mov_b64 exec, s[74:75]")
            A("s_waitcnt vmcnt(0)")
            A.label(ln)
        self.stamp(1)
        sched = {0: [2], 1: [3], 2: [4], 3: [5], 4: [6], 5: [7], 6: [8], 7: [9]} if 'l3' not in EXP else {0: [2], 1: [3], 2: [4, 5], 3: [6], 4: [7], 5: [8], 6: [9], 7: []}
        for st in range(8):
            vm.need(("st", st))
            if st == 7:
                self.get_nonce(role)
            A("s_barrier")
            if st == 0: self.stamp(2)
            for x in sched[st]:
                if x <= last: issue(x)
            if role == "bu" and st == 7:
                for R_ in range(2): cregion(R_)
            if st == 4:
                A(f"s_load_dwordx2 s[{NON}:{NON+1}], s[30:31], 128")
        if role == "qkv": self.qkv_loader_tail()
        else: self.bu_loader_tail()

    def get_nonce(self, role):
        A, L = self.A, self.L
        ok, lp = L(f"nok_{role}"), L(f"nlp_{role}")
        A("s_waitcnt lgkmcnt(0)")
        A(f"s_cmp_lg_u32 s{NON}, 0", f"s_cbranch_scc1 {ok}")
        A.srd(SRD_T0, 30, 256)
        A(f"s_mov_b32 s72, {POLL_LIMIT}", "v_mov_b32 v13, 0")
        A.label(lp)
        A(f"buffer_load_dwordx2 v[14:15], v13, {R4(SRD_T0)}, 0 offen offset:128 sc1", "s_waitcnt vmcnt(0)")
        A(f"v_readfirstlane_b32 s{NON}, v14", f"v_readfirstlane_b32 s{NON+1}, v15", "s_nop 3")
        A("s_sub_u32 s72, s72, 1", f"s_cbranch_scc1 {ok}")
        A(f"s_cmp_lg_u32 s{NON}, 0", f"s_cbranch_scc1 {ok}", "s_sleep 2", f"s_branch {lp}")
        A.label(ok)
        if role == "bu":
            A(f"v_mov_b32 v14, s{NON}", f"v_mov_b32 v15, s{NON+1}", f"v_mov_b32 v13, {NONCE}")
            A("ds_write_b64 v13, v[14:15]", "s_waitcnt lgkmcnt(0)")

    def qkv_loader_tail(self):
        A, L, vm = self.A, self.L, self.vm
        A(f"v_mov_b32 v14, s{NON}", f"v_mov_b32 v15, s{NON+1}", f"v_mov_b32 v13, {NONCEQ}")
        A("ds_write_b64 v13, v[14:15]")
        vm.need(("st", 9))
        A("s_waitcnt lgkmcnt(0)")
        self.stamp(3)
        A("s_barrier")
        A("s_setprio 3")
        self.stamp(4)
        A("v_mul_u32_u24 v7, 24, v0", f"s_mul_i32 s64, s{S_W}, {PART_STRIDE}", "v_add_u32 v7, s64, v7")
        for w in range(4):
            for j in range(3):
                A(f"ds_read_b64 v[{16+6*w+2*j}:{17+6*w+2*j}], v7 offset:{PARTQ + w*4*PART_STRIDE + 8*j}")
        A("v_lshlrev_b32 v3, 4, v0")
        A(f"s_lshl_b32 s64, s{S_G}, 4", f"s_add_u32 s64, s64, s{S_RT}", "s_lshl_b32 s64, s64, 2", f"s_add_u32 s64, s64, s{S_W}", "s_lshl_b32 s64, s64, 10", f"s_add_u32 s64, s64, {WS['KVP']}")
        A(f"v_mov_b32 v51, s{NON}")
        A("s_waitcnt lgkmcnt(6)")
        for j in range(0, 6, 2):
            A(f"v_pk_add_f32 v[{16+j}:{17+j}], v[{16+j}:{17+j}], v[{22+j}:{23+j}]")
        A("s_waitcnt lgkmcnt(0)")
        for j in range(0, 6, 2):
            A(f"v_pk_add_f32 v[{28+j}:{29+j}], v[{28+j}:{29+j}], v[{34+j}:{35+j}]")
        for j in range(0, 6, 2):
            A(f"v_pk_add_f32 v[{16+j}:{17+j}], v[{16+j}:{17+j}], v[{28+j}:{29+j}]")
        for j in range(3):
            A(f"v_cvt_pk_bf16_f32 v{48+j}, v{16+2*j}, v{17+2*j}")
        A("s_mov_b64 s[66:67], exec", "s_mov_b32 exec_lo, -1", "s_mov_b32 exec_hi, 0x3fff")
        A(f"buffer_store_dwordx4 v[48:51], v3, {WSr}, s64 offen sc1")
        self.stamp(5)
        A("s_mov_b64 exec, s[66:67]")
        A.srd(SRD_T0, 8, 524288)
        A(f"s_lshl_b32 s64, s{S_W}, 17", f"s_lshl_b32 s65, s{S_G}, 7", "s_add_u32 s64, s64, s65")
        A(f"s_lshl_b32 s65, s{S_W}, 14")
        for i in range(16):
            A(f"s_add_u32 m0, s65, {WOIMG + i*1024}", f"s_add_u32 s69, s64, {i*8192}")
            A(f"buffer_load_dwordx4 v12, {R4(SRD_T0)}, s69 offen lds")
        if 'kvd' in EXP: A("s_waitcnt vmcnt(0)")
        A("s_mov_b32 exec_lo, -1", "s_mov_b32 exec_hi, 0x3fff")
        A(f"s_lshl_b32 s68, s{S_G}, 6", f"s_add_u32 s68, s68, s{S_W}", "s_lshl_b32 s68, s68, 10", f"s_add_u32 s68, s68, {WS['KVP']}")
        lp, ok, ll, llo = L("kv_poll"), L("kv_ok"), L("kv_light"), L("kv_lightok")
        A(f"s_mov_b32 s72, {POLL_LIMIT}")
        A("v_lshlrev_b32 v5, 12, v0", f"v_add_u32 v5, {45*16+12}, v5")
        A("s_mov_b32 exec_lo, 0xffff", "s_mov_b32 exec_hi, 0")
        A.label(ll)
        A(f"buffer_load_dword v6, v5, {WSr}, s68 offen sc1", "s_waitcnt vmcnt(0)")
        A(f"v_cmp_ne_u32 vcc, s{NON}, v6")
        A("s_sub_u32 s72, s72, 1", f"s_cbranch_scc1 {llo}")
        A(f"s_cbranch_vccnz {ll}")
        A.label(llo)
        A("s_mov_b32 exec_lo, -1", "s_mov_b32 exec_hi, 0x3fff")
        def bulk(fl):
            A("s_mov_b32 s64, s68")
            for r in range(16):
                A(f"buffer_load_dwordx4 v[{64+4*r}:{67+4*r}], v3, {WSr}, s64 offen {fl}")
                if r < 15: A("s_add_u32 s64, s64, 4096")
            A("s_waitcnt vmcnt(0)")
            A(f"v_xor_b32 v52, s{NON}, v67")
            for r in range(1, 16):
                A(f"v_xor_b32 v53, s{NON}, v{67+4*r}", "v_or_b32 v52, v52, v53")
            A("v_cmp_ne_u32 vcc, 0, v52")
        bulk("")
        A(f"s_cbranch_vccz {ok}")
        A.label(lp)
        bulk("sc1")
        A("s_sub_u32 s72, s72, 1", f"s_cbranch_scc1 {ok}")
        A(f"s_cbranch_vccnz {lp}")
        A.label(ok)
        self.stamp(6)
        A("s_mov_b64 exec, s[66:67]")
        for j in range(6): A(f"v_mov_b32 v{16+j}, 0")
        A("v_mov_b32 v24, 0x00003f80", "v_mov_b32 v25, 0x3f800000")
        for r in range(16):
            for j in range(3):
                A(f"v_dot2c_f32_bf16 v{16+2*j}, v{64+4*r+j}, v24")
                A(f"v_dot2c_f32_bf16 v{17+2*j}, v{64+4*r+j}, v25")
        A("s_nop 2")
        for j in range(3):
            A(f"v_cvt_pk_bf16_f32 v{48+j}, v{16+2*j}, v{17+2*j}")
        A("v_mul_u32_u24 v4, 12, v0", f"s_lshl_b32 s66, s{S_W}, 10", f"s_add_u32 s66, s66, {FIN}", "v_add_u32 v4, s66, v4")
        A("s_mov_b64 s[66:67], exec", "s_mov_b32 exec_lo, -1", "s_mov_b32 exec_hi, 0x3fff")
        for j in range(3): A(f"ds_write_b32 v4, v{48+j} offset:{4*j}")
        A("s_mov_b64 exec, s[66:67]")
        A("s_waitcnt lgkmcnt(0)")
        self.stamp(7)
        A("s_barrier")
        A("s_setprio 0")
        for i in range(32): A(f"v_mov_b32 v{P2ACC+i}, 0")
        A("s_waitcnt vmcnt(0)")
        self.stamp(8)
        A("s_barrier")

    def bu_loader_tail(self):
        A, L, vm = self.A, self.L, self.vm
        self.stamp(3)
        A("s_barrier")
        self.cregion(2); self.cregion(3)
        self.skip_issue(vm)
        A("v_lshlrev_b32 v13, 4, v0", f"s_lshl_b32 s65, s{S_W}, 13", "v_add_u32 v13, s65, v13")
        for R_ in range(4):
            vm.need(("c", R_))
            if R_ == 2: A("v_add_u32 v13, 0x10000, v13")
            for i in range(8):
                A(f"ds_write_b128 v13, {v(creg(R_, i),4)} offset:{(R_&1)*SLOT + i*1024}")
        A("s_waitcnt lgkmcnt(0)")
        vm.drain()
        self.skip_finish()
        for r in range(16):
            A(f"v_mov_b32 v{P2ACC+r}, 0", f"v_mov_b32 v{P2ACC+16+r}, v{XS+r}")
        self.stamp(4)
        A("s_barrier")

    def flag_addr(self, role, dst):
        A = self.A
        A(f"s_add_u32 s{dst}, s{S_RT}, {0 if role == 'A' else 16}", f"s_lshl_b32 s{dst}, s{dst}, 10", f"s_add_u32 s{dst}, s{dst}, {WS['FLG']}")

    def wave_flag(self, role, vn):
        A = self.A
        self.flag_addr(role, 64)
        A(f"s_lshl_b32 s65, s{S_G}, 7", "s_add_u32 s64, s64, s65", f"s_lshl_b32 s65, s{S_W}, 3", "s_add_u32 s64, s64, s65", "v_mov_b32 v12, 0")
        A("s_mov_b64 s[74:75], exec", "s_mov_b64 exec, 1")
        lf, lj = self.L(f"wf_fast_{role}"), self.L(f"wf_j_{role}")
        A("s_cmp_eq_u32 s73, 1", f"s_cbranch_scc1 {lf}")
        A(f"buffer_store_dwordx2 v[{vn}:{vn+1}], v12, {WSr}, s64 offen sc1")
        A(f"s_branch {lj}")
        A.label(lf)
        A(f"buffer_store_dwordx2 v[{vn}:{vn+1}], v12, {WSr}, s64 offen")
        A.label(lj)
        A("s_mov_b64 exec, s[74:75]")

    def p2_wait(self, role):
        A, L = self.A, self.L
        self.flag_addr(role, 64)
        A(f"s_lshr_b32 s65, s{S_WAVE}, 2", "s_lshl_b32 s65, s65, 9", "s_add_u32 s64, s64, s65")
        lp, done = L(f"fpoll_{role}"), L(f"fpolld_{role}")
        A(f"s_mov_b32 s72, {POLL_LIMIT}")
        if role == "B":
            A("v_lshrrev_b32 v10, 2, v0", "v_lshlrev_b32 v10, 7, v10", "v_and_b32 v11, 3, v0", "v_lshlrev_b32 v11, 3, v11", "v_add_u32 v10, v10, v11")
            A("s_mov_b64 s[74:75], exec", "s_mov_b64 exec, 0xffff")
        else:
            A(f"s_lshl_b32 s65, s{S_W}, 3", "v_lshlrev_b32 v10, 7, v0", "v_add_u32 v10, s65, v10")
            A("s_mov_b64 s[74:75], exec", "s_mov_b64 exec, 0xf")
        A.label(lp)
        A(f"buffer_load_dwordx2 v[8:9], v10, {WSr}, s64 offen sc1")
        A("s_waitcnt vmcnt(0)")
        A(f"v_xor_b32 v8, s{NON}, v8", f"v_xor_b32 v9, s{NON+1}, v9", "v_or_b32 v8, v8, v9")
        A("v_cmp_ne_u32 vcc, 0, v8")
        A("s_sub_u32 s72, s72, 1", f"s_cbranch_scc1 {done}")
        A(f"s_cbranch_vccnz {lp}")
        A.label(done)
        A("s_mov_b64 exec, s[74:75]")

    def phi_pack(self, acc, n, dst, T):
        A = self.A
        for base in range(0, n, 8):
            for i in range(0, 8, 2):
                A(f"v_pk_mul_f32 v[{T+i}:{T+i+1}], v[{acc+base+i}:{acc+base+i+1}], s[76:77]")
            for i in range(8):
                A(f"v_exp_f32_e64 v{T+i}, v{T+i} clamp")
            for i in range(8):
                A(f"v_max_f32 v{acc+base+i}, 0, v{acc+base+i}")
            for i in range(0, 8, 2):
                A(f"v_pk_add_f32 v[{acc+base+i}:{acc+base+i+1}], v[{acc+base+i}:{acc+base+i+1}], v[{T+i}:{T+i+1}]")
            for i in range(0, 8, 2):
                A(f"v_pk_add_f32 v[{acc+base+i}:{acc+base+i+1}], v[{acc+base+i}:{acc+base+i+1}], s[64:65]")
            for i in range(0, 8, 2):
                A(f"v_cvt_pk_bf16_f32 v{dst+(base+i)//2}, v{acc+base+i}, v{acc+base+i+1}")

    def lam_code(self, P, T):
        A = self.A
        A(f"v_lshlrev_b32 v{P}, 16, v{P}", f"v_lshlrev_b32 v{P+1}, 16, v{P+1}", f"v_lshlrev_b32 v{P+2}, 16, v{P+2}")
        A(f"v_mul_f32 v{T}, {LOG2E:#x}, v{P+2}", f"v_exp_f32 v{T}, v{T}", "s_nop 0")
        A(f"v_cvt_pk_bf16_f32 v{T}, v{T}, v{T}", f"v_lshlrev_b32 v{T}, 16, v{T}")
        A(f"v_mul_f32 v{T+1}, v{T}, v{P}", f"v_mul_f32 v{T+2}, v{T}, v{P+1}")
        A(f"v_mul_f32 v{T+1}, {LOG2E:#x}, v{T+1}", f"v_mul_f32 v{T+2}, {INV2PI:#x}, v{T+2}")
        A(f"v_exp_f32 v{T+1}, v{T+1}", f"v_fract_f32 v{T+2}, v{T+2}", "s_nop 0")
        A(f"v_cos_f32 v{P+3}, v{T+2}", f"v_sin_f32 v{P+4}, v{T+2}", "s_nop 0")
        A(f"v_mul_f32 v{P+3}, v{P+3}, v{T+1}", f"v_mul_f32 v{P+4}, v{P+4}, v{T+1}")

    def csq(self, d, s_, t):
        A = self.A
        A(f"v_mul_f32 v{t}, v{s_+1}, v{s_+1}", f"v_mul_f32 v{d+1}, v{s_}, v{s_+1}")
        A(f"v_fma_f32 v{d}, v{s_}, v{s_}, -v{t}", f"v_add_f32 v{d+1}, v{d+1}, v{d+1}")

    def cfma(self, dr, di, ar, ai, br, bi, cr, ci):
        A = self.A
        A(f"v_fma_f32 v{dr}, v{ar}, v{br}, v{cr}", f"v_fma_f32 v{di}, v{ar}, v{bi}, v{ci}")
        A(f"v_fma_f32 v{dr}, -v{ai}, v{bi}, v{dr}", f"v_fma_f32 v{di}, v{ai}, v{br}, v{di}")

    def qkv_compute(self):
        A, L = self.A, self.L
        ACC, WF, XF, TMP = 16, 80, 112, 240
        VA, VW = 4, 8
        lg = Lgkm(A)
        A("v_and_b32 v10, 31, v0", "v_lshrrev_b32 v11, 5, v0")
        A(f"s_lshl_b32 s64, s{S_W}, 5", "v_add_u32 v12, s64, v10", "v_lshlrev_b32 v12, 7, v12")
        A("v_lshrrev_b32 v13, 1, v10", "v_and_b32 v13, 7, v13", "v_xor_b32 v13, v13, v11", "v_lshlrev_b32 v13, 4, v13")
        A(f"v_add_u32 v{VA}, v12, v13")
        for ks in range(1, 4): A(f"v_xor_b32 v{VA+ks}, {32*ks}, v{VA}")
        A("v_lshrrev_b32 v12, 5, v0", "v_lshlrev_b32 v12, 3, v12", "v_bfe_u32 v13, v0, 2, 2", "v_add_u32 v12, v12, v13", "v_lshlrev_b32 v12, 7, v12")
        A("v_bfe_u32 v13, v0, 3, 1", "v_lshlrev_b32 v13, 6, v13", "v_add_u32 v12, v12, v13")
        A("v_bfe_u32 v13, v0, 4, 1", "v_lshlrev_b32 v13, 5, v13", "v_add_u32 v12, v12, v13")
        A("v_and_b32 v13, 3, v0", "v_lshlrev_b32 v13, 3, v13", f"v_add_u32 v{VW}, v12, v13")
        A(f"v_xor_b32 v{VW+1}, 64, v{VW}")
        A(f"v_add_u32 v2, {3*SLOT}, v{VW}", f"v_add_u32 v3, {3*SLOT}, v{VW+1}")
        A(f"s_mov_b32 s76, {LOG2E:#x}", f"s_mov_b32 s77, {LOG2E:#x}")
        A("v_cmp_gt_u32 s[74:75], 16, v10")
        for i in range(64): A(f"v_mov_b32 v{ACC+i}, 0")
        A("v_and_b32 v12, 15, v10", "v_lshlrev_b32 v13, 4, v11", "v_add_u32 v12, v12, v13", "v_lshlrev_b32 v12, 5, v12")
        A("v_lshrrev_b32 v13, 4, v10", f"v_mul_u32_u24 v13, {PART_STRIDE}, v13", "v_add_u32 v12, v12, v13")
        A(f"s_mul_i32 s66, s{S_W}, {4*PART_STRIDE}", f"s_add_u32 s66, s66, {PARTQ}", "v_add_u32 v12, s66, v12")
        A("v_lshlrev_b32 v14, 5, v11", "v_add_u32 v14, v14, v13", "v_add_u32 v14, s66, v14", "v_add_u32 v14, 1024, v14")
        A("s_waitcnt lgkmcnt(0)")
        self.pf_srds("A")
        self.l2_prefetch("A", 0, 250)
        self.l2_prefetch("A", 4, 250) if 'pfall' in EXP else None
        A.srd(SRD_WS, 32, 268435456)
        self.mode_announce("A")
        self.flag_touch("A", 245)
        self.weight_touch(242)
        A("v_cmp_gt_u32 s[74:75], 16, v10")
        def reads(s_, ks):
            buf = (s_ * 4 + ks) & 1
            out = [(f"ds_read_b128 {v(XF + (s_*4+ks)*4, 4)}, v{VA+ks}", ("x", s_, ks))]
            for nt in range(4):
                part, sub = nt >> 1, nt & 1
                for a_ in range(2):
                    off = 16384 + part * 8192 + (16 * ks + 4 * a_) * 128
                    out.append((f"ds_read_b64_tr_b16 {v(WF + buf*16 + nt*4 + 2*a_, 2)}, v{VW+sub} offset:{off}", ("w", s_, ks, nt)))
            return out
        self.pf_srds("A")
        A("s_barrier")
        self.stamp(1)
        for ins, tag in reads(0, 0): lg.issue(ins, tag)
        if 'pfall' not in EXP: self.l2_prefetch("A", 4, 250)
        for s_ in range(8):
            for ks in range(4):
                nxt = (s_, ks + 1) if ks < 3 else ((s_ + 1, 0) if s_ < 7 else None)
                if ks == 3 and s_ < 7:
                    A("s_barrier")
                    self.sstamp(3 + s_)
                    d = SLOT if (s_ + 1) % NSLOT != 0 else -(NSLOT - 1) * SLOT
                    for r in list(range(VA, VA + 4)) + [VW, VW + 1]:
                        A(f"v_add_u32 v{r}, {d & 0xffffffff:#x}, v{r}")
                nr = reads(*nxt) if nxt else []
                buf = (s_ * 4 + ks) & 1
                xf = v(XF + (s_ * 4 + ks) * 4, 4)
                for nt in range(4):
                    if nt == 0: lg.need(("x", s_, ks), ("w", s_, ks, 0))
                    else: lg.need(("w", s_, ks, nt))
                    A(f"v_mfma_f32_32x32x16_bf16 {v(ACC+16*nt,16)}, {xf}, {v(WF+buf*16+nt*4,4)}, {v(ACC+16*nt,16)}")
                    if nr:
                        for ins, tag in (nr[0:3] if nt == 0 else nr[1 + 2*nt: 3 + 2*nt]):
                            lg.issue(ins, tag)
        self.stamp(2)
        A("s_waitcnt vmcnt(0)")
        A(f"s_mov_b32 s64, {EPS:#x}", f"s_mov_b32 s65, {EPS:#x}")
        for i in range(4): A(f"v_mov_b32 v{TMP+8+i}, 0x3f803f80")
        A("s_nop 3")
        ONES = TMP + 8
        def kvm(hp):
            kv = ACC + 16 * hp; z = ACC + 32 + 16 * hp
            A(f"v_mfma_f32_32x32x16_bf16 {v(kv,16)}, {v(WF+8*hp,4)}, {v(WF+16+8*hp,4)}, 0")
            A(f"v_mfma_f32_32x32x16_bf16 {v(z,16)}, {v(WF+8*hp,4)}, {v(ONES,4)}, 0")
            A(f"v_mfma_f32_32x32x16_bf16 {v(kv,16)}, {v(WF+8*hp+4,4)}, {v(WF+16+8*hp+4,4)}, {v(kv,16)}")
            A(f"v_mfma_f32_32x32x16_bf16 {v(z,16)}, {v(WF+8*hp+4,4)}, {v(ONES,4)}, {v(z,16)}")
        def vpack(hp):
            for i in range(0, 16, 2):
                A(f"v_cvt_pk_bf16_f32 v{WF+16+8*hp+i//2}, v{ACC+32+16*hp+i}, v{ACC+33+16*hp+i}")
        def pwrite(hp):
            kv = ACC + 16 * hp; z = ACC + 32 + 16 * hp
            T0 = WF + 16 * hp if False else XF_FREE
            for j in range(8):
                A(f"v_cndmask_b32 v{T0+j}, v{kv+8+j}, v{kv+j}, s[74:75]")
            for j in range(8):
                A(f"v_cndmask_b32 v{T0+8+j}, v{z+8+j}, v{z+j}, s[74:75]")
            A(f"ds_write_b128 v12, {v(T0,4)} offset:{hp*2*PART_STRIDE}")
            A(f"ds_write_b128 v12, {v(T0+4,4)} offset:{hp*2*PART_STRIDE+16}")
            A("s_mov_b64 s[66:67], exec", "s_mov_b32 exec_lo, 0x00010001", "s_mov_b32 exec_hi, 0x00010001")
            A(f"ds_write_b128 v14, {v(T0+8,4)} offset:{hp*2*PART_STRIDE}")
            A(f"ds_write_b128 v14, {v(T0+12,4)} offset:{hp*2*PART_STRIDE+16}")
            A("s_mov_b64 exec, s[66:67]")
        self.phi_pack(ACC, 16, WF, TMP)
        vpack(0)
        A("s_nop 1")
        kvm(0)
        self.phi_pack(ACC + 16, 16, WF + 8, TMP)
        vpack(1)
        A("s_nop 1")
        kvm(1)
        XF_FREE = WF
        A("s_nop 1")
        pwrite(0)
        A("s_waitcnt lgkmcnt(0)")
        A("s_nop 4")
        pwrite(1)
        A("s_waitcnt lgkmcnt(0)")
        self.stamp(3)
        A("s_barrier")
        self.mode_load("A", 250)
        for i in range(32): A(f"v_mov_b32 v{ACC+i}, 0")
        lg = Lgkm(A)
        NB = 4
        def qreads(step):
            idx, ks = step >> 2, step & 3
            a9, u = idx >> 2, idx & 3
            b = WF + (step % NB) * 8
            out = []
            for sub in range(2):
                for a_ in range(2):
                    off = a9 * SLOT + u * 8192 + (16 * ks + 4 * a_) * 128
                    out.append((f"ds_read_b64_tr_b16 {v(b + sub*4 + 2*a_, 2)}, v{2+sub} offset:{off}", ("q", step, sub)))
            return out
        for st in range(3):
            for ins, tag in qreads(st): lg.issue(ins, tag)
        for step in range(32):
            b = WF + (step % NB) * 8
            xf = v(XF + step * 4, 4)
            nr = qreads(step + 3) if step + 3 < 32 else []
            for sub in range(2):
                lg.need(("q", step, sub))
                A(f"v_mfma_f32_32x32x16_bf16 {v(ACC+16*sub,16)}, {v(b+4*sub,4)}, {xf}, {v(ACC+16*sub,16)}")
                for ins, tag in nr[2*sub:2*sub+2]: lg.issue(ins, tag)
        self.stamp(4)
        A(f"s_mov_b32 s64, {EPS:#x}", f"s_mov_b32 s65, {EPS:#x}")
        for i in range(32): A(f"v_mov_b32 v{P2ACC+i}, 0")
        self.phi_pack(ACC, 16, WF, TMP)
        self.phi_pack(ACC + 16, 16, WF + 8, TMP)
        A("v_lshlrev_b32 v13, 4, v11", "v_add_u32 v13, v13, v10", "v_lshlrev_b32 v13, 4, v13")
        A("v_lshlrev_b32 v15, 4, v11", "v_add_u32 v15, 512, v15", "v_cndmask_b32 v13, v15, v13, s[74:75]", f"v_add_u32 v13, {FIN}, v13")
        A("v_lshlrev_b32 v12, 4, v0")
        A(f"s_lshl_b32 s64, s{S_RT}, 2", f"s_add_u32 s64, s64, s{S_W}", "s_lshl_b32 s64, s64, 5", f"s_lshl_b32 s65, s{S_G}, 2", "s_add_u32 s64, s64, s65", "s_lshl_b32 s64, s64, 10")
        A("s_waitcnt vmcnt(0)")
        self.mode_resolve("A", 250, "qc")
        self.stamp(5)
        A("s_barrier")
        self.stamp(6)
        A(f"v_mov_b32 v15, {NONCEQ}", "ds_read_b64 v[250:251], v15")
        for hl in range(4):
            A(f"ds_read_b128 {v(WF+16+4*hl,4)}, v13 offset:{hl*1024}")
        for hl in range(4):
            hp, a_ = hl >> 1, hl & 1
            A(f"s_waitcnt lgkmcnt({3-hl})")
            A(f"v_mfma_f32_32x32x16_bf16 {v(ACC+16*hl,16)}, {v(WF+16+4*hl,4)}, {v(WF+8*hp+4*a_,4)}, 0")
        A("s_nop 7")
        for hl in range(4):
            d = ACC + 16 * hl
            if hl == 3: A("s_nop 3")
            A(f"v_add_f32 v{d+8}, {EPS:#x}, v{d+8}")
        for hl in range(4):
            A(f"v_rcp_f32 v{ACC+16*hl+8}, v{ACC+16*hl+8}")
        A("s_nop 0")
        for hl in range(4):
            d = ACC + 16 * hl
            for j in range(0, 8, 2):
                A(f"v_pk_mul_f32 v[{d+j}:{d+j+1}], v[{d+j}:{d+j+1}], v[{d+8}:{d+9}] op_sel_hi:[1,0]")
            for j in range(4):
                A(f"v_cvt_pk_bf16_f32 v{d+12+j}, v{d+2*j}, v{d+2*j+1}")
        for hl in range(4):
            A(f"buffer_store_dwordx4 {v(ACC+16*hl+12,4)}, v12, {WSr}, s64 offen offset:{hl*1024} sc1")
        A(f"v_readfirstlane_b32 s{NON}, v250", f"v_readfirstlane_b32 s{NON+1}, v251")
        A("s_barrier")
        A("s_waitcnt vmcnt(0)")
        self.wave_flag("A", 250)
        self.stamp(7)

    def bu_compute(self):
        A, L = self.A, self.L
        RE, IM, AF, BF = 16, 48, 80, 144
        C = 160
        lg = Lgkm(A)
        A("v_and_b32 v10, 15, v0", "v_lshrrev_b32 v11, 4, v0")
        A(f"s_lshl_b32 s64, s{S_G}, 6", f"s_lshl_b32 s65, s{S_W}, 4", "s_add_u32 s64, s64, s65", "s_lshl_b32 s64, s64, 1")
        A("v_lshlrev_b32 v12, 1, v10")
        A("v_lshrrev_b32 v13, 1, v10", "v_xor_b32 v13, v13, v11", "v_lshlrev_b32 v13, 4, v13", "v_lshlrev_b32 v14, 7, v10", "v_add_u32 v4, v13, v14")
        A("v_xor_b32 v5, 64, v4")
        A(f"s_lshl_b32 s65, s{S_W}, 11", "s_add_u32 s65, s65, 16384")
        A("v_add_u32 v6, s65, v4", "v_add_u32 v7, s65, v5")
        for i in range(64): A(f"v_mov_b32 v{RE+i}, 0")
        A("s_waitcnt lgkmcnt(0)")
        A.srd(SRD_WS, 32, 268435456)
        A.srd(SRD_T0, 12, 1024); A.srd(SRD_T1, 14, 1024); A.srd(SRD_T2, 24, 1024)
        A(f"buffer_load_ushort v{C}, v12, {R4(SRD_T0)}, s64 offen")
        A(f"buffer_load_ushort v{C+1}, v12, {R4(SRD_T1)}, s64 offen")
        A(f"buffer_load_ushort v{C+2}, v12, {R4(SRD_T2)}, s64 offen")
        self.pf_srds("B")
        self.l2_prefetch("B", 0, 250)
        if 'pfall' in EXP: self.l2_prefetch("B", 4, 250)
        A(f"s_waitcnt vmcnt({0 if 'pf' not in EXP else 6 if 'pfall' in EXP else 3})")
        self.mode_announce("B")
        self.flag_touch("B", 243)
        self.weight_touch(240)
        self.lam_code(C, C + 8)
        A(f"v_mov_b32 v166, v{C+3}", f"v_mov_b32 v167, v{C+4}")
        A("v_add_f32 v163, -1.0, v163")
        A("v_mul_f32 v168, v160, v160", "v_fma_f32 v168, v161, v161, v168", "v_rcp_f32 v168, v168")
        A("v_mul_f32 v169, v163, v160", "v_fma_f32 v169, v167, v161, v169")
        A("v_mul_f32 v170, v167, v160", "v_fma_f32 v170, -v163, v161, v170")
        A("v_add_f32 v168, v168, v168")
        A("v_mul_f32 v164, v169, v168", "v_mul_f32 v165, v170, v168")
        self.csq(174, 166, 176); self.csq(178, 174, 176); self.csq(174, 178, 176); self.csq(168, 174, 176)
        self.csq(170, 168, 176); self.csq(174, 170, 176); self.csq(172, 174, 176)
        self.csq(214, 172, 176); self.csq(218, 214, 176)
        A("v_mul_f32 v216, v214, v172", "v_mul_f32 v217, v214, v173", "v_fma_f32 v216, -v215, v173, v216", "v_fma_f32 v217, v215, v172, v217")
        def reads(s_, k2):
            buf = (s_ * 2 + k2) & 1
            out = [(f"ds_read_b128 {v(BF + buf*8, 4)}, v{6+k2} offset:0", ("b", s_, k2, 0)),
                   (f"ds_read_b128 {v(BF + buf*8 + 4, 4)}, v{6+k2} offset:8192", ("b", s_, k2, 1))]
            for mt in range(8):
                out.append((f"ds_read_b128 {v(AF + buf*32 + mt*4, 4)}, v{4+k2} offset:{mt*2048}", ("a", s_, k2, mt)))
            return out
        self.pf_srds("B")
        A("s_barrier")
        self.stamp(1)
        for ins, tag in reads(0, 0): lg.issue(ins, tag)
        if 'pfall' not in EXP: self.l2_prefetch("B", 4, 250)
        for s_ in range(8):
            for k2 in range(2):
                nxt = (s_, 1) if k2 == 0 else ((s_ + 1, 0) if s_ < 7 else None)
                if k2 == 1 and s_ < 7:
                    A("s_barrier")
                    self.sstamp(3 + s_)
                    d = SLOT if (s_ + 1) % NSLOT != 0 else -(NSLOT - 1) * SLOT
                    for r in range(4, 8):
                        A(f"v_add_u32 v{r}, {d & 0xffffffff:#x}, v{r}")
                nr = reads(*nxt) if nxt else []
                if nxt is None:
                    nr = []
                buf = (s_ * 2 + k2) & 1
                for mt in range(8):
                    if mt == 0: lg.need(("b", s_, k2, 0), ("b", s_, k2, 1), ("a", s_, k2, 0))
                    else: lg.need(("a", s_, k2, mt))
                    af = v(AF + buf*32 + mt*4, 4)
                    A(f"v_mfma_f32_16x16x32_bf16 {v(RE+4*mt,4)}, {af}, {v(BF+buf*8,4)}, {v(RE+4*mt,4)}")
                    A(f"v_mfma_f32_16x16x32_bf16 {v(IM+4*mt,4)}, {af}, {v(BF+buf*8+4,4)}, {v(IM+4*mt,4)}")
                    if nr:
                        for ins, tag in (nr[0:3] if mt == 0 else [nr[2 + mt]]):
                            lg.issue(ins, tag)
                    if nxt is None and mt == 0:
                        A(f"v_mov_b32 v12, {NONCE}")
                        lg.issue("ds_read_b64 v[230:231], v12", "nonce")
        self.stamp(2)
        def pr(base, sg): return base + 4 * (sg >> 1) + 2 * (sg & 1)
        E0, E1_ = 180, 184
        Lr = "v[166:167]"
        def step(dre, dim, sre, sim, ure, uim, M=Lr):
            A(f"v_pk_fma_f32 v[{dre}:{dre+1}], v[{sre}:{sre+1}], {M}, v[{ure}:{ure+1}] op_sel_hi:[1,0,1]")
            A(f"v_pk_fma_f32 v[{dim}:{dim+1}], v[{sim}:{sim+1}], {M}, v[{uim}:{uim+1}] op_sel_hi:[1,0,1]")
            A(f"v_pk_fma_f32 v[{dre}:{dre+1}], v[{sim}:{sim+1}], {M}, v[{dre}:{dre+1}] op_sel:[0,1,0] op_sel_hi:[1,1,1] neg_lo:[0,1,0] neg_hi:[0,1,0]")
            A(f"v_pk_fma_f32 v[{dim}:{dim+1}], v[{sre}:{sre+1}], {M}, v[{dim}:{dim+1}] op_sel:[0,1,0] op_sel_hi:[1,1,1]")
        A(f"s_lshl_b32 s64, s{S_G}, 4", f"s_add_u32 s64, s64, s{S_RT}", "s_lshl_b32 s64, s64, 6", f"s_lshl_b32 s65, s{S_W}, 4", "s_add_u32 s64, s64, s65", "s_lshl_b32 s64, s64, 4", f"s_add_u32 s64, s64, {WS['ES']}")
        A("v_lshlrev_b32 v13, 4, v10", "v_lshlrev_b32 v12, 2, v10")
        cur = (pr(RE, 0), pr(IM, 0))
        for sg in range(1, 16):
            d = E0 if sg & 1 else E1_
            step(d, d + 2, cur[0], cur[1], pr(RE, sg), pr(IM, sg))
            cur = (d, d + 2)
        er, ei = cur
        self.cfma(188, 189, 168, 169, er, ei, er + 1, ei + 1)
        for qq in range(4):
            A(f"v_add_u32 v{14 + (qq&1)}, {64*qq}, v12")
            A(f"ds_bpermute_b32 v{190+2*qq}, v{14 + (qq&1)}, v188", f"ds_bpermute_b32 v{191+2*qq}, v{14 + (qq&1)}, v189")
        A("s_waitcnt lgkmcnt(0)")
        self.cfma(198, 199, 170, 171, 190, 191, 192, 193)
        self.cfma(200, 201, 170, 171, 198, 199, 194, 195)
        self.cfma(228, 229, 170, 171, 200, 201, 196, 197)
        A("s_mov_b64 s[66:67], exec", "s_mov_b64 exec, 0xffff")
        A(f"buffer_store_dwordx4 v[228:231], v13, {WSr}, s64 offen sc1")
        A("s_mov_b64 exec, s[66:67]")
        self.stamp(3)
        A("s_barrier")
        self.skip_issue()
        self.mode_load("B", 224)
        K2 = "v[164:165]"
        for sg in range(16):
            r_, i_ = pr(RE, sg), pr(IM, sg)
            A(f"v_pk_mul_f32 v[232:233], v[{i_}:{i_+1}], {K2} op_sel:[0,1] op_sel_hi:[1,1]")
            A(f"v_pk_mul_f32 v[234:235], v[{r_}:{r_+1}], {K2} op_sel:[0,1] op_sel_hi:[1,1]")
            A(f"v_pk_fma_f32 v[{r_}:{r_+1}], v[{r_}:{r_+1}], {K2}, v[232:233] op_sel_hi:[1,0,1] neg_lo:[0,0,1] neg_hi:[0,0,1]")
            A(f"v_pk_fma_f32 v[{i_}:{i_+1}], v[{i_}:{i_+1}], {K2}, v[234:235] op_sel_hi:[1,0,1]")
        if 'epre' in EXP:
            A("s_waitcnt vmcnt(0)")
            self.skip_finish()
            for r in range(16):
                A(f"v_mov_b32 v{P2ACC+r}, v{XS+r}", f"v_mov_b32 v{P2ACC+16+r}, 0")
        self.stamp(4)
        A(f"s_lshl_b32 s64, s{S_G}, 10", f"s_lshl_b32 s65, s{S_W}, 4", "s_add_u32 s64, s64, s65", "s_lshl_b32 s64, s64, 4", f"s_add_u32 s64, s64, {WS['ES']}")
        A("v_lshlrev_b32 v13, 4, v10")
        lp, lgd, lok, ltd, lz, ldone = L("e_poll"), L("e_gd"), L("e_ok"), L("e_td"), L("e_zero"), L("e_done")
        A("v_lshlrev_b32 v14, 10, v11", "v_add_u32 v14, v14, v13")
        A(f"s_cmp_eq_u32 s{S_RT}, 0", f"s_cbranch_scc1 {lz}")
        for i in range(4):
            A(f"v_add_u32 v15, {4*i}, v11", f"v_cmp_gt_u32 s[{52+2*i}:{53+2*i}], s{S_RT}, v15")
        A(f"s_mov_b32 s72, {POLL_LIMIT}")
        A.label(lp)
        A("s_mov_b32 s65, s64")
        for i in range(4):
            A(f"s_cmp_le_u32 s{S_RT}, {4*i}", f"s_cbranch_scc1 {lgd}")
            A(f"buffer_load_dwordx4 v[{80+4*i}:{83+4*i}], v14, {WSr}, s65 offen sc1")
            if i < 3: A("s_add_u32 s65, s65, 4096")
        A.label(lgd)
        A("v_mov_b32 v236, 0")
        A("s_waitcnt vmcnt(0)")
        for i in range(4):
            A(f"s_cmp_le_u32 s{S_RT}, {4*i}", f"s_cbranch_scc1 {ltd}")
            A(f"v_xor_b32 v237, v230, v{82+4*i}", f"v_xor_b32 v238, v231, v{83+4*i}", "v_or_b32 v237, v237, v238")
            A(f"v_cndmask_b32 v237, 0, v237, s[{52+2*i}:{53+2*i}]", "v_or_b32 v236, v236, v237")
        A.label(ltd)
        A("v_cmp_ne_u32 vcc, 0, v236")
        A("s_sub_u32 s72, s72, 1", f"s_cbranch_scc1 {lok}")
        A(f"s_cbranch_vccnz {lp}")
        A.label(lok)
        A("v_mov_b32 v204, 0", "v_mov_b32 v205, 0")
        for i in range(4):
            self.cfma(206, 207, 218, 219, 204, 205, 80 + 4*i, 81 + 4*i)
            A(f"v_cndmask_b32 v204, v204, v206, s[{52+2*i}:{53+2*i}]", f"v_cndmask_b32 v205, v205, v207, s[{52+2*i}:{53+2*i}]")
        A(f"s_sub_u32 s65, s{S_RT}, 1", "v_sub_u32 v15, s65, v11", "v_and_b32 v15, 3, v15")
        A("v_mov_b32 v206, 1.0", "v_mov_b32 v207, 0")
        for e, (wr, wi) in enumerate(((172, 173), (214, 215), (216, 217)), start=1):
            A(f"v_cmp_eq_u32 vcc, {e}, v15", "s_nop 1")
            A(f"v_cndmask_b32 v206, v206, v{wr}, vcc", f"v_cndmask_b32 v207, v207, v{wi}, vcc")
        A("v_mul_f32 v236, v204, v206", "v_mul_f32 v237, v204, v207")
        A("v_fma_f32 v236, -v205, v207, v236", "v_fma_f32 v237, v205, v206, v237")
        A("v_mov_b32 v238, v236", "v_mov_b32 v206, v237", "s_nop 1")
        A("v_permlane32_swap_b32 v236, v238", "v_permlane32_swap_b32 v237, v206", "s_nop 1")
        A("v_add_f32 v236, v236, v238", "v_add_f32 v237, v237, v206")
        A("v_mov_b32 v238, v236", "v_mov_b32 v206, v237", "s_nop 1")
        A("v_permlane16_swap_b32 v236, v238", "v_permlane16_swap_b32 v237, v206", "s_nop 1")
        A("v_add_f32 v204, v236, v238", "v_add_f32 v205, v237, v206")
        A(f"s_branch {ldone}")
        A.label(lz)
        A("v_mov_b32 v204, 0", "v_mov_b32 v205, 0", "s_waitcnt vmcnt(0)")
        A.label(ldone)
        self.mode_resolve("B", 224, "bc")
        self.stamp(5)
        self.cfma(198, 199, 170, 171, 204, 205, 190, 191)
        self.cfma(200, 201, 170, 171, 198, 199, 192, 193)
        self.cfma(202, 203, 170, 171, 200, 201, 194, 195)
        for qq, (sr, si) in enumerate(((198, 199), (200, 201), (202, 203)), start=1):
            A(f"v_cmp_eq_u32 vcc, {qq}, v11", "s_nop 1")
            A(f"v_cndmask_b32 v204, v204, v{sr}, vcc", f"v_cndmask_b32 v205, v205, v{si}, vcc")
        self.cfma(206, 207, 168, 169, 204, 205, er, ei)
        def cmul(dr, di, ar, ai):
            A(f"v_mul_f32 v{dr}, v{ar}, v164", f"v_mul_f32 v{di}, v{ar}, v165")
            A(f"v_fma_f32 v{dr}, -v{ai}, v165, v{dr}", f"v_fma_f32 v{di}, v{ai}, v164, v{di}")
        cmul(208, 210, 204, 205)
        cmul(209, 211, 206, 207)
        A(f"s_lshl_b32 s64, s{S_W}, 13", f"s_add_u32 s64, s64, {MISC}")
        A("v_lshlrev_b32 v12, 6, v11", "v_lshlrev_b32 v13, 4, v10", "v_xor_b32 v12, v12, v13", "v_lshlrev_b32 v13, 8, v10", "v_add_u32 v12, v12, v13", "v_add_u32 v12, s64, v12")
        for c in range(1, 4): A(f"v_xor_b32 v{212+c}, {16*c}, v12")
        A("v_bfe_u32 v13, v0, 4, 1", "v_lshlrev_b32 v13, 5, v13", "v_and_b32 v14, 3, v0", "v_lshlrev_b32 v14, 3, v14", "v_add_u32 v13, v13, v14")
        A("v_bfe_u32 v14, v0, 2, 2", "v_lshlrev_b32 v15, 4, v14", "v_xor_b32 v13, v13, v15", "v_lshlrev_b32 v14, 8, v14", "v_add_u32 v13, v13, v14")
        A("v_lshrrev_b32 v14, 5, v0", "v_lshlrev_b32 v14, 12, v14", "v_add_u32 v13, v13, v14", "v_add_u32 v13, s64, v13")
        cur = (208, 210)
        def pack(pl_, c):
            base, neg = (RE, "") if pl_ == 0 else (IM, "-")
            for j in range(4):
                sg = 8 * (c & 1) + 2 * j
                r0, r1 = pr(base, sg) + (c >> 1), pr(base, sg + 1) + (c >> 1)
                A(f"v_cvt_pk_bf16_f32 v{80 + 16*pl_ + 4*c + j}, {neg}v{r0}, {neg}v{r1}")
            A(f"ds_write_b128 v{12 if c == 0 else 212+c}, {v(80 + 16*pl_ + 4*c, 4)} offset:{pl_*4096}")
        for sg in range(16):
            d = (pr(RE, sg), pr(IM, sg))
            step(d[0], d[1], cur[0], cur[1], d[0], d[1])
            cur = d
            if sg == 8:
                for pl_ in range(2):
                    pack(pl_, 0); pack(pl_, 2)
        self.stamp(6)
        for pl_ in range(2):
            pack(pl_, 1); pack(pl_, 3)
        A(f"s_lshl_b32 s64, s{S_RT}, 8", f"s_lshl_b32 s65, s{S_G}, 3", "s_add_u32 s64, s64, s65", f"s_lshl_b32 s65, s{S_W}, 1", "s_add_u32 s64, s64, s65", "s_lshl_b32 s64, s64, 10", f"s_add_u32 s64, s64, {WS['H']}")
        A("v_lshlrev_b32 v12, 4, v0")
        A("s_waitcnt lgkmcnt(0)")
        for rb in range(4):
            for ksl in range(2):
                for a_ in range(2):
                    off = (8 * ksl + 4 * a_) * 256 + ((64 * rb) ^ (128 * ksl + 64 * a_))
                    A(f"ds_read_b64_tr_b16 {v(16 + (rb*2+ksl)*4 + 2*a_, 2)}, v13 offset:{off}")
        for rb in range(4):
            A(f"s_waitcnt lgkmcnt({min(15, 12-4*rb)})")
            for ksl in range(2):
                A(f"buffer_store_dwordx4 {v(16 + (rb*2+ksl)*4, 4)}, v12, {WSr}, s64 offen offset:{ksl*1024} sc1")
            if rb < 3: A("s_add_u32 s64, s64, 0x10000")
        self.stamp(7)
        if 'epre' not in EXP:
            self.skip_finish()
            for r in range(16):
                A(f"v_mov_b32 v{P2ACC+r}, v{XS+r}", f"v_mov_b32 v{P2ACC+16+r}, 0")
        A(f"v_readfirstlane_b32 s{NON}, v230", f"v_readfirstlane_b32 s{NON+1}, v231")
        A("s_barrier")
        A("s_waitcnt vmcnt(0)")
        self.wave_flag("B", 230)
        self.stamp(8)

    def p2(self, role):
        A, L = self.A, self.L
        self.stamp(9)
        nk = 32 if role == "A" else 64
        nst = nk // 2
        abase = WS["O"] if role == "A" else WS["H"]
        ACC, BF, AF = P2ACC, 48, 80
        NBUF, LA = 4, 7
        A(f"s_lshr_b32 s64, s{S_WAVE}, 2", f"s_and_b32 s65, s{S_WAVE}, 3")
        A("v_lshlrev_b32 v2, 4, v0")
        A(f"s_lshl_b32 s66, s{S_RT}, 2", "s_add_u32 s66, s66, s65", f"s_mul_i32 s66, s66, {nk*1024}")
        A(f"s_mul_i32 s67, s64, {nst*1024}", "s_add_u32 s66, s66, s67", f"s_add_u32 s66, s66, {abase}")
        def aload(k):
            A(f"buffer_load_dwordx4 {v(AF + 4*(k % 8), 4)}, v2, {WSr}, s66 offen offset:{(k % 4)*1024}")
            if k % 4 == 3: A("s_add_u32 s66, s66, 4096")
        A("v_and_b32 v5, 31, v0", "v_lshrrev_b32 v6, 5, v0")
        A(f"s_lshl_b32 s68, s{S_RT}, 7", "s_lshl_b32 s69, s65, 5", "s_add_u32 s68, s68, s69")
        A(f"s_lshl_b32 s69, s{S_G}, 6", "s_lshl_b32 s70, s64, 5", "s_add_u32 s69, s69, s70")
        lg = Lgkm(A)
        if role == "A":
            A("v_lshlrev_b32 v12, 2, v6", "v_bfe_u32 v13, v0, 2, 2", "v_add_u32 v12, v12, v13", "v_lshlrev_b32 v12, 7, v12")
            A("v_bfe_u32 v13, v0, 3, 1", "v_lshlrev_b32 v13, 6, v13", "v_add_u32 v12, v12, v13")
            A("v_bfe_u32 v13, v0, 4, 1", "v_lshlrev_b32 v13, 5, v13", "v_add_u32 v12, v12, v13")
            A("v_and_b32 v13, 3, v0", "v_lshlrev_b32 v13, 3, v13", "v_add_u32 v12, v12, v13")
            A("s_lshl_b32 s70, s64, 15", f"s_add_u32 s70, s70, {WOIMG}", "v_add_u32 v3, s70, v12", "v_xor_b32 v4, 64, v3")
            def bread(k):
                b = BF + 8 * (k % NBUF)
                for cb in range(2):
                    for a_ in range(2):
                        lg.issue(f"ds_read_b64_tr_b16 {v(b + 4*cb + 2*a_, 2)}, v{3+cb} offset:{(16*k + 8*a_)*128}", ("b", k))
        else:
            A("v_lshlrev_b32 v12, 16, v6", "v_lshlrev_b32 v13, 10, v5", "v_add_u32 v12, v12, v13")
            A("v_and_b32 v13, 15, v5", "v_lshlrev_b32 v13, 4, v13", "v_add_u32 v12, v12, v13")
            A("s_lshl_b32 s70, s64, 9", "v_add_u32 v3, s70, v12")
            def bread(k):
                b = BF + 8 * (k % NBUF)
                t = 8 + (k % 4)
                A(f"v_xor_b32 v{t}, {(k & 15) * 16}, v3")
                for cb in range(2):
                    lg.issue(f"ds_read_b128 {v(b + 4*cb, 4)}, v{t} offset:{(k >> 4) * 256 + cb * 32768}", ("b", k))
        for k in range(NBUF - 1): bread(k)
        A("s_mov_b32 s76, s64", "s_mov_b32 s77, s66")
        self.p2_wait(role)
        A("s_mov_b32 s64, s76", "s_mov_b32 s66, s77")
        for k in range(LA): aload(k)
        self.stamp(10)
        for k in range(nst):
            if k + LA < nst: aload(k + LA)
            if k + NBUF - 1 < nst: bread(k + NBUF - 1)
            rem = min(nst - 1 - k, LA)
            A(f"s_waitcnt vmcnt({rem})")
            lg.need(("b", k))
            b = BF + 8 * (k % NBUF)
            A(f"v_mfma_f32_32x32x16_bf16 {v(ACC,16)}, {v(AF+4*(k%8),4)}, {v(b,4)}, {v(ACC,16)}")
            A(f"v_mfma_f32_32x32x16_bf16 {v(ACC+16,16)}, {v(AF+4*(k%8),4)}, {v(b+4,4)}, {v(ACC+16,16)}")
        self.stamp(11)
        A(f"s_lshl_b32 s70, s{S_WAVE}, 12", f"s_add_u32 s70, s70, {MISC}", "v_add_u32 v9, s70, v2")
        A(f"s_xor_b32 s71, s{S_WAVE}, 4", "s_lshl_b32 s71, s71, 12", f"s_add_u32 s71, s71, {MISC}", "v_add_u32 v10, s71, v2")
        A("s_lshl_b32 s68, s68, 12", "s_lshl_b32 s69, s69, 2", "s_add_u32 s68, s68, s69")
        if role == "B": A("s_add_u32 s68, s68, 2048")
        A("v_lshlrev_b32 v11, 14, v6", "v_lshlrev_b32 v12, 2, v5", "v_add_u32 v11, v11, v12")
        A.srd(SRD_T0, 28, 8388608)
        lk, lj = L(f"kh1_{role}"), L(f"join_{role}")
        A("s_cmp_eq_u32 s64, 1", f"s_cbranch_scc1 {lk}")
        for i in range(4): A(f"ds_write_b128 v9, {v(ACC+16+4*i,4)} offset:{i*1024}")
        A(f"s_mov_b32 s71, 0")
        A(f"s_branch {lj}")
        A.label(lk)
        for i in range(4): A(f"ds_write_b128 v9, {v(ACC+4*i,4)} offset:{i*1024}")
        A("s_nop 1")
        for i in range(16): A(f"v_mov_b32 v{ACC+i}, v{ACC+16+i}")
        A.label(lj)
        A("s_waitcnt lgkmcnt(0)")
        A("s_barrier")
        for i in range(4): A(f"ds_read_b128 {v(48+4*i,4)}, v10 offset:{i*1024}")
        for i in range(4):
            A(f"s_waitcnt lgkmcnt({3-i})")
            for r in range(4*i, 4*i+4, 2):
                A(f"v_pk_add_f32 v[{ACC+r}:{ACC+r+1}], v[{ACC+r}:{ACC+r+1}], v[{48+r}:{49+r}]")
            for r in range(4*i, 4*i+4):
                row = (r & 3) + 8 * (r >> 2)
                A(f"s_add_u32 s69, s68, {row*4096}")
                A(f"buffer_store_dword v{ACC+r}, v11, {R4(SRD_T0)}, s69 offen {OUTF}")
        self.stamp(12)
        if 'clk' in EXP:
            lx = L(f"clk_{role}")
            A("s_waitcnt vmcnt(0)")
            A(f"s_cmp_lg_u32 s2, {0 if role == 'A' else 4}", f"s_cbranch_scc1 {lx}", f"s_cmp_lg_u32 s{S_WAVE}, 0", f"s_cbranch_scc1 {lx}")
            A("s_memtime s[88:89]", "s_memrealtime s[90:91]", "s_waitcnt lgkmcnt(0)")
            A("s_sub_u32 s88, s88, s84", "s_sub_u32 s90, s90, s86", "v_mov_b32 v16, s88", "v_mov_b32 v17, s90")
            A(f"v_mov_b32 v18, {0 if role == 'A' else 8}")
            A.srd(SRD_T0, 30, 256)
            A("s_mov_b64 exec, 1")
            A(f"buffer_store_dwordx2 v[16:17], v18, {R4(SRD_T0)}, 0 offen sc1")
            A.label(lx)
        self.write_stamps()
        A("s_endpgm")

def build(out, stamps=False):
    A = Asm()
    K = NAME + "_kernel"
    A.raw(HEADER_COMMENT + f"; @launch grid=(256,1,1) block=(512,1,1) lds={LDS_BYTES}\n" + '.amdgcn_target "amdgcn-amd-amdhsa--gfx950"\n')
    G(A, K, stamps).gen()
    A.kernel_desc(K, 256, accum=256)
    open(out, "w").write(A.text())

if __name__ == "__main__":
    build(sys.argv[1], stamps=(len(sys.argv) > 2 and sys.argv[2] == "stamps"))
```

```python
import sys
sys.path.insert(0, "gen"); sys.path.insert(0, "scratch")
from asmlib import *
WS = dict(O=0x000000, H=0x200000, KVP=0x600000, ES=0x700000, FLG=0x740000, ST=0x900000)
LDS_BYTES = 163840
SLOT = 32768
NSLOT = 5
MISC = 4 * SLOT
PART_STRIDE = 1152
PARTQ = 0
FIN = 20480
WOIMG = SLOT
NONCE = MISC + 24576 + 64
NONCEQ = 28672
LOG2E = 0x3FB8AA3B
EPS = 0x358637BD
INV2PI = 0x3E22F983
POLL_LIMIT = 1 << 18
EXP = set(a for a in sys.argv[3:]) | {'kvd', 'epre'}
OUTF = 'nt'
FASTF = 'nt' if 'fnt' in EXP else 'sc0' if 'fsc0' in EXP else 'sc0 nt' if 'fsc0nt' in EXP else ''

S_W, S_WAVE, S_XCD, S_SLOT, S_RT, S_G, S_ROT = 3, 34, 35, 36, 37, 38, 39
SRD_X, SRD_W, SRD_WS, SRD_T0, SRD_T1, SRD_T2, SRD_T3 = 40, 44, 48, 52, 56, 60, 96
NON = 78
P2ACC, XS, XD = 128, 112, 239
def R4(n): return f"s[{n}:{n+3}]"
def creg(R, i):
    n = R * 8 + i
    return 24 + 4 * n if n < 22 else 160 + 4 * (n - 22)
WSr = R4(SRD_WS)

class G:
    def __init__(self, A, K, stamps):
        self.A, self.K, self.stamps = A, K, stamps
    def L(self, n): return f"{self.K}_{n}"
    def stamp(self, i):
        if self.stamps:
            if 'pro' in EXP and 9 <= i <= 12 and not getattr(self, 'inpro', False): return
            if 'stg' in EXP and 3 <= i <= 12 and not getattr(self, 'instg', False): return
            self.A("s_memtime s[100:101]", "s_waitcnt lgkmcnt(0)", f"s_mov_b32 s{80+i}, s100")
    def sstamp(self, i):
        if 'stg' in EXP:
            self.instg = True
            self.A("s_memtime s[100:101]")
            self.A("s_waitcnt lgkmcnt(0)", f"s_mov_b32 s{80+i}, s100")
            self.instg = False
    def pstamp(self, i):
        if 'pro' in EXP:
            self.inpro = True; self.stamp(i); self.inpro = False
    def write_stamps(self):
        A = self.A
        if not self.stamps: return
        A("s_waitcnt vmcnt(0) lgkmcnt(0)")
        self.stamp(13)
        A("s_memrealtime s[100:101]", "s_waitcnt lgkmcnt(0)", "s_mov_b32 s95, s100")
        for j in range(16): A(f"v_mov_b32 v{16+j}, s{80+j}")
        A("s_lshl_b32 s64, s2, 3", f"s_add_u32 s64, s64, s{S_WAVE}", "s_lshl_b32 s64, s64, 6", f"s_add_u32 s64, s64, {WS['ST']}", "v_mov_b32 v2, s64")
        A("v_cmp_eq_u32 vcc, 0, v0", "s_and_saveexec_b64 s[66:67], vcc")
        for j in range(4):
            A(f"buffer_store_dwordx4 v[{16+4*j}:{19+4*j}], v2, {WSr}, 0 offen offset:{16*j}")

    def gen(self):
        A, L = self.A, self.L
        A.kernel_begin(self.K)
        A.label(L("start"))
        if self.stamps:
            for j in range(16): A(f"s_mov_b32 s{80+j}, 0")
            A("s_memrealtime s[100:101]", "s_waitcnt lgkmcnt(0)", "s_mov_b32 s94, s100")
            self.stamp(0)
        if 'clk' in EXP:
            A("s_memtime s[84:85]", "s_memrealtime s[86:87]")
        A("s_cmp_ge_u32 s2, 256", f"s_cbranch_scc1 {L('end')}")
        A("s_load_dwordx4 s[4:7], s[0:1], 0", "s_load_dwordx4 s[8:11], s[0:1], 16", "s_load_dwordx4 s[16:19], s[0:1], 48")
        if 'nocode' not in EXP:
            lc = L("nocode")
            A("s_getpc_b64 s[64:65]")
            A.label(L("pcref"))
            A(f"s_lshr_b32 s66, s2, 3", "s_mul_i32 s66, s66, 9", "v_add_u32 v2, s66, v0", "v_lshlrev_b32 v2, 7, v2")
            A(f"v_min_u32 v2, {L('end')}-{L('pcref')}, v2")
            A(f"v_cmp_gt_u32 vcc, 9, v0", "s_and_saveexec_b64 s[66:67], vcc", f"s_cbranch_execz {lc}")
            A("global_load_dword v255, v2, s[64:65]")
            A.label(lc)
            A("s_mov_b64 exec, s[66:67]")
        A("v_lshrrev_b32 v1, 6, v0", "v_and_b32 v0, 63, v0")
        A(f"v_readfirstlane_b32 s{S_WAVE}, v1")
        A(f"s_and_b32 s{S_XCD}, s2, 7", f"s_lshr_b32 s{S_SLOT}, s2, 3")
        A(f"s_and_b32 s64, s{S_XCD}, 3", f"s_lshl_b32 s{S_RT}, s64, 2", f"s_and_b32 s65, s{S_SLOT}, 3", f"s_add_u32 s{S_RT}, s{S_RT}, s65")
        A(f"s_lshr_b32 s{S_G}, s{S_SLOT}, 2")
        if 'rotb' in EXP:
            A("s_lshl_b32 s65, s65, 1", f"s_add_u32 s{S_ROT}, s{S_G}, s65", f"s_add_u32 s{S_ROT}, s{S_ROT}, s64", f"s_and_b32 s{S_ROT}, s{S_ROT}, 7")
        elif 'rotc' in EXP:
            A("s_lshl_b32 s65, s65, 1", f"s_add_u32 s{S_ROT}, s{S_G}, s65", f"s_and_b32 s{S_ROT}, s{S_ROT}, 7")
        elif 'rotd' in EXP:
            A(f"s_add_u32 s{S_ROT}, s{S_G}, s65", f"s_and_b32 s{S_ROT}, s{S_ROT}, 3", f"s_lshl_b32 s{S_ROT}, s{S_ROT}, 1")
        else:
            A("s_lshl_b32 s65, s65, 1", f"s_add_u32 s{S_ROT}, s{S_G}, s65", "s_and_b32 s64, s64, 1", f"s_add_u32 s{S_ROT}, s{S_ROT}, s64", f"s_and_b32 s{S_ROT}, s{S_ROT}, 7")
        if 'rot0' in EXP: A(f"s_mov_b32 s{S_ROT}, 0")
        A(f"s_and_b32 s{S_W}, s{S_WAVE}, 3")
        A(f"s_cmp_lt_u32 s{S_WAVE}, 4", f"s_cbranch_scc1 {L('compute')}")
        self.loader_prologue()
        A(f"s_cmp_ge_u32 s{S_XCD}, 4", f"s_cbranch_scc1 {L('bu_load')}")
        self.loader("qkv")
        A.label(L("p2A"))
        self.p2("A")
        A.label(L("bu_load"))
        self.loader("bu")
        A.label(L("p2B"))
        self.p2("B")
        A.label(L("compute"))
        self.rest_kernargs()
        A(f"s_cmp_ge_u32 s{S_XCD}, 4", f"s_cbranch_scc1 {L('bu')}")
        self.qkv_compute()
        A(f"s_branch {L('p2A')}")
        A.label(L("bu"))
        self.bu_compute()
        A(f"s_branch {L('p2B')}")
        A.label(L("end"))
        A("s_endpgm")

    def rest_kernargs(self):
        A = self.A
        A("s_load_dwordx4 s[12:15], s[0:1], 32", "s_load_dwordx4 s[20:23], s[0:1], 64", "s_load_dwordx4 s[24:27], s[0:1], 80")
        A("s_load_dwordx4 s[28:31], s[0:1], 96", "s_load_dwordx2 s[32:33], s[0:1], 112")

    def loader_prologue(self):
        A, L = self.A, self.L
        A("v_lshrrev_b32 v5, 3, v0", "v_and_b32 v6, 7, v0", "v_lshrrev_b32 v7, 4, v0")
        A("v_xor_b32 v8, v6, v7", "v_lshlrev_b32 v8, 4, v8")
        A("v_lshlrev_b32 v2, 10, v5", "v_add_u32 v2, v2, v8", "v_xor_b32 v3, 64, v2")
        A(f"s_lshl_b32 s70, s{S_W}, 12")
        lb, lj = L("pro_b"), L("pro_j")
        A(f"s_cmp_ge_u32 s{S_XCD}, 4", f"s_cbranch_scc1 {lb}")
        A("v_and_b32 v9, 1, v7", "v_lshlrev_b32 v9, 2, v9", "v_xor_b32 v9, v6, v9", "v_lshlrev_b32 v9, 4, v9")
        A("v_mul_u32_u24 v4, 3072, v5", "v_add_u32 v4, v4, v9", "v_lshlrev_b32 v12, 10, v5", "v_add_u32 v12, v12, v9")
        A("v_mov_b32 v20, v2", "v_mov_b32 v21, v3", "v_mov_b32 v22, v4", "v_mov_b32 v23, v4", "v_mov_b32 v11, v3")
        A(f"s_lshl_b32 s64, s{S_RT}, 7", f"s_lshl_b32 s65, s{S_W}, 5", "s_add_u32 s64, s64, s65", "s_lshl_b32 s68, s64, 10")
        A(f"s_mul_i32 s69, s{S_W}, {16*3072}", f"s_lshl_b32 s65, s{S_G}, 7", "s_add_u32 s69, s69, s65")
        A(f"s_mov_b32 s76, {64*3072}", "s_lshr_b32 s71, s70, 1")
        A("s_movk_i32 s52, 0x2000", "s_movk_i32 s53, 0x4000")
        A("s_movk_i32 s56, 0x2000")
        A("s_movk_i32 s60, 1024", "s_movk_i32 s61, 25600", "s_movk_i32 s62, 2048", "s_movk_i32 s63, 26624")
        A("s_waitcnt lgkmcnt(0)")
        A.srd(SRD_X, 4, 2097152); A.srd(SRD_W, 6, 1572864)
        A(f"s_branch {lj}")
        A.label(lb)
        A("v_lshrrev_b32 v9, 5, v0", "v_lshlrev_b32 v9, 5, v9", "v_and_b32 v10, 1, v5", "v_lshlrev_b32 v10, 4, v10", "v_add_u32 v9, v9, v10")
        A("v_and_b32 v10, 1, v7", "v_add_u32 v9, v9, v10", "v_lshlrev_b32 v4, 10, v9", "v_add_u32 v4, v4, v8", "v_xor_b32 v11, 64, v4")
        A("v_mov_b32 v20, v4", "v_mov_b32 v21, v11", "v_mov_b32 v22, v2", "v_mov_b32 v23, v3", "v_mov_b32 v12, v2")
        A(f"s_lshl_b32 s64, s{S_RT}, 7", f"s_lshl_b32 s65, s{S_W}, 2", "s_add_u32 s64, s64, s65", "s_lshl_b32 s68, s64, 10")
        A(f"s_lshl_b32 s64, s{S_G}, 6", f"s_and_b32 s65, s{S_W}, 1", "s_lshl_b32 s65, s65, 5", "s_add_u32 s64, s64, s65", "s_lshl_b32 s69, s64, 10")
        A("s_movk_i32 s76, 128", "s_mov_b32 s71, s70")
        A("s_mov_b32 s52, 0x10000", "s_movk_i32 s53, 0x800")
        A("s_movk_i32 s56, 0x800")
        A("s_movk_i32 s60, 0", "s_movk_i32 s61, 0x2000", "s_movk_i32 s62, 0x4000", "s_movk_i32 s63, 0x6000")
        A("s_waitcnt lgkmcnt(0)")
        A.srd(SRD_X, 10, 2097152)
        A(f"s_cmp_lt_u32 s{S_W}, 2", "s_cselect_b32 s64, s16, s18", "s_cselect_b32 s65, s17, s19")
        A.srd(SRD_W, 64, 524288)
        A.label(lj)
        A("s_add_u32 s54, s52, s53", "s_add_u32 s57, s56, 1024")
        self.pstamp(10)
        X, W = R4(SRD_X), R4(SRD_W)
        for st in range(1 if 's0' in EXP else 2):
            slot = st * SLOT
            A(f"s_add_u32 s64, s{S_ROT}, {st}", "s_and_b32 s64, s64, 7")
            A("s_lshl_b32 s65, s64, 7", "s_add_u32 s65, s65, s68", "s_mul_i32 s66, s64, s76", "s_add_u32 s66, s66, s69")
            xo = [None, "s52", "s53", "s54"]
            for ii in range(4):
                A(f"s_add_u32 m0, s70, {slot + ii*1024}")
                A(f"s_add_u32 s67, s65, {xo[ii]}" if xo[ii] else "s_mov_b32 s67, s65")
                A(f"buffer_load_dwordx4 v{20 + (ii&1)}, {X}, s67 offen lds")
            A(f"s_add_u32 s72, s71, {slot + 16384}")
            wl = ["0", "1024", "s56", "s57"]
            for ii in range(4):
                A(f"s_add_u32 m0, s72, {wl[ii]}", f"s_add_u32 s67, s66, s{60+ii}")
                A(f"buffer_load_dwordx4 v{22 + (ii&1)}, {W}, s67 offen lds")
            self.pstamp(11 + st)
        self.rest_kernargs()

    def poll_lines(self, tag, nl, sbase, stride_log2, R=8):
        A, L = self.A, self.L
        lp, done = L(f"poll_{tag}"), L(f"polld_{tag}")
        A(f"s_mov_b32 s72, {POLL_LIMIT}")
        A(f"v_lshlrev_b32 v{R+2}, {stride_log2}, v0")
        A("s_mov_b64 s[74:75], exec", f"s_mov_b64 exec, {(1 << nl) - 1:#x}")
        A.label(lp)
        A(f"buffer_load_dwordx2 v[{R}:{R+1}], v{R+2}, {WSr}, s{sbase} offen sc1")
        A("s_waitcnt vmcnt(0)")
        A(f"v_xor_b32 v{R}, s{NON}, v{R}", f"v_xor_b32 v{R+1}, s{NON+1}, v{R+1}", f"v_or_b32 v{R}, v{R}, v{R+1}")
        A(f"v_cmp_ne_u32 vcc, 0, v{R}")
        A("s_sub_u32 s72, s72, 1")
        A(f"s_cbranch_scc1 {done}")
        A(f"s_cbranch_vccz {done}")
        A(f"s_branch {lp}")
        A.label(done)
        A("s_mov_b64 exec, s[74:75]")

    def store_flag(self, sbase, tag, R=8):
        A, L = self.A, self.L
        A(f"v_mov_b32 v{R}, s{NON}", f"v_mov_b32 v{R+1}, s{NON+1}", f"v_mov_b32 v{R+2}, 0")
        A("s_mov_b64 s[74:75], exec", "s_mov_b64 exec, 1")
        lf, lj = L(f"sf_fast_{tag}"), L(f"sf_j_{tag}")
        A("s_cmp_eq_u32 s73, 1", f"s_cbranch_scc1 {lf}")
        A(f"buffer_store_dwordx2 v[{R}:{R+1}], v{R+2}, {WSr}, s{sbase} offen sc1")
        A(f"s_branch {lj}")
        A.label(lf)
        A(f"buffer_store_dwordx2 v[{R}:{R+1}], v{R+2}, {WSr}, s{sbase} offen")
        A.label(lj)
        A("s_mov_b64 exec, s[74:75]")

    def skip_issue(self, vm=None):
        A = self.A
        A(f"s_lshr_b32 s64, s{S_WAVE}, 2")
        A(f"s_lshl_b32 s68, s{S_RT}, 7", f"s_lshl_b32 s69, s{S_W}, 5", "s_add_u32 s68, s68, s69")
        A(f"s_lshl_b32 s69, s{S_G}, 6", "s_lshl_b32 s70, s64, 5", "s_add_u32 s69, s69, s70")
        A.srd(SRD_T0, 10, 2097152); A.srd(SRD_T1, 26, 1024)
        A("s_lshl_b32 s70, s68, 10", "s_lshl_b32 s71, s69, 1", "s_add_u32 s70, s70, s71")
        A("v_and_b32 v8, 31, v0", "v_lshrrev_b32 v7, 5, v0", "v_lshlrev_b32 v7, 12, v7", "v_lshlrev_b32 v8, 1, v8", "v_add_u32 v7, v7, v8")
        for r in range(16):
            if r % 4 == 0 and r > 0: A("s_add_u32 s70, s70, 8192")
            ins = f"buffer_load_ushort v{XS+r}, v7, {R4(SRD_T0)}, s70 offen offset:{(r%4)*1024}"
            vm.issue(ins, "skip") if vm else A(ins)
        ins = f"buffer_load_ushort v{XD}, v8, {R4(SRD_T1)}, s71 offen"
        vm.issue(ins, "skip") if vm else A(ins)

    def skip_finish(self):
        A = self.A
        A(f"v_lshlrev_b32 v{XD}, 16, v{XD}")
        for r in range(16): A(f"v_lshlrev_b32 v{XS+r}, 16, v{XS+r}")
        for r in range(16): A(f"v_mul_f32 v{XS+r}, v{XS+r}, v{XD}")
        for r in range(0, 16, 2): A(f"v_cvt_pk_bf16_f32 v{XS+r}, v{XS+r}, v{XS+r+1}")
        for r in range(0, 16, 2):
            A(f"v_and_b32 v{XS+r+1}, 0xffff0000, v{XS+r}", f"v_lshlrev_b32 v{XS+r}, 16, v{XS+r}")

    def mode_announce(self, role, R=240):
        A, L = self.A, self.L
        lx = L(f"ann_{role}")
        A(f"s_cmp_lg_u32 s{S_W}, 0", f"s_cbranch_scc1 {lx}")
        A("s_getreg_b32 s64, hwreg(HW_REG_XCC_ID, 0, 3)", "s_lshl_b32 s64, 1, s64", f"s_lshl_b32 s65, 0x100, s{S_G}", "s_or_b32 s64, s64, s65")
        A(f"s_add_u32 s65, s{S_RT}, {0 if role == 'A' else 16}", "s_lshl_b32 s65, s65, 2")
        A(f"v_mov_b32 v{R}, s64", f"v_mov_b32 v{R+1}, s65")
        A.srd(SRD_T3, 30, 256)
        A("s_mov_b64 s[66:67], exec", "s_mov_b64 exec, 1")
        A(f"buffer_atomic_or v{R}, v{R+1}, {R4(SRD_T3)}, 0 offen sc1")
        A("s_mov_b64 exec, s[66:67]")
        A.label(lx)

    def mode_load(self, role, R):
        A = self.A
        A(f"s_add_u32 s65, s{S_RT}, {0 if role == 'A' else 16}", "s_lshl_b32 s65, s65, 2", f"v_mov_b32 v{R+1}, s65")
        A.srd(SRD_T3, 30, 256)
        A(f"buffer_load_dword v{R}, v{R+1}, {R4(SRD_T3)}, 0 offen sc1")

    def mode_resolve(self, role, R, tag):
        A, L = self.A, self.L
        lp, ok = L(f"mode_lp_{tag}"), L(f"mode_ok_{tag}")
        A(f"s_mov_b32 s72, {POLL_LIMIT}")
        A.label(lp)
        A(f"v_readfirstlane_b32 s73, v{R}", "s_nop 3")
        A("s_and_b32 s71, s73, 0xff00", "s_cmp_eq_u32 s71, 0xff00", f"s_cbranch_scc1 {ok}")
        A("s_sub_u32 s72, s72, 1", f"s_cbranch_scc1 {ok}")
        A(f"buffer_load_dword v{R}, v{R+1}, {R4(SRD_T3)}, 0 offen sc1", "s_waitcnt vmcnt(0)", f"s_branch {lp}")
        A.label(ok)
        A("s_and_b32 s70, s73, 0xff", "s_bcnt1_i32_b32 s70, s70", "s_cmp_eq_u32 s70, 1", "s_cselect_b32 s73, 1, 0")
        A("s_cmp_eq_u32 s71, 0xff00", "s_cselect_b32 s73, s73, 0")
        if 'slow' in EXP: A("s_mov_b32 s73, 0")

    def flag_touch(self, role, R):
        A = self.A
        self.flag_addr(role, 64)
        A(f"s_lshl_b32 s65, s{S_G}, 7", "s_add_u32 s64, s64, s65", f"v_mov_b32 v{R}, 0")
        A("s_mov_b64 s[74:75], exec", "s_mov_b64 exec, 1")
        A(f"buffer_load_dword v{R+1}, v{R}, {WSr}, s64 offen sc1")
        A("s_mov_b64 exec, s[74:75]")

    def weight_touch(self, R):
        A = self.A
        if 'nowt' in EXP: return
        A("s_lshl_b32 s64, s2, 2", f"s_add_u32 s64, s64, s{S_W}", "s_mul_i32 s64, s64, 12")
        A(f"v_add_u32 v{R}, s64, v0", f"v_lshlrev_b32 v{R}, 7, v{R}")
        A.srd(SRD_T0, 8, 524288); A.srd(SRD_T1, 20, 524288); A.srd(SRD_T2, 22, 524288)
        A("s_mov_b64 s[74:75], exec", "s_mov_b64 exec, 0xfff")
        A(f"buffer_load_dword v{R+1}, v{R}, {R4(SRD_T0)}, 0 offen sc1")
        A(f"v_subrev_u32 v{R+2}, 0x80000, v{R}")
        A(f"buffer_load_dword v{R+1}, v{R+2}, {R4(SRD_T1)}, 0 offen sc1")
        A(f"v_subrev_u32 v{R+2}, 0x100000, v{R}")
        A(f"buffer_load_dword v{R+1}, v{R+2}, {R4(SRD_T2)}, 0 offen sc1")
        A("s_mov_b64 exec, s[74:75]")

    def l2_prefetch(self, role, base, R):
        A = self.A
        if 'pf' not in EXP: return
        A(f"s_add_u32 s64, s{S_W}, {base}")
        A(f"s_and_b32 s65, s{S_XCD}, 3", "s_lshl_b32 s65, s65, 9", f"s_lshl_b32 s66, s{S_SLOT}, 4", "s_add_u32 s65, s65, s66")
        A("s_lshl_b32 s65, s65, 10", "s_lshl_b32 s66, s64, 7", "s_add_u32 s65, s65, s66")
        A(f"v_and_b32 v{R+2}, 15, v0", f"v_lshlrev_b32 v{R}, 10, v{R+2}")
        A(f"buffer_load_dword v{R+1}, v{R}, {R4(SRD_T0)}, s65 offen sc1")
        if role == "A":
            A(f"v_bfe_u32 v{R+3}, v0, 4, 1", f"v_mul_u32_u24 v{R+3}, 3072, v{R+3}", f"v_lshlrev_b32 v{R+2}, 7, v{R+2}", f"v_add_u32 v{R+2}, v{R+2}, v{R+3}")
            A("s_lshl_b32 s70, s64, 6", f"s_lshl_b32 s66, s{S_SLOT}, 1", "s_add_u32 s70, s70, s66", "s_mul_i32 s70, s70, 3072", "s_add_u32 s70, s70, 1024")
            A(f"buffer_load_dword v{R+1}, v{R+2}, {R4(SRD_T1)}, s70 offen sc1")
        else:
            A(f"s_lshl_b32 s70, s{S_SLOT}, 14", "s_lshl_b32 s66, s64, 7", "s_add_u32 s70, s70, s66")
            A(f"buffer_load_dword v{R+1}, v{R}, {R4(SRD_T1)}, s70 offen sc1")
            A(f"buffer_load_dword v{R+1}, v{R}, {R4(SRD_T2)}, s70 offen sc1")

    def pf_srds(self, role):
        A = self.A
        if 'pf' not in EXP: return
        if role == "A":
            A.srd(SRD_T0, 4, 2097152); A.srd(SRD_T1, 6, 1572864)
        else:
            A.srd(SRD_T0, 10, 2097152); A.srd(SRD_T1, 16, 524288); A.srd(SRD_T2, 18, 524288)

    def loader(self, role):
        A, L = self.A, self.L
        last = 9 if role == "qkv" else 7
        vm = Vm(A)
        vm.q = [('st', 0)] * 8 + ([] if 's0' in EXP else [('st', 1)] * 8)
        X, W = R4(SRD_X), R4(SRD_W)
        def issue(st):
            slot = (st % NSLOT) * SLOT
            tag = ("st", st)
            if st >= 8:
                a = st - 8
                A(f"s_add_u32 s64, s{S_ROT}, s{S_W}", f"s_add_u32 s64, s64, {4*a}", "s_and_b32 s64, s64, 7")
                A(f"s_mul_i32 s64, s64, {64*3072}", f"s_lshl_b32 s65, s{S_G}, 7", "s_add_u32 s64, s64, s65")
                A("s_lshl_b32 s66, s70, 1")
                for i in range(8):
                    A(f"s_add_u32 m0, s66, {slot + i*1024}", f"s_add_u32 s67, s64, {i*8*3072}")
                    vm.issue(f"buffer_load_dwordx4 v4, {W}, s67 offen lds", tag)
                return
            A(f"s_add_u32 s64, s{S_ROT}, {st}", "s_and_b32 s64, s64, 7")
            A("s_lshl_b32 s65, s64, 7", "s_add_u32 s65, s65, s68")
            if role == "qkv":
                A(f"s_mul_i32 s66, s64, {64*3072}", "s_add_u32 s66, s66, s69")
                for ii in range(4):
                    A(f"s_add_u32 m0, s70, {slot + ii*1024}", f"s_add_u32 s67, s65, {ii*8192}")
                    vm.issue(f"buffer_load_dwordx4 v{2 + (ii&1)}, {X}, s67 offen lds", tag)
                A("s_lshr_b32 s71, s70, 1")
                for part in range(2):
                    for ii in range(2):
                        A(f"s_add_u32 m0, s71, {slot + 16384 + part*8192 + ii*1024}", f"s_add_u32 s67, s66, {ii*8*3072 + (1+part)*1024}")
                        vm.issue(f"buffer_load_dwordx4 v4, {W}, s67 offen lds", tag)
            else:
                A("s_lshl_b32 s66, s64, 7", "s_add_u32 s66, s66, s69")
                for ii in range(4):
                    A(f"s_add_u32 m0, s70, {slot + ii*1024}", f"s_add_u32 s67, s65, {(64*(ii&1) + 2*(ii>>1))*1024}")
                    vm.issue(f"buffer_load_dwordx4 v{4 if (ii&1)==0 else 11}, {X}, s67 offen lds", tag)
                for ii in range(4):
                    A(f"s_add_u32 m0, s70, {slot + 16384 + ii*1024}", f"s_add_u32 s67, s66, {ii*8192}")
                    vm.issue(f"buffer_load_dwordx4 v{2 + (ii&1)}, {W}, s67 offen lds", tag)
        def cregion(R):
            part = R >> 1
            A.srd(SRD_T0, 20 + 2 * part, 524288)
            A(f"s_lshl_b32 s64, s{S_G}, 6", f"s_lshl_b32 s65, s{S_W}, 3", "s_add_u32 s64, s64, s65", f"s_add_u32 s64, s64, {32*(R&1)}", "s_lshl_b32 s64, s64, 10")
            A(f"s_and_b32 s66, s{S_W}, 1", "s_lshl_b32 s66, s66, 7", "v_lshlrev_b32 v13, 4, v0", "v_xor_b32 v13, s66, v13")
            for i in range(8):
                A(f"v_xor_b32 v{14+(i&1)}, {i*16}, v13")
                A(f"s_add_u32 s67, s64, {i*1024}")
                vm.issue(f"buffer_load_dwordx4 {v(creg(R, i),4)}, v{14+(i&1)}, {R4(SRD_T0)}, s67 offen", ("c", R))
        self.cregion = cregion
        self.vm = vm
        A("s_waitcnt lgkmcnt(0)")
        A.srd(SRD_WS, 32, 268435456)
        if role == "qkv":
            ln = L("nononce")
            A("s_cmp_lg_u32 s2, 0", f"s_cbranch_scc1 {ln}", f"s_cmp_lg_u32 s{S_WAVE}, 4", f"s_cbranch_scc1 {ln}")
            A("s_memrealtime s[76:77]", "s_waitcnt lgkmcnt(0)", "s_or_b32 s76, s76, 1")
            A("v_mov_b32 v14, s76", "v_mov_b32 v15, s77", "v_mov_b32 v13, 0")
            A.srd(SRD_T0, 30, 256)
            A("s_mov_b64 s[74:75], exec", "s_mov_b64 exec, 1")
            A(f"buffer_store_dwordx2 v[14:15], v13, {R4(SRD_T0)}, 0 offen offset:128 sc1")
            A("s_mov_b64 exec, s[74:75]")
            A("s_waitcnt vmcnt(0)")
            A.label(ln)
        self.stamp(1)
        sched = {0: [2], 1: [3], 2: [4], 3: [5], 4: [6], 5: [7], 6: [8], 7: [9]} if 'l3' not in EXP else {0: [2], 1: [3], 2: [4, 5], 3: [6], 4: [7], 5: [8], 6: [9], 7: []}
        if 's0' in EXP: sched[0] = [1, 2]
        for st in range(8):
            vm.need(("st", st))
            if st == 7:
                self.get_nonce(role)
            A("s_barrier")
            if st == 0: self.stamp(2)
            for x in sched[st]:
                if x <= last: issue(x)
            if role == "bu" and 'cearly' in EXP:
                if st == 6: cregion(0)
                if st == 7:
                    for R_ in (1, 2, 3): cregion(R_)
            elif role == "bu" and 'call7' in EXP:
                if st == 7:
                    for R_ in range(4): cregion(R_)
            elif role == "bu" and st == 7:
                for R_ in range(2): cregion(R_)
            if st == 4:
                A(f"s_load_dwordx2 s[{NON}:{NON+1}], s[30:31], 128")
        if role == "qkv": self.qkv_loader_tail()
        else: self.bu_loader_tail()

    def get_nonce(self, role):
        A, L = self.A, self.L
        ok, lp = L(f"nok_{role}"), L(f"nlp_{role}")
        A("s_waitcnt lgkmcnt(0)")
        A(f"s_cmp_lg_u32 s{NON}, 0", f"s_cbranch_scc1 {ok}")
        A.srd(SRD_T0, 30, 256)
        A(f"s_mov_b32 s72, {POLL_LIMIT}", "v_mov_b32 v13, 0")
        A.label(lp)
        A(f"buffer_load_dwordx2 v[14:15], v13, {R4(SRD_T0)}, 0 offen offset:128 sc1", "s_waitcnt vmcnt(0)")
        A(f"v_readfirstlane_b32 s{NON}, v14", f"v_readfirstlane_b32 s{NON+1}, v15", "s_nop 3")
        A("s_sub_u32 s72, s72, 1", f"s_cbranch_scc1 {ok}")
        A(f"s_cmp_lg_u32 s{NON}, 0", f"s_cbranch_scc1 {ok}", "s_sleep 2", f"s_branch {lp}")
        A.label(ok)
        if role == "bu":
            A(f"v_mov_b32 v14, s{NON}", f"v_mov_b32 v15, s{NON+1}", f"v_mov_b32 v13, {NONCE}")
            A("ds_write_b64 v13, v[14:15]", "s_waitcnt lgkmcnt(0)")

    def qkv_loader_tail(self):
        A, L, vm = self.A, self.L, self.vm
        A(f"v_mov_b32 v14, s{NON}", f"v_mov_b32 v15, s{NON+1}", f"v_mov_b32 v13, {NONCEQ}")
        A("ds_write_b64 v13, v[14:15]")
        vm.need(("st", 9))
        A("s_waitcnt lgkmcnt(0)")
        self.stamp(3)
        A("s_barrier")
        A("s_setprio 3")
        self.stamp(4)
        A("v_mul_u32_u24 v7, 24, v0", f"s_mul_i32 s64, s{S_W}, {PART_STRIDE}", "v_add_u32 v7, s64, v7")
        for w in range(4):
            for j in range(3):
                A(f"ds_read_b64 v[{16+6*w+2*j}:{17+6*w+2*j}], v7 offset:{PARTQ + w*4*PART_STRIDE + 8*j}")
        A("v_lshlrev_b32 v3, 4, v0")
        A(f"s_lshl_b32 s64, s{S_G}, 4", f"s_add_u32 s64, s64, s{S_RT}", "s_lshl_b32 s64, s64, 2", f"s_add_u32 s64, s64, s{S_W}", "s_lshl_b32 s64, s64, 10", f"s_add_u32 s64, s64, {WS['KVP']}")
        A(f"v_mov_b32 v51, s{NON}")
        A("s_waitcnt lgkmcnt(6)")
        for j in range(0, 6, 2):
            A(f"v_pk_add_f32 v[{16+j}:{17+j}], v[{16+j}:{17+j}], v[{22+j}:{23+j}]")
        A("s_waitcnt lgkmcnt(0)")
        for j in range(0, 6, 2):
            A(f"v_pk_add_f32 v[{28+j}:{29+j}], v[{28+j}:{29+j}], v[{34+j}:{35+j}]")
        for j in range(0, 6, 2):
            A(f"v_pk_add_f32 v[{16+j}:{17+j}], v[{16+j}:{17+j}], v[{28+j}:{29+j}]")
        for j in range(3):
            A(f"v_cvt_pk_bf16_f32 v{48+j}, v{16+2*j}, v{17+2*j}")
        A("s_mov_b64 s[66:67], exec", "s_mov_b32 exec_lo, -1", "s_mov_b32 exec_hi, 0x3fff")
        A(f"buffer_store_dwordx4 v[48:51], v3, {WSr}, s64 offen sc1")
        self.stamp(5)
        A("s_mov_b64 exec, s[66:67]")
        A.srd(SRD_T0, 8, 524288)
        A(f"s_lshl_b32 s64, s{S_W}, 17", f"s_lshl_b32 s65, s{S_G}, 7", "s_add_u32 s64, s64, s65")
        A(f"s_lshl_b32 s65, s{S_W}, 14")
        for i in range(16):
            A(f"s_add_u32 m0, s65, {WOIMG + i*1024}", f"s_add_u32 s69, s64, {i*8192}")
            A(f"buffer_load_dwordx4 v12, {R4(SRD_T0)}, s69 offen lds")
        if 'kvd' in EXP: A("s_waitcnt vmcnt(0)")
        A("s_mov_b32 exec_lo, -1", "s_mov_b32 exec_hi, 0x3fff")
        A(f"s_lshl_b32 s68, s{S_G}, 6", f"s_add_u32 s68, s68, s{S_W}", "s_lshl_b32 s68, s68, 10", f"s_add_u32 s68, s68, {WS['KVP']}")
        lp, ok, ll, llo = L("kv_poll"), L("kv_ok"), L("kv_light"), L("kv_lightok")
        A(f"s_mov_b32 s72, {POLL_LIMIT}")
        A("v_lshlrev_b32 v5, 12, v0", f"v_add_u32 v5, {45*16+12}, v5")
        A("s_mov_b32 exec_lo, 0xffff", "s_mov_b32 exec_hi, 0")
        A.label(ll)
        A(f"buffer_load_dword v6, v5, {WSr}, s68 offen sc1", "s_waitcnt vmcnt(0)")
        A(f"v_cmp_ne_u32 vcc, s{NON}, v6")
        A("s_sub_u32 s72, s72, 1", f"s_cbranch_scc1 {llo}")
        A(f"s_cbranch_vccnz {ll}")
        A.label(llo)
        A("s_mov_b32 exec_lo, -1", "s_mov_b32 exec_hi, 0x3fff")
        def bulk(fl):
            A("s_mov_b32 s64, s68")
            for r in range(16):
                A(f"buffer_load_dwordx4 v[{64+4*r}:{67+4*r}], v3, {WSr}, s64 offen {fl}")
                if r < 15: A("s_add_u32 s64, s64, 4096")
            A("s_waitcnt vmcnt(0)")
            A(f"v_xor_b32 v52, s{NON}, v67")
            for r in range(1, 16):
                A(f"v_xor_b32 v53, s{NON}, v{67+4*r}", "v_or_b32 v52, v52, v53")
            A("v_cmp_ne_u32 vcc, 0, v52")
        bulk("")
        A(f"s_cbranch_vccz {ok}")
        A.label(lp)
        bulk("sc1")
        A("s_sub_u32 s72, s72, 1", f"s_cbranch_scc1 {ok}")
        A(f"s_cbranch_vccnz {lp}")
        A.label(ok)
        self.stamp(6)
        A("s_mov_b64 exec, s[66:67]")
        for j in range(6): A(f"v_mov_b32 v{16+j}, 0")
        A("v_mov_b32 v24, 0x00003f80", "v_mov_b32 v25, 0x3f800000")
        for r in range(16):
            for j in range(3):
                A(f"v_dot2c_f32_bf16 v{16+2*j}, v{64+4*r+j}, v24")
                A(f"v_dot2c_f32_bf16 v{17+2*j}, v{64+4*r+j}, v25")
        A("s_nop 2")
        for j in range(3):
            A(f"v_cvt_pk_bf16_f32 v{48+j}, v{16+2*j}, v{17+2*j}")
        A("v_mul_u32_u24 v4, 12, v0", f"s_lshl_b32 s66, s{S_W}, 10", f"s_add_u32 s66, s66, {FIN}", "v_add_u32 v4, s66, v4")
        A("s_mov_b64 s[66:67], exec", "s_mov_b32 exec_lo, -1", "s_mov_b32 exec_hi, 0x3fff")
        for j in range(3): A(f"ds_write_b32 v4, v{48+j} offset:{4*j}")
        A("s_mov_b64 exec, s[66:67]")
        A("s_waitcnt lgkmcnt(0)")
        self.stamp(7)
        A("s_barrier")
        A("s_setprio 0")
        for i in range(32): A(f"v_mov_b32 v{P2ACC+i}, 0")
        A("s_waitcnt vmcnt(0)")
        self.stamp(8)
        A("s_barrier")

    def bu_loader_tail(self):
        A, L, vm = self.A, self.L, self.vm
        self.stamp(3)
        A("s_barrier")
        if 'cearly' not in EXP and 'call7' not in EXP:
            self.cregion(2); self.cregion(3)
        self.skip_issue(vm)
        A("v_lshlrev_b32 v13, 4, v0", f"s_lshl_b32 s65, s{S_W}, 13", "v_add_u32 v13, s65, v13")
        for R_ in range(4):
            vm.need(("c", R_))
            if R_ == 2: A("v_add_u32 v13, 0x10000, v13")
            for i in range(8):
                A(f"ds_write_b128 v13, {v(creg(R_, i),4)} offset:{(R_&1)*SLOT + i*1024}")
        A("s_waitcnt lgkmcnt(0)")
        vm.drain()
        self.skip_finish()
        for r in range(16):
            A(f"v_mov_b32 v{P2ACC+r}, 0", f"v_mov_b32 v{P2ACC+16+r}, v{XS+r}")
        self.stamp(4)
        A("s_barrier")

    def flag_addr(self, role, dst):
        A = self.A
        A(f"s_add_u32 s{dst}, s{S_RT}, {0 if role == 'A' else 16}", f"s_lshl_b32 s{dst}, s{dst}, 10", f"s_add_u32 s{dst}, s{dst}, {WS['FLG']}")

    def wave_flag(self, role, vn):
        A = self.A
        self.flag_addr(role, 64)
        A(f"s_lshl_b32 s65, s{S_G}, 7", "s_add_u32 s64, s64, s65", f"s_lshl_b32 s65, s{S_W}, 3", "s_add_u32 s64, s64, s65", "v_mov_b32 v12, 0")
        A("s_mov_b64 s[74:75], exec", "s_mov_b64 exec, 1")
        lf, lj = self.L(f"wf_fast_{role}"), self.L(f"wf_j_{role}")
        A("s_cmp_eq_u32 s73, 1", f"s_cbranch_scc1 {lf}")
        A(f"buffer_store_dwordx2 v[{vn}:{vn+1}], v12, {WSr}, s64 offen sc1")
        A(f"s_branch {lj}")
        A.label(lf)
        A(f"buffer_store_dwordx2 v[{vn}:{vn+1}], v12, {WSr}, s64 offen")
        A.label(lj)
        A("s_mov_b64 exec, s[74:75]")

    def p2_wait(self, role):
        A, L = self.A, self.L
        self.flag_addr(role, 64)
        A(f"s_lshr_b32 s65, s{S_WAVE}, 2", "s_lshl_b32 s65, s65, 9", "s_add_u32 s64, s64, s65")
        lp, done = L(f"fpoll_{role}"), L(f"fpolld_{role}")
        A(f"s_mov_b32 s72, {POLL_LIMIT}")
        if role == "B":
            A("v_lshrrev_b32 v10, 2, v0", "v_lshlrev_b32 v10, 7, v10", "v_and_b32 v11, 3, v0", "v_lshlrev_b32 v11, 3, v11", "v_add_u32 v10, v10, v11")
            A("s_mov_b64 s[74:75], exec", "s_mov_b64 exec, 0xffff")
        else:
            A(f"s_lshl_b32 s65, s{S_W}, 3", "v_lshlrev_b32 v10, 7, v0", "v_add_u32 v10, s65, v10")
            A("s_mov_b64 s[74:75], exec", "s_mov_b64 exec, 0xf")
        A.label(lp)
        A(f"buffer_load_dwordx2 v[8:9], v10, {WSr}, s64 offen sc1")
        A("s_waitcnt vmcnt(0)")
        A(f"v_xor_b32 v8, s{NON}, v8", f"v_xor_b32 v9, s{NON+1}, v9", "v_or_b32 v8, v8, v9")
        A("v_cmp_ne_u32 vcc, 0, v8")
        A("s_sub_u32 s72, s72, 1", f"s_cbranch_scc1 {done}")
        A(f"s_cbranch_vccz {done}")
        for e in EXP:
            if e.startswith('fsl'): A(f"s_sleep {int(e[3:])}")
        A(f"s_branch {lp}")
        A.label(done)
        A("s_mov_b64 exec, s[74:75]")

    def phi_pack(self, acc, n, dst, T):
        A = self.A
        for base in range(0, n, 8):
            for i in range(0, 8, 2):
                A(f"v_pk_mul_f32 v[{T+i}:{T+i+1}], v[{acc+base+i}:{acc+base+i+1}], s[76:77]")
            for i in range(8):
                A(f"v_exp_f32_e64 v{T+i}, v{T+i} clamp")
            for i in range(8):
                A(f"v_max_f32 v{acc+base+i}, 0, v{acc+base+i}")
            for i in range(0, 8, 2):
                A(f"v_pk_add_f32 v[{acc+base+i}:{acc+base+i+1}], v[{acc+base+i}:{acc+base+i+1}], v[{T+i}:{T+i+1}]")
            for i in range(0, 8, 2):
                A(f"v_pk_add_f32 v[{acc+base+i}:{acc+base+i+1}], v[{acc+base+i}:{acc+base+i+1}], s[64:65]")
            for i in range(0, 8, 2):
                A(f"v_cvt_pk_bf16_f32 v{dst+(base+i)//2}, v{acc+base+i}, v{acc+base+i+1}")

    def lam_code(self, P, T):
        A = self.A
        A(f"v_lshlrev_b32 v{P}, 16, v{P}", f"v_lshlrev_b32 v{P+1}, 16, v{P+1}", f"v_lshlrev_b32 v{P+2}, 16, v{P+2}")
        A(f"v_mul_f32 v{T}, {LOG2E:#x}, v{P+2}", f"v_exp_f32 v{T}, v{T}", "s_nop 0")
        A(f"v_cvt_pk_bf16_f32 v{T}, v{T}, v{T}", f"v_lshlrev_b32 v{T}, 16, v{T}")
        A(f"v_mul_f32 v{T+1}, v{T}, v{P}", f"v_mul_f32 v{T+2}, v{T}, v{P+1}")
        A(f"v_mul_f32 v{T+1}, {LOG2E:#x}, v{T+1}", f"v_mul_f32 v{T+2}, {INV2PI:#x}, v{T+2}")
        A(f"v_exp_f32 v{T+1}, v{T+1}", f"v_fract_f32 v{T+2}, v{T+2}", "s_nop 0")
        A(f"v_cos_f32 v{P+3}, v{T+2}", f"v_sin_f32 v{P+4}, v{T+2}", "s_nop 0")
        A(f"v_mul_f32 v{P+3}, v{P+3}, v{T+1}", f"v_mul_f32 v{P+4}, v{P+4}, v{T+1}")

    def csq(self, d, s_, t):
        A = self.A
        A(f"v_mul_f32 v{t}, v{s_+1}, v{s_+1}", f"v_mul_f32 v{d+1}, v{s_}, v{s_+1}")
        A(f"v_fma_f32 v{d}, v{s_}, v{s_}, -v{t}", f"v_add_f32 v{d+1}, v{d+1}, v{d+1}")

    def cfma(self, dr, di, ar, ai, br, bi, cr, ci):
        A = self.A
        A(f"v_fma_f32 v{dr}, v{ar}, v{br}, v{cr}", f"v_fma_f32 v{di}, v{ar}, v{bi}, v{ci}")
        A(f"v_fma_f32 v{dr}, -v{ai}, v{bi}, v{dr}", f"v_fma_f32 v{di}, v{ai}, v{br}, v{di}")

    def qkv_compute(self):
        A, L = self.A, self.L
        ACC, WF, XF, TMP = 16, 80, 112, 240
        VA, VW = 4, 8
        lg = Lgkm(A)
        A("v_and_b32 v10, 31, v0", "v_lshrrev_b32 v11, 5, v0")
        A(f"s_lshl_b32 s64, s{S_W}, 5", "v_add_u32 v12, s64, v10", "v_lshlrev_b32 v12, 7, v12")
        A("v_lshrrev_b32 v13, 1, v10", "v_and_b32 v13, 7, v13", "v_xor_b32 v13, v13, v11", "v_lshlrev_b32 v13, 4, v13")
        A(f"v_add_u32 v{VA}, v12, v13")
        for ks in range(1, 4): A(f"v_xor_b32 v{VA+ks}, {32*ks}, v{VA}")
        A("v_lshrrev_b32 v12, 5, v0", "v_lshlrev_b32 v12, 3, v12", "v_bfe_u32 v13, v0, 2, 2", "v_add_u32 v12, v12, v13", "v_lshlrev_b32 v12, 7, v12")
        A("v_bfe_u32 v13, v0, 3, 1", "v_lshlrev_b32 v13, 6, v13", "v_add_u32 v12, v12, v13")
        A("v_bfe_u32 v13, v0, 4, 1", "v_lshlrev_b32 v13, 5, v13", "v_add_u32 v12, v12, v13")
        A("v_and_b32 v13, 3, v0", "v_lshlrev_b32 v13, 3, v13", f"v_add_u32 v{VW}, v12, v13")
        A(f"v_xor_b32 v{VW+1}, 64, v{VW}")
        A(f"v_add_u32 v2, {3*SLOT}, v{VW}", f"v_add_u32 v3, {3*SLOT}, v{VW+1}")
        A(f"s_mov_b32 s76, {LOG2E:#x}", f"s_mov_b32 s77, {LOG2E:#x}")
        A("v_cmp_gt_u32 s[74:75], 16, v10")
        for i in range(64): A(f"v_mov_b32 v{ACC+i}, 0")
        A("v_and_b32 v12, 15, v10", "v_lshlrev_b32 v13, 4, v11", "v_add_u32 v12, v12, v13", "v_lshlrev_b32 v12, 5, v12")
        A("v_lshrrev_b32 v13, 4, v10", f"v_mul_u32_u24 v13, {PART_STRIDE}, v13", "v_add_u32 v12, v12, v13")
        A(f"s_mul_i32 s66, s{S_W}, {4*PART_STRIDE}", f"s_add_u32 s66, s66, {PARTQ}", "v_add_u32 v12, s66, v12")
        A("v_lshlrev_b32 v14, 5, v11", "v_add_u32 v14, v14, v13", "v_add_u32 v14, s66, v14", "v_add_u32 v14, 1024, v14")
        A("s_waitcnt lgkmcnt(0)")
        self.pf_srds("A")
        self.l2_prefetch("A", 0, 250)
        self.l2_prefetch("A", 4, 250) if 'pfall' in EXP else None
        A.srd(SRD_WS, 32, 268435456)
        self.mode_announce("A")
        self.flag_touch("A", 245)
        self.weight_touch(242)
        A("v_cmp_gt_u32 s[74:75], 16, v10")
        def reads(s_, ks):
            buf = (s_ * 4 + ks) & 1
            out = [(f"ds_read_b128 {v(XF + (s_*4+ks)*4, 4)}, v{VA+ks}", ("x", s_, ks))]
            for nt in range(4):
                part, sub = nt >> 1, nt & 1
                for a_ in range(2):
                    off = 16384 + part * 8192 + (16 * ks + 4 * a_) * 128
                    out.append((f"ds_read_b64_tr_b16 {v(WF + buf*16 + nt*4 + 2*a_, 2)}, v{VW+sub} offset:{off}", ("w", s_, ks, nt)))
            return out
        self.pf_srds("A")
        if 'prio' in EXP: A("s_setprio 2")
        A("s_barrier")
        self.stamp(1)
        for ins, tag in reads(0, 0): lg.issue(ins, tag)
        if 'pfall' not in EXP: self.l2_prefetch("A", 4, 250)
        for s_ in range(8):
            for ks in range(4):
                nxt = (s_, ks + 1) if ks < 3 else ((s_ + 1, 0) if s_ < 7 else None)
                if ks == 3 and s_ < 7:
                    A("s_barrier")
                    self.sstamp(3 + s_)
                    d = SLOT if (s_ + 1) % NSLOT != 0 else -(NSLOT - 1) * SLOT
                    for r in list(range(VA, VA + 4)) + [VW, VW + 1]:
                        A(f"v_add_u32 v{r}, {d & 0xffffffff:#x}, v{r}")
                nr = reads(*nxt) if nxt else []
                buf = (s_ * 4 + ks) & 1
                xf = v(XF + (s_ * 4 + ks) * 4, 4)
                for nt in range(4):
                    if nt == 0: lg.need(("x", s_, ks), ("w", s_, ks, 0))
                    else: lg.need(("w", s_, ks, nt))
                    A(f"v_mfma_f32_32x32x16_bf16 {v(ACC+16*nt,16)}, {xf}, {v(WF+buf*16+nt*4,4)}, {v(ACC+16*nt,16)}")
                    if nr:
                        for ins, tag in (nr[0:3] if nt == 0 else nr[1 + 2*nt: 3 + 2*nt]):
                            lg.issue(ins, tag)
        self.stamp(2)
        A("s_waitcnt vmcnt(0)")
        A(f"s_mov_b32 s64, {EPS:#x}", f"s_mov_b32 s65, {EPS:#x}")
        for i in range(4): A(f"v_mov_b32 v{TMP+8+i}, 0x3f803f80")
        A("s_nop 3")
        ONES = TMP + 8
        def kvm(hp):
            kv = ACC + 16 * hp; z = ACC + 32 + 16 * hp
            A(f"v_mfma_f32_32x32x16_bf16 {v(kv,16)}, {v(WF+8*hp,4)}, {v(WF+16+8*hp,4)}, 0")
            A(f"v_mfma_f32_32x32x16_bf16 {v(z,16)}, {v(WF+8*hp,4)}, {v(ONES,4)}, 0")
            A(f"v_mfma_f32_32x32x16_bf16 {v(kv,16)}, {v(WF+8*hp+4,4)}, {v(WF+16+8*hp+4,4)}, {v(kv,16)}")
            A(f"v_mfma_f32_32x32x16_bf16 {v(z,16)}, {v(WF+8*hp+4,4)}, {v(ONES,4)}, {v(z,16)}")
        def vpack(hp):
            for i in range(0, 16, 2):
                A(f"v_cvt_pk_bf16_f32 v{WF+16+8*hp+i//2}, v{ACC+32+16*hp+i}, v{ACC+33+16*hp+i}")
        def pwrite(hp):
            kv = ACC + 16 * hp; z = ACC + 32 + 16 * hp
            T0 = WF + 16 * hp if False else XF_FREE
            for j in range(8):
                A(f"v_cndmask_b32 v{T0+j}, v{kv+8+j}, v{kv+j}, s[74:75]")
            for j in range(8):
                A(f"v_cndmask_b32 v{T0+8+j}, v{z+8+j}, v{z+j}, s[74:75]")
            A(f"ds_write_b128 v12, {v(T0,4)} offset:{hp*2*PART_STRIDE}")
            A(f"ds_write_b128 v12, {v(T0+4,4)} offset:{hp*2*PART_STRIDE+16}")
            A("s_mov_b64 s[66:67], exec", "s_mov_b32 exec_lo, 0x00010001", "s_mov_b32 exec_hi, 0x00010001")
            A(f"ds_write_b128 v14, {v(T0+8,4)} offset:{hp*2*PART_STRIDE}")
            A(f"ds_write_b128 v14, {v(T0+12,4)} offset:{hp*2*PART_STRIDE+16}")
            A("s_mov_b64 exec, s[66:67]")
        self.phi_pack(ACC, 16, WF, TMP)
        vpack(0)
        A("s_nop 1")
        kvm(0)
        self.phi_pack(ACC + 16, 16, WF + 8, TMP)
        vpack(1)
        A("s_nop 1")
        kvm(1)
        XF_FREE = WF
        A("s_nop 1")
        pwrite(0)
        A("s_waitcnt lgkmcnt(0)")
        A("s_nop 4")
        pwrite(1)
        A("s_waitcnt lgkmcnt(0)")
        self.stamp(3)
        A("s_barrier")
        self.mode_load("A", 250)
        for i in range(32): A(f"v_mov_b32 v{ACC+i}, 0")
        lg = Lgkm(A)
        NB = 4
        def qreads(step):
            idx, ks = step >> 2, step & 3
            a9, u = idx >> 2, idx & 3
            b = WF + (step % NB) * 8
            out = []
            for sub in range(2):
                for a_ in range(2):
                    off = a9 * SLOT + u * 8192 + (16 * ks + 4 * a_) * 128
                    out.append((f"ds_read_b64_tr_b16 {v(b + sub*4 + 2*a_, 2)}, v{2+sub} offset:{off}", ("q", step, sub)))
            return out
        for st in range(3):
            for ins, tag in qreads(st): lg.issue(ins, tag)
        for step in range(32):
            b = WF + (step % NB) * 8
            xf = v(XF + step * 4, 4)
            nr = qreads(step + 3) if step + 3 < 32 else []
            for sub in range(2):
                lg.need(("q", step, sub))
                A(f"v_mfma_f32_32x32x16_bf16 {v(ACC+16*sub,16)}, {v(b+4*sub,4)}, {xf}, {v(ACC+16*sub,16)}")
                for ins, tag in nr[2*sub:2*sub+2]: lg.issue(ins, tag)
        self.stamp(4)
        A(f"s_mov_b32 s64, {EPS:#x}", f"s_mov_b32 s65, {EPS:#x}")
        for i in range(32): A(f"v_mov_b32 v{P2ACC+i}, 0")
        self.phi_pack(ACC, 16, WF, TMP)
        self.phi_pack(ACC + 16, 16, WF + 8, TMP)
        A("v_lshlrev_b32 v13, 4, v11", "v_add_u32 v13, v13, v10", "v_lshlrev_b32 v13, 4, v13")
        A("v_lshlrev_b32 v15, 4, v11", "v_add_u32 v15, 512, v15", "v_cndmask_b32 v13, v15, v13, s[74:75]", f"v_add_u32 v13, {FIN}, v13")
        A("v_lshlrev_b32 v12, 4, v0")
        A(f"s_lshl_b32 s64, s{S_RT}, 2", f"s_add_u32 s64, s64, s{S_W}", "s_lshl_b32 s64, s64, 5", f"s_lshl_b32 s65, s{S_G}, 2", "s_add_u32 s64, s64, s65", "s_lshl_b32 s64, s64, 10")
        A("s_waitcnt vmcnt(0)")
        self.mode_resolve("A", 250, "qc")
        self.stamp(5)
        A("s_barrier")
        self.stamp(6)
        A(f"v_mov_b32 v15, {NONCEQ}", "ds_read_b64 v[250:251], v15")
        for hl in range(4):
            A(f"ds_read_b128 {v(WF+16+4*hl,4)}, v13 offset:{hl*1024}")
        for hl in range(4):
            hp, a_ = hl >> 1, hl & 1
            A(f"s_waitcnt lgkmcnt({3-hl})")
            A(f"v_mfma_f32_32x32x16_bf16 {v(ACC+16*hl,16)}, {v(WF+16+4*hl,4)}, {v(WF+8*hp+4*a_,4)}, 0")
        A("s_nop 7")
        for hl in range(4):
            d = ACC + 16 * hl
            if hl == 3: A("s_nop 3")
            A(f"v_add_f32 v{d+8}, {EPS:#x}, v{d+8}")
        for hl in range(4):
            A(f"v_rcp_f32 v{ACC+16*hl+8}, v{ACC+16*hl+8}")
        A("s_nop 0")
        for hl in range(4):
            d = ACC + 16 * hl
            for j in range(0, 8, 2):
                A(f"v_pk_mul_f32 v[{d+j}:{d+j+1}], v[{d+j}:{d+j+1}], v[{d+8}:{d+9}] op_sel_hi:[1,0]")
            for j in range(4):
                A(f"v_cvt_pk_bf16_f32 v{d+12+j}, v{d+2*j}, v{d+2*j+1}")
        for hl in range(4):
            A(f"buffer_store_dwordx4 {v(ACC+16*hl+12,4)}, v12, {WSr}, s64 offen offset:{hl*1024} sc1")
        A(f"v_readfirstlane_b32 s{NON}, v250", f"v_readfirstlane_b32 s{NON+1}, v251")
        A("s_barrier")
        A("s_waitcnt vmcnt(0)")
        self.wave_flag("A", 250)
        self.stamp(7)

    def bu_compute(self):
        A, L = self.A, self.L
        RE, IM, AF, BF = 16, 48, 80, 144
        C = 160
        lg = Lgkm(A)
        A("v_and_b32 v10, 15, v0", "v_lshrrev_b32 v11, 4, v0")
        A(f"s_lshl_b32 s64, s{S_G}, 6", f"s_lshl_b32 s65, s{S_W}, 4", "s_add_u32 s64, s64, s65", "s_lshl_b32 s64, s64, 1")
        A("v_lshlrev_b32 v12, 1, v10")
        A("v_lshrrev_b32 v13, 1, v10", "v_xor_b32 v13, v13, v11", "v_lshlrev_b32 v13, 4, v13", "v_lshlrev_b32 v14, 7, v10", "v_add_u32 v4, v13, v14")
        A("v_xor_b32 v5, 64, v4")
        A(f"s_lshl_b32 s65, s{S_W}, 11", "s_add_u32 s65, s65, 16384")
        A("v_add_u32 v6, s65, v4", "v_add_u32 v7, s65, v5")
        for i in range(64): A(f"v_mov_b32 v{RE+i}, 0")
        A("s_waitcnt lgkmcnt(0)")
        A.srd(SRD_WS, 32, 268435456)
        A.srd(SRD_T0, 12, 1024); A.srd(SRD_T1, 14, 1024); A.srd(SRD_T2, 24, 1024)
        A(f"buffer_load_ushort v{C}, v12, {R4(SRD_T0)}, s64 offen")
        A(f"buffer_load_ushort v{C+1}, v12, {R4(SRD_T1)}, s64 offen")
        A(f"buffer_load_ushort v{C+2}, v12, {R4(SRD_T2)}, s64 offen")
        self.pf_srds("B")
        self.l2_prefetch("B", 0, 250)
        if 'pfall' in EXP: self.l2_prefetch("B", 4, 250)
        A(f"s_waitcnt vmcnt({0 if 'pf' not in EXP else 6 if 'pfall' in EXP else 3})")
        self.mode_announce("B")
        self.flag_touch("B", 243)
        self.weight_touch(240)
        self.lam_code(C, C + 8)
        A(f"v_mov_b32 v166, v{C+3}", f"v_mov_b32 v167, v{C+4}")
        A("v_add_f32 v163, -1.0, v163")
        A("v_mul_f32 v168, v160, v160", "v_fma_f32 v168, v161, v161, v168", "v_rcp_f32 v168, v168")
        A("v_mul_f32 v169, v163, v160", "v_fma_f32 v169, v167, v161, v169")
        A("v_mul_f32 v170, v167, v160", "v_fma_f32 v170, -v163, v161, v170")
        A("v_add_f32 v168, v168, v168")
        A("v_mul_f32 v164, v169, v168", "v_mul_f32 v165, v170, v168")
        self.csq(174, 166, 176); self.csq(178, 174, 176); self.csq(174, 178, 176); self.csq(168, 174, 176)
        self.csq(170, 168, 176); self.csq(174, 170, 176); self.csq(172, 174, 176)
        self.csq(214, 172, 176); self.csq(218, 214, 176)
        A("v_mul_f32 v216, v214, v172", "v_mul_f32 v217, v214, v173", "v_fma_f32 v216, -v215, v173, v216", "v_fma_f32 v217, v215, v172, v217")
        def reads(s_, k2):
            buf = (s_ * 2 + k2) & 1
            out = [(f"ds_read_b128 {v(BF + buf*8, 4)}, v{6+k2} offset:0", ("b", s_, k2, 0)),
                   (f"ds_read_b128 {v(BF + buf*8 + 4, 4)}, v{6+k2} offset:8192", ("b", s_, k2, 1))]
            for mt in range(8):
                out.append((f"ds_read_b128 {v(AF + buf*32 + mt*4, 4)}, v{4+k2} offset:{mt*2048}", ("a", s_, k2, mt)))
            return out
        self.pf_srds("B")
        if 'prio' in EXP: A("s_setprio 2")
        A("s_barrier")
        self.stamp(1)
        for ins, tag in reads(0, 0): lg.issue(ins, tag)
        if 'pfall' not in EXP: self.l2_prefetch("B", 4, 250)
        for s_ in range(8):
            for k2 in range(2):
                nxt = (s_, 1) if k2 == 0 else ((s_ + 1, 0) if s_ < 7 else None)
                if k2 == 1 and s_ < 7:
                    A("s_barrier")
                    self.sstamp(3 + s_)
                    d = SLOT if (s_ + 1) % NSLOT != 0 else -(NSLOT - 1) * SLOT
                    for r in range(4, 8):
                        A(f"v_add_u32 v{r}, {d & 0xffffffff:#x}, v{r}")
                nr = reads(*nxt) if nxt else []
                if nxt is None:
                    nr = []
                buf = (s_ * 2 + k2) & 1
                for mt in range(8):
                    if mt == 0: lg.need(("b", s_, k2, 0), ("b", s_, k2, 1), ("a", s_, k2, 0))
                    else: lg.need(("a", s_, k2, mt))
                    af = v(AF + buf*32 + mt*4, 4)
                    A(f"v_mfma_f32_16x16x32_bf16 {v(RE+4*mt,4)}, {af}, {v(BF+buf*8,4)}, {v(RE+4*mt,4)}")
                    A(f"v_mfma_f32_16x16x32_bf16 {v(IM+4*mt,4)}, {af}, {v(BF+buf*8+4,4)}, {v(IM+4*mt,4)}")
                    if nr:
                        for ins, tag in (nr[0:3] if mt == 0 else [nr[2 + mt]]):
                            lg.issue(ins, tag)
                    if nxt is None and mt == 0:
                        A(f"v_mov_b32 v12, {NONCE}")
                        lg.issue("ds_read_b64 v[230:231], v12", "nonce")
        self.stamp(2)
        def pr(base, sg): return base + 4 * (sg >> 1) + 2 * (sg & 1)
        E0, E1_ = 180, 184
        Lr = "v[166:167]"
        def step(dre, dim, sre, sim, ure, uim, M=Lr):
            A(f"v_pk_fma_f32 v[{dre}:{dre+1}], v[{sre}:{sre+1}], {M}, v[{ure}:{ure+1}] op_sel_hi:[1,0,1]")
            A(f"v_pk_fma_f32 v[{dim}:{dim+1}], v[{sim}:{sim+1}], {M}, v[{uim}:{uim+1}] op_sel_hi:[1,0,1]")
            A(f"v_pk_fma_f32 v[{dre}:{dre+1}], v[{sim}:{sim+1}], {M}, v[{dre}:{dre+1}] op_sel:[0,1,0] op_sel_hi:[1,1,1] neg_lo:[0,1,0] neg_hi:[0,1,0]")
            A(f"v_pk_fma_f32 v[{dim}:{dim+1}], v[{sre}:{sre+1}], {M}, v[{dim}:{dim+1}] op_sel:[0,1,0] op_sel_hi:[1,1,1]")
        A(f"s_lshl_b32 s64, s{S_G}, 4", f"s_add_u32 s64, s64, s{S_RT}", "s_lshl_b32 s64, s64, 6", f"s_lshl_b32 s65, s{S_W}, 4", "s_add_u32 s64, s64, s65", "s_lshl_b32 s64, s64, 4", f"s_add_u32 s64, s64, {WS['ES']}")
        A("v_lshlrev_b32 v13, 4, v10", "v_lshlrev_b32 v12, 2, v10")
        cur = (pr(RE, 0), pr(IM, 0))
        for sg in range(1, 16):
            d = E0 if sg & 1 else E1_
            step(d, d + 2, cur[0], cur[1], pr(RE, sg), pr(IM, sg))
            cur = (d, d + 2)
        er, ei = cur
        self.cfma(188, 189, 168, 169, er, ei, er + 1, ei + 1)
        for qq in range(4):
            A(f"v_add_u32 v{14 + (qq&1)}, {64*qq}, v12")
            A(f"ds_bpermute_b32 v{190+2*qq}, v{14 + (qq&1)}, v188", f"ds_bpermute_b32 v{191+2*qq}, v{14 + (qq&1)}, v189")
        A("s_waitcnt lgkmcnt(0)")
        self.cfma(198, 199, 170, 171, 190, 191, 192, 193)
        self.cfma(200, 201, 170, 171, 198, 199, 194, 195)
        self.cfma(228, 229, 170, 171, 200, 201, 196, 197)
        A("s_mov_b64 s[66:67], exec", "s_mov_b64 exec, 0xffff")
        A(f"buffer_store_dwordx4 v[228:231], v13, {WSr}, s64 offen sc1")
        A("s_mov_b64 exec, s[66:67]")
        self.stamp(3)
        A("s_barrier")
        self.skip_issue()
        self.mode_load("B", 224)
        K2 = "v[164:165]"
        for sg in range(16):
            r_, i_ = pr(RE, sg), pr(IM, sg)
            A(f"v_pk_mul_f32 v[232:233], v[{i_}:{i_+1}], {K2} op_sel:[0,1] op_sel_hi:[1,1]")
            A(f"v_pk_mul_f32 v[234:235], v[{r_}:{r_+1}], {K2} op_sel:[0,1] op_sel_hi:[1,1]")
            A(f"v_pk_fma_f32 v[{r_}:{r_+1}], v[{r_}:{r_+1}], {K2}, v[232:233] op_sel_hi:[1,0,1] neg_lo:[0,0,1] neg_hi:[0,0,1]")
            A(f"v_pk_fma_f32 v[{i_}:{i_+1}], v[{i_}:{i_+1}], {K2}, v[234:235] op_sel_hi:[1,0,1]")
        if 'epre' in EXP:
            A("s_waitcnt vmcnt(0)")
            self.skip_finish()
            for r in range(16):
                A(f"v_mov_b32 v{P2ACC+r}, v{XS+r}", f"v_mov_b32 v{P2ACC+16+r}, 0")
        self.stamp(4)
        A(f"s_lshl_b32 s64, s{S_G}, 10", f"s_lshl_b32 s65, s{S_W}, 4", "s_add_u32 s64, s64, s65", "s_lshl_b32 s64, s64, 4", f"s_add_u32 s64, s64, {WS['ES']}")
        A("v_lshlrev_b32 v13, 4, v10")
        lp, lgd, lok, ltd, lz, ldone = L("e_poll"), L("e_gd"), L("e_ok"), L("e_td"), L("e_zero"), L("e_done")
        A("v_lshlrev_b32 v14, 10, v11", "v_add_u32 v14, v14, v13")
        A(f"s_cmp_eq_u32 s{S_RT}, 0", f"s_cbranch_scc1 {lz}")
        for i in range(4):
            A(f"v_add_u32 v15, {4*i}, v11", f"v_cmp_gt_u32 s[{52+2*i}:{53+2*i}], s{S_RT}, v15")
        A(f"s_mov_b32 s72, {POLL_LIMIT}")
        A.label(lp)
        A("s_mov_b32 s65, s64")
        for i in range(4):
            A(f"s_cmp_le_u32 s{S_RT}, {4*i}", f"s_cbranch_scc1 {lgd}")
            A(f"buffer_load_dwordx4 v[{80+4*i}:{83+4*i}], v14, {WSr}, s65 offen sc1")
            if i < 3: A("s_add_u32 s65, s65, 4096")
        A.label(lgd)
        A("v_mov_b32 v236, 0")
        A("s_waitcnt vmcnt(0)")
        for i in range(4):
            A(f"s_cmp_le_u32 s{S_RT}, {4*i}", f"s_cbranch_scc1 {ltd}")
            A(f"v_xor_b32 v237, v230, v{82+4*i}", f"v_xor_b32 v238, v231, v{83+4*i}", "v_or_b32 v237, v237, v238")
            A(f"v_cndmask_b32 v237, 0, v237, s[{52+2*i}:{53+2*i}]", "v_or_b32 v236, v236, v237")
        A.label(ltd)
        A("v_cmp_ne_u32 vcc, 0, v236")
        A("s_sub_u32 s72, s72, 1", f"s_cbranch_scc1 {lok}")
        A(f"s_cbranch_vccnz {lp}")
        A.label(lok)
        A("v_mov_b32 v204, 0", "v_mov_b32 v205, 0")
        for i in range(4):
            self.cfma(206, 207, 218, 219, 204, 205, 80 + 4*i, 81 + 4*i)
            A(f"v_cndmask_b32 v204, v204, v206, s[{52+2*i}:{53+2*i}]", f"v_cndmask_b32 v205, v205, v207, s[{52+2*i}:{53+2*i}]")
        A(f"s_sub_u32 s65, s{S_RT}, 1", "v_sub_u32 v15, s65, v11", "v_and_b32 v15, 3, v15")
        A("v_mov_b32 v206, 1.0", "v_mov_b32 v207, 0")
        for e, (wr, wi) in enumerate(((172, 173), (214, 215), (216, 217)), start=1):
            A(f"v_cmp_eq_u32 vcc, {e}, v15", "s_nop 1")
            A(f"v_cndmask_b32 v206, v206, v{wr}, vcc", f"v_cndmask_b32 v207, v207, v{wi}, vcc")
        A("v_mul_f32 v236, v204, v206", "v_mul_f32 v237, v204, v207")
        A("v_fma_f32 v236, -v205, v207, v236", "v_fma_f32 v237, v205, v206, v237")
        A("v_mov_b32 v238, v236", "v_mov_b32 v206, v237", "s_nop 1")
        A("v_permlane32_swap_b32 v236, v238", "v_permlane32_swap_b32 v237, v206", "s_nop 1")
        A("v_add_f32 v236, v236, v238", "v_add_f32 v237, v237, v206")
        A("v_mov_b32 v238, v236", "v_mov_b32 v206, v237", "s_nop 1")
        A("v_permlane16_swap_b32 v236, v238", "v_permlane16_swap_b32 v237, v206", "s_nop 1")
        A("v_add_f32 v204, v236, v238", "v_add_f32 v205, v237, v206")
        A(f"s_branch {ldone}")
        A.label(lz)
        A("v_mov_b32 v204, 0", "v_mov_b32 v205, 0", "s_waitcnt vmcnt(0)")
        A.label(ldone)
        self.mode_resolve("B", 224, "bc")
        self.stamp(5)
        self.cfma(198, 199, 170, 171, 204, 205, 190, 191)
        self.cfma(200, 201, 170, 171, 198, 199, 192, 193)
        self.cfma(202, 203, 170, 171, 200, 201, 194, 195)
        for qq, (sr, si) in enumerate(((198, 199), (200, 201), (202, 203)), start=1):
            A(f"v_cmp_eq_u32 vcc, {qq}, v11", "s_nop 1")
            A(f"v_cndmask_b32 v204, v204, v{sr}, vcc", f"v_cndmask_b32 v205, v205, v{si}, vcc")
        self.cfma(206, 207, 168, 169, 204, 205, er, ei)
        def cmul(dr, di, ar, ai):
            A(f"v_mul_f32 v{dr}, v{ar}, v164", f"v_mul_f32 v{di}, v{ar}, v165")
            A(f"v_fma_f32 v{dr}, -v{ai}, v165, v{dr}", f"v_fma_f32 v{di}, v{ai}, v164, v{di}")
        cmul(208, 210, 204, 205)
        cmul(209, 211, 206, 207)
        A(f"s_lshl_b32 s64, s{S_W}, 13", f"s_add_u32 s64, s64, {MISC}")
        A("v_lshlrev_b32 v12, 6, v11", "v_lshlrev_b32 v13, 4, v10", "v_xor_b32 v12, v12, v13", "v_lshlrev_b32 v13, 8, v10", "v_add_u32 v12, v12, v13", "v_add_u32 v12, s64, v12")
        for c in range(1, 4): A(f"v_xor_b32 v{212+c}, {16*c}, v12")
        A("v_bfe_u32 v13, v0, 4, 1", "v_lshlrev_b32 v13, 5, v13", "v_and_b32 v14, 3, v0", "v_lshlrev_b32 v14, 3, v14", "v_add_u32 v13, v13, v14")
        A("v_bfe_u32 v14, v0, 2, 2", "v_lshlrev_b32 v15, 4, v14", "v_xor_b32 v13, v13, v15", "v_lshlrev_b32 v14, 8, v14", "v_add_u32 v13, v13, v14")
        A("v_lshrrev_b32 v14, 5, v0", "v_lshlrev_b32 v14, 12, v14", "v_add_u32 v13, v13, v14", "v_add_u32 v13, s64, v13")
        cur = (208, 210)
        def pack(pl_, c):
            base, neg = (RE, "") if pl_ == 0 else (IM, "-")
            for j in range(4):
                sg = 8 * (c & 1) + 2 * j
                r0, r1 = pr(base, sg) + (c >> 1), pr(base, sg + 1) + (c >> 1)
                A(f"v_cvt_pk_bf16_f32 v{80 + 16*pl_ + 4*c + j}, {neg}v{r0}, {neg}v{r1}")
            A(f"ds_write_b128 v{12 if c == 0 else 212+c}, {v(80 + 16*pl_ + 4*c, 4)} offset:{pl_*4096}")
        for sg in range(16):
            d = (pr(RE, sg), pr(IM, sg))
            step(d[0], d[1], cur[0], cur[1], d[0], d[1])
            cur = d
            if sg == 8:
                for pl_ in range(2):
                    pack(pl_, 0); pack(pl_, 2)
        self.stamp(6)
        for pl_ in range(2):
            pack(pl_, 1); pack(pl_, 3)
        A(f"s_lshl_b32 s64, s{S_RT}, 8", f"s_lshl_b32 s65, s{S_G}, 3", "s_add_u32 s64, s64, s65", f"s_lshl_b32 s65, s{S_W}, 1", "s_add_u32 s64, s64, s65", "s_lshl_b32 s64, s64, 10", f"s_add_u32 s64, s64, {WS['H']}")
        A("v_lshlrev_b32 v12, 4, v0")
        A("s_waitcnt lgkmcnt(0)")
        for rb in range(4):
            for ksl in range(2):
                for a_ in range(2):
                    off = (8 * ksl + 4 * a_) * 256 + ((64 * rb) ^ (128 * ksl + 64 * a_))
                    A(f"ds_read_b64_tr_b16 {v(16 + (rb*2+ksl)*4 + 2*a_, 2)}, v13 offset:{off}")
        for rb in range(4):
            A(f"s_waitcnt lgkmcnt({min(15, 12-4*rb)})")
            for ksl in range(2):
                A(f"buffer_store_dwordx4 {v(16 + (rb*2+ksl)*4, 4)}, v12, {WSr}, s64 offen offset:{ksl*1024} sc1")
            if rb < 3: A("s_add_u32 s64, s64, 0x10000")
        self.stamp(7)
        if 'epre' not in EXP:
            self.skip_finish()
            for r in range(16):
                A(f"v_mov_b32 v{P2ACC+r}, v{XS+r}", f"v_mov_b32 v{P2ACC+16+r}, 0")
        A(f"v_readfirstlane_b32 s{NON}, v230", f"v_readfirstlane_b32 s{NON+1}, v231")
        A("s_barrier")
        A("s_waitcnt vmcnt(0)")
        self.wave_flag("B", 230)
        self.stamp(8)

    def p2(self, role):
        A, L = self.A, self.L
        self.stamp(9)
        if 'prio' in EXP: A("s_setprio 0")
        nk = 32 if role == "A" else 64
        nst = nk // 2
        abase = WS["O"] if role == "A" else WS["H"]
        ACC, BF, AF = P2ACC, 48, 80
        NBUF, LA = 4, 7
        A(f"s_lshr_b32 s64, s{S_WAVE}, 2", f"s_and_b32 s65, s{S_WAVE}, 3")
        A("v_lshlrev_b32 v2, 4, v0")
        A(f"s_lshl_b32 s66, s{S_RT}, 2", "s_add_u32 s66, s66, s65", f"s_mul_i32 s66, s66, {nk*1024}")
        A(f"s_mul_i32 s67, s64, {nst*1024}", "s_add_u32 s66, s66, s67", f"s_add_u32 s66, s66, {abase}")
        def aload(k):
            A(f"buffer_load_dwordx4 {v(AF + 4*(k % 8), 4)}, v2, {WSr}, s66 offen offset:{(k % 4)*1024}")
            if k % 4 == 3: A("s_add_u32 s66, s66, 4096")
        A("v_and_b32 v5, 31, v0", "v_lshrrev_b32 v6, 5, v0")
        A(f"s_lshl_b32 s68, s{S_RT}, 7", "s_lshl_b32 s69, s65, 5", "s_add_u32 s68, s68, s69")
        A(f"s_lshl_b32 s69, s{S_G}, 6", "s_lshl_b32 s70, s64, 5", "s_add_u32 s69, s69, s70")
        lg = Lgkm(A)
        if role == "A":
            A("v_lshlrev_b32 v12, 2, v6", "v_bfe_u32 v13, v0, 2, 2", "v_add_u32 v12, v12, v13", "v_lshlrev_b32 v12, 7, v12")
            A("v_bfe_u32 v13, v0, 3, 1", "v_lshlrev_b32 v13, 6, v13", "v_add_u32 v12, v12, v13")
            A("v_bfe_u32 v13, v0, 4, 1", "v_lshlrev_b32 v13, 5, v13", "v_add_u32 v12, v12, v13")
            A("v_and_b32 v13, 3, v0", "v_lshlrev_b32 v13, 3, v13", "v_add_u32 v12, v12, v13")
            A("s_lshl_b32 s70, s64, 15", f"s_add_u32 s70, s70, {WOIMG}", "v_add_u32 v3, s70, v12", "v_xor_b32 v4, 64, v3")
            def bread(k):
                b = BF + 8 * (k % NBUF)
                for cb in range(2):
                    for a_ in range(2):
                        lg.issue(f"ds_read_b64_tr_b16 {v(b + 4*cb + 2*a_, 2)}, v{3+cb} offset:{(16*k + 8*a_)*128}", ("b", k))
        else:
            A("v_lshlrev_b32 v12, 16, v6", "v_lshlrev_b32 v13, 10, v5", "v_add_u32 v12, v12, v13")
            A("v_and_b32 v13, 15, v5", "v_lshlrev_b32 v13, 4, v13", "v_add_u32 v12, v12, v13")
            A("s_lshl_b32 s70, s64, 9", "v_add_u32 v3, s70, v12")
            def bread(k):
                b = BF + 8 * (k % NBUF)
                t = 8 + (k % 4)
                A(f"v_xor_b32 v{t}, {(k & 15) * 16}, v3")
                for cb in range(2):
                    lg.issue(f"ds_read_b128 {v(b + 4*cb, 4)}, v{t} offset:{(k >> 4) * 256 + cb * 32768}", ("b", k))
        for k in range(NBUF - 1): bread(k)
        A("s_mov_b32 s76, s64", "s_mov_b32 s77, s66")
        self.p2_wait(role)
        A("s_mov_b32 s64, s76", "s_mov_b32 s66, s77")
        for k in range(LA): aload(k)
        self.stamp(10)
        for k in range(nst):
            if k + LA < nst: aload(k + LA)
            if k + NBUF - 1 < nst: bread(k + NBUF - 1)
            rem = min(nst - 1 - k, LA)
            A(f"s_waitcnt vmcnt({rem})")
            lg.need(("b", k))
            b = BF + 8 * (k % NBUF)
            A(f"v_mfma_f32_32x32x16_bf16 {v(ACC,16)}, {v(AF+4*(k%8),4)}, {v(b,4)}, {v(ACC,16)}")
            A(f"v_mfma_f32_32x32x16_bf16 {v(ACC+16,16)}, {v(AF+4*(k%8),4)}, {v(b+4,4)}, {v(ACC+16,16)}")
        self.stamp(11)
        A(f"s_lshl_b32 s70, s{S_WAVE}, 12", f"s_add_u32 s70, s70, {MISC}", "v_add_u32 v9, s70, v2")
        A(f"s_xor_b32 s71, s{S_WAVE}, 4", "s_lshl_b32 s71, s71, 12", f"s_add_u32 s71, s71, {MISC}", "v_add_u32 v10, s71, v2")
        A("s_lshl_b32 s68, s68, 12", "s_lshl_b32 s69, s69, 2", "s_add_u32 s68, s68, s69")
        if role == "B": A("s_add_u32 s68, s68, 2048")
        A("v_lshlrev_b32 v11, 14, v6", "v_lshlrev_b32 v12, 2, v5", "v_add_u32 v11, v11, v12")
        A.srd(SRD_T0, 28, 8388608)
        lk, lj = L(f"kh1_{role}"), L(f"join_{role}")
        A("s_cmp_eq_u32 s64, 1", f"s_cbranch_scc1 {lk}")
        for i in range(4): A(f"ds_write_b128 v9, {v(ACC+16+4*i,4)} offset:{i*1024}")
        A(f"s_mov_b32 s71, 0")
        A(f"s_branch {lj}")
        A.label(lk)
        for i in range(4): A(f"ds_write_b128 v9, {v(ACC+4*i,4)} offset:{i*1024}")
        A("s_nop 1")
        for i in range(16): A(f"v_mov_b32 v{ACC+i}, v{ACC+16+i}")
        A.label(lj)
        A("s_waitcnt lgkmcnt(0)")
        A("s_barrier")
        for i in range(4): A(f"ds_read_b128 {v(48+4*i,4)}, v10 offset:{i*1024}")
        for i in range(4):
            A(f"s_waitcnt lgkmcnt({3-i})")
            for r in range(4*i, 4*i+4, 2):
                A(f"v_pk_add_f32 v[{ACC+r}:{ACC+r+1}], v[{ACC+r}:{ACC+r+1}], v[{48+r}:{49+r}]")
            for r in range(4*i, 4*i+4):
                row = (r & 3) + 8 * (r >> 2)
                A(f"s_add_u32 s69, s68, {row*4096}")
                A(f"buffer_store_dword v{ACC+r}, v11, {R4(SRD_T0)}, s69 offen {OUTF}")
        self.stamp(12)
        if 'clk' in EXP:
            lx = L(f"clk_{role}")
            A("s_waitcnt vmcnt(0)")
            A(f"s_cmp_lg_u32 s2, {0 if role == 'A' else 4}", f"s_cbranch_scc1 {lx}", f"s_cmp_lg_u32 s{S_WAVE}, 0", f"s_cbranch_scc1 {lx}")
            A("s_memtime s[88:89]", "s_memrealtime s[90:91]", "s_waitcnt lgkmcnt(0)")
            A("s_sub_u32 s88, s88, s84", "s_sub_u32 s90, s90, s86", "v_mov_b32 v16, s88", "v_mov_b32 v17, s90")
            A(f"v_mov_b32 v18, {0 if role == 'A' else 8}")
            A.srd(SRD_T0, 30, 256)
            A("s_mov_b64 exec, 1")
            A(f"buffer_store_dwordx2 v[16:17], v18, {R4(SRD_T0)}, 0 offen sc1")
            A.label(lx)
        self.write_stamps()
        A("s_endpgm")

def build(out, stamps=False):
    A = Asm()
    K = NAME + "_kernel"
    A.raw(HEADER_COMMENT + f"; @launch grid=(256,1,1) block=(512,1,1) lds={LDS_BYTES}\n" + '.amdgcn_target "amdgcn-amd-amdhsa--gfx950"\n')
    G(A, K, stamps).gen()
    A.kernel_desc(K, 256, accum=256)
    open(out, "w").write(A.text())

if __name__ == "__main__":
    build(sys.argv[1], stamps=(len(sys.argv) > 2 and sys.argv[2] == "stamps"))
```

```python
import sys
sys.path.insert(0, "gen"); sys.path.insert(0, "scratch")
from asmlib import *
WS = dict(O=0x000000, H=0x200000, KVP=0x600000, ES=0x700000, FLG=0x740000, ST=0x900000)
LDS_BYTES = 163840
SLOT = 32768
NSLOT = 5
MISC = 4 * SLOT
PART_STRIDE = 1152
PARTQ = 0
FIN = 20480
WOIMG = SLOT
NONCE = MISC + 24576 + 64
NONCEQ = 28672
LOG2E = 0x3FB8AA3B
EPS = 0x358637BD
INV2PI = 0x3E22F983
POLL_LIMIT = 1 << 18
EXP = set(a for a in sys.argv[3:]) | {'kvd', 'epre', 'rotd'}
OUTF = 'nt'
FASTF = 'nt' if 'fnt' in EXP else 'sc0' if 'fsc0' in EXP else 'sc0 nt' if 'fsc0nt' in EXP else ''

S_W, S_WAVE, S_XCD, S_SLOT, S_RT, S_G, S_ROT = 3, 34, 35, 36, 37, 38, 39
SRD_X, SRD_W, SRD_WS, SRD_T0, SRD_T1, SRD_T2, SRD_T3 = 40, 44, 48, 52, 56, 60, 96
NON = 78
P2ACC, XS, XD = 128, 112, 239
def R4(n): return f"s[{n}:{n+3}]"
def creg(R, i):
    n = R * 8 + i
    return 24 + 4 * n if n < 22 else 160 + 4 * (n - 22)
WSr = R4(SRD_WS)

class G:
    def __init__(self, A, K, stamps):
        self.A, self.K, self.stamps = A, K, stamps
    def L(self, n): return f"{self.K}_{n}"
    def stamp(self, i):
        if self.stamps:
            if 'pro' in EXP and 9 <= i <= 12 and not getattr(self, 'inpro', False): return
            if 'stg' in EXP and 3 <= i <= 12 and not getattr(self, 'instg', False): return
            self.A("s_memtime s[100:101]", "s_waitcnt lgkmcnt(0)", f"s_mov_b32 s{80+i}, s100")
    def sstamp(self, i):
        if 'stg' in EXP:
            self.instg = True
            self.A("s_memtime s[100:101]")
            self.A("s_waitcnt lgkmcnt(0)", f"s_mov_b32 s{80+i}, s100")
            self.instg = False
    def pstamp(self, i):
        if 'pro' in EXP:
            self.inpro = True; self.stamp(i); self.inpro = False
    def write_stamps(self):
        A = self.A
        if not self.stamps: return
        A("s_waitcnt vmcnt(0) lgkmcnt(0)")
        self.stamp(13)
        A("s_memrealtime s[100:101]", "s_waitcnt lgkmcnt(0)", "s_mov_b32 s95, s100")
        for j in range(16): A(f"v_mov_b32 v{16+j}, s{80+j}")
        A("s_lshl_b32 s64, s2, 3", f"s_add_u32 s64, s64, s{S_WAVE}", "s_lshl_b32 s64, s64, 6", f"s_add_u32 s64, s64, {WS['ST']}", "v_mov_b32 v2, s64")
        A("v_cmp_eq_u32 vcc, 0, v0", "s_and_saveexec_b64 s[66:67], vcc")
        for j in range(4):
            A(f"buffer_store_dwordx4 v[{16+4*j}:{19+4*j}], v2, {WSr}, 0 offen offset:{16*j}")

    def gen(self):
        A, L = self.A, self.L
        A.kernel_begin(self.K)
        A.label(L("start"))
        if self.stamps:
            for j in range(16): A(f"s_mov_b32 s{80+j}, 0")
            A("s_memrealtime s[100:101]", "s_waitcnt lgkmcnt(0)", "s_mov_b32 s94, s100")
            self.stamp(0)
        if 'clk' in EXP:
            A("s_memtime s[84:85]", "s_memrealtime s[86:87]")
        A("s_cmp_ge_u32 s2, 256", f"s_cbranch_scc1 {L('end')}")
        A("s_load_dwordx4 s[4:7], s[0:1], 0", "s_load_dwordx4 s[8:11], s[0:1], 16", "s_load_dwordx4 s[16:19], s[0:1], 48")
        if 'nocode' not in EXP:
            lc = L("nocode")
            A("s_getpc_b64 s[64:65]")
            A.label(L("pcref"))
            A(f"s_lshr_b32 s66, s2, 3", "s_mul_i32 s66, s66, 9", "v_add_u32 v2, s66, v0", "v_lshlrev_b32 v2, 7, v2")
            A(f"v_min_u32 v2, {L('end')}-{L('pcref')}, v2")
            A(f"v_cmp_gt_u32 vcc, 9, v0", "s_and_saveexec_b64 s[66:67], vcc", f"s_cbranch_execz {lc}")
            A("global_load_dword v255, v2, s[64:65]")
            A.label(lc)
            A("s_mov_b64 exec, s[66:67]")
        A("v_lshrrev_b32 v1, 6, v0", "v_and_b32 v0, 63, v0")
        A(f"v_readfirstlane_b32 s{S_WAVE}, v1")
        A(f"s_and_b32 s{S_XCD}, s2, 7", f"s_lshr_b32 s{S_SLOT}, s2, 3")
        A(f"s_and_b32 s64, s{S_XCD}, 3", f"s_lshl_b32 s{S_RT}, s64, 2", f"s_and_b32 s65, s{S_SLOT}, 3", f"s_add_u32 s{S_RT}, s{S_RT}, s65")
        A(f"s_lshr_b32 s{S_G}, s{S_SLOT}, 2")
        if 'rotb' in EXP:
            A("s_lshl_b32 s65, s65, 1", f"s_add_u32 s{S_ROT}, s{S_G}, s65", f"s_add_u32 s{S_ROT}, s{S_ROT}, s64", f"s_and_b32 s{S_ROT}, s{S_ROT}, 7")
        elif 'rotc' in EXP:
            A("s_lshl_b32 s65, s65, 1", f"s_add_u32 s{S_ROT}, s{S_G}, s65", f"s_and_b32 s{S_ROT}, s{S_ROT}, 7")
        elif 'rote' in EXP:
            A(f"s_add_u32 s{S_ROT}, s{S_G}, s65", f"s_and_b32 s{S_ROT}, s{S_ROT}, 1", f"s_lshl_b32 s{S_ROT}, s{S_ROT}, 2")
        elif 'rotf' in EXP:
            A(f"s_add_u32 s{S_ROT}, s{S_G}, s65", f"s_and_b32 s{S_ROT}, s{S_ROT}, 3", f"s_lshl_b32 s{S_ROT}, s{S_ROT}, 1", "s_and_b32 s64, s64, 1", f"s_add_u32 s{S_ROT}, s{S_ROT}, s64")
        elif 'rotg' in EXP:
            A(f"s_and_b32 s{S_ROT}, s{S_G}, 3", f"s_lshl_b32 s{S_ROT}, s{S_ROT}, 1")
        elif 'roth' in EXP:
            A(f"s_add_u32 s{S_ROT}, s{S_G}, s65", f"s_and_b32 s{S_ROT}, s{S_ROT}, 3")
        elif 'rotd' in EXP:
            A(f"s_add_u32 s{S_ROT}, s{S_G}, s65", f"s_and_b32 s{S_ROT}, s{S_ROT}, 3", f"s_lshl_b32 s{S_ROT}, s{S_ROT}, 1")
        else:
            A("s_lshl_b32 s65, s65, 1", f"s_add_u32 s{S_ROT}, s{S_G}, s65", "s_and_b32 s64, s64, 1", f"s_add_u32 s{S_ROT}, s{S_ROT}, s64", f"s_and_b32 s{S_ROT}, s{S_ROT}, 7")
        if 'rot0' in EXP: A(f"s_mov_b32 s{S_ROT}, 0")
        A(f"s_and_b32 s{S_W}, s{S_WAVE}, 3")
        A(f"s_cmp_lt_u32 s{S_WAVE}, 4", f"s_cbranch_scc1 {L('compute')}")
        self.loader_prologue()
        A(f"s_cmp_ge_u32 s{S_XCD}, 4", f"s_cbranch_scc1 {L('bu_load')}")
        self.loader("qkv")
        A.label(L("p2A"))
        self.p2("A")
        A.label(L("bu_load"))
        self.loader("bu")
        A.label(L("p2B"))
        self.p2("B")
        A.label(L("compute"))
        self.rest_kernargs()
        A(f"s_cmp_ge_u32 s{S_XCD}, 4", f"s_cbranch_scc1 {L('bu')}")
        self.qkv_compute()
        A(f"s_branch {L('p2A')}")
        A.label(L("bu"))
        self.bu_compute()
        A(f"s_branch {L('p2B')}")
        A.label(L("end"))
        A("s_endpgm")

    def rest_kernargs(self):
        A = self.A
        A("s_load_dwordx4 s[12:15], s[0:1], 32", "s_load_dwordx4 s[20:23], s[0:1], 64", "s_load_dwordx4 s[24:27], s[0:1], 80")
        A("s_load_dwordx4 s[28:31], s[0:1], 96", "s_load_dwordx2 s[32:33], s[0:1], 112")

    def loader_prologue(self):
        A, L = self.A, self.L
        A("v_lshrrev_b32 v5, 3, v0", "v_and_b32 v6, 7, v0", "v_lshrrev_b32 v7, 4, v0")
        A("v_xor_b32 v8, v6, v7", "v_lshlrev_b32 v8, 4, v8")
        A("v_lshlrev_b32 v2, 10, v5", "v_add_u32 v2, v2, v8", "v_xor_b32 v3, 64, v2")
        A(f"s_lshl_b32 s70, s{S_W}, 12")
        lb, lj = L("pro_b"), L("pro_j")
        A(f"s_cmp_ge_u32 s{S_XCD}, 4", f"s_cbranch_scc1 {lb}")
        A("v_and_b32 v9, 1, v7", "v_lshlrev_b32 v9, 2, v9", "v_xor_b32 v9, v6, v9", "v_lshlrev_b32 v9, 4, v9")
        A("v_mul_u32_u24 v4, 3072, v5", "v_add_u32 v4, v4, v9", "v_lshlrev_b32 v12, 10, v5", "v_add_u32 v12, v12, v9")
        A("v_mov_b32 v20, v2", "v_mov_b32 v21, v3", "v_mov_b32 v22, v4", "v_mov_b32 v23, v4", "v_mov_b32 v11, v3")
        A(f"s_lshl_b32 s64, s{S_RT}, 7", f"s_lshl_b32 s65, s{S_W}, 5", "s_add_u32 s64, s64, s65", "s_lshl_b32 s68, s64, 10")
        A(f"s_mul_i32 s69, s{S_W}, {16*3072}", f"s_lshl_b32 s65, s{S_G}, 7", "s_add_u32 s69, s69, s65")
        A(f"s_mov_b32 s76, {64*3072}", "s_lshr_b32 s71, s70, 1")
        A("s_movk_i32 s52, 0x2000", "s_movk_i32 s53, 0x4000")
        A("s_movk_i32 s56, 0x2000")
        A("s_movk_i32 s60, 1024", "s_movk_i32 s61, 25600", "s_movk_i32 s62, 2048", "s_movk_i32 s63, 26624")
        A("s_waitcnt lgkmcnt(0)")
        A.srd(SRD_X, 4, 2097152); A.srd(SRD_W, 6, 1572864)
        A(f"s_branch {lj}")
        A.label(lb)
        A("v_lshrrev_b32 v9, 5, v0", "v_lshlrev_b32 v9, 5, v9", "v_and_b32 v10, 1, v5", "v_lshlrev_b32 v10, 4, v10", "v_add_u32 v9, v9, v10")
        A("v_and_b32 v10, 1, v7", "v_add_u32 v9, v9, v10", "v_lshlrev_b32 v4, 10, v9", "v_add_u32 v4, v4, v8", "v_xor_b32 v11, 64, v4")
        A("v_mov_b32 v20, v4", "v_mov_b32 v21, v11", "v_mov_b32 v22, v2", "v_mov_b32 v23, v3", "v_mov_b32 v12, v2")
        A(f"s_lshl_b32 s64, s{S_RT}, 7", f"s_lshl_b32 s65, s{S_W}, 2", "s_add_u32 s64, s64, s65", "s_lshl_b32 s68, s64, 10")
        A(f"s_lshl_b32 s64, s{S_G}, 6", f"s_and_b32 s65, s{S_W}, 1", "s_lshl_b32 s65, s65, 5", "s_add_u32 s64, s64, s65", "s_lshl_b32 s69, s64, 10")
        A("s_movk_i32 s76, 128", "s_mov_b32 s71, s70")
        A("s_mov_b32 s52, 0x10000", "s_movk_i32 s53, 0x800")
        A("s_movk_i32 s56, 0x800")
        A("s_movk_i32 s60, 0", "s_movk_i32 s61, 0x2000", "s_movk_i32 s62, 0x4000", "s_movk_i32 s63, 0x6000")
        A("s_waitcnt lgkmcnt(0)")
        A.srd(SRD_X, 10, 2097152)
        A(f"s_cmp_lt_u32 s{S_W}, 2", "s_cselect_b32 s64, s16, s18", "s_cselect_b32 s65, s17, s19")
        A.srd(SRD_W, 64, 524288)
        A.label(lj)
        A("s_add_u32 s54, s52, s53", "s_add_u32 s57, s56, 1024")
        self.pstamp(10)
        X, W = R4(SRD_X), R4(SRD_W)
        for st in range(1 if 's0' in EXP else 2):
            slot = st * SLOT
            A(f"s_add_u32 s64, s{S_ROT}, {st}", "s_and_b32 s64, s64, 7")
            A("s_lshl_b32 s65, s64, 7", "s_add_u32 s65, s65, s68", "s_mul_i32 s66, s64, s76", "s_add_u32 s66, s66, s69")
            xo = [None, "s52", "s53", "s54"]
            for ii in range(4):
                A(f"s_add_u32 m0, s70, {slot + ii*1024}")
                A(f"s_add_u32 s67, s65, {xo[ii]}" if xo[ii] else "s_mov_b32 s67, s65")
                A(f"buffer_load_dwordx4 v{20 + (ii&1)}, {X}, s67 offen lds")
            A(f"s_add_u32 s72, s71, {slot + 16384}")
            wl = ["0", "1024", "s56", "s57"]
            for ii in range(4):
                A(f"s_add_u32 m0, s72, {wl[ii]}", f"s_add_u32 s67, s66, s{60+ii}")
                A(f"buffer_load_dwordx4 v{22 + (ii&1)}, {W}, s67 offen lds")
            self.pstamp(11 + st)
        self.rest_kernargs()

    def poll_lines(self, tag, nl, sbase, stride_log2, R=8):
        A, L = self.A, self.L
        lp, done = L(f"poll_{tag}"), L(f"polld_{tag}")
        A(f"s_mov_b32 s72, {POLL_LIMIT}")
        A(f"v_lshlrev_b32 v{R+2}, {stride_log2}, v0")
        A("s_mov_b64 s[74:75], exec", f"s_mov_b64 exec, {(1 << nl) - 1:#x}")
        A.label(lp)
        A(f"buffer_load_dwordx2 v[{R}:{R+1}], v{R+2}, {WSr}, s{sbase} offen sc1")
        A("s_waitcnt vmcnt(0)")
        A(f"v_xor_b32 v{R}, s{NON}, v{R}", f"v_xor_b32 v{R+1}, s{NON+1}, v{R+1}", f"v_or_b32 v{R}, v{R}, v{R+1}")
        A(f"v_cmp_ne_u32 vcc, 0, v{R}")
        A("s_sub_u32 s72, s72, 1")
        A(f"s_cbranch_scc1 {done}")
        A(f"s_cbranch_vccz {done}")
        A(f"s_branch {lp}")
        A.label(done)
        A("s_mov_b64 exec, s[74:75]")

    def store_flag(self, sbase, tag, R=8):
        A, L = self.A, self.L
        A(f"v_mov_b32 v{R}, s{NON}", f"v_mov_b32 v{R+1}, s{NON+1}", f"v_mov_b32 v{R+2}, 0")
        A("s_mov_b64 s[74:75], exec", "s_mov_b64 exec, 1")
        lf, lj = L(f"sf_fast_{tag}"), L(f"sf_j_{tag}")
        A("s_cmp_eq_u32 s73, 1", f"s_cbranch_scc1 {lf}")
        A(f"buffer_store_dwordx2 v[{R}:{R+1}], v{R+2}, {WSr}, s{sbase} offen sc1")
        A(f"s_branch {lj}")
        A.label(lf)
        A(f"buffer_store_dwordx2 v[{R}:{R+1}], v{R+2}, {WSr}, s{sbase} offen")
        A.label(lj)
        A("s_mov_b64 exec, s[74:75]")

    def skip_issue(self, vm=None):
        A = self.A
        A(f"s_lshr_b32 s64, s{S_WAVE}, 2")
        A(f"s_lshl_b32 s68, s{S_RT}, 7", f"s_lshl_b32 s69, s{S_W}, 5", "s_add_u32 s68, s68, s69")
        A(f"s_lshl_b32 s69, s{S_G}, 6", "s_lshl_b32 s70, s64, 5", "s_add_u32 s69, s69, s70")
        A.srd(SRD_T0, 10, 2097152); A.srd(SRD_T1, 26, 1024)
        A("s_lshl_b32 s70, s68, 10", "s_lshl_b32 s71, s69, 1", "s_add_u32 s70, s70, s71")
        A("v_and_b32 v8, 31, v0", "v_lshrrev_b32 v7, 5, v0", "v_lshlrev_b32 v7, 12, v7", "v_lshlrev_b32 v8, 1, v8", "v_add_u32 v7, v7, v8")
        for r in range(16):
            if r % 4 == 0 and r > 0: A("s_add_u32 s70, s70, 8192")
            ins = f"buffer_load_ushort v{XS+r}, v7, {R4(SRD_T0)}, s70 offen offset:{(r%4)*1024}"
            vm.issue(ins, "skip") if vm else A(ins)
        ins = f"buffer_load_ushort v{XD}, v8, {R4(SRD_T1)}, s71 offen"
        vm.issue(ins, "skip") if vm else A(ins)

    def skip_finish(self):
        A = self.A
        A(f"v_lshlrev_b32 v{XD}, 16, v{XD}")
        for r in range(16): A(f"v_lshlrev_b32 v{XS+r}, 16, v{XS+r}")
        for r in range(16): A(f"v_mul_f32 v{XS+r}, v{XS+r}, v{XD}")
        for r in range(0, 16, 2): A(f"v_cvt_pk_bf16_f32 v{XS+r}, v{XS+r}, v{XS+r+1}")
        for r in range(0, 16, 2):
            A(f"v_and_b32 v{XS+r+1}, 0xffff0000, v{XS+r}", f"v_lshlrev_b32 v{XS+r}, 16, v{XS+r}")

    def mode_announce(self, role, R=240):
        A, L = self.A, self.L
        lx = L(f"ann_{role}")
        A(f"s_cmp_lg_u32 s{S_W}, 0", f"s_cbranch_scc1 {lx}")
        A("s_getreg_b32 s64, hwreg(HW_REG_XCC_ID, 0, 3)", "s_lshl_b32 s64, 1, s64", f"s_lshl_b32 s65, 0x100, s{S_G}", "s_or_b32 s64, s64, s65")
        A(f"s_add_u32 s65, s{S_RT}, {0 if role == 'A' else 16}", "s_lshl_b32 s65, s65, 2")
        A(f"v_mov_b32 v{R}, s64", f"v_mov_b32 v{R+1}, s65")
        A.srd(SRD_T3, 30, 256)
        A("s_mov_b64 s[66:67], exec", "s_mov_b64 exec, 1")
        A(f"buffer_atomic_or v{R}, v{R+1}, {R4(SRD_T3)}, 0 offen sc1")
        A("s_mov_b64 exec, s[66:67]")
        A.label(lx)

    def mode_load(self, role, R):
        A = self.A
        A(f"s_add_u32 s65, s{S_RT}, {0 if role == 'A' else 16}", "s_lshl_b32 s65, s65, 2", f"v_mov_b32 v{R+1}, s65")
        A.srd(SRD_T3, 30, 256)
        A(f"buffer_load_dword v{R}, v{R+1}, {R4(SRD_T3)}, 0 offen sc1")

    def mode_resolve(self, role, R, tag):
        A, L = self.A, self.L
        lp, ok = L(f"mode_lp_{tag}"), L(f"mode_ok_{tag}")
        A(f"s_mov_b32 s72, {POLL_LIMIT}")
        A.label(lp)
        A(f"v_readfirstlane_b32 s73, v{R}", "s_nop 3")
        A("s_and_b32 s71, s73, 0xff00", "s_cmp_eq_u32 s71, 0xff00", f"s_cbranch_scc1 {ok}")
        A("s_sub_u32 s72, s72, 1", f"s_cbranch_scc1 {ok}")
        A(f"buffer_load_dword v{R}, v{R+1}, {R4(SRD_T3)}, 0 offen sc1", "s_waitcnt vmcnt(0)", f"s_branch {lp}")
        A.label(ok)
        A("s_and_b32 s70, s73, 0xff", "s_bcnt1_i32_b32 s70, s70", "s_cmp_eq_u32 s70, 1", "s_cselect_b32 s73, 1, 0")
        A("s_cmp_eq_u32 s71, 0xff00", "s_cselect_b32 s73, s73, 0")
        if 'slow' in EXP: A("s_mov_b32 s73, 0")

    def flag_touch(self, role, R):
        A = self.A
        self.flag_addr(role, 64)
        A(f"s_lshl_b32 s65, s{S_G}, 7", "s_add_u32 s64, s64, s65", f"v_mov_b32 v{R}, 0")
        A("s_mov_b64 s[74:75], exec", "s_mov_b64 exec, 1")
        A(f"buffer_load_dword v{R+1}, v{R}, {WSr}, s64 offen sc1")
        A("s_mov_b64 exec, s[74:75]")

    def weight_touch(self, R):
        A = self.A
        if 'nowt' in EXP: return
        A("s_lshl_b32 s64, s2, 2", f"s_add_u32 s64, s64, s{S_W}", "s_mul_i32 s64, s64, 12")
        A(f"v_add_u32 v{R}, s64, v0", f"v_lshlrev_b32 v{R}, 7, v{R}")
        A.srd(SRD_T0, 8, 524288); A.srd(SRD_T1, 20, 524288); A.srd(SRD_T2, 22, 524288)
        A("s_mov_b64 s[74:75], exec", "s_mov_b64 exec, 0xfff")
        A(f"buffer_load_dword v{R+1}, v{R}, {R4(SRD_T0)}, 0 offen sc1")
        A(f"v_subrev_u32 v{R+2}, 0x80000, v{R}")
        A(f"buffer_load_dword v{R+1}, v{R+2}, {R4(SRD_T1)}, 0 offen sc1")
        A(f"v_subrev_u32 v{R+2}, 0x100000, v{R}")
        A(f"buffer_load_dword v{R+1}, v{R+2}, {R4(SRD_T2)}, 0 offen sc1")
        A("s_mov_b64 exec, s[74:75]")

    def l2_prefetch(self, role, base, R):
        A = self.A
        if 'pf' not in EXP: return
        A(f"s_add_u32 s64, s{S_W}, {base}")
        A(f"s_and_b32 s65, s{S_XCD}, 3", "s_lshl_b32 s65, s65, 9", f"s_lshl_b32 s66, s{S_SLOT}, 4", "s_add_u32 s65, s65, s66")
        A("s_lshl_b32 s65, s65, 10", "s_lshl_b32 s66, s64, 7", "s_add_u32 s65, s65, s66")
        A(f"v_and_b32 v{R+2}, 15, v0", f"v_lshlrev_b32 v{R}, 10, v{R+2}")
        A(f"buffer_load_dword v{R+1}, v{R}, {R4(SRD_T0)}, s65 offen sc1")
        if role == "A":
            A(f"v_bfe_u32 v{R+3}, v0, 4, 1", f"v_mul_u32_u24 v{R+3}, 3072, v{R+3}", f"v_lshlrev_b32 v{R+2}, 7, v{R+2}", f"v_add_u32 v{R+2}, v{R+2}, v{R+3}")
            A("s_lshl_b32 s70, s64, 6", f"s_lshl_b32 s66, s{S_SLOT}, 1", "s_add_u32 s70, s70, s66", "s_mul_i32 s70, s70, 3072", "s_add_u32 s70, s70, 1024")
            A(f"buffer_load_dword v{R+1}, v{R+2}, {R4(SRD_T1)}, s70 offen sc1")
        else:
            A(f"s_lshl_b32 s70, s{S_SLOT}, 14", "s_lshl_b32 s66, s64, 7", "s_add_u32 s70, s70, s66")
            A(f"buffer_load_dword v{R+1}, v{R}, {R4(SRD_T1)}, s70 offen sc1")
            A(f"buffer_load_dword v{R+1}, v{R}, {R4(SRD_T2)}, s70 offen sc1")

    def pf_srds(self, role):
        A = self.A
        if 'pf' not in EXP: return
        if role == "A":
            A.srd(SRD_T0, 4, 2097152); A.srd(SRD_T1, 6, 1572864)
        else:
            A.srd(SRD_T0, 10, 2097152); A.srd(SRD_T1, 16, 524288); A.srd(SRD_T2, 18, 524288)

    def page_touch(self, role, R):
        A = self.A
        if 'pt' not in EXP: return
        A(f"v_mov_b32 v{R}, 0")
        if role == "A":
            A(f"s_lshl_b32 s64, s{S_RT}, 2", f"s_add_u32 s64, s64, s{S_W}", "s_lshl_b32 s64, s64, 5", f"s_lshl_b32 s65, s{S_G}, 2", "s_add_u32 s64, s64, s65", "s_lshl_b32 s64, s64, 10")
        else:
            A(f"s_lshl_b32 s64, s{S_RT}, 2", f"s_add_u32 s64, s64, s{S_W}", "s_lshl_b32 s64, s64, 6", f"s_lshl_b32 s65, s{S_G}, 3", "s_add_u32 s64, s64, s65", "s_lshl_b32 s64, s64, 10", f"s_add_u32 s64, s64, {WS['H']}")
        A(f"buffer_load_dword v{R+1}, v{R}, {WSr}, s64 offen sc1")
        A.srd(SRD_T0, 28, 8388608)
        A(f"s_lshl_b32 s64, s{S_RT}, 7", f"s_lshl_b32 s65, s{S_W}, 5", "s_add_u32 s64, s64, s65", "s_lshl_b32 s64, s64, 12", f"s_lshl_b32 s65, s{S_G}, 8", "s_add_u32 s64, s64, s65")
        if role == "B": A("s_add_u32 s64, s64, 2048")
        A(f"buffer_load_dword v{R+1}, v{R}, {R4(SRD_T0)}, s64 offen sc1")
        if role == "B":
            A.srd(SRD_T1, 26, 1024)
            A(f"buffer_load_dword v{R+1}, v{R}, {R4(SRD_T1)}, 0 offen sc1")

    def loader(self, role):
        A, L = self.A, self.L
        last = 9 if role == "qkv" else 7
        vm = Vm(A)
        vm.q = [('st', 0)] * 8 + ([] if 's0' in EXP else [('st', 1)] * 8)
        X, W = R4(SRD_X), R4(SRD_W)
        def issue(st):
            slot = (st % NSLOT) * SLOT
            tag = ("st", st)
            if st >= 8:
                a = st - 8
                A(f"s_add_u32 s64, s{S_ROT}, s{S_W}", f"s_add_u32 s64, s64, {4*a}", "s_and_b32 s64, s64, 7")
                A(f"s_mul_i32 s64, s64, {64*3072}", f"s_lshl_b32 s65, s{S_G}, 7", "s_add_u32 s64, s64, s65")
                A("s_lshl_b32 s66, s70, 1")
                for i in range(8):
                    A(f"s_add_u32 m0, s66, {slot + i*1024}", f"s_add_u32 s67, s64, {i*8*3072}")
                    vm.issue(f"buffer_load_dwordx4 v4, {W}, s67 offen lds", tag)
                return
            A(f"s_add_u32 s64, s{S_ROT}, {st}", "s_and_b32 s64, s64, 7")
            A("s_lshl_b32 s65, s64, 7", "s_add_u32 s65, s65, s68")
            if role == "qkv":
                A(f"s_mul_i32 s66, s64, {64*3072}", "s_add_u32 s66, s66, s69")
                for ii in range(4):
                    A(f"s_add_u32 m0, s70, {slot + ii*1024}", f"s_add_u32 s67, s65, {ii*8192}")
                    vm.issue(f"buffer_load_dwordx4 v{2 + (ii&1)}, {X}, s67 offen lds", tag)
                A("s_lshr_b32 s71, s70, 1")
                for part in range(2):
                    for ii in range(2):
                        A(f"s_add_u32 m0, s71, {slot + 16384 + part*8192 + ii*1024}", f"s_add_u32 s67, s66, {ii*8*3072 + (1+part)*1024}")
                        vm.issue(f"buffer_load_dwordx4 v4, {W}, s67 offen lds", tag)
            else:
                A("s_lshl_b32 s66, s64, 7", "s_add_u32 s66, s66, s69")
                for ii in range(4):
                    A(f"s_add_u32 m0, s70, {slot + ii*1024}", f"s_add_u32 s67, s65, {(64*(ii&1) + 2*(ii>>1))*1024}")
                    vm.issue(f"buffer_load_dwordx4 v{4 if (ii&1)==0 else 11}, {X}, s67 offen lds", tag)
                for ii in range(4):
                    A(f"s_add_u32 m0, s70, {slot + 16384 + ii*1024}", f"s_add_u32 s67, s66, {ii*8192}")
                    vm.issue(f"buffer_load_dwordx4 v{2 + (ii&1)}, {W}, s67 offen lds", tag)
        def cregion(R):
            part = R >> 1
            A.srd(SRD_T0, 20 + 2 * part, 524288)
            A(f"s_lshl_b32 s64, s{S_G}, 6", f"s_lshl_b32 s65, s{S_W}, 3", "s_add_u32 s64, s64, s65", f"s_add_u32 s64, s64, {32*(R&1)}", "s_lshl_b32 s64, s64, 10")
            A(f"s_and_b32 s66, s{S_W}, 1", "s_lshl_b32 s66, s66, 7", "v_lshlrev_b32 v13, 4, v0", "v_xor_b32 v13, s66, v13")
            for i in range(8):
                A(f"v_xor_b32 v{14+(i&1)}, {i*16}, v13")
                A(f"s_add_u32 s67, s64, {i*1024}")
                vm.issue(f"buffer_load_dwordx4 {v(creg(R, i),4)}, v{14+(i&1)}, {R4(SRD_T0)}, s67 offen", ("c", R))
        self.cregion = cregion
        self.vm = vm
        A("s_waitcnt lgkmcnt(0)")
        A.srd(SRD_WS, 32, 268435456)
        if role == "qkv":
            ln = L("nononce")
            A("s_cmp_lg_u32 s2, 0", f"s_cbranch_scc1 {ln}", f"s_cmp_lg_u32 s{S_WAVE}, 4", f"s_cbranch_scc1 {ln}")
            A("s_memrealtime s[76:77]", "s_waitcnt lgkmcnt(0)", "s_or_b32 s76, s76, 1")
            A("v_mov_b32 v14, s76", "v_mov_b32 v15, s77", "v_mov_b32 v13, 0")
            A.srd(SRD_T0, 30, 256)
            A("s_mov_b64 s[74:75], exec", "s_mov_b64 exec, 1")
            A(f"buffer_store_dwordx2 v[14:15], v13, {R4(SRD_T0)}, 0 offen offset:128 sc1")
            A("s_mov_b64 exec, s[74:75]")
            A("s_waitcnt vmcnt(0)")
            A.label(ln)
        self.stamp(1)
        sched = {0: [2], 1: [3], 2: [4], 3: [5], 4: [6], 5: [7], 6: [8], 7: [9]} if 'l3' not in EXP else {0: [2], 1: [3], 2: [4, 5], 3: [6], 4: [7], 5: [8], 6: [9], 7: []}
        if 's0' in EXP: sched[0] = [1, 2]
        for st in range(8):
            vm.need(("st", st))
            if st == 7:
                self.get_nonce(role)
            A("s_barrier")
            if st == 0: self.stamp(2)
            for x in sched[st]:
                if x <= last: issue(x)
            if role == "bu" and 'cearly' in EXP:
                if st == 6: cregion(0)
                if st == 7:
                    for R_ in (1, 2, 3): cregion(R_)
            elif role == "bu" and 'call7' in EXP:
                if st == 7:
                    for R_ in range(4): cregion(R_)
            elif role == "bu" and st == 7:
                for R_ in range(2): cregion(R_)
            if st == 4:
                A(f"s_load_dwordx2 s[{NON}:{NON+1}], s[30:31], 128")
        if role == "qkv": self.qkv_loader_tail()
        else: self.bu_loader_tail()

    def get_nonce(self, role):
        A, L = self.A, self.L
        ok, lp = L(f"nok_{role}"), L(f"nlp_{role}")
        A("s_waitcnt lgkmcnt(0)")
        A(f"s_cmp_lg_u32 s{NON}, 0", f"s_cbranch_scc1 {ok}")
        A.srd(SRD_T0, 30, 256)
        A(f"s_mov_b32 s72, {POLL_LIMIT}", "v_mov_b32 v13, 0")
        A.label(lp)
        A(f"buffer_load_dwordx2 v[14:15], v13, {R4(SRD_T0)}, 0 offen offset:128 sc1", "s_waitcnt vmcnt(0)")
        A(f"v_readfirstlane_b32 s{NON}, v14", f"v_readfirstlane_b32 s{NON+1}, v15", "s_nop 3")
        A("s_sub_u32 s72, s72, 1", f"s_cbranch_scc1 {ok}")
        A(f"s_cmp_lg_u32 s{NON}, 0", f"s_cbranch_scc1 {ok}", "s_sleep 2", f"s_branch {lp}")
        A.label(ok)
        if role == "bu":
            A(f"v_mov_b32 v14, s{NON}", f"v_mov_b32 v15, s{NON+1}", f"v_mov_b32 v13, {NONCE}")
            A("ds_write_b64 v13, v[14:15]", "s_waitcnt lgkmcnt(0)")

    def qkv_loader_tail(self):
        A, L, vm = self.A, self.L, self.vm
        A(f"v_mov_b32 v14, s{NON}", f"v_mov_b32 v15, s{NON+1}", f"v_mov_b32 v13, {NONCEQ}")
        A("ds_write_b64 v13, v[14:15]")
        vm.need(("st", 9))
        A("s_waitcnt lgkmcnt(0)")
        self.stamp(3)
        A("s_barrier")
        A("s_setprio 3")
        self.stamp(4)
        A("v_mul_u32_u24 v7, 24, v0", f"s_mul_i32 s64, s{S_W}, {PART_STRIDE}", "v_add_u32 v7, s64, v7")
        for w in range(4):
            for j in range(3):
                A(f"ds_read_b64 v[{16+6*w+2*j}:{17+6*w+2*j}], v7 offset:{PARTQ + w*4*PART_STRIDE + 8*j}")
        A("v_lshlrev_b32 v3, 4, v0")
        A(f"s_lshl_b32 s64, s{S_G}, 4", f"s_add_u32 s64, s64, s{S_RT}", "s_lshl_b32 s64, s64, 2", f"s_add_u32 s64, s64, s{S_W}", "s_lshl_b32 s64, s64, 10", f"s_add_u32 s64, s64, {WS['KVP']}")
        A(f"v_mov_b32 v51, s{NON}")
        A("s_waitcnt lgkmcnt(6)")
        for j in range(0, 6, 2):
            A(f"v_pk_add_f32 v[{16+j}:{17+j}], v[{16+j}:{17+j}], v[{22+j}:{23+j}]")
        A("s_waitcnt lgkmcnt(0)")
        for j in range(0, 6, 2):
            A(f"v_pk_add_f32 v[{28+j}:{29+j}], v[{28+j}:{29+j}], v[{34+j}:{35+j}]")
        for j in range(0, 6, 2):
            A(f"v_pk_add_f32 v[{16+j}:{17+j}], v[{16+j}:{17+j}], v[{28+j}:{29+j}]")
        for j in range(3):
            A(f"v_cvt_pk_bf16_f32 v{48+j}, v{16+2*j}, v{17+2*j}")
        A("s_mov_b64 s[66:67], exec", "s_mov_b32 exec_lo, -1", "s_mov_b32 exec_hi, 0x3fff")
        A(f"buffer_store_dwordx4 v[48:51], v3, {WSr}, s64 offen sc1")
        self.stamp(5)
        A("s_mov_b64 exec, s[66:67]")
        A.srd(SRD_T0, 8, 524288)
        A(f"s_lshl_b32 s64, s{S_W}, 17", f"s_lshl_b32 s65, s{S_G}, 7", "s_add_u32 s64, s64, s65")
        A(f"s_lshl_b32 s65, s{S_W}, 14")
        for i in range(16):
            A(f"s_add_u32 m0, s65, {WOIMG + i*1024}", f"s_add_u32 s69, s64, {i*8192}")
            A(f"buffer_load_dwordx4 v12, {R4(SRD_T0)}, s69 offen lds")
        if 'kvd' in EXP: A("s_waitcnt vmcnt(0)")
        A("s_mov_b32 exec_lo, -1", "s_mov_b32 exec_hi, 0x3fff")
        A(f"s_lshl_b32 s68, s{S_G}, 6", f"s_add_u32 s68, s68, s{S_W}", "s_lshl_b32 s68, s68, 10", f"s_add_u32 s68, s68, {WS['KVP']}")
        lp, ok, ll, llo = L("kv_poll"), L("kv_ok"), L("kv_light"), L("kv_lightok")
        A(f"s_mov_b32 s72, {POLL_LIMIT}")
        A("v_lshlrev_b32 v5, 12, v0", f"v_add_u32 v5, {45*16+12}, v5")
        A("s_mov_b32 exec_lo, 0xffff", "s_mov_b32 exec_hi, 0")
        A.label(ll)
        A(f"buffer_load_dword v6, v5, {WSr}, s68 offen sc1", "s_waitcnt vmcnt(0)")
        A(f"v_cmp_ne_u32 vcc, s{NON}, v6")
        A("s_sub_u32 s72, s72, 1", f"s_cbranch_scc1 {llo}")
        A(f"s_cbranch_vccnz {ll}")
        A.label(llo)
        A("s_mov_b32 exec_lo, -1", "s_mov_b32 exec_hi, 0x3fff")
        def bulk(fl):
            A("s_mov_b32 s64, s68")
            for r in range(16):
                A(f"buffer_load_dwordx4 v[{64+4*r}:{67+4*r}], v3, {WSr}, s64 offen {fl}")
                if r < 15: A("s_add_u32 s64, s64, 4096")
            A("s_waitcnt vmcnt(0)")
            A(f"v_xor_b32 v52, s{NON}, v67")
            for r in range(1, 16):
                A(f"v_xor_b32 v53, s{NON}, v{67+4*r}", "v_or_b32 v52, v52, v53")
            A("v_cmp_ne_u32 vcc, 0, v52")
        bulk("")
        A(f"s_cbranch_vccz {ok}")
        A.label(lp)
        bulk("sc1")
        A("s_sub_u32 s72, s72, 1", f"s_cbranch_scc1 {ok}")
        A(f"s_cbranch_vccnz {lp}")
        A.label(ok)
        self.stamp(6)
        A("s_mov_b64 exec, s[66:67]")
        for j in range(6): A(f"v_mov_b32 v{16+j}, 0")
        A("v_mov_b32 v24, 0x00003f80", "v_mov_b32 v25, 0x3f800000")
        for r in range(16):
            for j in range(3):
                A(f"v_dot2c_f32_bf16 v{16+2*j}, v{64+4*r+j}, v24")
                A(f"v_dot2c_f32_bf16 v{17+2*j}, v{64+4*r+j}, v25")
        A("s_nop 2")
        for j in range(3):
            A(f"v_cvt_pk_bf16_f32 v{48+j}, v{16+2*j}, v{17+2*j}")
        A("v_mul_u32_u24 v4, 12, v0", f"s_lshl_b32 s66, s{S_W}, 10", f"s_add_u32 s66, s66, {FIN}", "v_add_u32 v4, s66, v4")
        A("s_mov_b64 s[66:67], exec", "s_mov_b32 exec_lo, -1", "s_mov_b32 exec_hi, 0x3fff")
        for j in range(3): A(f"ds_write_b32 v4, v{48+j} offset:{4*j}")
        A("s_mov_b64 exec, s[66:67]")
        A("s_waitcnt lgkmcnt(0)")
        self.stamp(7)
        A("s_barrier")
        A("s_setprio 0")
        for i in range(32): A(f"v_mov_b32 v{P2ACC+i}, 0")
        A("s_waitcnt vmcnt(0)")
        self.stamp(8)
        A("s_barrier")

    def bu_loader_tail(self):
        A, L, vm = self.A, self.L, self.vm
        self.stamp(3)
        A("s_barrier")
        if 'cearly' not in EXP and 'call7' not in EXP:
            self.cregion(2); self.cregion(3)
        self.skip_issue(vm)
        A("v_lshlrev_b32 v13, 4, v0", f"s_lshl_b32 s65, s{S_W}, 13", "v_add_u32 v13, s65, v13")
        for R_ in range(4):
            vm.need(("c", R_))
            if R_ == 2: A("v_add_u32 v13, 0x10000, v13")
            for i in range(8):
                A(f"ds_write_b128 v13, {v(creg(R_, i),4)} offset:{(R_&1)*SLOT + i*1024}")
        A("s_waitcnt lgkmcnt(0)")
        vm.drain()
        self.skip_finish()
        for r in range(16):
            A(f"v_mov_b32 v{P2ACC+r}, 0", f"v_mov_b32 v{P2ACC+16+r}, v{XS+r}")
        self.stamp(4)
        A("s_barrier")

    def flag_addr(self, role, dst):
        A = self.A
        A(f"s_add_u32 s{dst}, s{S_RT}, {0 if role == 'A' else 16}", f"s_lshl_b32 s{dst}, s{dst}, 10", f"s_add_u32 s{dst}, s{dst}, {WS['FLG']}")

    def wave_flag(self, role, vn):
        A = self.A
        self.flag_addr(role, 64)
        A(f"s_lshl_b32 s65, s{S_G}, 7", "s_add_u32 s64, s64, s65", f"s_lshl_b32 s65, s{S_W}, 3", "s_add_u32 s64, s64, s65", "v_mov_b32 v12, 0")
        A("s_mov_b64 s[74:75], exec", "s_mov_b64 exec, 1")
        lf, lj = self.L(f"wf_fast_{role}"), self.L(f"wf_j_{role}")
        A("s_cmp_eq_u32 s73, 1", f"s_cbranch_scc1 {lf}")
        A(f"buffer_store_dwordx2 v[{vn}:{vn+1}], v12, {WSr}, s64 offen sc1")
        A(f"s_branch {lj}")
        A.label(lf)
        A(f"buffer_store_dwordx2 v[{vn}:{vn+1}], v12, {WSr}, s64 offen")
        A.label(lj)
        A("s_mov_b64 exec, s[74:75]")

    def p2_wait(self, role):
        A, L = self.A, self.L
        self.flag_addr(role, 64)
        A(f"s_lshr_b32 s65, s{S_WAVE}, 2", "s_lshl_b32 s65, s65, 9", "s_add_u32 s64, s64, s65")
        lp, done = L(f"fpoll_{role}"), L(f"fpolld_{role}")
        A(f"s_mov_b32 s72, {POLL_LIMIT}")
        if role == "B":
            A("v_lshrrev_b32 v10, 2, v0", "v_lshlrev_b32 v10, 7, v10", "v_and_b32 v11, 3, v0", "v_lshlrev_b32 v11, 3, v11", "v_add_u32 v10, v10, v11")
            A("s_mov_b64 s[74:75], exec", "s_mov_b64 exec, 0xffff")
        else:
            A(f"s_lshl_b32 s65, s{S_W}, 3", "v_lshlrev_b32 v10, 7, v0", "v_add_u32 v10, s65, v10")
            A("s_mov_b64 s[74:75], exec", "s_mov_b64 exec, 0xf")
        A.label(lp)
        A(f"buffer_load_dwordx2 v[8:9], v10, {WSr}, s64 offen sc1")
        A("s_waitcnt vmcnt(0)")
        A(f"v_xor_b32 v8, s{NON}, v8", f"v_xor_b32 v9, s{NON+1}, v9", "v_or_b32 v8, v8, v9")
        A("v_cmp_ne_u32 vcc, 0, v8")
        A("s_sub_u32 s72, s72, 1", f"s_cbranch_scc1 {done}")
        A(f"s_cbranch_vccz {done}")
        for e in EXP:
            if e.startswith('fsl'): A(f"s_sleep {int(e[3:])}")
        A(f"s_branch {lp}")
        A.label(done)
        A("s_mov_b64 exec, s[74:75]")

    def phi_pack(self, acc, n, dst, T):
        A = self.A
        for base in range(0, n, 8):
            for i in range(0, 8, 2):
                A(f"v_pk_mul_f32 v[{T+i}:{T+i+1}], v[{acc+base+i}:{acc+base+i+1}], s[76:77]")
            for i in range(8):
                A(f"v_exp_f32_e64 v{T+i}, v{T+i} clamp")
            for i in range(8):
                A(f"v_max_f32 v{acc+base+i}, 0, v{acc+base+i}")
            for i in range(0, 8, 2):
                A(f"v_pk_add_f32 v[{acc+base+i}:{acc+base+i+1}], v[{acc+base+i}:{acc+base+i+1}], v[{T+i}:{T+i+1}]")
            for i in range(0, 8, 2):
                A(f"v_pk_add_f32 v[{acc+base+i}:{acc+base+i+1}], v[{acc+base+i}:{acc+base+i+1}], s[64:65]")
            for i in range(0, 8, 2):
                A(f"v_cvt_pk_bf16_f32 v{dst+(base+i)//2}, v{acc+base+i}, v{acc+base+i+1}")

    def lam_code(self, P, T):
        A = self.A
        A(f"v_lshlrev_b32 v{P}, 16, v{P}", f"v_lshlrev_b32 v{P+1}, 16, v{P+1}", f"v_lshlrev_b32 v{P+2}, 16, v{P+2}")
        A(f"v_mul_f32 v{T}, {LOG2E:#x}, v{P+2}", f"v_exp_f32 v{T}, v{T}", "s_nop 0")
        A(f"v_cvt_pk_bf16_f32 v{T}, v{T}, v{T}", f"v_lshlrev_b32 v{T}, 16, v{T}")
        A(f"v_mul_f32 v{T+1}, v{T}, v{P}", f"v_mul_f32 v{T+2}, v{T}, v{P+1}")
        A(f"v_mul_f32 v{T+1}, {LOG2E:#x}, v{T+1}", f"v_mul_f32 v{T+2}, {INV2PI:#x}, v{T+2}")
        A(f"v_exp_f32 v{T+1}, v{T+1}", f"v_fract_f32 v{T+2}, v{T+2}", "s_nop 0")
        A(f"v_cos_f32 v{P+3}, v{T+2}", f"v_sin_f32 v{P+4}, v{T+2}", "s_nop 0")
        A(f"v_mul_f32 v{P+3}, v{P+3}, v{T+1}", f"v_mul_f32 v{P+4}, v{P+4}, v{T+1}")

    def csq(self, d, s_, t):
        A = self.A
        A(f"v_mul_f32 v{t}, v{s_+1}, v{s_+1}", f"v_mul_f32 v{d+1}, v{s_}, v{s_+1}")
        A(f"v_fma_f32 v{d}, v{s_}, v{s_}, -v{t}", f"v_add_f32 v{d+1}, v{d+1}, v{d+1}")

    def cfma(self, dr, di, ar, ai, br, bi, cr, ci):
        A = self.A
        A(f"v_fma_f32 v{dr}, v{ar}, v{br}, v{cr}", f"v_fma_f32 v{di}, v{ar}, v{bi}, v{ci}")
        A(f"v_fma_f32 v{dr}, -v{ai}, v{bi}, v{dr}", f"v_fma_f32 v{di}, v{ai}, v{br}, v{di}")

    def qkv_compute(self):
        A, L = self.A, self.L
        ACC, WF, XF, TMP = 16, 80, 112, 240
        VA, VW = 4, 8
        lg = Lgkm(A)
        A("v_and_b32 v10, 31, v0", "v_lshrrev_b32 v11, 5, v0")
        A(f"s_lshl_b32 s64, s{S_W}, 5", "v_add_u32 v12, s64, v10", "v_lshlrev_b32 v12, 7, v12")
        A("v_lshrrev_b32 v13, 1, v10", "v_and_b32 v13, 7, v13", "v_xor_b32 v13, v13, v11", "v_lshlrev_b32 v13, 4, v13")
        A(f"v_add_u32 v{VA}, v12, v13")
        for ks in range(1, 4): A(f"v_xor_b32 v{VA+ks}, {32*ks}, v{VA}")
        A("v_lshrrev_b32 v12, 5, v0", "v_lshlrev_b32 v12, 3, v12", "v_bfe_u32 v13, v0, 2, 2", "v_add_u32 v12, v12, v13", "v_lshlrev_b32 v12, 7, v12")
        A("v_bfe_u32 v13, v0, 3, 1", "v_lshlrev_b32 v13, 6, v13", "v_add_u32 v12, v12, v13")
        A("v_bfe_u32 v13, v0, 4, 1", "v_lshlrev_b32 v13, 5, v13", "v_add_u32 v12, v12, v13")
        A("v_and_b32 v13, 3, v0", "v_lshlrev_b32 v13, 3, v13", f"v_add_u32 v{VW}, v12, v13")
        A(f"v_xor_b32 v{VW+1}, 64, v{VW}")
        A(f"v_add_u32 v2, {3*SLOT}, v{VW}", f"v_add_u32 v3, {3*SLOT}, v{VW+1}")
        A(f"s_mov_b32 s76, {LOG2E:#x}", f"s_mov_b32 s77, {LOG2E:#x}")
        A("v_cmp_gt_u32 s[74:75], 16, v10")
        for i in range(64): A(f"v_mov_b32 v{ACC+i}, 0")
        A("v_and_b32 v12, 15, v10", "v_lshlrev_b32 v13, 4, v11", "v_add_u32 v12, v12, v13", "v_lshlrev_b32 v12, 5, v12")
        A("v_lshrrev_b32 v13, 4, v10", f"v_mul_u32_u24 v13, {PART_STRIDE}, v13", "v_add_u32 v12, v12, v13")
        A(f"s_mul_i32 s66, s{S_W}, {4*PART_STRIDE}", f"s_add_u32 s66, s66, {PARTQ}", "v_add_u32 v12, s66, v12")
        A("v_lshlrev_b32 v14, 5, v11", "v_add_u32 v14, v14, v13", "v_add_u32 v14, s66, v14", "v_add_u32 v14, 1024, v14")
        A("s_waitcnt lgkmcnt(0)")
        self.pf_srds("A")
        self.l2_prefetch("A", 0, 250)
        self.l2_prefetch("A", 4, 250) if 'pfall' in EXP else None
        A.srd(SRD_WS, 32, 268435456)
        self.mode_announce("A")
        self.flag_touch("A", 245)
        self.page_touch("A", 252)
        self.weight_touch(242)
        A("v_cmp_gt_u32 s[74:75], 16, v10")
        def reads(s_, ks):
            buf = (s_ * 4 + ks) & 1
            out = [(f"ds_read_b128 {v(XF + (s_*4+ks)*4, 4)}, v{VA+ks}", ("x", s_, ks))]
            for nt in range(4):
                part, sub = nt >> 1, nt & 1
                for a_ in range(2):
                    off = 16384 + part * 8192 + (16 * ks + 4 * a_) * 128
                    out.append((f"ds_read_b64_tr_b16 {v(WF + buf*16 + nt*4 + 2*a_, 2)}, v{VW+sub} offset:{off}", ("w", s_, ks, nt)))
            return out
        self.pf_srds("A")
        if 'prio' in EXP: A("s_setprio 2")
        A("s_barrier")
        self.stamp(1)
        for ins, tag in reads(0, 0): lg.issue(ins, tag)
        if 'pfall' not in EXP: self.l2_prefetch("A", 4, 250)
        for s_ in range(8):
            for ks in range(4):
                nxt = (s_, ks + 1) if ks < 3 else ((s_ + 1, 0) if s_ < 7 else None)
                if ks == 3 and s_ < 7:
                    A("s_barrier")
                    self.sstamp(3 + s_)
                    d = SLOT if (s_ + 1) % NSLOT != 0 else -(NSLOT - 1) * SLOT
                    for r in list(range(VA, VA + 4)) + [VW, VW + 1]:
                        A(f"v_add_u32 v{r}, {d & 0xffffffff:#x}, v{r}")
                nr = reads(*nxt) if nxt else []
                buf = (s_ * 4 + ks) & 1
                xf = v(XF + (s_ * 4 + ks) * 4, 4)
                for nt in range(4):
                    if nt == 0: lg.need(("x", s_, ks), ("w", s_, ks, 0))
                    else: lg.need(("w", s_, ks, nt))
                    A(f"v_mfma_f32_32x32x16_bf16 {v(ACC+16*nt,16)}, {xf}, {v(WF+buf*16+nt*4,4)}, {v(ACC+16*nt,16)}")
                    if nr:
                        for ins, tag in (nr[0:3] if nt == 0 else nr[1 + 2*nt: 3 + 2*nt]):
                            lg.issue(ins, tag)
        self.stamp(2)
        A("s_waitcnt vmcnt(0)")
        A(f"s_mov_b32 s64, {EPS:#x}", f"s_mov_b32 s65, {EPS:#x}")
        for i in range(4): A(f"v_mov_b32 v{TMP+8+i}, 0x3f803f80")
        A("s_nop 3")
        ONES = TMP + 8
        def kvm(hp):
            kv = ACC + 16 * hp; z = ACC + 32 + 16 * hp
            A(f"v_mfma_f32_32x32x16_bf16 {v(kv,16)}, {v(WF+8*hp,4)}, {v(WF+16+8*hp,4)}, 0")
            A(f"v_mfma_f32_32x32x16_bf16 {v(z,16)}, {v(WF+8*hp,4)}, {v(ONES,4)}, 0")
            A(f"v_mfma_f32_32x32x16_bf16 {v(kv,16)}, {v(WF+8*hp+4,4)}, {v(WF+16+8*hp+4,4)}, {v(kv,16)}")
            A(f"v_mfma_f32_32x32x16_bf16 {v(z,16)}, {v(WF+8*hp+4,4)}, {v(ONES,4)}, {v(z,16)}")
        def vpack(hp):
            for i in range(0, 16, 2):
                A(f"v_cvt_pk_bf16_f32 v{WF+16+8*hp+i//2}, v{ACC+32+16*hp+i}, v{ACC+33+16*hp+i}")
        def pwrite(hp):
            kv = ACC + 16 * hp; z = ACC + 32 + 16 * hp
            T0 = WF + 16 * hp if False else XF_FREE
            for j in range(8):
                A(f"v_cndmask_b32 v{T0+j}, v{kv+8+j}, v{kv+j}, s[74:75]")
            for j in range(8):
                A(f"v_cndmask_b32 v{T0+8+j}, v{z+8+j}, v{z+j}, s[74:75]")
            A(f"ds_write_b128 v12, {v(T0,4)} offset:{hp*2*PART_STRIDE}")
            A(f"ds_write_b128 v12, {v(T0+4,4)} offset:{hp*2*PART_STRIDE+16}")
            A("s_mov_b64 s[66:67], exec", "s_mov_b32 exec_lo, 0x00010001", "s_mov_b32 exec_hi, 0x00010001")
            A(f"ds_write_b128 v14, {v(T0+8,4)} offset:{hp*2*PART_STRIDE}")
            A(f"ds_write_b128 v14, {v(T0+12,4)} offset:{hp*2*PART_STRIDE+16}")
            A("s_mov_b64 exec, s[66:67]")
        self.phi_pack(ACC, 16, WF, TMP)
        vpack(0)
        A("s_nop 1")
        kvm(0)
        self.phi_pack(ACC + 16, 16, WF + 8, TMP)
        vpack(1)
        A("s_nop 1")
        kvm(1)
        XF_FREE = WF
        A("s_nop 1")
        pwrite(0)
        A("s_waitcnt lgkmcnt(0)")
        A("s_nop 4")
        pwrite(1)
        A("s_waitcnt lgkmcnt(0)")
        self.stamp(3)
        A("s_barrier")
        self.mode_load("A", 250)
        for i in range(32): A(f"v_mov_b32 v{ACC+i}, 0")
        lg = Lgkm(A)
        NB = 4
        def qreads(step):
            idx, ks = step >> 2, step & 3
            a9, u = idx >> 2, idx & 3
            b = WF + (step % NB) * 8
            out = []
            for sub in range(2):
                for a_ in range(2):
                    off = a9 * SLOT + u * 8192 + (16 * ks + 4 * a_) * 128
                    out.append((f"ds_read_b64_tr_b16 {v(b + sub*4 + 2*a_, 2)}, v{2+sub} offset:{off}", ("q", step, sub)))
            return out
        for st in range(3):
            for ins, tag in qreads(st): lg.issue(ins, tag)
        for step in range(32):
            b = WF + (step % NB) * 8
            xf = v(XF + step * 4, 4)
            nr = qreads(step + 3) if step + 3 < 32 else []
            for sub in range(2):
                lg.need(("q", step, sub))
                A(f"v_mfma_f32_32x32x16_bf16 {v(ACC+16*sub,16)}, {v(b+4*sub,4)}, {xf}, {v(ACC+16*sub,16)}")
                for ins, tag in nr[2*sub:2*sub+2]: lg.issue(ins, tag)
        self.stamp(4)
        A(f"s_mov_b32 s64, {EPS:#x}", f"s_mov_b32 s65, {EPS:#x}")
        for i in range(32): A(f"v_mov_b32 v{P2ACC+i}, 0")
        self.phi_pack(ACC, 16, WF, TMP)
        self.phi_pack(ACC + 16, 16, WF + 8, TMP)
        A("v_lshlrev_b32 v13, 4, v11", "v_add_u32 v13, v13, v10", "v_lshlrev_b32 v13, 4, v13")
        A("v_lshlrev_b32 v15, 4, v11", "v_add_u32 v15, 512, v15", "v_cndmask_b32 v13, v15, v13, s[74:75]", f"v_add_u32 v13, {FIN}, v13")
        A("v_lshlrev_b32 v12, 4, v0")
        A(f"s_lshl_b32 s64, s{S_RT}, 2", f"s_add_u32 s64, s64, s{S_W}", "s_lshl_b32 s64, s64, 5", f"s_lshl_b32 s65, s{S_G}, 2", "s_add_u32 s64, s64, s65", "s_lshl_b32 s64, s64, 10")
        A("s_waitcnt vmcnt(0)")
        self.mode_resolve("A", 250, "qc")
        self.stamp(5)
        A("s_barrier")
        self.stamp(6)
        A(f"v_mov_b32 v15, {NONCEQ}", "ds_read_b64 v[250:251], v15")
        for hl in range(4):
            A(f"ds_read_b128 {v(WF+16+4*hl,4)}, v13 offset:{hl*1024}")
        for hl in range(4):
            hp, a_ = hl >> 1, hl & 1
            A(f"s_waitcnt lgkmcnt({3-hl})")
            A(f"v_mfma_f32_32x32x16_bf16 {v(ACC+16*hl,16)}, {v(WF+16+4*hl,4)}, {v(WF+8*hp+4*a_,4)}, 0")
        A("s_nop 7")
        for hl in range(4):
            d = ACC + 16 * hl
            if hl == 3: A("s_nop 3")
            A(f"v_add_f32 v{d+8}, {EPS:#x}, v{d+8}")
        for hl in range(4):
            A(f"v_rcp_f32 v{ACC+16*hl+8}, v{ACC+16*hl+8}")
        A("s_nop 0")
        for hl in range(4):
            d = ACC + 16 * hl
            for j in range(0, 8, 2):
                A(f"v_pk_mul_f32 v[{d+j}:{d+j+1}], v[{d+j}:{d+j+1}], v[{d+8}:{d+9}] op_sel_hi:[1,0]")
            for j in range(4):
                A(f"v_cvt_pk_bf16_f32 v{d+12+j}, v{d+2*j}, v{d+2*j+1}")
        for hl in range(4):
            A(f"buffer_store_dwordx4 {v(ACC+16*hl+12,4)}, v12, {WSr}, s64 offen offset:{hl*1024} sc1")
        A(f"v_readfirstlane_b32 s{NON}, v250", f"v_readfirstlane_b32 s{NON+1}, v251")
        A("s_barrier")
        A("s_waitcnt vmcnt(0)")
        self.wave_flag("A", 250)
        self.stamp(7)

    def bu_compute(self):
        A, L = self.A, self.L
        RE, IM, AF, BF = 16, 48, 80, 144
        C = 160
        lg = Lgkm(A)
        A("v_and_b32 v10, 15, v0", "v_lshrrev_b32 v11, 4, v0")
        A(f"s_lshl_b32 s64, s{S_G}, 6", f"s_lshl_b32 s65, s{S_W}, 4", "s_add_u32 s64, s64, s65", "s_lshl_b32 s64, s64, 1")
        A("v_lshlrev_b32 v12, 1, v10")
        A("v_lshrrev_b32 v13, 1, v10", "v_xor_b32 v13, v13, v11", "v_lshlrev_b32 v13, 4, v13", "v_lshlrev_b32 v14, 7, v10", "v_add_u32 v4, v13, v14")
        A("v_xor_b32 v5, 64, v4")
        A(f"s_lshl_b32 s65, s{S_W}, 11", "s_add_u32 s65, s65, 16384")
        A("v_add_u32 v6, s65, v4", "v_add_u32 v7, s65, v5")
        for i in range(64): A(f"v_mov_b32 v{RE+i}, 0")
        A("s_waitcnt lgkmcnt(0)")
        A.srd(SRD_WS, 32, 268435456)
        A.srd(SRD_T0, 12, 1024); A.srd(SRD_T1, 14, 1024); A.srd(SRD_T2, 24, 1024)
        A(f"buffer_load_ushort v{C}, v12, {R4(SRD_T0)}, s64 offen")
        A(f"buffer_load_ushort v{C+1}, v12, {R4(SRD_T1)}, s64 offen")
        A(f"buffer_load_ushort v{C+2}, v12, {R4(SRD_T2)}, s64 offen")
        self.pf_srds("B")
        self.l2_prefetch("B", 0, 250)
        if 'pfall' in EXP: self.l2_prefetch("B", 4, 250)
        A(f"s_waitcnt vmcnt({0 if 'pf' not in EXP else 6 if 'pfall' in EXP else 3})")
        self.mode_announce("B")
        self.flag_touch("B", 243)
        self.page_touch("B", 252)
        self.weight_touch(240)
        self.lam_code(C, C + 8)
        A(f"v_mov_b32 v166, v{C+3}", f"v_mov_b32 v167, v{C+4}")
        A("v_add_f32 v163, -1.0, v163")
        A("v_mul_f32 v168, v160, v160", "v_fma_f32 v168, v161, v161, v168", "v_rcp_f32 v168, v168")
        A("v_mul_f32 v169, v163, v160", "v_fma_f32 v169, v167, v161, v169")
        A("v_mul_f32 v170, v167, v160", "v_fma_f32 v170, -v163, v161, v170")
        A("v_add_f32 v168, v168, v168")
        A("v_mul_f32 v164, v169, v168", "v_mul_f32 v165, v170, v168")
        self.csq(174, 166, 176); self.csq(178, 174, 176); self.csq(174, 178, 176); self.csq(168, 174, 176)
        self.csq(170, 168, 176); self.csq(174, 170, 176); self.csq(172, 174, 176)
        self.csq(214, 172, 176); self.csq(218, 214, 176)
        A("v_mul_f32 v216, v214, v172", "v_mul_f32 v217, v214, v173", "v_fma_f32 v216, -v215, v173, v216", "v_fma_f32 v217, v215, v172, v217")
        def reads(s_, k2):
            buf = (s_ * 2 + k2) & 1
            out = [(f"ds_read_b128 {v(BF + buf*8, 4)}, v{6+k2} offset:0", ("b", s_, k2, 0)),
                   (f"ds_read_b128 {v(BF + buf*8 + 4, 4)}, v{6+k2} offset:8192", ("b", s_, k2, 1))]
            for mt in range(8):
                out.append((f"ds_read_b128 {v(AF + buf*32 + mt*4, 4)}, v{4+k2} offset:{mt*2048}", ("a", s_, k2, mt)))
            return out
        self.pf_srds("B")
        if 'prio' in EXP: A("s_setprio 2")
        A("s_barrier")
        self.stamp(1)
        for ins, tag in reads(0, 0): lg.issue(ins, tag)
        if 'pfall' not in EXP: self.l2_prefetch("B", 4, 250)
        for s_ in range(8):
            for k2 in range(2):
                nxt = (s_, 1) if k2 == 0 else ((s_ + 1, 0) if s_ < 7 else None)
                if k2 == 1 and s_ < 7:
                    A("s_barrier")
                    self.sstamp(3 + s_)
                    d = SLOT if (s_ + 1) % NSLOT != 0 else -(NSLOT - 1) * SLOT
                    for r in range(4, 8):
                        A(f"v_add_u32 v{r}, {d & 0xffffffff:#x}, v{r}")
                nr = reads(*nxt) if nxt else []
                if nxt is None:
                    nr = []
                buf = (s_ * 2 + k2) & 1
                for mt in range(8):
                    if mt == 0: lg.need(("b", s_, k2, 0), ("b", s_, k2, 1), ("a", s_, k2, 0))
                    else: lg.need(("a", s_, k2, mt))
                    af = v(AF + buf*32 + mt*4, 4)
                    A(f"v_mfma_f32_16x16x32_bf16 {v(RE+4*mt,4)}, {af}, {v(BF+buf*8,4)}, {v(RE+4*mt,4)}")
                    A(f"v_mfma_f32_16x16x32_bf16 {v(IM+4*mt,4)}, {af}, {v(BF+buf*8+4,4)}, {v(IM+4*mt,4)}")
                    if nr:
                        for ins, tag in (nr[0:3] if mt == 0 else [nr[2 + mt]]):
                            lg.issue(ins, tag)
                    if nxt is None and mt == 0:
                        A(f"v_mov_b32 v12, {NONCE}")
                        lg.issue("ds_read_b64 v[230:231], v12", "nonce")
        self.stamp(2)
        def pr(base, sg): return base + 4 * (sg >> 1) + 2 * (sg & 1)
        E0, E1_ = 180, 184
        Lr = "v[166:167]"
        def step(dre, dim, sre, sim, ure, uim, M=Lr):
            A(f"v_pk_fma_f32 v[{dre}:{dre+1}], v[{sre}:{sre+1}], {M}, v[{ure}:{ure+1}] op_sel_hi:[1,0,1]")
            A(f"v_pk_fma_f32 v[{dim}:{dim+1}], v[{sim}:{sim+1}], {M}, v[{uim}:{uim+1}] op_sel_hi:[1,0,1]")
            A(f"v_pk_fma_f32 v[{dre}:{dre+1}], v[{sim}:{sim+1}], {M}, v[{dre}:{dre+1}] op_sel:[0,1,0] op_sel_hi:[1,1,1] neg_lo:[0,1,0] neg_hi:[0,1,0]")
            A(f"v_pk_fma_f32 v[{dim}:{dim+1}], v[{sre}:{sre+1}], {M}, v[{dim}:{dim+1}] op_sel:[0,1,0] op_sel_hi:[1,1,1]")
        A(f"s_lshl_b32 s64, s{S_G}, 4", f"s_add_u32 s64, s64, s{S_RT}", "s_lshl_b32 s64, s64, 6", f"s_lshl_b32 s65, s{S_W}, 4", "s_add_u32 s64, s64, s65", "s_lshl_b32 s64, s64, 4", f"s_add_u32 s64, s64, {WS['ES']}")
        A("v_lshlrev_b32 v13, 4, v10", "v_lshlrev_b32 v12, 2, v10")
        cur = (pr(RE, 0), pr(IM, 0))
        for sg in range(1, 16):
            d = E0 if sg & 1 else E1_
            step(d, d + 2, cur[0], cur[1], pr(RE, sg), pr(IM, sg))
            cur = (d, d + 2)
        er, ei = cur
        self.cfma(188, 189, 168, 169, er, ei, er + 1, ei + 1)
        for qq in range(4):
            A(f"v_add_u32 v{14 + (qq&1)}, {64*qq}, v12")
            A(f"ds_bpermute_b32 v{190+2*qq}, v{14 + (qq&1)}, v188", f"ds_bpermute_b32 v{191+2*qq}, v{14 + (qq&1)}, v189")
        A("s_waitcnt lgkmcnt(0)")
        self.cfma(198, 199, 170, 171, 190, 191, 192, 193)
        self.cfma(200, 201, 170, 171, 198, 199, 194, 195)
        self.cfma(228, 229, 170, 171, 200, 201, 196, 197)
        A("s_mov_b64 s[66:67], exec", "s_mov_b64 exec, 0xffff")
        A(f"buffer_store_dwordx4 v[228:231], v13, {WSr}, s64 offen sc1")
        A("s_mov_b64 exec, s[66:67]")
        self.stamp(3)
        A("s_barrier")
        self.skip_issue()
        self.mode_load("B", 224)
        K2 = "v[164:165]"
        for sg in range(16):
            r_, i_ = pr(RE, sg), pr(IM, sg)
            A(f"v_pk_mul_f32 v[232:233], v[{i_}:{i_+1}], {K2} op_sel:[0,1] op_sel_hi:[1,1]")
            A(f"v_pk_mul_f32 v[234:235], v[{r_}:{r_+1}], {K2} op_sel:[0,1] op_sel_hi:[1,1]")
            A(f"v_pk_fma_f32 v[{r_}:{r_+1}], v[{r_}:{r_+1}], {K2}, v[232:233] op_sel_hi:[1,0,1] neg_lo:[0,0,1] neg_hi:[0,0,1]")
            A(f"v_pk_fma_f32 v[{i_}:{i_+1}], v[{i_}:{i_+1}], {K2}, v[234:235] op_sel_hi:[1,0,1]")
        if 'epre' in EXP:
            A("s_waitcnt vmcnt(0)")
            self.skip_finish()
            for r in range(16):
                A(f"v_mov_b32 v{P2ACC+r}, v{XS+r}", f"v_mov_b32 v{P2ACC+16+r}, 0")
        self.stamp(4)
        A(f"s_lshl_b32 s64, s{S_G}, 10", f"s_lshl_b32 s65, s{S_W}, 4", "s_add_u32 s64, s64, s65", "s_lshl_b32 s64, s64, 4", f"s_add_u32 s64, s64, {WS['ES']}")
        A("v_lshlrev_b32 v13, 4, v10")
        lp, lgd, lok, ltd, lz, ldone = L("e_poll"), L("e_gd"), L("e_ok"), L("e_td"), L("e_zero"), L("e_done")
        A("v_lshlrev_b32 v14, 10, v11", "v_add_u32 v14, v14, v13")
        A(f"s_cmp_eq_u32 s{S_RT}, 0", f"s_cbranch_scc1 {lz}")
        for i in range(4):
            A(f"v_add_u32 v15, {4*i}, v11", f"v_cmp_gt_u32 s[{52+2*i}:{53+2*i}], s{S_RT}, v15")
        A(f"s_mov_b32 s72, {POLL_LIMIT}")
        A.label(lp)
        A("s_mov_b32 s65, s64")
        for i in range(4):
            A(f"s_cmp_le_u32 s{S_RT}, {4*i}", f"s_cbranch_scc1 {lgd}")
            A(f"buffer_load_dwordx4 v[{80+4*i}:{83+4*i}], v14, {WSr}, s65 offen sc1")
            if i < 3: A("s_add_u32 s65, s65, 4096")
        A.label(lgd)
        A("v_mov_b32 v236, 0")
        A("s_waitcnt vmcnt(0)")
        for i in range(4):
            A(f"s_cmp_le_u32 s{S_RT}, {4*i}", f"s_cbranch_scc1 {ltd}")
            A(f"v_xor_b32 v237, v230, v{82+4*i}", f"v_xor_b32 v238, v231, v{83+4*i}", "v_or_b32 v237, v237, v238")
            A(f"v_cndmask_b32 v237, 0, v237, s[{52+2*i}:{53+2*i}]", "v_or_b32 v236, v236, v237")
        A.label(ltd)
        A("v_cmp_ne_u32 vcc, 0, v236")
        A("s_sub_u32 s72, s72, 1", f"s_cbranch_scc1 {lok}")
        A(f"s_cbranch_vccnz {lp}")
        A.label(lok)
        A("v_mov_b32 v204, 0", "v_mov_b32 v205, 0")
        for i in range(4):
            self.cfma(206, 207, 218, 219, 204, 205, 80 + 4*i, 81 + 4*i)
            A(f"v_cndmask_b32 v204, v204, v206, s[{52+2*i}:{53+2*i}]", f"v_cndmask_b32 v205, v205, v207, s[{52+2*i}:{53+2*i}]")
        A(f"s_sub_u32 s65, s{S_RT}, 1", "v_sub_u32 v15, s65, v11", "v_and_b32 v15, 3, v15")
        A("v_mov_b32 v206, 1.0", "v_mov_b32 v207, 0")
        for e, (wr, wi) in enumerate(((172, 173), (214, 215), (216, 217)), start=1):
            A(f"v_cmp_eq_u32 vcc, {e}, v15", "s_nop 1")
            A(f"v_cndmask_b32 v206, v206, v{wr}, vcc", f"v_cndmask_b32 v207, v207, v{wi}, vcc")
        A("v_mul_f32 v236, v204, v206", "v_mul_f32 v237, v204, v207")
        A("v_fma_f32 v236, -v205, v207, v236", "v_fma_f32 v237, v205, v206, v237")
        A("v_mov_b32 v238, v236", "v_mov_b32 v206, v237", "s_nop 1")
        A("v_permlane32_swap_b32 v236, v238", "v_permlane32_swap_b32 v237, v206", "s_nop 1")
        A("v_add_f32 v236, v236, v238", "v_add_f32 v237, v237, v206")
        A("v_mov_b32 v238, v236", "v_mov_b32 v206, v237", "s_nop 1")
        A("v_permlane16_swap_b32 v236, v238", "v_permlane16_swap_b32 v237, v206", "s_nop 1")
        A("v_add_f32 v204, v236, v238", "v_add_f32 v205, v237, v206")
        A(f"s_branch {ldone}")
        A.label(lz)
        A("v_mov_b32 v204, 0", "v_mov_b32 v205, 0", "s_waitcnt vmcnt(0)")
        A.label(ldone)
        self.mode_resolve("B", 224, "bc")
        self.stamp(5)
        self.cfma(198, 199, 170, 171, 204, 205, 190, 191)
        self.cfma(200, 201, 170, 171, 198, 199, 192, 193)
        self.cfma(202, 203, 170, 171, 200, 201, 194, 195)
        for qq, (sr, si) in enumerate(((198, 199), (200, 201), (202, 203)), start=1):
            A(f"v_cmp_eq_u32 vcc, {qq}, v11", "s_nop 1")
            A(f"v_cndmask_b32 v204, v204, v{sr}, vcc", f"v_cndmask_b32 v205, v205, v{si}, vcc")
        self.cfma(206, 207, 168, 169, 204, 205, er, ei)
        def cmul(dr, di, ar, ai):
            A(f"v_mul_f32 v{dr}, v{ar}, v164", f"v_mul_f32 v{di}, v{ar}, v165")
            A(f"v_fma_f32 v{dr}, -v{ai}, v165, v{dr}", f"v_fma_f32 v{di}, v{ai}, v164, v{di}")
        cmul(208, 210, 204, 205)
        cmul(209, 211, 206, 207)
        A(f"s_lshl_b32 s64, s{S_W}, 13", f"s_add_u32 s64, s64, {MISC}")
        A("v_lshlrev_b32 v12, 6, v11", "v_lshlrev_b32 v13, 4, v10", "v_xor_b32 v12, v12, v13", "v_lshlrev_b32 v13, 8, v10", "v_add_u32 v12, v12, v13", "v_add_u32 v12, s64, v12")
        for c in range(1, 4): A(f"v_xor_b32 v{212+c}, {16*c}, v12")
        A("v_bfe_u32 v13, v0, 4, 1", "v_lshlrev_b32 v13, 5, v13", "v_and_b32 v14, 3, v0", "v_lshlrev_b32 v14, 3, v14", "v_add_u32 v13, v13, v14")
        A("v_bfe_u32 v14, v0, 2, 2", "v_lshlrev_b32 v15, 4, v14", "v_xor_b32 v13, v13, v15", "v_lshlrev_b32 v14, 8, v14", "v_add_u32 v13, v13, v14")
        A("v_lshrrev_b32 v14, 5, v0", "v_lshlrev_b32 v14, 12, v14", "v_add_u32 v13, v13, v14", "v_add_u32 v13, s64, v13")
        cur = (208, 210)
        def pack(pl_, c):
            base, neg = (RE, "") if pl_ == 0 else (IM, "-")
            for j in range(4):
                sg = 8 * (c & 1) + 2 * j
                r0, r1 = pr(base, sg) + (c >> 1), pr(base, sg + 1) + (c >> 1)
                A(f"v_cvt_pk_bf16_f32 v{80 + 16*pl_ + 4*c + j}, {neg}v{r0}, {neg}v{r1}")
            A(f"ds_write_b128 v{12 if c == 0 else 212+c}, {v(80 + 16*pl_ + 4*c, 4)} offset:{pl_*4096}")
        for sg in range(16):
            d = (pr(RE, sg), pr(IM, sg))
            step(d[0], d[1], cur[0], cur[1], d[0], d[1])
            cur = d
            if sg == 8:
                for pl_ in range(2):
                    pack(pl_, 0); pack(pl_, 2)
        self.stamp(6)
        for pl_ in range(2):
            pack(pl_, 1); pack(pl_, 3)
        A(f"s_lshl_b32 s64, s{S_RT}, 8", f"s_lshl_b32 s65, s{S_G}, 3", "s_add_u32 s64, s64, s65", f"s_lshl_b32 s65, s{S_W}, 1", "s_add_u32 s64, s64, s65", "s_lshl_b32 s64, s64, 10", f"s_add_u32 s64, s64, {WS['H']}")
        A("v_lshlrev_b32 v12, 4, v0")
        A("s_waitcnt lgkmcnt(0)")
        for rb in range(4):
            for ksl in range(2):
                for a_ in range(2):
                    off = (8 * ksl + 4 * a_) * 256 + ((64 * rb) ^ (128 * ksl + 64 * a_))
                    A(f"ds_read_b64_tr_b16 {v(16 + (rb*2+ksl)*4 + 2*a_, 2)}, v13 offset:{off}")
        for rb in range(4):
            A(f"s_waitcnt lgkmcnt({min(15, 12-4*rb)})")
            for ksl in range(2):
                A(f"buffer_store_dwordx4 {v(16 + (rb*2+ksl)*4, 4)}, v12, {WSr}, s64 offen offset:{ksl*1024} sc1")
            if rb < 3: A("s_add_u32 s64, s64, 0x10000")
        self.stamp(7)
        if 'epre' not in EXP:
            self.skip_finish()
            for r in range(16):
                A(f"v_mov_b32 v{P2ACC+r}, v{XS+r}", f"v_mov_b32 v{P2ACC+16+r}, 0")
        A(f"v_readfirstlane_b32 s{NON}, v230", f"v_readfirstlane_b32 s{NON+1}, v231")
        A("s_barrier")
        A("s_waitcnt vmcnt(0)")
        self.wave_flag("B", 230)
        self.stamp(8)

    def p2(self, role):
        A, L = self.A, self.L
        self.stamp(9)
        if 'prio' in EXP: A("s_setprio 0")
        nk = 32 if role == "A" else 64
        nst = nk // 2
        abase = WS["O"] if role == "A" else WS["H"]
        ACC, BF, AF = P2ACC, 48, 80
        NBUF, LA = 4, 7
        A(f"s_lshr_b32 s64, s{S_WAVE}, 2", f"s_and_b32 s65, s{S_WAVE}, 3")
        A("v_lshlrev_b32 v2, 4, v0")
        A(f"s_lshl_b32 s66, s{S_RT}, 2", "s_add_u32 s66, s66, s65", f"s_mul_i32 s66, s66, {nk*1024}")
        A(f"s_mul_i32 s67, s64, {nst*1024}", "s_add_u32 s66, s66, s67", f"s_add_u32 s66, s66, {abase}")
        def aload(k):
            A(f"buffer_load_dwordx4 {v(AF + 4*(k % 8), 4)}, v2, {WSr}, s66 offen offset:{(k % 4)*1024}")
            if k % 4 == 3: A("s_add_u32 s66, s66, 4096")
        A("v_and_b32 v5, 31, v0", "v_lshrrev_b32 v6, 5, v0")
        A(f"s_lshl_b32 s68, s{S_RT}, 7", "s_lshl_b32 s69, s65, 5", "s_add_u32 s68, s68, s69")
        A(f"s_lshl_b32 s69, s{S_G}, 6", "s_lshl_b32 s70, s64, 5", "s_add_u32 s69, s69, s70")
        lg = Lgkm(A)
        if role == "A":
            A("v_lshlrev_b32 v12, 2, v6", "v_bfe_u32 v13, v0, 2, 2", "v_add_u32 v12, v12, v13", "v_lshlrev_b32 v12, 7, v12")
            A("v_bfe_u32 v13, v0, 3, 1", "v_lshlrev_b32 v13, 6, v13", "v_add_u32 v12, v12, v13")
            A("v_bfe_u32 v13, v0, 4, 1", "v_lshlrev_b32 v13, 5, v13", "v_add_u32 v12, v12, v13")
            A("v_and_b32 v13, 3, v0", "v_lshlrev_b32 v13, 3, v13", "v_add_u32 v12, v12, v13")
            A("s_lshl_b32 s70, s64, 15", f"s_add_u32 s70, s70, {WOIMG}", "v_add_u32 v3, s70, v12", "v_xor_b32 v4, 64, v3")
            def bread(k):
                b = BF + 8 * (k % NBUF)
                for cb in range(2):
                    for a_ in range(2):
                        lg.issue(f"ds_read_b64_tr_b16 {v(b + 4*cb + 2*a_, 2)}, v{3+cb} offset:{(16*k + 8*a_)*128}", ("b", k))
        else:
            A("v_lshlrev_b32 v12, 16, v6", "v_lshlrev_b32 v13, 10, v5", "v_add_u32 v12, v12, v13")
            A("v_and_b32 v13, 15, v5", "v_lshlrev_b32 v13, 4, v13", "v_add_u32 v12, v12, v13")
            A("s_lshl_b32 s70, s64, 9", "v_add_u32 v3, s70, v12")
            def bread(k):
                b = BF + 8 * (k % NBUF)
                t = 8 + (k % 4)
                A(f"v_xor_b32 v{t}, {(k & 15) * 16}, v3")
                for cb in range(2):
                    lg.issue(f"ds_read_b128 {v(b + 4*cb, 4)}, v{t} offset:{(k >> 4) * 256 + cb * 32768}", ("b", k))
        for k in range(NBUF - 1): bread(k)
        A("s_mov_b32 s76, s64", "s_mov_b32 s77, s66")
        self.p2_wait(role)
        A("s_mov_b32 s64, s76", "s_mov_b32 s66, s77")
        for k in range(LA): aload(k)
        self.stamp(10)
        for k in range(nst):
            if k + LA < nst: aload(k + LA)
            if k + NBUF - 1 < nst: bread(k + NBUF - 1)
            rem = min(nst - 1 - k, LA)
            A(f"s_waitcnt vmcnt({rem})")
            lg.need(("b", k))
            b = BF + 8 * (k % NBUF)
            A(f"v_mfma_f32_32x32x16_bf16 {v(ACC,16)}, {v(AF+4*(k%8),4)}, {v(b,4)}, {v(ACC,16)}")
            A(f"v_mfma_f32_32x32x16_bf16 {v(ACC+16,16)}, {v(AF+4*(k%8),4)}, {v(b+4,4)}, {v(ACC+16,16)}")
        self.stamp(11)
        A(f"s_lshl_b32 s70, s{S_WAVE}, 12", f"s_add_u32 s70, s70, {MISC}", "v_add_u32 v9, s70, v2")
        A(f"s_xor_b32 s71, s{S_WAVE}, 4", "s_lshl_b32 s71, s71, 12", f"s_add_u32 s71, s71, {MISC}", "v_add_u32 v10, s71, v2")
        A("s_lshl_b32 s68, s68, 12", "s_lshl_b32 s69, s69, 2", "s_add_u32 s68, s68, s69")
        if role == "B": A("s_add_u32 s68, s68, 2048")
        A("v_lshlrev_b32 v11, 14, v6", "v_lshlrev_b32 v12, 2, v5", "v_add_u32 v11, v11, v12")
        A.srd(SRD_T0, 28, 8388608)
        lk, lj = L(f"kh1_{role}"), L(f"join_{role}")
        A("s_cmp_eq_u32 s64, 1", f"s_cbranch_scc1 {lk}")
        for i in range(4): A(f"ds_write_b128 v9, {v(ACC+16+4*i,4)} offset:{i*1024}")
        A(f"s_mov_b32 s71, 0")
        A(f"s_branch {lj}")
        A.label(lk)
        for i in range(4): A(f"ds_write_b128 v9, {v(ACC+4*i,4)} offset:{i*1024}")
        A("s_nop 1")
        for i in range(16): A(f"v_mov_b32 v{ACC+i}, v{ACC+16+i}")
        A.label(lj)
        A("s_waitcnt lgkmcnt(0)")
        A("s_barrier")
        for i in range(4): A(f"ds_read_b128 {v(48+4*i,4)}, v10 offset:{i*1024}")
        for i in range(4):
            A(f"s_waitcnt lgkmcnt({3-i})")
            for r in range(4*i, 4*i+4, 2):
                A(f"v_pk_add_f32 v[{ACC+r}:{ACC+r+1}], v[{ACC+r}:{ACC+r+1}], v[{48+r}:{49+r}]")
            for r in range(4*i, 4*i+4):
                row = (r & 3) + 8 * (r >> 2)
                A(f"s_add_u32 s69, s68, {row*4096}")
                A(f"buffer_store_dword v{ACC+r}, v11, {R4(SRD_T0)}, s69 offen {OUTF}")
        self.stamp(12)
        if 'clk' in EXP:
            lx = L(f"clk_{role}")
            A("s_waitcnt vmcnt(0)")
            A(f"s_cmp_lg_u32 s2, {0 if role == 'A' else 4}", f"s_cbranch_scc1 {lx}", f"s_cmp_lg_u32 s{S_WAVE}, 0", f"s_cbranch_scc1 {lx}")
            A("s_memtime s[88:89]", "s_memrealtime s[90:91]", "s_waitcnt lgkmcnt(0)")
            A("s_sub_u32 s88, s88, s84", "s_sub_u32 s90, s90, s86", "v_mov_b32 v16, s88", "v_mov_b32 v17, s90")
            A(f"v_mov_b32 v18, {0 if role == 'A' else 8}")
            A.srd(SRD_T0, 30, 256)
            A("s_mov_b64 exec, 1")
            A(f"buffer_store_dwordx2 v[16:17], v18, {R4(SRD_T0)}, 0 offen sc1")
            A.label(lx)
        self.write_stamps()
        A("s_endpgm")

def build(out, stamps=False):
    A = Asm()
    K = NAME + "_kernel"
    A.raw(HEADER_COMMENT + f"; @launch grid=(256,1,1) block=(512,1,1) lds={LDS_BYTES}\n" + '.amdgcn_target "amdgcn-amd-amdhsa--gfx950"\n')
    G(A, K, stamps).gen()
    A.kernel_desc(K, 256, accum=256)
    open(out, "w").write(A.text())

if __name__ == "__main__":
    build(sys.argv[1], stamps=(len(sys.argv) > 2 and sys.argv[2] == "stamps"))
```

```python
import sys
sys.path.insert(0, "gen"); sys.path.insert(0, "scratch")
from asmlib import *
WS = dict(O=0x000000, H=0x200000, KVP=0x600000, ES=0x700000, FLG=0x740000, ST=0x900000)
LDS_BYTES = 163840
SLOT = 32768
NSLOT = 5
MISC = 4 * SLOT
PART_STRIDE = 1152
PARTQ = 0
FIN = 20480
WOIMG = SLOT
NONCE = MISC + 24576 + 64
NONCEQ = 28672
LOG2E = 0x3FB8AA3B
EPS = 0x358637BD
INV2PI = 0x3E22F983
POLL_LIMIT = 1 << 18
EXP = set(a for a in sys.argv[3:]) | {'kvd', 'epre', 'rotd', 'pt'}
OUTF = 'nt'
FASTF = 'nt' if 'fnt' in EXP else 'sc0' if 'fsc0' in EXP else 'sc0 nt' if 'fsc0nt' in EXP else ''

S_W, S_WAVE, S_XCD, S_SLOT, S_RT, S_G, S_ROT = 3, 34, 35, 36, 37, 38, 39
SRD_X, SRD_W, SRD_WS, SRD_T0, SRD_T1, SRD_T2, SRD_T3 = 40, 44, 48, 52, 56, 60, 96
NON = 78
P2ACC, XS, XD = 128, 112, 239
def R4(n): return f"s[{n}:{n+3}]"
def creg(R, i):
    n = R * 8 + i
    return 24 + 4 * n if n < 22 else 160 + 4 * (n - 22)
WSr = R4(SRD_WS)

class G:
    def __init__(self, A, K, stamps):
        self.A, self.K, self.stamps = A, K, stamps
    def L(self, n): return f"{self.K}_{n}"
    def stamp(self, i):
        if self.stamps:
            if 'pro' in EXP and 9 <= i <= 12 and not getattr(self, 'inpro', False): return
            if 'stg' in EXP and 3 <= i <= 12 and not getattr(self, 'instg', False): return
            self.A("s_memtime s[100:101]", "s_waitcnt lgkmcnt(0)", f"s_mov_b32 s{80+i}, s100")
    def sstamp(self, i):
        if 'stg' in EXP:
            self.instg = True
            self.A("s_memtime s[100:101]")
            self.A("s_waitcnt lgkmcnt(0)", f"s_mov_b32 s{80+i}, s100")
            self.instg = False
    def pstamp(self, i):
        if 'pro' in EXP:
            self.inpro = True; self.stamp(i); self.inpro = False
    def write_stamps(self):
        A = self.A
        if not self.stamps: return
        A("s_waitcnt vmcnt(0) lgkmcnt(0)")
        self.stamp(13)
        A("s_memrealtime s[100:101]", "s_waitcnt lgkmcnt(0)", "s_mov_b32 s95, s100")
        for j in range(16): A(f"v_mov_b32 v{16+j}, s{80+j}")
        A("s_lshl_b32 s64, s2, 3", f"s_add_u32 s64, s64, s{S_WAVE}", "s_lshl_b32 s64, s64, 6", f"s_add_u32 s64, s64, {WS['ST']}", "v_mov_b32 v2, s64")
        A("v_cmp_eq_u32 vcc, 0, v0", "s_and_saveexec_b64 s[66:67], vcc")
        for j in range(4):
            A(f"buffer_store_dwordx4 v[{16+4*j}:{19+4*j}], v2, {WSr}, 0 offen offset:{16*j}")

    def gen(self):
        A, L = self.A, self.L
        A.kernel_begin(self.K)
        A.label(L("start"))
        if self.stamps:
            for j in range(16): A(f"s_mov_b32 s{80+j}, 0")
            A("s_memrealtime s[100:101]", "s_waitcnt lgkmcnt(0)", "s_mov_b32 s94, s100")
            self.stamp(0)
        if 'clk' in EXP:
            A("s_memtime s[84:85]", "s_memrealtime s[86:87]")
        A("s_cmp_ge_u32 s2, 256", f"s_cbranch_scc1 {L('end')}")
        A("s_load_dwordx4 s[4:7], s[0:1], 0", "s_load_dwordx4 s[8:11], s[0:1], 16", "s_load_dwordx4 s[16:19], s[0:1], 48")
        if 'nocode' not in EXP:
            lc = L("nocode")
            A("s_getpc_b64 s[64:65]")
            A.label(L("pcref"))
            A(f"s_lshr_b32 s66, s2, 3", "s_mul_i32 s66, s66, 9", "v_add_u32 v2, s66, v0", "v_lshlrev_b32 v2, 7, v2")
            A(f"v_min_u32 v2, {L('end')}-{L('pcref')}, v2")
            A(f"v_cmp_gt_u32 vcc, 9, v0", "s_and_saveexec_b64 s[66:67], vcc", f"s_cbranch_execz {lc}")
            A("global_load_dword v255, v2, s[64:65]")
            A.label(lc)
            A("s_mov_b64 exec, s[66:67]")
        A("v_lshrrev_b32 v1, 6, v0", "v_and_b32 v0, 63, v0")
        A(f"v_readfirstlane_b32 s{S_WAVE}, v1")
        A(f"s_and_b32 s{S_XCD}, s2, 7", f"s_lshr_b32 s{S_SLOT}, s2, 3")
        A(f"s_and_b32 s64, s{S_XCD}, 3", f"s_lshl_b32 s{S_RT}, s64, 2", f"s_and_b32 s65, s{S_SLOT}, 3", f"s_add_u32 s{S_RT}, s{S_RT}, s65")
        A(f"s_lshr_b32 s{S_G}, s{S_SLOT}, 2")
        if 'rotb' in EXP:
            A("s_lshl_b32 s65, s65, 1", f"s_add_u32 s{S_ROT}, s{S_G}, s65", f"s_add_u32 s{S_ROT}, s{S_ROT}, s64", f"s_and_b32 s{S_ROT}, s{S_ROT}, 7")
        elif 'rotc' in EXP:
            A("s_lshl_b32 s65, s65, 1", f"s_add_u32 s{S_ROT}, s{S_G}, s65", f"s_and_b32 s{S_ROT}, s{S_ROT}, 7")
        elif 'rote' in EXP:
            A(f"s_add_u32 s{S_ROT}, s{S_G}, s65", f"s_and_b32 s{S_ROT}, s{S_ROT}, 1", f"s_lshl_b32 s{S_ROT}, s{S_ROT}, 2")
        elif 'rotf' in EXP:
            A(f"s_add_u32 s{S_ROT}, s{S_G}, s65", f"s_and_b32 s{S_ROT}, s{S_ROT}, 3", f"s_lshl_b32 s{S_ROT}, s{S_ROT}, 1", "s_and_b32 s64, s64, 1", f"s_add_u32 s{S_ROT}, s{S_ROT}, s64")
        elif 'rotg' in EXP:
            A(f"s_and_b32 s{S_ROT}, s{S_G}, 3", f"s_lshl_b32 s{S_ROT}, s{S_ROT}, 1")
        elif 'roth' in EXP:
            A(f"s_add_u32 s{S_ROT}, s{S_G}, s65", f"s_and_b32 s{S_ROT}, s{S_ROT}, 3")
        elif 'rotd' in EXP:
            A(f"s_add_u32 s{S_ROT}, s{S_G}, s65", f"s_and_b32 s{S_ROT}, s{S_ROT}, 3", f"s_lshl_b32 s{S_ROT}, s{S_ROT}, 1")
        else:
            A("s_lshl_b32 s65, s65, 1", f"s_add_u32 s{S_ROT}, s{S_G}, s65", "s_and_b32 s64, s64, 1", f"s_add_u32 s{S_ROT}, s{S_ROT}, s64", f"s_and_b32 s{S_ROT}, s{S_ROT}, 7")
        if 'rot0' in EXP: A(f"s_mov_b32 s{S_ROT}, 0")
        A(f"s_and_b32 s{S_W}, s{S_WAVE}, 3")
        A(f"s_cmp_lt_u32 s{S_WAVE}, 4", f"s_cbranch_scc1 {L('compute')}")
        self.loader_prologue()
        A(f"s_cmp_ge_u32 s{S_XCD}, 4", f"s_cbranch_scc1 {L('bu_load')}")
        self.loader("qkv")
        A.label(L("p2A"))
        self.p2("A")
        A.label(L("bu_load"))
        self.loader("bu")
        A.label(L("p2B"))
        self.p2("B")
        A.label(L("compute"))
        self.rest_kernargs()
        A(f"s_cmp_ge_u32 s{S_XCD}, 4", f"s_cbranch_scc1 {L('bu')}")
        A("s_waitcnt lgkmcnt(0)")
        self.nonce_source()
        self.qkv_compute()
        A(f"s_branch {L('p2A')}")
        A.label(L("bu"))
        self.bu_compute()
        A(f"s_branch {L('p2B')}")
        A.label(L("end"))
        A("s_endpgm")

    def rest_kernargs(self):
        A = self.A
        A("s_load_dwordx4 s[12:15], s[0:1], 32", "s_load_dwordx4 s[20:23], s[0:1], 64", "s_load_dwordx4 s[24:27], s[0:1], 80")
        A("s_load_dwordx4 s[28:31], s[0:1], 96", "s_load_dwordx2 s[32:33], s[0:1], 112")

    def loader_prologue(self):
        A, L = self.A, self.L
        A("v_lshrrev_b32 v5, 3, v0", "v_and_b32 v6, 7, v0", "v_lshrrev_b32 v7, 4, v0")
        A("v_xor_b32 v8, v6, v7", "v_lshlrev_b32 v8, 4, v8")
        A("v_lshlrev_b32 v2, 10, v5", "v_add_u32 v2, v2, v8", "v_xor_b32 v3, 64, v2")
        A(f"s_lshl_b32 s70, s{S_W}, 12")
        lb, lj = L("pro_b"), L("pro_j")
        A(f"s_cmp_ge_u32 s{S_XCD}, 4", f"s_cbranch_scc1 {lb}")
        A("v_and_b32 v9, 1, v7", "v_lshlrev_b32 v9, 2, v9", "v_xor_b32 v9, v6, v9", "v_lshlrev_b32 v9, 4, v9")
        A("v_mul_u32_u24 v4, 3072, v5", "v_add_u32 v4, v4, v9", "v_lshlrev_b32 v12, 10, v5", "v_add_u32 v12, v12, v9")
        A("v_mov_b32 v20, v2", "v_mov_b32 v21, v3", "v_mov_b32 v22, v4", "v_mov_b32 v23, v4", "v_mov_b32 v11, v3")
        A(f"s_lshl_b32 s64, s{S_RT}, 7", f"s_lshl_b32 s65, s{S_W}, 5", "s_add_u32 s64, s64, s65", "s_lshl_b32 s68, s64, 10")
        A(f"s_mul_i32 s69, s{S_W}, {16*3072}", f"s_lshl_b32 s65, s{S_G}, 7", "s_add_u32 s69, s69, s65")
        A(f"s_mov_b32 s76, {64*3072}", "s_lshr_b32 s71, s70, 1")
        A("s_movk_i32 s52, 0x2000", "s_movk_i32 s53, 0x4000")
        A("s_movk_i32 s56, 0x2000")
        A("s_movk_i32 s60, 1024", "s_movk_i32 s61, 25600", "s_movk_i32 s62, 2048", "s_movk_i32 s63, 26624")
        A("s_waitcnt lgkmcnt(0)")
        A.srd(SRD_X, 4, 2097152); A.srd(SRD_W, 6, 1572864)
        A(f"s_branch {lj}")
        A.label(lb)
        A("v_lshrrev_b32 v9, 5, v0", "v_lshlrev_b32 v9, 5, v9", "v_and_b32 v10, 1, v5", "v_lshlrev_b32 v10, 4, v10", "v_add_u32 v9, v9, v10")
        A("v_and_b32 v10, 1, v7", "v_add_u32 v9, v9, v10", "v_lshlrev_b32 v4, 10, v9", "v_add_u32 v4, v4, v8", "v_xor_b32 v11, 64, v4")
        A("v_mov_b32 v20, v4", "v_mov_b32 v21, v11", "v_mov_b32 v22, v2", "v_mov_b32 v23, v3", "v_mov_b32 v12, v2")
        A(f"s_lshl_b32 s64, s{S_RT}, 7", f"s_lshl_b32 s65, s{S_W}, 2", "s_add_u32 s64, s64, s65", "s_lshl_b32 s68, s64, 10")
        A(f"s_lshl_b32 s64, s{S_G}, 6", f"s_and_b32 s65, s{S_W}, 1", "s_lshl_b32 s65, s65, 5", "s_add_u32 s64, s64, s65", "s_lshl_b32 s69, s64, 10")
        A("s_movk_i32 s76, 128", "s_mov_b32 s71, s70")
        A("s_mov_b32 s52, 0x10000", "s_movk_i32 s53, 0x800")
        A("s_movk_i32 s56, 0x800")
        A("s_movk_i32 s60, 0", "s_movk_i32 s61, 0x2000", "s_movk_i32 s62, 0x4000", "s_movk_i32 s63, 0x6000")
        A("s_waitcnt lgkmcnt(0)")
        A.srd(SRD_X, 10, 2097152)
        A(f"s_cmp_lt_u32 s{S_W}, 2", "s_cselect_b32 s64, s16, s18", "s_cselect_b32 s65, s17, s19")
        A.srd(SRD_W, 64, 524288)
        A.label(lj)
        A("s_add_u32 s54, s52, s53", "s_add_u32 s57, s56, 1024")
        self.pstamp(10)
        X, W = R4(SRD_X), R4(SRD_W)
        for st in range(1 if 's0' in EXP else 2):
            slot = st * SLOT
            A(f"s_add_u32 s64, s{S_ROT}, {st}", "s_and_b32 s64, s64, 7")
            A("s_lshl_b32 s65, s64, 7", "s_add_u32 s65, s65, s68", "s_mul_i32 s66, s64, s76", "s_add_u32 s66, s66, s69")
            xo = [None, "s52", "s53", "s54"]
            for ii in range(4):
                A(f"s_add_u32 m0, s70, {slot + ii*1024}")
                A(f"s_add_u32 s67, s65, {xo[ii]}" if xo[ii] else "s_mov_b32 s67, s65")
                A(f"buffer_load_dwordx4 v{20 + (ii&1)}, {X}, s67 offen lds")
            A(f"s_add_u32 s72, s71, {slot + 16384}")
            wl = ["0", "1024", "s56", "s57"]
            for ii in range(4):
                A(f"s_add_u32 m0, s72, {wl[ii]}", f"s_add_u32 s67, s66, s{60+ii}")
                A(f"buffer_load_dwordx4 v{22 + (ii&1)}, {W}, s67 offen lds")
            self.pstamp(11 + st)
        self.rest_kernargs()

    def poll_lines(self, tag, nl, sbase, stride_log2, R=8):
        A, L = self.A, self.L
        lp, done = L(f"poll_{tag}"), L(f"polld_{tag}")
        A(f"s_mov_b32 s72, {POLL_LIMIT}")
        A(f"v_lshlrev_b32 v{R+2}, {stride_log2}, v0")
        A("s_mov_b64 s[74:75], exec", f"s_mov_b64 exec, {(1 << nl) - 1:#x}")
        A.label(lp)
        A(f"buffer_load_dwordx2 v[{R}:{R+1}], v{R+2}, {WSr}, s{sbase} offen sc1")
        A("s_waitcnt vmcnt(0)")
        A(f"v_xor_b32 v{R}, s{NON}, v{R}", f"v_xor_b32 v{R+1}, s{NON+1}, v{R+1}", f"v_or_b32 v{R}, v{R}, v{R+1}")
        A(f"v_cmp_ne_u32 vcc, 0, v{R}")
        A("s_sub_u32 s72, s72, 1")
        A(f"s_cbranch_scc1 {done}")
        A(f"s_cbranch_vccz {done}")
        A(f"s_branch {lp}")
        A.label(done)
        A("s_mov_b64 exec, s[74:75]")

    def store_flag(self, sbase, tag, R=8):
        A, L = self.A, self.L
        A(f"v_mov_b32 v{R}, s{NON}", f"v_mov_b32 v{R+1}, s{NON+1}", f"v_mov_b32 v{R+2}, 0")
        A("s_mov_b64 s[74:75], exec", "s_mov_b64 exec, 1")
        lf, lj = L(f"sf_fast_{tag}"), L(f"sf_j_{tag}")
        A("s_cmp_eq_u32 s73, 1", f"s_cbranch_scc1 {lf}")
        A(f"buffer_store_dwordx2 v[{R}:{R+1}], v{R+2}, {WSr}, s{sbase} offen sc1")
        A(f"s_branch {lj}")
        A.label(lf)
        A(f"buffer_store_dwordx2 v[{R}:{R+1}], v{R+2}, {WSr}, s{sbase} offen")
        A.label(lj)
        A("s_mov_b64 exec, s[74:75]")

    def skip_issue(self, vm=None):
        A = self.A
        A(f"s_lshr_b32 s64, s{S_WAVE}, 2")
        A(f"s_lshl_b32 s68, s{S_RT}, 7", f"s_lshl_b32 s69, s{S_W}, 5", "s_add_u32 s68, s68, s69")
        A(f"s_lshl_b32 s69, s{S_G}, 6", "s_lshl_b32 s70, s64, 5", "s_add_u32 s69, s69, s70")
        A.srd(SRD_T0, 10, 2097152); A.srd(SRD_T1, 26, 1024)
        A("s_lshl_b32 s70, s68, 10", "s_lshl_b32 s71, s69, 1", "s_add_u32 s70, s70, s71")
        A("v_and_b32 v8, 31, v0", "v_lshrrev_b32 v7, 5, v0", "v_lshlrev_b32 v7, 12, v7", "v_lshlrev_b32 v8, 1, v8", "v_add_u32 v7, v7, v8")
        for r in range(16):
            if r % 4 == 0 and r > 0: A("s_add_u32 s70, s70, 8192")
            ins = f"buffer_load_ushort v{XS+r}, v7, {R4(SRD_T0)}, s70 offen offset:{(r%4)*1024}"
            vm.issue(ins, "skip") if vm else A(ins)
        ins = f"buffer_load_ushort v{XD}, v8, {R4(SRD_T1)}, s71 offen"
        vm.issue(ins, "skip") if vm else A(ins)

    def skip_finish(self):
        A = self.A
        A(f"v_lshlrev_b32 v{XD}, 16, v{XD}")
        for r in range(16): A(f"v_lshlrev_b32 v{XS+r}, 16, v{XS+r}")
        for r in range(16): A(f"v_mul_f32 v{XS+r}, v{XS+r}, v{XD}")
        for r in range(0, 16, 2): A(f"v_cvt_pk_bf16_f32 v{XS+r}, v{XS+r}, v{XS+r+1}")
        for r in range(0, 16, 2):
            A(f"v_and_b32 v{XS+r+1}, 0xffff0000, v{XS+r}", f"v_lshlrev_b32 v{XS+r}, 16, v{XS+r}")

    def mode_announce(self, role, R=240):
        A, L = self.A, self.L
        lx = L(f"ann_{role}")
        A(f"s_cmp_lg_u32 s{S_W}, 0", f"s_cbranch_scc1 {lx}")
        A("s_getreg_b32 s64, hwreg(HW_REG_XCC_ID, 0, 3)", "s_lshl_b32 s64, 1, s64", f"s_lshl_b32 s65, 0x100, s{S_G}", "s_or_b32 s64, s64, s65")
        A(f"s_add_u32 s65, s{S_RT}, {0 if role == 'A' else 16}", "s_lshl_b32 s65, s65, 2")
        A(f"v_mov_b32 v{R}, s64", f"v_mov_b32 v{R+1}, s65")
        A.srd(SRD_T3, 30, 256)
        A("s_mov_b64 s[66:67], exec", "s_mov_b64 exec, 1")
        A(f"buffer_atomic_or v{R}, v{R+1}, {R4(SRD_T3)}, 0 offen sc1")
        A("s_mov_b64 exec, s[66:67]")
        A.label(lx)

    def mode_load(self, role, R):
        A = self.A
        A(f"s_add_u32 s65, s{S_RT}, {0 if role == 'A' else 16}", "s_lshl_b32 s65, s65, 2", f"v_mov_b32 v{R+1}, s65")
        A.srd(SRD_T3, 30, 256)
        A(f"buffer_load_dword v{R}, v{R+1}, {R4(SRD_T3)}, 0 offen sc1")

    def mode_resolve(self, role, R, tag):
        A, L = self.A, self.L
        lp, ok = L(f"mode_lp_{tag}"), L(f"mode_ok_{tag}")
        A(f"s_mov_b32 s72, {POLL_LIMIT}")
        A.label(lp)
        A(f"v_readfirstlane_b32 s73, v{R}", "s_nop 3")
        A("s_and_b32 s71, s73, 0xff00", "s_cmp_eq_u32 s71, 0xff00", f"s_cbranch_scc1 {ok}")
        A("s_sub_u32 s72, s72, 1", f"s_cbranch_scc1 {ok}")
        A(f"buffer_load_dword v{R}, v{R+1}, {R4(SRD_T3)}, 0 offen sc1", "s_waitcnt vmcnt(0)", f"s_branch {lp}")
        A.label(ok)
        A("s_and_b32 s70, s73, 0xff", "s_bcnt1_i32_b32 s70, s70", "s_cmp_eq_u32 s70, 1", "s_cselect_b32 s73, 1, 0")
        A("s_cmp_eq_u32 s71, 0xff00", "s_cselect_b32 s73, s73, 0")
        if 'slow' in EXP: A("s_mov_b32 s73, 0")

    def flag_touch(self, role, R):
        A = self.A
        self.flag_addr(role, 64)
        A(f"s_lshl_b32 s65, s{S_G}, 7", "s_add_u32 s64, s64, s65", f"v_mov_b32 v{R}, 0")
        A("s_mov_b64 s[74:75], exec", "s_mov_b64 exec, 1")
        A(f"buffer_load_dword v{R+1}, v{R}, {WSr}, s64 offen sc1")
        A("s_mov_b64 exec, s[74:75]")

    def weight_touch(self, R):
        A = self.A
        if 'nowt' in EXP: return
        A("s_lshl_b32 s64, s2, 2", f"s_add_u32 s64, s64, s{S_W}", "s_mul_i32 s64, s64, 12")
        A(f"v_add_u32 v{R}, s64, v0", f"v_lshlrev_b32 v{R}, 7, v{R}")
        A.srd(SRD_T0, 8, 524288); A.srd(SRD_T1, 20, 524288); A.srd(SRD_T2, 22, 524288)
        A("s_mov_b64 s[74:75], exec", "s_mov_b64 exec, 0xfff")
        A(f"buffer_load_dword v{R+1}, v{R}, {R4(SRD_T0)}, 0 offen sc1")
        A(f"v_subrev_u32 v{R+2}, 0x80000, v{R}")
        A(f"buffer_load_dword v{R+1}, v{R+2}, {R4(SRD_T1)}, 0 offen sc1")
        A(f"v_subrev_u32 v{R+2}, 0x100000, v{R}")
        A(f"buffer_load_dword v{R+1}, v{R+2}, {R4(SRD_T2)}, 0 offen sc1")
        A("s_mov_b64 exec, s[74:75]")

    def l2_prefetch(self, role, base, R):
        A = self.A
        if 'pf' not in EXP: return
        A(f"s_add_u32 s64, s{S_W}, {base}")
        A(f"s_and_b32 s65, s{S_XCD}, 3", "s_lshl_b32 s65, s65, 9", f"s_lshl_b32 s66, s{S_SLOT}, 4", "s_add_u32 s65, s65, s66")
        A("s_lshl_b32 s65, s65, 10", "s_lshl_b32 s66, s64, 7", "s_add_u32 s65, s65, s66")
        A(f"v_and_b32 v{R+2}, 15, v0", f"v_lshlrev_b32 v{R}, 10, v{R+2}")
        A(f"buffer_load_dword v{R+1}, v{R}, {R4(SRD_T0)}, s65 offen sc1")
        if role == "A":
            A(f"v_bfe_u32 v{R+3}, v0, 4, 1", f"v_mul_u32_u24 v{R+3}, 3072, v{R+3}", f"v_lshlrev_b32 v{R+2}, 7, v{R+2}", f"v_add_u32 v{R+2}, v{R+2}, v{R+3}")
            A("s_lshl_b32 s70, s64, 6", f"s_lshl_b32 s66, s{S_SLOT}, 1", "s_add_u32 s70, s70, s66", "s_mul_i32 s70, s70, 3072", "s_add_u32 s70, s70, 1024")
            A(f"buffer_load_dword v{R+1}, v{R+2}, {R4(SRD_T1)}, s70 offen sc1")
        else:
            A(f"s_lshl_b32 s70, s{S_SLOT}, 14", "s_lshl_b32 s66, s64, 7", "s_add_u32 s70, s70, s66")
            A(f"buffer_load_dword v{R+1}, v{R}, {R4(SRD_T1)}, s70 offen sc1")
            A(f"buffer_load_dword v{R+1}, v{R}, {R4(SRD_T2)}, s70 offen sc1")

    def pf_srds(self, role):
        A = self.A
        if 'pf' not in EXP: return
        if role == "A":
            A.srd(SRD_T0, 4, 2097152); A.srd(SRD_T1, 6, 1572864)
        else:
            A.srd(SRD_T0, 10, 2097152); A.srd(SRD_T1, 16, 524288); A.srd(SRD_T2, 18, 524288)

    def page_touch(self, role, R):
        A = self.A
        if 'pt' not in EXP: return
        A(f"v_mov_b32 v{R}, 0")
        if role == "A":
            A(f"s_lshl_b32 s64, s{S_RT}, 2", f"s_add_u32 s64, s64, s{S_W}", "s_lshl_b32 s64, s64, 5", f"s_lshl_b32 s65, s{S_G}, 2", "s_add_u32 s64, s64, s65", "s_lshl_b32 s64, s64, 10")
        else:
            A(f"s_lshl_b32 s64, s{S_RT}, 2", f"s_add_u32 s64, s64, s{S_W}", "s_lshl_b32 s64, s64, 6", f"s_lshl_b32 s65, s{S_G}, 3", "s_add_u32 s64, s64, s65", "s_lshl_b32 s64, s64, 10", f"s_add_u32 s64, s64, {WS['H']}")
        A(f"buffer_load_dword v{R+1}, v{R}, {WSr}, s64 offen sc1")
        A.srd(SRD_T0, 28, 8388608)
        A(f"s_lshl_b32 s64, s{S_RT}, 7", f"s_lshl_b32 s65, s{S_W}, 5", "s_add_u32 s64, s64, s65", "s_lshl_b32 s64, s64, 12", f"s_lshl_b32 s65, s{S_G}, 8", "s_add_u32 s64, s64, s65")
        if role == "B": A("s_add_u32 s64, s64, 2048")
        A(f"buffer_load_dword v{R+1}, v{R}, {R4(SRD_T0)}, s64 offen sc1")
        if role == "B":
            A.srd(SRD_T1, 26, 1024)
            A(f"buffer_load_dword v{R+1}, v{R}, {R4(SRD_T1)}, 0 offen sc1")
        if 'pt2' in EXP:
            if role == "A":
                A.srd(SRD_T1, 8, 524288)
                A(f"s_lshl_b32 s64, s{S_G}, 7")
                A(f"buffer_load_dword v{R+1}, v{R}, {R4(SRD_T1)}, s64 offen sc1")
            else:
                A.srd(SRD_T0, 20, 524288); A.srd(SRD_T2, 22, 524288)
                A(f"s_lshl_b32 s64, s{S_G}, 16")
                A(f"buffer_load_dword v{R+1}, v{R}, {R4(SRD_T0)}, s64 offen sc1")
                A(f"buffer_load_dword v{R+1}, v{R}, {R4(SRD_T2)}, s64 offen sc1")

    def nonce_source(self):
        A, L = self.A, self.L
        ln = L("nononce")
        A("s_cmp_lg_u32 s2, 0", f"s_cbranch_scc1 {ln}", f"s_cmp_lg_u32 s{S_WAVE}, 0", f"s_cbranch_scc1 {ln}")
        A("s_memrealtime s[70:71]", "s_waitcnt lgkmcnt(0)", "s_or_b32 s70, s70, 1")
        A("v_mov_b32 v248, s70", "v_mov_b32 v249, s71", "v_mov_b32 v247, 0")
        A.srd(SRD_T3, 30, 256)
        A(f"buffer_store_dwordx2 v[248:249], v247, {R4(SRD_T3)}, 0 offen offset:128 sc1")
        A.label(ln)

    def loader(self, role):
        A, L = self.A, self.L
        last = 9 if role == "qkv" else 7
        vm = Vm(A)
        vm.q = [('st', 0)] * 8 + ([] if 's0' in EXP else [('st', 1)] * 8)
        X, W = R4(SRD_X), R4(SRD_W)
        def issue(st):
            slot = (st % NSLOT) * SLOT
            tag = ("st", st)
            if st >= 8:
                a = st - 8
                A(f"s_add_u32 s64, s{S_ROT}, s{S_W}", f"s_add_u32 s64, s64, {4*a}", "s_and_b32 s64, s64, 7")
                A(f"s_mul_i32 s64, s64, {64*3072}", f"s_lshl_b32 s65, s{S_G}, 7", "s_add_u32 s64, s64, s65")
                A("s_lshl_b32 s66, s70, 1")
                for i in range(8):
                    A(f"s_add_u32 m0, s66, {slot + i*1024}", f"s_add_u32 s67, s64, {i*8*3072}")
                    vm.issue(f"buffer_load_dwordx4 v4, {W}, s67 offen lds", tag)
                return
            A(f"s_add_u32 s64, s{S_ROT}, {st}", "s_and_b32 s64, s64, 7")
            A("s_lshl_b32 s65, s64, 7", "s_add_u32 s65, s65, s68")
            if role == "qkv":
                A(f"s_mul_i32 s66, s64, {64*3072}", "s_add_u32 s66, s66, s69")
                for ii in range(4):
                    A(f"s_add_u32 m0, s70, {slot + ii*1024}", f"s_add_u32 s67, s65, {ii*8192}")
                    vm.issue(f"buffer_load_dwordx4 v{2 + (ii&1)}, {X}, s67 offen lds", tag)
                A("s_lshr_b32 s71, s70, 1")
                for part in range(2):
                    for ii in range(2):
                        A(f"s_add_u32 m0, s71, {slot + 16384 + part*8192 + ii*1024}", f"s_add_u32 s67, s66, {ii*8*3072 + (1+part)*1024}")
                        vm.issue(f"buffer_load_dwordx4 v4, {W}, s67 offen lds", tag)
            else:
                A("s_lshl_b32 s66, s64, 7", "s_add_u32 s66, s66, s69")
                for ii in range(4):
                    A(f"s_add_u32 m0, s70, {slot + ii*1024}", f"s_add_u32 s67, s65, {(64*(ii&1) + 2*(ii>>1))*1024}")
                    vm.issue(f"buffer_load_dwordx4 v{4 if (ii&1)==0 else 11}, {X}, s67 offen lds", tag)
                for ii in range(4):
                    A(f"s_add_u32 m0, s70, {slot + 16384 + ii*1024}", f"s_add_u32 s67, s66, {ii*8192}")
                    vm.issue(f"buffer_load_dwordx4 v{2 + (ii&1)}, {W}, s67 offen lds", tag)
        def cregion(R):
            part = R >> 1
            A.srd(SRD_T0, 20 + 2 * part, 524288)
            A(f"s_lshl_b32 s64, s{S_G}, 6", f"s_lshl_b32 s65, s{S_W}, 3", "s_add_u32 s64, s64, s65", f"s_add_u32 s64, s64, {32*(R&1)}", "s_lshl_b32 s64, s64, 10")
            A(f"s_and_b32 s66, s{S_W}, 1", "s_lshl_b32 s66, s66, 7", "v_lshlrev_b32 v13, 4, v0", "v_xor_b32 v13, s66, v13")
            for i in range(8):
                A(f"v_xor_b32 v{14+(i&1)}, {i*16}, v13")
                A(f"s_add_u32 s67, s64, {i*1024}")
                vm.issue(f"buffer_load_dwordx4 {v(creg(R, i),4)}, v{14+(i&1)}, {R4(SRD_T0)}, s67 offen", ("c", R))
        self.cregion = cregion
        self.vm = vm
        A("s_waitcnt lgkmcnt(0)")
        A.srd(SRD_WS, 32, 268435456)
        self.stamp(1)
        sched = {0: [2], 1: [3], 2: [4], 3: [5], 4: [6], 5: [7], 6: [8], 7: [9]} if 'l3' not in EXP else {0: [2], 1: [3], 2: [4, 5], 3: [6], 4: [7], 5: [8], 6: [9], 7: []}
        if 's0' in EXP: sched[0] = [1, 2]
        for st in range(8):
            vm.need(("st", st))
            if st == 7:
                self.get_nonce(role)
            A("s_barrier")
            if st == 0: self.stamp(2)
            for x in sched[st]:
                if x <= last: issue(x)
            if role == "bu" and 'cearly' in EXP:
                if st == 6: cregion(0)
                if st == 7:
                    for R_ in (1, 2, 3): cregion(R_)
            elif role == "bu" and 'call7' in EXP:
                if st == 7:
                    for R_ in range(4): cregion(R_)
            elif role == "bu" and st == 7:
                for R_ in range(2): cregion(R_)
            if st == 4:
                A(f"s_load_dwordx2 s[{NON}:{NON+1}], s[30:31], 128")
        if role == "qkv": self.qkv_loader_tail()
        else: self.bu_loader_tail()

    def get_nonce(self, role):
        A, L = self.A, self.L
        ok, lp = L(f"nok_{role}"), L(f"nlp_{role}")
        A("s_waitcnt lgkmcnt(0)")
        A(f"s_cmp_lg_u32 s{NON}, 0", f"s_cbranch_scc1 {ok}")
        A.srd(SRD_T0, 30, 256)
        A(f"s_mov_b32 s72, {POLL_LIMIT}", "v_mov_b32 v13, 0")
        A.label(lp)
        A(f"buffer_load_dwordx2 v[14:15], v13, {R4(SRD_T0)}, 0 offen offset:128 sc1", "s_waitcnt vmcnt(0)")
        A(f"v_readfirstlane_b32 s{NON}, v14", f"v_readfirstlane_b32 s{NON+1}, v15", "s_nop 3")
        A("s_sub_u32 s72, s72, 1", f"s_cbranch_scc1 {ok}")
        A(f"s_cmp_lg_u32 s{NON}, 0", f"s_cbranch_scc1 {ok}", "s_sleep 2", f"s_branch {lp}")
        A.label(ok)
        if role == "bu":
            A(f"v_mov_b32 v14, s{NON}", f"v_mov_b32 v15, s{NON+1}", f"v_mov_b32 v13, {NONCE}")
            A("ds_write_b64 v13, v[14:15]", "s_waitcnt lgkmcnt(0)")

    def qkv_loader_tail(self):
        A, L, vm = self.A, self.L, self.vm
        A(f"v_mov_b32 v14, s{NON}", f"v_mov_b32 v15, s{NON+1}", f"v_mov_b32 v13, {NONCEQ}")
        A("ds_write_b64 v13, v[14:15]")
        vm.need(("st", 9))
        A("s_waitcnt lgkmcnt(0)")
        self.stamp(3)
        A("s_barrier")
        A("s_setprio 3")
        self.stamp(4)
        A("v_mul_u32_u24 v7, 24, v0", f"s_mul_i32 s64, s{S_W}, {PART_STRIDE}", "v_add_u32 v7, s64, v7")
        for w in range(4):
            for j in range(3):
                A(f"ds_read_b64 v[{16+6*w+2*j}:{17+6*w+2*j}], v7 offset:{PARTQ + w*4*PART_STRIDE + 8*j}")
        A("v_lshlrev_b32 v3, 4, v0")
        A(f"s_lshl_b32 s64, s{S_G}, 4", f"s_add_u32 s64, s64, s{S_RT}", "s_lshl_b32 s64, s64, 2", f"s_add_u32 s64, s64, s{S_W}", "s_lshl_b32 s64, s64, 10", f"s_add_u32 s64, s64, {WS['KVP']}")
        A(f"v_mov_b32 v51, s{NON}")
        A("s_waitcnt lgkmcnt(6)")
        for j in range(0, 6, 2):
            A(f"v_pk_add_f32 v[{16+j}:{17+j}], v[{16+j}:{17+j}], v[{22+j}:{23+j}]")
        A("s_waitcnt lgkmcnt(0)")
        for j in range(0, 6, 2):
            A(f"v_pk_add_f32 v[{28+j}:{29+j}], v[{28+j}:{29+j}], v[{34+j}:{35+j}]")
        for j in range(0, 6, 2):
            A(f"v_pk_add_f32 v[{16+j}:{17+j}], v[{16+j}:{17+j}], v[{28+j}:{29+j}]")
        for j in range(3):
            A(f"v_cvt_pk_bf16_f32 v{48+j}, v{16+2*j}, v{17+2*j}")
        A("s_mov_b64 s[66:67], exec", "s_mov_b32 exec_lo, -1", "s_mov_b32 exec_hi, 0x3fff")
        A(f"buffer_store_dwordx4 v[48:51], v3, {WSr}, s64 offen sc1")
        self.stamp(5)
        A("s_mov_b64 exec, s[66:67]")
        A.srd(SRD_T0, 8, 524288)
        A(f"s_lshl_b32 s64, s{S_W}, 17", f"s_lshl_b32 s65, s{S_G}, 7", "s_add_u32 s64, s64, s65")
        A(f"s_lshl_b32 s65, s{S_W}, 14")
        for i in range(16):
            A(f"s_add_u32 m0, s65, {WOIMG + i*1024}", f"s_add_u32 s69, s64, {i*8192}")
            A(f"buffer_load_dwordx4 v12, {R4(SRD_T0)}, s69 offen lds")
        if 'kvd' in EXP: A("s_waitcnt vmcnt(0)")
        A("s_mov_b32 exec_lo, -1", "s_mov_b32 exec_hi, 0x3fff")
        A(f"s_lshl_b32 s68, s{S_G}, 6", f"s_add_u32 s68, s68, s{S_W}", "s_lshl_b32 s68, s68, 10", f"s_add_u32 s68, s68, {WS['KVP']}")
        lp, ok, ll, llo = L("kv_poll"), L("kv_ok"), L("kv_light"), L("kv_lightok")
        A(f"s_mov_b32 s72, {POLL_LIMIT}")
        A("v_lshlrev_b32 v5, 12, v0", f"v_add_u32 v5, {45*16+12}, v5")
        A("s_mov_b32 exec_lo, 0xffff", "s_mov_b32 exec_hi, 0")
        A.label(ll)
        A(f"buffer_load_dword v6, v5, {WSr}, s68 offen sc1", "s_waitcnt vmcnt(0)")
        A(f"v_cmp_ne_u32 vcc, s{NON}, v6")
        A("s_sub_u32 s72, s72, 1", f"s_cbranch_scc1 {llo}")
        A(f"s_cbranch_vccnz {ll}")
        A.label(llo)
        A("s_mov_b32 exec_lo, -1", "s_mov_b32 exec_hi, 0x3fff")
        def bulk(fl):
            A("s_mov_b32 s64, s68")
            for r in range(16):
                A(f"buffer_load_dwordx4 v[{64+4*r}:{67+4*r}], v3, {WSr}, s64 offen {fl}")
                if r < 15: A("s_add_u32 s64, s64, 4096")
            A("s_waitcnt vmcnt(0)")
            A(f"v_xor_b32 v52, s{NON}, v67")
            for r in range(1, 16):
                A(f"v_xor_b32 v53, s{NON}, v{67+4*r}", "v_or_b32 v52, v52, v53")
            A("v_cmp_ne_u32 vcc, 0, v52")
        bulk("")
        A(f"s_cbranch_vccz {ok}")
        A.label(lp)
        bulk("sc1")
        A("s_sub_u32 s72, s72, 1", f"s_cbranch_scc1 {ok}")
        A(f"s_cbranch_vccnz {lp}")
        A.label(ok)
        self.stamp(6)
        A("s_mov_b64 exec, s[66:67]")
        for j in range(6): A(f"v_mov_b32 v{16+j}, 0")
        A("v_mov_b32 v24, 0x00003f80", "v_mov_b32 v25, 0x3f800000")
        for r in range(16):
            for j in range(3):
                A(f"v_dot2c_f32_bf16 v{16+2*j}, v{64+4*r+j}, v24")
                A(f"v_dot2c_f32_bf16 v{17+2*j}, v{64+4*r+j}, v25")
        A("s_nop 2")
        for j in range(3):
            A(f"v_cvt_pk_bf16_f32 v{48+j}, v{16+2*j}, v{17+2*j}")
        A("v_mul_u32_u24 v4, 12, v0", f"s_lshl_b32 s66, s{S_W}, 10", f"s_add_u32 s66, s66, {FIN}", "v_add_u32 v4, s66, v4")
        A("s_mov_b64 s[66:67], exec", "s_mov_b32 exec_lo, -1", "s_mov_b32 exec_hi, 0x3fff")
        for j in range(3): A(f"ds_write_b32 v4, v{48+j} offset:{4*j}")
        A("s_mov_b64 exec, s[66:67]")
        A("s_waitcnt lgkmcnt(0)")
        self.stamp(7)
        A("s_barrier")
        A("s_setprio 0")
        for i in range(32): A(f"v_mov_b32 v{P2ACC+i}, 0")
        A("s_waitcnt vmcnt(0)")
        self.stamp(8)
        A("s_barrier")

    def bu_loader_tail(self):
        A, L, vm = self.A, self.L, self.vm
        self.stamp(3)
        A("s_barrier")
        if 'cearly' not in EXP and 'call7' not in EXP:
            self.cregion(2); self.cregion(3)
        self.skip_issue(vm)
        A("v_lshlrev_b32 v13, 4, v0", f"s_lshl_b32 s65, s{S_W}, 13", "v_add_u32 v13, s65, v13")
        for R_ in range(4):
            vm.need(("c", R_))
            if R_ == 2: A("v_add_u32 v13, 0x10000, v13")
            for i in range(8):
                A(f"ds_write_b128 v13, {v(creg(R_, i),4)} offset:{(R_&1)*SLOT + i*1024}")
        A("s_waitcnt lgkmcnt(0)")
        vm.drain()
        self.skip_finish()
        for r in range(16):
            A(f"v_mov_b32 v{P2ACC+r}, 0", f"v_mov_b32 v{P2ACC+16+r}, v{XS+r}")
        self.stamp(4)
        A("s_barrier")

    def flag_addr(self, role, dst):
        A = self.A
        A(f"s_add_u32 s{dst}, s{S_RT}, {0 if role == 'A' else 16}", f"s_lshl_b32 s{dst}, s{dst}, 10", f"s_add_u32 s{dst}, s{dst}, {WS['FLG']}")

    def wave_flag(self, role, vn):
        A = self.A
        self.flag_addr(role, 64)
        A(f"s_lshl_b32 s65, s{S_G}, 7", "s_add_u32 s64, s64, s65", f"s_lshl_b32 s65, s{S_W}, 3", "s_add_u32 s64, s64, s65", "v_mov_b32 v12, 0")
        A("s_mov_b64 s[74:75], exec", "s_mov_b64 exec, 1")
        lf, lj = self.L(f"wf_fast_{role}"), self.L(f"wf_j_{role}")
        A("s_cmp_eq_u32 s73, 1", f"s_cbranch_scc1 {lf}")
        A(f"buffer_store_dwordx2 v[{vn}:{vn+1}], v12, {WSr}, s64 offen sc1")
        A(f"s_branch {lj}")
        A.label(lf)
        A(f"buffer_store_dwordx2 v[{vn}:{vn+1}], v12, {WSr}, s64 offen")
        A.label(lj)
        A("s_mov_b64 exec, s[74:75]")

    def p2_wait(self, role):
        A, L = self.A, self.L
        self.flag_addr(role, 64)
        A(f"s_lshr_b32 s65, s{S_WAVE}, 2", "s_lshl_b32 s65, s65, 9", "s_add_u32 s64, s64, s65")
        lp, done = L(f"fpoll_{role}"), L(f"fpolld_{role}")
        A(f"s_mov_b32 s72, {POLL_LIMIT}")
        if role == "B":
            A("v_lshrrev_b32 v10, 2, v0", "v_lshlrev_b32 v10, 7, v10", "v_and_b32 v11, 3, v0", "v_lshlrev_b32 v11, 3, v11", "v_add_u32 v10, v10, v11")
            A("s_mov_b64 s[74:75], exec", "s_mov_b64 exec, 0xffff")
        else:
            A(f"s_lshl_b32 s65, s{S_W}, 3", "v_lshlrev_b32 v10, 7, v0", "v_add_u32 v10, s65, v10")
            A("s_mov_b64 s[74:75], exec", "s_mov_b64 exec, 0xf")
        A.label(lp)
        A(f"buffer_load_dwordx2 v[8:9], v10, {WSr}, s64 offen sc1")
        A("s_waitcnt vmcnt(0)")
        A(f"v_xor_b32 v8, s{NON}, v8", f"v_xor_b32 v9, s{NON+1}, v9", "v_or_b32 v8, v8, v9")
        A("v_cmp_ne_u32 vcc, 0, v8")
        A("s_sub_u32 s72, s72, 1", f"s_cbranch_scc1 {done}")
        A(f"s_cbranch_vccz {done}")
        for e in EXP:
            if e.startswith('fsl'): A(f"s_sleep {int(e[3:])}")
        A(f"s_branch {lp}")
        A.label(done)
        A("s_mov_b64 exec, s[74:75]")

    def phi_pack(self, acc, n, dst, T):
        A = self.A
        for base in range(0, n, 8):
            for i in range(0, 8, 2):
                A(f"v_pk_mul_f32 v[{T+i}:{T+i+1}], v[{acc+base+i}:{acc+base+i+1}], s[76:77]")
            for i in range(8):
                A(f"v_exp_f32_e64 v{T+i}, v{T+i} clamp")
            for i in range(8):
                A(f"v_max_f32 v{acc+base+i}, 0, v{acc+base+i}")
            for i in range(0, 8, 2):
                A(f"v_pk_add_f32 v[{acc+base+i}:{acc+base+i+1}], v[{acc+base+i}:{acc+base+i+1}], v[{T+i}:{T+i+1}]")
            for i in range(0, 8, 2):
                A(f"v_pk_add_f32 v[{acc+base+i}:{acc+base+i+1}], v[{acc+base+i}:{acc+base+i+1}], s[64:65]")
            for i in range(0, 8, 2):
                A(f"v_cvt_pk_bf16_f32 v{dst+(base+i)//2}, v{acc+base+i}, v{acc+base+i+1}")

    def lam_code(self, P, T):
        A = self.A
        A(f"v_lshlrev_b32 v{P}, 16, v{P}", f"v_lshlrev_b32 v{P+1}, 16, v{P+1}", f"v_lshlrev_b32 v{P+2}, 16, v{P+2}")
        A(f"v_mul_f32 v{T}, {LOG2E:#x}, v{P+2}", f"v_exp_f32 v{T}, v{T}", "s_nop 0")
        A(f"v_cvt_pk_bf16_f32 v{T}, v{T}, v{T}", f"v_lshlrev_b32 v{T}, 16, v{T}")
        A(f"v_mul_f32 v{T+1}, v{T}, v{P}", f"v_mul_f32 v{T+2}, v{T}, v{P+1}")
        A(f"v_mul_f32 v{T+1}, {LOG2E:#x}, v{T+1}", f"v_mul_f32 v{T+2}, {INV2PI:#x}, v{T+2}")
        A(f"v_exp_f32 v{T+1}, v{T+1}", f"v_fract_f32 v{T+2}, v{T+2}", "s_nop 0")
        A(f"v_cos_f32 v{P+3}, v{T+2}", f"v_sin_f32 v{P+4}, v{T+2}", "s_nop 0")
        A(f"v_mul_f32 v{P+3}, v{P+3}, v{T+1}", f"v_mul_f32 v{P+4}, v{P+4}, v{T+1}")

    def csq(self, d, s_, t):
        A = self.A
        A(f"v_mul_f32 v{t}, v{s_+1}, v{s_+1}", f"v_mul_f32 v{d+1}, v{s_}, v{s_+1}")
        A(f"v_fma_f32 v{d}, v{s_}, v{s_}, -v{t}", f"v_add_f32 v{d+1}, v{d+1}, v{d+1}")

    def cfma(self, dr, di, ar, ai, br, bi, cr, ci):
        A = self.A
        A(f"v_fma_f32 v{dr}, v{ar}, v{br}, v{cr}", f"v_fma_f32 v{di}, v{ar}, v{bi}, v{ci}")
        A(f"v_fma_f32 v{dr}, -v{ai}, v{bi}, v{dr}", f"v_fma_f32 v{di}, v{ai}, v{br}, v{di}")

    def qkv_compute(self):
        A, L = self.A, self.L
        ACC, WF, XF, TMP = 16, 80, 112, 240
        VA, VW = 4, 8
        lg = Lgkm(A)
        A("v_and_b32 v10, 31, v0", "v_lshrrev_b32 v11, 5, v0")
        A(f"s_lshl_b32 s64, s{S_W}, 5", "v_add_u32 v12, s64, v10", "v_lshlrev_b32 v12, 7, v12")
        A("v_lshrrev_b32 v13, 1, v10", "v_and_b32 v13, 7, v13", "v_xor_b32 v13, v13, v11", "v_lshlrev_b32 v13, 4, v13")
        A(f"v_add_u32 v{VA}, v12, v13")
        for ks in range(1, 4): A(f"v_xor_b32 v{VA+ks}, {32*ks}, v{VA}")
        A("v_lshrrev_b32 v12, 5, v0", "v_lshlrev_b32 v12, 3, v12", "v_bfe_u32 v13, v0, 2, 2", "v_add_u32 v12, v12, v13", "v_lshlrev_b32 v12, 7, v12")
        A("v_bfe_u32 v13, v0, 3, 1", "v_lshlrev_b32 v13, 6, v13", "v_add_u32 v12, v12, v13")
        A("v_bfe_u32 v13, v0, 4, 1", "v_lshlrev_b32 v13, 5, v13", "v_add_u32 v12, v12, v13")
        A("v_and_b32 v13, 3, v0", "v_lshlrev_b32 v13, 3, v13", f"v_add_u32 v{VW}, v12, v13")
        A(f"v_xor_b32 v{VW+1}, 64, v{VW}")
        A(f"v_add_u32 v2, {3*SLOT}, v{VW}", f"v_add_u32 v3, {3*SLOT}, v{VW+1}")
        A(f"s_mov_b32 s76, {LOG2E:#x}", f"s_mov_b32 s77, {LOG2E:#x}")
        A("v_cmp_gt_u32 s[74:75], 16, v10")
        for i in range(64): A(f"v_mov_b32 v{ACC+i}, 0")
        A("v_and_b32 v12, 15, v10", "v_lshlrev_b32 v13, 4, v11", "v_add_u32 v12, v12, v13", "v_lshlrev_b32 v12, 5, v12")
        A("v_lshrrev_b32 v13, 4, v10", f"v_mul_u32_u24 v13, {PART_STRIDE}, v13", "v_add_u32 v12, v12, v13")
        A(f"s_mul_i32 s66, s{S_W}, {4*PART_STRIDE}", f"s_add_u32 s66, s66, {PARTQ}", "v_add_u32 v12, s66, v12")
        A("v_lshlrev_b32 v14, 5, v11", "v_add_u32 v14, v14, v13", "v_add_u32 v14, s66, v14", "v_add_u32 v14, 1024, v14")
        A("s_waitcnt lgkmcnt(0)")
        self.pf_srds("A")
        self.l2_prefetch("A", 0, 250)
        self.l2_prefetch("A", 4, 250) if 'pfall' in EXP else None
        A.srd(SRD_WS, 32, 268435456)
        self.mode_announce("A")
        self.flag_touch("A", 245)
        self.page_touch("A", 252)
        self.weight_touch(242)
        A("v_cmp_gt_u32 s[74:75], 16, v10")
        def reads(s_, ks):
            buf = (s_ * 4 + ks) & 1
            out = [(f"ds_read_b128 {v(XF + (s_*4+ks)*4, 4)}, v{VA+ks}", ("x", s_, ks))]
            for nt in range(4):
                part, sub = nt >> 1, nt & 1
                for a_ in range(2):
                    off = 16384 + part * 8192 + (16 * ks + 4 * a_) * 128
                    out.append((f"ds_read_b64_tr_b16 {v(WF + buf*16 + nt*4 + 2*a_, 2)}, v{VW+sub} offset:{off}", ("w", s_, ks, nt)))
            return out
        self.pf_srds("A")
        if 'prio' in EXP: A("s_setprio 2")
        A("s_barrier")
        self.stamp(1)
        for ins, tag in reads(0, 0): lg.issue(ins, tag)
        if 'pfall' not in EXP: self.l2_prefetch("A", 4, 250)
        for s_ in range(8):
            for ks in range(4):
                nxt = (s_, ks + 1) if ks < 3 else ((s_ + 1, 0) if s_ < 7 else None)
                if ks == 3 and s_ < 7:
                    A("s_barrier")
                    self.sstamp(3 + s_)
                    d = SLOT if (s_ + 1) % NSLOT != 0 else -(NSLOT - 1) * SLOT
                    for r in list(range(VA, VA + 4)) + [VW, VW + 1]:
                        A(f"v_add_u32 v{r}, {d & 0xffffffff:#x}, v{r}")
                nr = reads(*nxt) if nxt else []
                buf = (s_ * 4 + ks) & 1
                xf = v(XF + (s_ * 4 + ks) * 4, 4)
                for nt in range(4):
                    if nt == 0: lg.need(("x", s_, ks), ("w", s_, ks, 0))
                    else: lg.need(("w", s_, ks, nt))
                    A(f"v_mfma_f32_32x32x16_bf16 {v(ACC+16*nt,16)}, {xf}, {v(WF+buf*16+nt*4,4)}, {v(ACC+16*nt,16)}")
                    if nr:
                        for ins, tag in (nr[0:3] if nt == 0 else nr[1 + 2*nt: 3 + 2*nt]):
                            lg.issue(ins, tag)
        self.stamp(2)
        A("s_waitcnt vmcnt(0)")
        A(f"s_mov_b32 s64, {EPS:#x}", f"s_mov_b32 s65, {EPS:#x}")
        for i in range(4): A(f"v_mov_b32 v{TMP+8+i}, 0x3f803f80")
        A("s_nop 3")
        ONES = TMP + 8
        def kvm(hp):
            kv = ACC + 16 * hp; z = ACC + 32 + 16 * hp
            A(f"v_mfma_f32_32x32x16_bf16 {v(kv,16)}, {v(WF+8*hp,4)}, {v(WF+16+8*hp,4)}, 0")
            A(f"v_mfma_f32_32x32x16_bf16 {v(z,16)}, {v(WF+8*hp,4)}, {v(ONES,4)}, 0")
            A(f"v_mfma_f32_32x32x16_bf16 {v(kv,16)}, {v(WF+8*hp+4,4)}, {v(WF+16+8*hp+4,4)}, {v(kv,16)}")
            A(f"v_mfma_f32_32x32x16_bf16 {v(z,16)}, {v(WF+8*hp+4,4)}, {v(ONES,4)}, {v(z,16)}")
        def vpack(hp):
            for i in range(0, 16, 2):
                A(f"v_cvt_pk_bf16_f32 v{WF+16+8*hp+i//2}, v{ACC+32+16*hp+i}, v{ACC+33+16*hp+i}")
        def pwrite(hp):
            kv = ACC + 16 * hp; z = ACC + 32 + 16 * hp
            T0 = WF + 16 * hp if False else XF_FREE
            for j in range(8):
                A(f"v_cndmask_b32 v{T0+j}, v{kv+8+j}, v{kv+j}, s[74:75]")
            for j in range(8):
                A(f"v_cndmask_b32 v{T0+8+j}, v{z+8+j}, v{z+j}, s[74:75]")
            A(f"ds_write_b128 v12, {v(T0,4)} offset:{hp*2*PART_STRIDE}")
            A(f"ds_write_b128 v12, {v(T0+4,4)} offset:{hp*2*PART_STRIDE+16}")
            A("s_mov_b64 s[66:67], exec", "s_mov_b32 exec_lo, 0x00010001", "s_mov_b32 exec_hi, 0x00010001")
            A(f"ds_write_b128 v14, {v(T0+8,4)} offset:{hp*2*PART_STRIDE}")
            A(f"ds_write_b128 v14, {v(T0+12,4)} offset:{hp*2*PART_STRIDE+16}")
            A("s_mov_b64 exec, s[66:67]")
        self.phi_pack(ACC, 16, WF, TMP)
        vpack(0)
        A("s_nop 1")
        kvm(0)
        self.phi_pack(ACC + 16, 16, WF + 8, TMP)
        vpack(1)
        A("s_nop 1")
        kvm(1)
        XF_FREE = WF
        A("s_nop 1")
        pwrite(0)
        A("s_waitcnt lgkmcnt(0)")
        A("s_nop 4")
        pwrite(1)
        A("s_waitcnt lgkmcnt(0)")
        self.stamp(3)
        A("s_barrier")
        self.mode_load("A", 250)
        for i in range(32): A(f"v_mov_b32 v{ACC+i}, 0")
        lg = Lgkm(A)
        NB = 4
        def qreads(step):
            idx, ks = step >> 2, step & 3
            a9, u = idx >> 2, idx & 3
            b = WF + (step % NB) * 8
            out = []
            for sub in range(2):
                for a_ in range(2):
                    off = a9 * SLOT + u * 8192 + (16 * ks + 4 * a_) * 128
                    out.append((f"ds_read_b64_tr_b16 {v(b + sub*4 + 2*a_, 2)}, v{2+sub} offset:{off}", ("q", step, sub)))
            return out
        for st in range(3):
            for ins, tag in qreads(st): lg.issue(ins, tag)
        for step in range(32):
            b = WF + (step % NB) * 8
            xf = v(XF + step * 4, 4)
            nr = qreads(step + 3) if step + 3 < 32 else []
            for sub in range(2):
                lg.need(("q", step, sub))
                A(f"v_mfma_f32_32x32x16_bf16 {v(ACC+16*sub,16)}, {v(b+4*sub,4)}, {xf}, {v(ACC+16*sub,16)}")
                for ins, tag in nr[2*sub:2*sub+2]: lg.issue(ins, tag)
        self.stamp(4)
        A(f"s_mov_b32 s64, {EPS:#x}", f"s_mov_b32 s65, {EPS:#x}")
        for i in range(32): A(f"v_mov_b32 v{P2ACC+i}, 0")
        self.phi_pack(ACC, 16, WF, TMP)
        self.phi_pack(ACC + 16, 16, WF + 8, TMP)
        A("v_lshlrev_b32 v13, 4, v11", "v_add_u32 v13, v13, v10", "v_lshlrev_b32 v13, 4, v13")
        A("v_lshlrev_b32 v15, 4, v11", "v_add_u32 v15, 512, v15", "v_cndmask_b32 v13, v15, v13, s[74:75]", f"v_add_u32 v13, {FIN}, v13")
        A("v_lshlrev_b32 v12, 4, v0")
        A(f"s_lshl_b32 s64, s{S_RT}, 2", f"s_add_u32 s64, s64, s{S_W}", "s_lshl_b32 s64, s64, 5", f"s_lshl_b32 s65, s{S_G}, 2", "s_add_u32 s64, s64, s65", "s_lshl_b32 s64, s64, 10")
        A("s_waitcnt vmcnt(0)")
        self.mode_resolve("A", 250, "qc")
        self.stamp(5)
        A("s_barrier")
        self.stamp(6)
        A(f"v_mov_b32 v15, {NONCEQ}", "ds_read_b64 v[250:251], v15")
        for hl in range(4):
            A(f"ds_read_b128 {v(WF+16+4*hl,4)}, v13 offset:{hl*1024}")
        for hl in range(4):
            hp, a_ = hl >> 1, hl & 1
            A(f"s_waitcnt lgkmcnt({3-hl})")
            A(f"v_mfma_f32_32x32x16_bf16 {v(ACC+16*hl,16)}, {v(WF+16+4*hl,4)}, {v(WF+8*hp+4*a_,4)}, 0")
        A("s_nop 7")
        for hl in range(4):
            d = ACC + 16 * hl
            if hl == 3: A("s_nop 3")
            A(f"v_add_f32 v{d+8}, {EPS:#x}, v{d+8}")
        for hl in range(4):
            A(f"v_rcp_f32 v{ACC+16*hl+8}, v{ACC+16*hl+8}")
        A("s_nop 0")
        for hl in range(4):
            d = ACC + 16 * hl
            for j in range(0, 8, 2):
                A(f"v_pk_mul_f32 v[{d+j}:{d+j+1}], v[{d+j}:{d+j+1}], v[{d+8}:{d+9}] op_sel_hi:[1,0]")
            for j in range(4):
                A(f"v_cvt_pk_bf16_f32 v{d+12+j}, v{d+2*j}, v{d+2*j+1}")
        for hl in range(4):
            A(f"buffer_store_dwordx4 {v(ACC+16*hl+12,4)}, v12, {WSr}, s64 offen offset:{hl*1024} sc1")
        A(f"v_readfirstlane_b32 s{NON}, v250", f"v_readfirstlane_b32 s{NON+1}, v251")
        A("s_barrier")
        A("s_waitcnt vmcnt(0)")
        self.wave_flag("A", 250)
        self.stamp(7)

    def bu_compute(self):
        A, L = self.A, self.L
        RE, IM, AF, BF = 16, 48, 80, 144
        C = 160
        lg = Lgkm(A)
        A("v_and_b32 v10, 15, v0", "v_lshrrev_b32 v11, 4, v0")
        A(f"s_lshl_b32 s64, s{S_G}, 6", f"s_lshl_b32 s65, s{S_W}, 4", "s_add_u32 s64, s64, s65", "s_lshl_b32 s64, s64, 1")
        A("v_lshlrev_b32 v12, 1, v10")
        A("v_lshrrev_b32 v13, 1, v10", "v_xor_b32 v13, v13, v11", "v_lshlrev_b32 v13, 4, v13", "v_lshlrev_b32 v14, 7, v10", "v_add_u32 v4, v13, v14")
        A("v_xor_b32 v5, 64, v4")
        A(f"s_lshl_b32 s65, s{S_W}, 11", "s_add_u32 s65, s65, 16384")
        A("v_add_u32 v6, s65, v4", "v_add_u32 v7, s65, v5")
        for i in range(64): A(f"v_mov_b32 v{RE+i}, 0")
        A("s_waitcnt lgkmcnt(0)")
        A.srd(SRD_WS, 32, 268435456)
        A.srd(SRD_T0, 12, 1024); A.srd(SRD_T1, 14, 1024); A.srd(SRD_T2, 24, 1024)
        A(f"buffer_load_ushort v{C}, v12, {R4(SRD_T0)}, s64 offen")
        A(f"buffer_load_ushort v{C+1}, v12, {R4(SRD_T1)}, s64 offen")
        A(f"buffer_load_ushort v{C+2}, v12, {R4(SRD_T2)}, s64 offen")
        self.pf_srds("B")
        self.l2_prefetch("B", 0, 250)
        if 'pfall' in EXP: self.l2_prefetch("B", 4, 250)
        A(f"s_waitcnt vmcnt({0 if 'pf' not in EXP else 6 if 'pfall' in EXP else 3})")
        self.mode_announce("B")
        self.flag_touch("B", 243)
        self.page_touch("B", 252)
        self.weight_touch(240)
        self.lam_code(C, C + 8)
        A(f"v_mov_b32 v166, v{C+3}", f"v_mov_b32 v167, v{C+4}")
        A("v_add_f32 v163, -1.0, v163")
        A("v_mul_f32 v168, v160, v160", "v_fma_f32 v168, v161, v161, v168", "v_rcp_f32 v168, v168")
        A("v_mul_f32 v169, v163, v160", "v_fma_f32 v169, v167, v161, v169")
        A("v_mul_f32 v170, v167, v160", "v_fma_f32 v170, -v163, v161, v170")
        A("v_add_f32 v168, v168, v168")
        A("v_mul_f32 v164, v169, v168", "v_mul_f32 v165, v170, v168")
        self.csq(174, 166, 176); self.csq(178, 174, 176); self.csq(174, 178, 176); self.csq(168, 174, 176)
        self.csq(170, 168, 176); self.csq(174, 170, 176); self.csq(172, 174, 176)
        self.csq(214, 172, 176); self.csq(218, 214, 176)
        A("v_mul_f32 v216, v214, v172", "v_mul_f32 v217, v214, v173", "v_fma_f32 v216, -v215, v173, v216", "v_fma_f32 v217, v215, v172, v217")
        def reads(s_, k2):
            buf = (s_ * 2 + k2) & 1
            out = [(f"ds_read_b128 {v(BF + buf*8, 4)}, v{6+k2} offset:0", ("b", s_, k2, 0)),
                   (f"ds_read_b128 {v(BF + buf*8 + 4, 4)}, v{6+k2} offset:8192", ("b", s_, k2, 1))]
            for mt in range(8):
                out.append((f"ds_read_b128 {v(AF + buf*32 + mt*4, 4)}, v{4+k2} offset:{mt*2048}", ("a", s_, k2, mt)))
            return out
        self.pf_srds("B")
        if 'prio' in EXP: A("s_setprio 2")
        A("s_barrier")
        self.stamp(1)
        for ins, tag in reads(0, 0): lg.issue(ins, tag)
        if 'pfall' not in EXP: self.l2_prefetch("B", 4, 250)
        for s_ in range(8):
            for k2 in range(2):
                nxt = (s_, 1) if k2 == 0 else ((s_ + 1, 0) if s_ < 7 else None)
                if k2 == 1 and s_ < 7:
                    A("s_barrier")
                    self.sstamp(3 + s_)
                    d = SLOT if (s_ + 1) % NSLOT != 0 else -(NSLOT - 1) * SLOT
                    for r in range(4, 8):
                        A(f"v_add_u32 v{r}, {d & 0xffffffff:#x}, v{r}")
                nr = reads(*nxt) if nxt else []
                if nxt is None:
                    nr = []
                buf = (s_ * 2 + k2) & 1
                for mt in range(8):
                    if mt == 0: lg.need(("b", s_, k2, 0), ("b", s_, k2, 1), ("a", s_, k2, 0))
                    else: lg.need(("a", s_, k2, mt))
                    af = v(AF + buf*32 + mt*4, 4)
                    A(f"v_mfma_f32_16x16x32_bf16 {v(RE+4*mt,4)}, {af}, {v(BF+buf*8,4)}, {v(RE+4*mt,4)}")
                    A(f"v_mfma_f32_16x16x32_bf16 {v(IM+4*mt,4)}, {af}, {v(BF+buf*8+4,4)}, {v(IM+4*mt,4)}")
                    if nr:
                        for ins, tag in (nr[0:3] if mt == 0 else [nr[2 + mt]]):
                            lg.issue(ins, tag)
                    if nxt is None and mt == 0:
                        A(f"v_mov_b32 v12, {NONCE}")
                        lg.issue("ds_read_b64 v[230:231], v12", "nonce")
        self.stamp(2)
        def pr(base, sg): return base + 4 * (sg >> 1) + 2 * (sg & 1)
        E0, E1_ = 180, 184
        Lr = "v[166:167]"
        def step(dre, dim, sre, sim, ure, uim, M=Lr):
            A(f"v_pk_fma_f32 v[{dre}:{dre+1}], v[{sre}:{sre+1}], {M}, v[{ure}:{ure+1}] op_sel_hi:[1,0,1]")
            A(f"v_pk_fma_f32 v[{dim}:{dim+1}], v[{sim}:{sim+1}], {M}, v[{uim}:{uim+1}] op_sel_hi:[1,0,1]")
            A(f"v_pk_fma_f32 v[{dre}:{dre+1}], v[{sim}:{sim+1}], {M}, v[{dre}:{dre+1}] op_sel:[0,1,0] op_sel_hi:[1,1,1] neg_lo:[0,1,0] neg_hi:[0,1,0]")
            A(f"v_pk_fma_f32 v[{dim}:{dim+1}], v[{sre}:{sre+1}], {M}, v[{dim}:{dim+1}] op_sel:[0,1,0] op_sel_hi:[1,1,1]")
        A(f"s_lshl_b32 s64, s{S_G}, 4", f"s_add_u32 s64, s64, s{S_RT}", "s_lshl_b32 s64, s64, 6", f"s_lshl_b32 s65, s{S_W}, 4", "s_add_u32 s64, s64, s65", "s_lshl_b32 s64, s64, 4", f"s_add_u32 s64, s64, {WS['ES']}")
        A("v_lshlrev_b32 v13, 4, v10", "v_lshlrev_b32 v12, 2, v10")
        cur = (pr(RE, 0), pr(IM, 0))
        for sg in range(1, 16):
            d = E0 if sg & 1 else E1_
            step(d, d + 2, cur[0], cur[1], pr(RE, sg), pr(IM, sg))
            cur = (d, d + 2)
        er, ei = cur
        self.cfma(188, 189, 168, 169, er, ei, er + 1, ei + 1)
        for qq in range(4):
            A(f"v_add_u32 v{14 + (qq&1)}, {64*qq}, v12")
            A(f"ds_bpermute_b32 v{190+2*qq}, v{14 + (qq&1)}, v188", f"ds_bpermute_b32 v{191+2*qq}, v{14 + (qq&1)}, v189")
        A("s_waitcnt lgkmcnt(0)")
        self.cfma(198, 199, 170, 171, 190, 191, 192, 193)
        self.cfma(200, 201, 170, 171, 198, 199, 194, 195)
        self.cfma(228, 229, 170, 171, 200, 201, 196, 197)
        A("s_mov_b64 s[66:67], exec", "s_mov_b64 exec, 0xffff")
        A(f"buffer_store_dwordx4 v[228:231], v13, {WSr}, s64 offen sc1")
        A("s_mov_b64 exec, s[66:67]")
        self.stamp(3)
        A("s_barrier")
        self.skip_issue()
        self.mode_load("B", 224)
        K2 = "v[164:165]"
        for sg in range(16):
            r_, i_ = pr(RE, sg), pr(IM, sg)
            A(f"v_pk_mul_f32 v[232:233], v[{i_}:{i_+1}], {K2} op_sel:[0,1] op_sel_hi:[1,1]")
            A(f"v_pk_mul_f32 v[234:235], v[{r_}:{r_+1}], {K2} op_sel:[0,1] op_sel_hi:[1,1]")
            A(f"v_pk_fma_f32 v[{r_}:{r_+1}], v[{r_}:{r_+1}], {K2}, v[232:233] op_sel_hi:[1,0,1] neg_lo:[0,0,1] neg_hi:[0,0,1]")
            A(f"v_pk_fma_f32 v[{i_}:{i_+1}], v[{i_}:{i_+1}], {K2}, v[234:235] op_sel_hi:[1,0,1]")
        if 'epre' in EXP:
            A("s_waitcnt vmcnt(0)")
            self.skip_finish()
            for r in range(16):
                A(f"v_mov_b32 v{P2ACC+r}, v{XS+r}", f"v_mov_b32 v{P2ACC+16+r}, 0")
        self.stamp(4)
        A(f"s_lshl_b32 s64, s{S_G}, 10", f"s_lshl_b32 s65, s{S_W}, 4", "s_add_u32 s64, s64, s65", "s_lshl_b32 s64, s64, 4", f"s_add_u32 s64, s64, {WS['ES']}")
        A("v_lshlrev_b32 v13, 4, v10")
        lp, lgd, lok, ltd, lz, ldone = L("e_poll"), L("e_gd"), L("e_ok"), L("e_td"), L("e_zero"), L("e_done")
        A("v_lshlrev_b32 v14, 10, v11", "v_add_u32 v14, v14, v13")
        A(f"s_cmp_eq_u32 s{S_RT}, 0", f"s_cbranch_scc1 {lz}")
        for i in range(4):
            A(f"v_add_u32 v15, {4*i}, v11", f"v_cmp_gt_u32 s[{52+2*i}:{53+2*i}], s{S_RT}, v15")
        A(f"s_mov_b32 s72, {POLL_LIMIT}")
        A.label(lp)
        A("s_mov_b32 s65, s64")
        for i in range(4):
            A(f"s_cmp_le_u32 s{S_RT}, {4*i}", f"s_cbranch_scc1 {lgd}")
            A(f"buffer_load_dwordx4 v[{80+4*i}:{83+4*i}], v14, {WSr}, s65 offen sc1")
            if i < 3: A("s_add_u32 s65, s65, 4096")
        A.label(lgd)
        A("v_mov_b32 v236, 0")
        A("s_waitcnt vmcnt(0)")
        for i in range(4):
            A(f"s_cmp_le_u32 s{S_RT}, {4*i}", f"s_cbranch_scc1 {ltd}")
            A(f"v_xor_b32 v237, v230, v{82+4*i}", f"v_xor_b32 v238, v231, v{83+4*i}", "v_or_b32 v237, v237, v238")
            A(f"v_cndmask_b32 v237, 0, v237, s[{52+2*i}:{53+2*i}]", "v_or_b32 v236, v236, v237")
        A.label(ltd)
        A("v_cmp_ne_u32 vcc, 0, v236")
        A("s_sub_u32 s72, s72, 1", f"s_cbranch_scc1 {lok}")
        A(f"s_cbranch_vccnz {lp}")
        A.label(lok)
        A("v_mov_b32 v204, 0", "v_mov_b32 v205, 0")
        for i in range(4):
            self.cfma(206, 207, 218, 219, 204, 205, 80 + 4*i, 81 + 4*i)
            A(f"v_cndmask_b32 v204, v204, v206, s[{52+2*i}:{53+2*i}]", f"v_cndmask_b32 v205, v205, v207, s[{52+2*i}:{53+2*i}]")
        A(f"s_sub_u32 s65, s{S_RT}, 1", "v_sub_u32 v15, s65, v11", "v_and_b32 v15, 3, v15")
        A("v_mov_b32 v206, 1.0", "v_mov_b32 v207, 0")
        for e, (wr, wi) in enumerate(((172, 173), (214, 215), (216, 217)), start=1):
            A(f"v_cmp_eq_u32 vcc, {e}, v15", "s_nop 1")
            A(f"v_cndmask_b32 v206, v206, v{wr}, vcc", f"v_cndmask_b32 v207, v207, v{wi}, vcc")
        A("v_mul_f32 v236, v204, v206", "v_mul_f32 v237, v204, v207")
        A("v_fma_f32 v236, -v205, v207, v236", "v_fma_f32 v237, v205, v206, v237")
        A("v_mov_b32 v238, v236", "v_mov_b32 v206, v237", "s_nop 1")
        A("v_permlane32_swap_b32 v236, v238", "v_permlane32_swap_b32 v237, v206", "s_nop 1")
        A("v_add_f32 v236, v236, v238", "v_add_f32 v237, v237, v206")
        A("v_mov_b32 v238, v236", "v_mov_b32 v206, v237", "s_nop 1")
        A("v_permlane16_swap_b32 v236, v238", "v_permlane16_swap_b32 v237, v206", "s_nop 1")
        A("v_add_f32 v204, v236, v238", "v_add_f32 v205, v237, v206")
        A(f"s_branch {ldone}")
        A.label(lz)
        A("v_mov_b32 v204, 0", "v_mov_b32 v205, 0", "s_waitcnt vmcnt(0)")
        A.label(ldone)
        self.mode_resolve("B", 224, "bc")
        self.stamp(5)
        self.cfma(198, 199, 170, 171, 204, 205, 190, 191)
        self.cfma(200, 201, 170, 171, 198, 199, 192, 193)
        self.cfma(202, 203, 170, 171, 200, 201, 194, 195)
        for qq, (sr, si) in enumerate(((198, 199), (200, 201), (202, 203)), start=1):
            A(f"v_cmp_eq_u32 vcc, {qq}, v11", "s_nop 1")
            A(f"v_cndmask_b32 v204, v204, v{sr}, vcc", f"v_cndmask_b32 v205, v205, v{si}, vcc")
        self.cfma(206, 207, 168, 169, 204, 205, er, ei)
        def cmul(dr, di, ar, ai):
            A(f"v_mul_f32 v{dr}, v{ar}, v164", f"v_mul_f32 v{di}, v{ar}, v165")
            A(f"v_fma_f32 v{dr}, -v{ai}, v165, v{dr}", f"v_fma_f32 v{di}, v{ai}, v164, v{di}")
        cmul(208, 210, 204, 205)
        cmul(209, 211, 206, 207)
        A(f"s_lshl_b32 s64, s{S_W}, 13", f"s_add_u32 s64, s64, {MISC}")
        A("v_lshlrev_b32 v12, 6, v11", "v_lshlrev_b32 v13, 4, v10", "v_xor_b32 v12, v12, v13", "v_lshlrev_b32 v13, 8, v10", "v_add_u32 v12, v12, v13", "v_add_u32 v12, s64, v12")
        for c in range(1, 4): A(f"v_xor_b32 v{212+c}, {16*c}, v12")
        A("v_bfe_u32 v13, v0, 4, 1", "v_lshlrev_b32 v13, 5, v13", "v_and_b32 v14, 3, v0", "v_lshlrev_b32 v14, 3, v14", "v_add_u32 v13, v13, v14")
        A("v_bfe_u32 v14, v0, 2, 2", "v_lshlrev_b32 v15, 4, v14", "v_xor_b32 v13, v13, v15", "v_lshlrev_b32 v14, 8, v14", "v_add_u32 v13, v13, v14")
        A("v_lshrrev_b32 v14, 5, v0", "v_lshlrev_b32 v14, 12, v14", "v_add_u32 v13, v13, v14", "v_add_u32 v13, s64, v13")
        cur = (208, 210)
        def pack(pl_, c):
            base, neg = (RE, "") if pl_ == 0 else (IM, "-")
            for j in range(4):
                sg = 8 * (c & 1) + 2 * j
                r0, r1 = pr(base, sg) + (c >> 1), pr(base, sg + 1) + (c >> 1)
                A(f"v_cvt_pk_bf16_f32 v{80 + 16*pl_ + 4*c + j}, {neg}v{r0}, {neg}v{r1}")
            A(f"ds_write_b128 v{12 if c == 0 else 212+c}, {v(80 + 16*pl_ + 4*c, 4)} offset:{pl_*4096}")
        for sg in range(16):
            d = (pr(RE, sg), pr(IM, sg))
            step(d[0], d[1], cur[0], cur[1], d[0], d[1])
            cur = d
            if sg == 8:
                for pl_ in range(2):
                    pack(pl_, 0); pack(pl_, 2)
        self.stamp(6)
        for pl_ in range(2):
            pack(pl_, 1); pack(pl_, 3)
        A(f"s_lshl_b32 s64, s{S_RT}, 8", f"s_lshl_b32 s65, s{S_G}, 3", "s_add_u32 s64, s64, s65", f"s_lshl_b32 s65, s{S_W}, 1", "s_add_u32 s64, s64, s65", "s_lshl_b32 s64, s64, 10", f"s_add_u32 s64, s64, {WS['H']}")
        A("v_lshlrev_b32 v12, 4, v0")
        A("s_waitcnt lgkmcnt(0)")
        for rb in range(4):
            for ksl in range(2):
                for a_ in range(2):
                    off = (8 * ksl + 4 * a_) * 256 + ((64 * rb) ^ (128 * ksl + 64 * a_))
                    A(f"ds_read_b64_tr_b16 {v(16 + (rb*2+ksl)*4 + 2*a_, 2)}, v13 offset:{off}")
        for rb in range(4):
            A(f"s_waitcnt lgkmcnt({min(15, 12-4*rb)})")
            for ksl in range(2):
                A(f"buffer_store_dwordx4 {v(16 + (rb*2+ksl)*4, 4)}, v12, {WSr}, s64 offen offset:{ksl*1024} sc1")
            if rb < 3: A("s_add_u32 s64, s64, 0x10000")
        self.stamp(7)
        if 'epre' not in EXP:
            self.skip_finish()
            for r in range(16):
                A(f"v_mov_b32 v{P2ACC+r}, v{XS+r}", f"v_mov_b32 v{P2ACC+16+r}, 0")
        A(f"v_readfirstlane_b32 s{NON}, v230", f"v_readfirstlane_b32 s{NON+1}, v231")
        A("s_barrier")
        A("s_waitcnt vmcnt(0)")
        self.wave_flag("B", 230)
        self.stamp(8)

    def p2(self, role):
        A, L = self.A, self.L
        self.stamp(9)
        if 'prio' in EXP: A("s_setprio 0")
        nk = 32 if role == "A" else 64
        nst = nk // 2
        abase = WS["O"] if role == "A" else WS["H"]
        ACC, BF, AF = P2ACC, 48, 80
        NBUF, LA = 4, 7
        A(f"s_lshr_b32 s64, s{S_WAVE}, 2", f"s_and_b32 s65, s{S_WAVE}, 3")
        A("v_lshlrev_b32 v2, 4, v0")
        A(f"s_lshl_b32 s66, s{S_RT}, 2", "s_add_u32 s66, s66, s65", f"s_mul_i32 s66, s66, {nk*1024}")
        A(f"s_mul_i32 s67, s64, {nst*1024}", "s_add_u32 s66, s66, s67", f"s_add_u32 s66, s66, {abase}")
        def aload(k):
            A(f"buffer_load_dwordx4 {v(AF + 4*(k % 8), 4)}, v2, {WSr}, s66 offen offset:{(k % 4)*1024}")
            if k % 4 == 3: A("s_add_u32 s66, s66, 4096")
        A("v_and_b32 v5, 31, v0", "v_lshrrev_b32 v6, 5, v0")
        A(f"s_lshl_b32 s68, s{S_RT}, 7", "s_lshl_b32 s69, s65, 5", "s_add_u32 s68, s68, s69")
        A(f"s_lshl_b32 s69, s{S_G}, 6", "s_lshl_b32 s70, s64, 5", "s_add_u32 s69, s69, s70")
        lg = Lgkm(A)
        if role == "A":
            A("v_lshlrev_b32 v12, 2, v6", "v_bfe_u32 v13, v0, 2, 2", "v_add_u32 v12, v12, v13", "v_lshlrev_b32 v12, 7, v12")
            A("v_bfe_u32 v13, v0, 3, 1", "v_lshlrev_b32 v13, 6, v13", "v_add_u32 v12, v12, v13")
            A("v_bfe_u32 v13, v0, 4, 1", "v_lshlrev_b32 v13, 5, v13", "v_add_u32 v12, v12, v13")
            A("v_and_b32 v13, 3, v0", "v_lshlrev_b32 v13, 3, v13", "v_add_u32 v12, v12, v13")
            A("s_lshl_b32 s70, s64, 15", f"s_add_u32 s70, s70, {WOIMG}", "v_add_u32 v3, s70, v12", "v_xor_b32 v4, 64, v3")
            def bread(k):
                b = BF + 8 * (k % NBUF)
                for cb in range(2):
                    for a_ in range(2):
                        lg.issue(f"ds_read_b64_tr_b16 {v(b + 4*cb + 2*a_, 2)}, v{3+cb} offset:{(16*k + 8*a_)*128}", ("b", k))
        else:
            A("v_lshlrev_b32 v12, 16, v6", "v_lshlrev_b32 v13, 10, v5", "v_add_u32 v12, v12, v13")
            A("v_and_b32 v13, 15, v5", "v_lshlrev_b32 v13, 4, v13", "v_add_u32 v12, v12, v13")
            A("s_lshl_b32 s70, s64, 9", "v_add_u32 v3, s70, v12")
            def bread(k):
                b = BF + 8 * (k % NBUF)
                t = 8 + (k % 4)
                A(f"v_xor_b32 v{t}, {(k & 15) * 16}, v3")
                for cb in range(2):
                    lg.issue(f"ds_read_b128 {v(b + 4*cb, 4)}, v{t} offset:{(k >> 4) * 256 + cb * 32768}", ("b", k))
        for k in range(NBUF - 1): bread(k)
        A("s_mov_b32 s76, s64", "s_mov_b32 s77, s66")
        self.p2_wait(role)
        A("s_mov_b32 s64, s76", "s_mov_b32 s66, s77")
        for k in range(LA): aload(k)
        self.stamp(10)
        for k in range(nst):
            if k + LA < nst: aload(k + LA)
            if k + NBUF - 1 < nst: bread(k + NBUF - 1)
            rem = min(nst - 1 - k, LA)
            A(f"s_waitcnt vmcnt({rem})")
            lg.need(("b", k))
            b = BF + 8 * (k % NBUF)
            A(f"v_mfma_f32_32x32x16_bf16 {v(ACC,16)}, {v(AF+4*(k%8),4)}, {v(b,4)}, {v(ACC,16)}")
            A(f"v_mfma_f32_32x32x16_bf16 {v(ACC+16,16)}, {v(AF+4*(k%8),4)}, {v(b+4,4)}, {v(ACC+16,16)}")
        self.stamp(11)
        A(f"s_lshl_b32 s70, s{S_WAVE}, 12", f"s_add_u32 s70, s70, {MISC}", "v_add_u32 v9, s70, v2")
        A(f"s_xor_b32 s71, s{S_WAVE}, 4", "s_lshl_b32 s71, s71, 12", f"s_add_u32 s71, s71, {MISC}", "v_add_u32 v10, s71, v2")
        A("s_lshl_b32 s68, s68, 12", "s_lshl_b32 s69, s69, 2", "s_add_u32 s68, s68, s69")
        if role == "B": A("s_add_u32 s68, s68, 2048")
        A("v_lshlrev_b32 v11, 14, v6", "v_lshlrev_b32 v12, 2, v5", "v_add_u32 v11, v11, v12")
        A.srd(SRD_T0, 28, 8388608)
        lk, lj = L(f"kh1_{role}"), L(f"join_{role}")
        A("s_cmp_eq_u32 s64, 1", f"s_cbranch_scc1 {lk}")
        for i in range(4): A(f"ds_write_b128 v9, {v(ACC+16+4*i,4)} offset:{i*1024}")
        A(f"s_mov_b32 s71, 0")
        A(f"s_branch {lj}")
        A.label(lk)
        for i in range(4): A(f"ds_write_b128 v9, {v(ACC+4*i,4)} offset:{i*1024}")
        A("s_nop 1")
        for i in range(16): A(f"v_mov_b32 v{ACC+i}, v{ACC+16+i}")
        A.label(lj)
        A("s_waitcnt lgkmcnt(0)")
        A("s_barrier")
        for i in range(4): A(f"ds_read_b128 {v(48+4*i,4)}, v10 offset:{i*1024}")
        for i in range(4):
            A(f"s_waitcnt lgkmcnt({3-i})")
            for r in range(4*i, 4*i+4, 2):
                A(f"v_pk_add_f32 v[{ACC+r}:{ACC+r+1}], v[{ACC+r}:{ACC+r+1}], v[{48+r}:{49+r}]")
            for r in range(4*i, 4*i+4):
                row = (r & 3) + 8 * (r >> 2)
                A(f"s_add_u32 s69, s68, {row*4096}")
                A(f"buffer_store_dword v{ACC+r}, v11, {R4(SRD_T0)}, s69 offen {OUTF}")
        self.stamp(12)
        if 'clk' in EXP:
            lx = L(f"clk_{role}")
            A("s_waitcnt vmcnt(0)")
            A(f"s_cmp_lg_u32 s2, {0 if role == 'A' else 4}", f"s_cbranch_scc1 {lx}", f"s_cmp_lg_u32 s{S_WAVE}, 0", f"s_cbranch_scc1 {lx}")
            A("s_memtime s[88:89]", "s_memrealtime s[90:91]", "s_waitcnt lgkmcnt(0)")
            A("s_sub_u32 s88, s88, s84", "s_sub_u32 s90, s90, s86", "v_mov_b32 v16, s88", "v_mov_b32 v17, s90")
            A(f"v_mov_b32 v18, {0 if role == 'A' else 8}")
            A.srd(SRD_T0, 30, 256)
            A("s_mov_b64 exec, 1")
            A(f"buffer_store_dwordx2 v[16:17], v18, {R4(SRD_T0)}, 0 offen sc1")
            A.label(lx)
        self.write_stamps()
        A("s_endpgm")

def build(out, stamps=False):
    A = Asm()
    K = NAME + "_kernel"
    A.raw(HEADER_COMMENT + f"; @launch grid=(256,1,1) block=(512,1,1) lds={LDS_BYTES}\n" + '.amdgcn_target "amdgcn-amd-amdhsa--gfx950"\n')
    G(A, K, stamps).gen()
    A.kernel_desc(K, 256, accum=256)
    open(out, "w").write(A.text())

if __name__ == "__main__":
    build(sys.argv[1], stamps=(len(sys.argv) > 2 and sys.argv[2] == "stamps"))
```

```python
import sys
sys.path.insert(0, "gen"); sys.path.insert(0, "scratch")
from asmlib import *
WS = dict(O=0x000000, H=0x200000, KVP=0x600000, ES=0x700000, FLG=0x740000, ST=0x900000)
LDS_BYTES = 163840
SLOT = 32768
NSLOT = 5
MISC = 4 * SLOT
PART_STRIDE = 1152
PARTQ = 0
FIN = 20480
WOIMG = SLOT
NONCE = MISC + 24576 + 64
NONCEQ = 28672
LOG2E = 0x3FB8AA3B
EPS = 0x358637BD
INV2PI = 0x3E22F983
POLL_LIMIT = 1 << 18
EXP = set(a for a in sys.argv[3:]) | {'kvd', 'epre', 'rotd', 'pt'}
OUTF = 'sc1' if 'osc1' in EXP else '' if 'opl' in EXP else 'sc0 sc1' if 'osc01' in EXP else 'nt'
OUTFA = 'sc1' if 'oAsc1' in EXP else OUTF
FASTF = 'nt' if 'fnt' in EXP else 'sc0' if 'fsc0' in EXP else 'sc0 nt' if 'fsc0nt' in EXP else ''

S_W, S_WAVE, S_XCD, S_SLOT, S_RT, S_G, S_ROT = 3, 34, 35, 36, 37, 38, 39
SRD_X, SRD_W, SRD_WS, SRD_T0, SRD_T1, SRD_T2, SRD_T3 = 40, 44, 48, 52, 56, 60, 96
NON = 78
P2ACC, XS, XD = 128, 112, 239
def R4(n): return f"s[{n}:{n+3}]"
def creg(R, i):
    n = R * 8 + i
    return 24 + 4 * n if n < 22 else 160 + 4 * (n - 22)
WSr = R4(SRD_WS)

class G:
    def __init__(self, A, K, stamps):
        self.A, self.K, self.stamps = A, K, stamps
    def L(self, n): return f"{self.K}_{n}"
    def stamp(self, i):
        if self.stamps:
            if 'pro' in EXP and 9 <= i <= 12 and not getattr(self, 'inpro', False): return
            if 'stg' in EXP and 3 <= i <= 12 and not getattr(self, 'instg', False): return
            self.A("s_memtime s[100:101]", "s_waitcnt lgkmcnt(0)", f"s_mov_b32 s{80+i}, s100")
    def sstamp(self, i):
        if 'stg' in EXP:
            self.instg = True
            self.A("s_memtime s[100:101]")
            self.A("s_waitcnt lgkmcnt(0)", f"s_mov_b32 s{80+i}, s100")
            self.instg = False
    def pstamp(self, i):
        if 'pro' in EXP:
            self.inpro = True; self.stamp(i); self.inpro = False
    def write_stamps(self):
        A = self.A
        if not self.stamps: return
        A("s_waitcnt vmcnt(0) lgkmcnt(0)")
        self.stamp(13)
        A("s_memrealtime s[100:101]", "s_waitcnt lgkmcnt(0)", "s_mov_b32 s95, s100")
        for j in range(16): A(f"v_mov_b32 v{16+j}, s{80+j}")
        A("s_lshl_b32 s64, s2, 3", f"s_add_u32 s64, s64, s{S_WAVE}", "s_lshl_b32 s64, s64, 6", f"s_add_u32 s64, s64, {WS['ST']}", "v_mov_b32 v2, s64")
        A("v_cmp_eq_u32 vcc, 0, v0", "s_and_saveexec_b64 s[66:67], vcc")
        for j in range(4):
            A(f"buffer_store_dwordx4 v[{16+4*j}:{19+4*j}], v2, {WSr}, 0 offen offset:{16*j}")

    def gen(self):
        A, L = self.A, self.L
        A.kernel_begin(self.K)
        A.label(L("start"))
        if self.stamps:
            for j in range(16): A(f"s_mov_b32 s{80+j}, 0")
            A("s_memrealtime s[100:101]", "s_waitcnt lgkmcnt(0)", "s_mov_b32 s94, s100")
            self.stamp(0)
        if 'clk' in EXP:
            A("s_memtime s[84:85]", "s_memrealtime s[86:87]")
        A("s_cmp_ge_u32 s2, 256", f"s_cbranch_scc1 {L('end')}")
        A("s_load_dwordx4 s[4:7], s[0:1], 0", "s_load_dwordx4 s[8:11], s[0:1], 16", "s_load_dwordx4 s[16:19], s[0:1], 48")
        if 'nocode' not in EXP:
            lc = L("nocode")
            A("s_getpc_b64 s[64:65]")
            A.label(L("pcref"))
            A(f"s_lshr_b32 s66, s2, 3", "s_mul_i32 s66, s66, 9", "v_add_u32 v2, s66, v0", "v_lshlrev_b32 v2, 7, v2")
            A(f"v_min_u32 v2, {L('end')}-{L('pcref')}, v2")
            A(f"v_cmp_gt_u32 vcc, 9, v0", "s_and_saveexec_b64 s[66:67], vcc", f"s_cbranch_execz {lc}")
            A("global_load_dword v255, v2, s[64:65]")
            A.label(lc)
            A("s_mov_b64 exec, s[66:67]")
        A("v_lshrrev_b32 v1, 6, v0", "v_and_b32 v0, 63, v0")
        A(f"v_readfirstlane_b32 s{S_WAVE}, v1")
        A(f"s_and_b32 s{S_XCD}, s2, 7", f"s_lshr_b32 s{S_SLOT}, s2, 3")
        A(f"s_and_b32 s64, s{S_XCD}, 3", f"s_lshl_b32 s{S_RT}, s64, 2", f"s_and_b32 s65, s{S_SLOT}, 3", f"s_add_u32 s{S_RT}, s{S_RT}, s65")
        A(f"s_lshr_b32 s{S_G}, s{S_SLOT}, 2")
        if 'rotb' in EXP:
            A("s_lshl_b32 s65, s65, 1", f"s_add_u32 s{S_ROT}, s{S_G}, s65", f"s_add_u32 s{S_ROT}, s{S_ROT}, s64", f"s_and_b32 s{S_ROT}, s{S_ROT}, 7")
        elif 'rotc' in EXP:
            A("s_lshl_b32 s65, s65, 1", f"s_add_u32 s{S_ROT}, s{S_G}, s65", f"s_and_b32 s{S_ROT}, s{S_ROT}, 7")
        elif 'roti' in EXP:
            A(f"s_lshl_b32 s{S_ROT}, s65, 1")
        elif 'rotj' in EXP:
            A(f"s_lshr_b32 s{S_ROT}, s{S_G}, 1", f"s_add_u32 s{S_ROT}, s{S_ROT}, s65", f"s_and_b32 s{S_ROT}, s{S_ROT}, 3", f"s_lshl_b32 s{S_ROT}, s{S_ROT}, 1")
        elif 'rote' in EXP:
            A(f"s_add_u32 s{S_ROT}, s{S_G}, s65", f"s_and_b32 s{S_ROT}, s{S_ROT}, 1", f"s_lshl_b32 s{S_ROT}, s{S_ROT}, 2")
        elif 'rotf' in EXP:
            A(f"s_add_u32 s{S_ROT}, s{S_G}, s65", f"s_and_b32 s{S_ROT}, s{S_ROT}, 3", f"s_lshl_b32 s{S_ROT}, s{S_ROT}, 1", "s_and_b32 s64, s64, 1", f"s_add_u32 s{S_ROT}, s{S_ROT}, s64")
        elif 'rotg' in EXP:
            A(f"s_and_b32 s{S_ROT}, s{S_G}, 3", f"s_lshl_b32 s{S_ROT}, s{S_ROT}, 1")
        elif 'roth' in EXP:
            A(f"s_add_u32 s{S_ROT}, s{S_G}, s65", f"s_and_b32 s{S_ROT}, s{S_ROT}, 3")
        elif 'rotd' in EXP:
            A(f"s_add_u32 s{S_ROT}, s{S_G}, s65", f"s_and_b32 s{S_ROT}, s{S_ROT}, 3", f"s_lshl_b32 s{S_ROT}, s{S_ROT}, 1")
        else:
            A("s_lshl_b32 s65, s65, 1", f"s_add_u32 s{S_ROT}, s{S_G}, s65", "s_and_b32 s64, s64, 1", f"s_add_u32 s{S_ROT}, s{S_ROT}, s64", f"s_and_b32 s{S_ROT}, s{S_ROT}, 7")
        if 'rot0' in EXP: A(f"s_mov_b32 s{S_ROT}, 0")
        A(f"s_and_b32 s{S_W}, s{S_WAVE}, 3")
        A(f"s_cmp_lt_u32 s{S_WAVE}, 4", f"s_cbranch_scc1 {L('compute')}")
        self.loader_prologue()
        A(f"s_cmp_ge_u32 s{S_XCD}, 4", f"s_cbranch_scc1 {L('bu_load')}")
        self.loader("qkv")
        A.label(L("p2A"))
        self.p2("A")
        A.label(L("bu_load"))
        self.loader("bu")
        A.label(L("p2B"))
        self.p2("B")
        A.label(L("compute"))
        self.rest_kernargs()
        A(f"s_cmp_ge_u32 s{S_XCD}, 4", f"s_cbranch_scc1 {L('bu')}")
        A("s_waitcnt lgkmcnt(0)")
        self.nonce_source()
        self.qkv_compute()
        A(f"s_branch {L('p2A')}")
        A.label(L("bu"))
        self.bu_compute()
        A(f"s_branch {L('p2B')}")
        A.label(L("end"))
        A("s_endpgm")

    def rest_kernargs(self):
        A = self.A
        A("s_load_dwordx4 s[12:15], s[0:1], 32", "s_load_dwordx4 s[20:23], s[0:1], 64", "s_load_dwordx4 s[24:27], s[0:1], 80")
        A("s_load_dwordx4 s[28:31], s[0:1], 96", "s_load_dwordx2 s[32:33], s[0:1], 112")

    def loader_prologue(self):
        A, L = self.A, self.L
        A("v_lshrrev_b32 v5, 3, v0", "v_and_b32 v6, 7, v0", "v_lshrrev_b32 v7, 4, v0")
        A("v_xor_b32 v8, v6, v7", "v_lshlrev_b32 v8, 4, v8")
        A("v_lshlrev_b32 v2, 10, v5", "v_add_u32 v2, v2, v8", "v_xor_b32 v3, 64, v2")
        A(f"s_lshl_b32 s70, s{S_W}, 12")
        lb, lj = L("pro_b"), L("pro_j")
        A(f"s_cmp_ge_u32 s{S_XCD}, 4", f"s_cbranch_scc1 {lb}")
        A("v_and_b32 v9, 1, v7", "v_lshlrev_b32 v9, 2, v9", "v_xor_b32 v9, v6, v9", "v_lshlrev_b32 v9, 4, v9")
        A("v_mul_u32_u24 v4, 3072, v5", "v_add_u32 v4, v4, v9", "v_lshlrev_b32 v12, 10, v5", "v_add_u32 v12, v12, v9")
        A("v_mov_b32 v20, v2", "v_mov_b32 v21, v3", "v_mov_b32 v22, v4", "v_mov_b32 v23, v4", "v_mov_b32 v11, v3")
        A(f"s_lshl_b32 s64, s{S_RT}, 7", f"s_lshl_b32 s65, s{S_W}, 5", "s_add_u32 s64, s64, s65", "s_lshl_b32 s68, s64, 10")
        A(f"s_mul_i32 s69, s{S_W}, {16*3072}", f"s_lshl_b32 s65, s{S_G}, 7", "s_add_u32 s69, s69, s65")
        A(f"s_mov_b32 s76, {64*3072}", "s_lshr_b32 s71, s70, 1")
        A("s_movk_i32 s52, 0x2000", "s_movk_i32 s53, 0x4000")
        A("s_movk_i32 s56, 0x2000")
        A("s_movk_i32 s60, 1024", "s_movk_i32 s61, 25600", "s_movk_i32 s62, 2048", "s_movk_i32 s63, 26624")
        A("s_waitcnt lgkmcnt(0)")
        A.srd(SRD_X, 4, 2097152); A.srd(SRD_W, 6, 1572864)
        A(f"s_branch {lj}")
        A.label(lb)
        A("v_lshrrev_b32 v9, 5, v0", "v_lshlrev_b32 v9, 5, v9", "v_and_b32 v10, 1, v5", "v_lshlrev_b32 v10, 4, v10", "v_add_u32 v9, v9, v10")
        A("v_and_b32 v10, 1, v7", "v_add_u32 v9, v9, v10", "v_lshlrev_b32 v4, 10, v9", "v_add_u32 v4, v4, v8", "v_xor_b32 v11, 64, v4")
        A("v_mov_b32 v20, v4", "v_mov_b32 v21, v11", "v_mov_b32 v22, v2", "v_mov_b32 v23, v3", "v_mov_b32 v12, v2")
        A(f"s_lshl_b32 s64, s{S_RT}, 7", f"s_lshl_b32 s65, s{S_W}, 2", "s_add_u32 s64, s64, s65", "s_lshl_b32 s68, s64, 10")
        A(f"s_lshl_b32 s64, s{S_G}, 6", f"s_and_b32 s65, s{S_W}, 1", "s_lshl_b32 s65, s65, 5", "s_add_u32 s64, s64, s65", "s_lshl_b32 s69, s64, 10")
        A("s_movk_i32 s76, 128", "s_mov_b32 s71, s70")
        A("s_mov_b32 s52, 0x10000", "s_movk_i32 s53, 0x800")
        A("s_movk_i32 s56, 0x800")
        A("s_movk_i32 s60, 0", "s_movk_i32 s61, 0x2000", "s_movk_i32 s62, 0x4000", "s_movk_i32 s63, 0x6000")
        A("s_waitcnt lgkmcnt(0)")
        A.srd(SRD_X, 10, 2097152)
        A(f"s_cmp_lt_u32 s{S_W}, 2", "s_cselect_b32 s64, s16, s18", "s_cselect_b32 s65, s17, s19")
        A.srd(SRD_W, 64, 524288)
        A.label(lj)
        A("s_add_u32 s54, s52, s53", "s_add_u32 s57, s56, 1024")
        self.pstamp(10)
        X, W = R4(SRD_X), R4(SRD_W)
        for st in range(1 if 's0' in EXP else 2):
            slot = st * SLOT
            A(f"s_add_u32 s64, s{S_ROT}, {st}", "s_and_b32 s64, s64, 7")
            A("s_lshl_b32 s65, s64, 7", "s_add_u32 s65, s65, s68", "s_mul_i32 s66, s64, s76", "s_add_u32 s66, s66, s69")
            xo = [None, "s52", "s53", "s54"]
            for ii in range(4):
                A(f"s_add_u32 m0, s70, {slot + ii*1024}")
                A(f"s_add_u32 s67, s65, {xo[ii]}" if xo[ii] else "s_mov_b32 s67, s65")
                A(f"buffer_load_dwordx4 v{20 + (ii&1)}, {X}, s67 offen lds")
            A(f"s_add_u32 s72, s71, {slot + 16384}")
            wl = ["0", "1024", "s56", "s57"]
            for ii in range(4):
                A(f"s_add_u32 m0, s72, {wl[ii]}", f"s_add_u32 s67, s66, s{60+ii}")
                A(f"buffer_load_dwordx4 v{22 + (ii&1)}, {W}, s67 offen lds")
            self.pstamp(11 + st)
        self.rest_kernargs()

    def poll_lines(self, tag, nl, sbase, stride_log2, R=8):
        A, L = self.A, self.L
        lp, done = L(f"poll_{tag}"), L(f"polld_{tag}")
        A(f"s_mov_b32 s72, {POLL_LIMIT}")
        A(f"v_lshlrev_b32 v{R+2}, {stride_log2}, v0")
        A("s_mov_b64 s[74:75], exec", f"s_mov_b64 exec, {(1 << nl) - 1:#x}")
        A.label(lp)
        A(f"buffer_load_dwordx2 v[{R}:{R+1}], v{R+2}, {WSr}, s{sbase} offen sc1")
        A("s_waitcnt vmcnt(0)")
        A(f"v_xor_b32 v{R}, s{NON}, v{R}", f"v_xor_b32 v{R+1}, s{NON+1}, v{R+1}", f"v_or_b32 v{R}, v{R}, v{R+1}")
        A(f"v_cmp_ne_u32 vcc, 0, v{R}")
        A("s_sub_u32 s72, s72, 1")
        A(f"s_cbranch_scc1 {done}")
        A(f"s_cbranch_vccz {done}")
        A(f"s_branch {lp}")
        A.label(done)
        A("s_mov_b64 exec, s[74:75]")

    def store_flag(self, sbase, tag, R=8):
        A, L = self.A, self.L
        A(f"v_mov_b32 v{R}, s{NON}", f"v_mov_b32 v{R+1}, s{NON+1}", f"v_mov_b32 v{R+2}, 0")
        A("s_mov_b64 s[74:75], exec", "s_mov_b64 exec, 1")
        lf, lj = L(f"sf_fast_{tag}"), L(f"sf_j_{tag}")
        A("s_cmp_eq_u32 s73, 1", f"s_cbranch_scc1 {lf}")
        A(f"buffer_store_dwordx2 v[{R}:{R+1}], v{R+2}, {WSr}, s{sbase} offen sc1")
        A(f"s_branch {lj}")
        A.label(lf)
        A(f"buffer_store_dwordx2 v[{R}:{R+1}], v{R+2}, {WSr}, s{sbase} offen")
        A.label(lj)
        A("s_mov_b64 exec, s[74:75]")

    def skip_issue(self, vm=None):
        A = self.A
        A(f"s_lshr_b32 s64, s{S_WAVE}, 2")
        A(f"s_lshl_b32 s68, s{S_RT}, 7", f"s_lshl_b32 s69, s{S_W}, 5", "s_add_u32 s68, s68, s69")
        A(f"s_lshl_b32 s69, s{S_G}, 6", "s_lshl_b32 s70, s64, 5", "s_add_u32 s69, s69, s70")
        A.srd(SRD_T0, 10, 2097152); A.srd(SRD_T1, 26, 1024)
        A("s_lshl_b32 s70, s68, 10", "s_lshl_b32 s71, s69, 1", "s_add_u32 s70, s70, s71")
        A("v_and_b32 v8, 31, v0", "v_lshrrev_b32 v7, 5, v0", "v_lshlrev_b32 v7, 12, v7", "v_lshlrev_b32 v8, 1, v8", "v_add_u32 v7, v7, v8")
        for r in range(16):
            if r % 4 == 0 and r > 0: A("s_add_u32 s70, s70, 8192")
            ins = f"buffer_load_ushort v{XS+r}, v7, {R4(SRD_T0)}, s70 offen offset:{(r%4)*1024}"
            vm.issue(ins, "skip") if vm else A(ins)
        ins = f"buffer_load_ushort v{XD}, v8, {R4(SRD_T1)}, s71 offen"
        vm.issue(ins, "skip") if vm else A(ins)

    def skip_finish(self):
        A = self.A
        A(f"v_lshlrev_b32 v{XD}, 16, v{XD}")
        for r in range(16): A(f"v_lshlrev_b32 v{XS+r}, 16, v{XS+r}")
        for r in range(16): A(f"v_mul_f32 v{XS+r}, v{XS+r}, v{XD}")
        for r in range(0, 16, 2): A(f"v_cvt_pk_bf16_f32 v{XS+r}, v{XS+r}, v{XS+r+1}")
        for r in range(0, 16, 2):
            A(f"v_and_b32 v{XS+r+1}, 0xffff0000, v{XS+r}", f"v_lshlrev_b32 v{XS+r}, 16, v{XS+r}")

    def mode_announce(self, role, R=240):
        A, L = self.A, self.L
        lx = L(f"ann_{role}")
        A(f"s_cmp_lg_u32 s{S_W}, 0", f"s_cbranch_scc1 {lx}")
        A("s_getreg_b32 s64, hwreg(HW_REG_XCC_ID, 0, 3)", "s_lshl_b32 s64, 1, s64", f"s_lshl_b32 s65, 0x100, s{S_G}", "s_or_b32 s64, s64, s65")
        A(f"s_add_u32 s65, s{S_RT}, {0 if role == 'A' else 16}", "s_lshl_b32 s65, s65, 2")
        A(f"v_mov_b32 v{R}, s64", f"v_mov_b32 v{R+1}, s65")
        A.srd(SRD_T3, 30, 256)
        A("s_mov_b64 s[66:67], exec", "s_mov_b64 exec, 1")
        A(f"buffer_atomic_or v{R}, v{R+1}, {R4(SRD_T3)}, 0 offen sc1")
        A("s_mov_b64 exec, s[66:67]")
        A.label(lx)

    def mode_load(self, role, R):
        A = self.A
        A(f"s_add_u32 s65, s{S_RT}, {0 if role == 'A' else 16}", "s_lshl_b32 s65, s65, 2", f"v_mov_b32 v{R+1}, s65")
        A.srd(SRD_T3, 30, 256)
        A(f"buffer_load_dword v{R}, v{R+1}, {R4(SRD_T3)}, 0 offen sc1")

    def mode_resolve(self, role, R, tag):
        A, L = self.A, self.L
        lp, ok = L(f"mode_lp_{tag}"), L(f"mode_ok_{tag}")
        A(f"s_mov_b32 s72, {POLL_LIMIT}")
        A.label(lp)
        A(f"v_readfirstlane_b32 s73, v{R}", "s_nop 3")
        A("s_and_b32 s71, s73, 0xff00", "s_cmp_eq_u32 s71, 0xff00", f"s_cbranch_scc1 {ok}")
        A("s_sub_u32 s72, s72, 1", f"s_cbranch_scc1 {ok}")
        A(f"buffer_load_dword v{R}, v{R+1}, {R4(SRD_T3)}, 0 offen sc1", "s_waitcnt vmcnt(0)", f"s_branch {lp}")
        A.label(ok)
        A("s_and_b32 s70, s73, 0xff", "s_bcnt1_i32_b32 s70, s70", "s_cmp_eq_u32 s70, 1", "s_cselect_b32 s73, 1, 0")
        A("s_cmp_eq_u32 s71, 0xff00", "s_cselect_b32 s73, s73, 0")
        if 'slow' in EXP: A("s_mov_b32 s73, 0")

    def flag_touch(self, role, R):
        A = self.A
        self.flag_addr(role, 64)
        A(f"s_lshl_b32 s65, s{S_G}, 7", "s_add_u32 s64, s64, s65", f"v_mov_b32 v{R}, 0")
        A("s_mov_b64 s[74:75], exec", "s_mov_b64 exec, 1")
        A(f"buffer_load_dword v{R+1}, v{R}, {WSr}, s64 offen sc1")
        A("s_mov_b64 exec, s[74:75]")

    def weight_touch(self, R):
        A = self.A
        if 'nowt' in EXP: return
        A("s_lshl_b32 s64, s2, 2", f"s_add_u32 s64, s64, s{S_W}", "s_mul_i32 s64, s64, 12")
        A(f"v_add_u32 v{R}, s64, v0", f"v_lshlrev_b32 v{R}, 7, v{R}")
        A.srd(SRD_T0, 8, 524288); A.srd(SRD_T1, 20, 524288); A.srd(SRD_T2, 22, 524288)
        A("s_mov_b64 s[74:75], exec", "s_mov_b64 exec, 0xfff")
        A(f"buffer_load_dword v{R+1}, v{R}, {R4(SRD_T0)}, 0 offen sc1")
        A(f"v_subrev_u32 v{R+2}, 0x80000, v{R}")
        A(f"buffer_load_dword v{R+1}, v{R+2}, {R4(SRD_T1)}, 0 offen sc1")
        A(f"v_subrev_u32 v{R+2}, 0x100000, v{R}")
        A(f"buffer_load_dword v{R+1}, v{R+2}, {R4(SRD_T2)}, 0 offen sc1")
        A("s_mov_b64 exec, s[74:75]")

    def l2_prefetch(self, role, base, R):
        A = self.A
        if 'pf' not in EXP: return
        A(f"s_add_u32 s64, s{S_W}, {base}")
        A(f"s_and_b32 s65, s{S_XCD}, 3", "s_lshl_b32 s65, s65, 9", f"s_lshl_b32 s66, s{S_SLOT}, 4", "s_add_u32 s65, s65, s66")
        A("s_lshl_b32 s65, s65, 10", "s_lshl_b32 s66, s64, 7", "s_add_u32 s65, s65, s66")
        A(f"v_and_b32 v{R+2}, 15, v0", f"v_lshlrev_b32 v{R}, 10, v{R+2}")
        A(f"buffer_load_dword v{R+1}, v{R}, {R4(SRD_T0)}, s65 offen sc1")
        if role == "A":
            A(f"v_bfe_u32 v{R+3}, v0, 4, 1", f"v_mul_u32_u24 v{R+3}, 3072, v{R+3}", f"v_lshlrev_b32 v{R+2}, 7, v{R+2}", f"v_add_u32 v{R+2}, v{R+2}, v{R+3}")
            A("s_lshl_b32 s70, s64, 6", f"s_lshl_b32 s66, s{S_SLOT}, 1", "s_add_u32 s70, s70, s66", "s_mul_i32 s70, s70, 3072", "s_add_u32 s70, s70, 1024")
            A(f"buffer_load_dword v{R+1}, v{R+2}, {R4(SRD_T1)}, s70 offen sc1")
        else:
            A(f"s_lshl_b32 s70, s{S_SLOT}, 14", "s_lshl_b32 s66, s64, 7", "s_add_u32 s70, s70, s66")
            A(f"buffer_load_dword v{R+1}, v{R}, {R4(SRD_T1)}, s70 offen sc1")
            A(f"buffer_load_dword v{R+1}, v{R}, {R4(SRD_T2)}, s70 offen sc1")

    def pf_srds(self, role):
        A = self.A
        if 'pf' not in EXP: return
        if role == "A":
            A.srd(SRD_T0, 4, 2097152); A.srd(SRD_T1, 6, 1572864)
        else:
            A.srd(SRD_T0, 10, 2097152); A.srd(SRD_T1, 16, 524288); A.srd(SRD_T2, 18, 524288)

    def page_touch(self, role, R):
        A = self.A
        if 'pt' not in EXP: return
        A(f"v_mov_b32 v{R}, 0")
        if role == "A":
            A(f"s_lshl_b32 s64, s{S_RT}, 2", f"s_add_u32 s64, s64, s{S_W}", "s_lshl_b32 s64, s64, 5", f"s_lshl_b32 s65, s{S_G}, 2", "s_add_u32 s64, s64, s65", "s_lshl_b32 s64, s64, 10")
        else:
            A(f"s_lshl_b32 s64, s{S_RT}, 2", f"s_add_u32 s64, s64, s{S_W}", "s_lshl_b32 s64, s64, 6", f"s_lshl_b32 s65, s{S_G}, 3", "s_add_u32 s64, s64, s65", "s_lshl_b32 s64, s64, 10", f"s_add_u32 s64, s64, {WS['H']}")
        A(f"buffer_load_dword v{R+1}, v{R}, {WSr}, s64 offen sc1")
        A.srd(SRD_T0, 28, 8388608)
        A(f"s_lshl_b32 s64, s{S_RT}, 7", f"s_lshl_b32 s65, s{S_W}, 5", "s_add_u32 s64, s64, s65", "s_lshl_b32 s64, s64, 12", f"s_lshl_b32 s65, s{S_G}, 8", "s_add_u32 s64, s64, s65")
        if role == "B": A("s_add_u32 s64, s64, 2048")
        A(f"buffer_load_dword v{R+1}, v{R}, {R4(SRD_T0)}, s64 offen sc1")
        if role == "B":
            A.srd(SRD_T1, 26, 1024)
            A(f"buffer_load_dword v{R+1}, v{R}, {R4(SRD_T1)}, 0 offen sc1")
        if 'pt2' in EXP:
            if role == "A":
                A.srd(SRD_T1, 8, 524288)
                A(f"s_lshl_b32 s64, s{S_G}, 7")
                A(f"buffer_load_dword v{R+1}, v{R}, {R4(SRD_T1)}, s64 offen sc1")
            else:
                A.srd(SRD_T0, 20, 524288); A.srd(SRD_T2, 22, 524288)
                A(f"s_lshl_b32 s64, s{S_G}, 16")
                A(f"buffer_load_dword v{R+1}, v{R}, {R4(SRD_T0)}, s64 offen sc1")
                A(f"buffer_load_dword v{R+1}, v{R}, {R4(SRD_T2)}, s64 offen sc1")

    def nonce_source(self):
        A, L = self.A, self.L
        ln = L("nononce")
        A("s_cmp_lg_u32 s2, 0", f"s_cbranch_scc1 {ln}", f"s_cmp_lg_u32 s{S_WAVE}, 0", f"s_cbranch_scc1 {ln}")
        A("s_memrealtime s[70:71]", "s_waitcnt lgkmcnt(0)", "s_or_b32 s70, s70, 1")
        A("v_mov_b32 v248, s70", "v_mov_b32 v249, s71", "v_mov_b32 v247, 0")
        A.srd(SRD_T3, 30, 256)
        A(f"buffer_store_dwordx2 v[248:249], v247, {R4(SRD_T3)}, 0 offen offset:128 sc1")
        A.label(ln)

    def loader(self, role):
        A, L = self.A, self.L
        last = 9 if role == "qkv" else 7
        vm = Vm(A)
        vm.q = [('st', 0)] * 8 + ([] if 's0' in EXP else [('st', 1)] * 8)
        X, W = R4(SRD_X), R4(SRD_W)
        def issue(st):
            slot = (st % NSLOT) * SLOT
            tag = ("st", st)
            if st >= 8:
                a = st - 8
                A(f"s_add_u32 s64, s{S_ROT}, s{S_W}", f"s_add_u32 s64, s64, {4*a}", "s_and_b32 s64, s64, 7")
                A(f"s_mul_i32 s64, s64, {64*3072}", f"s_lshl_b32 s65, s{S_G}, 7", "s_add_u32 s64, s64, s65")
                A("s_lshl_b32 s66, s70, 1")
                for i in range(8):
                    A(f"s_add_u32 m0, s66, {slot + i*1024}", f"s_add_u32 s67, s64, {i*8*3072}")
                    vm.issue(f"buffer_load_dwordx4 v4, {W}, s67 offen lds", tag)
                return
            A(f"s_add_u32 s64, s{S_ROT}, {st}", "s_and_b32 s64, s64, 7")
            A("s_lshl_b32 s65, s64, 7", "s_add_u32 s65, s65, s68")
            if role == "qkv":
                A(f"s_mul_i32 s66, s64, {64*3072}", "s_add_u32 s66, s66, s69")
                for ii in range(4):
                    A(f"s_add_u32 m0, s70, {slot + ii*1024}", f"s_add_u32 s67, s65, {ii*8192}")
                    vm.issue(f"buffer_load_dwordx4 v{2 + (ii&1)}, {X}, s67 offen lds", tag)
                A("s_lshr_b32 s71, s70, 1")
                for part in range(2):
                    for ii in range(2):
                        A(f"s_add_u32 m0, s71, {slot + 16384 + part*8192 + ii*1024}", f"s_add_u32 s67, s66, {ii*8*3072 + (1+part)*1024}")
                        vm.issue(f"buffer_load_dwordx4 v4, {W}, s67 offen lds", tag)
            else:
                A("s_lshl_b32 s66, s64, 7", "s_add_u32 s66, s66, s69")
                for ii in range(4):
                    A(f"s_add_u32 m0, s70, {slot + ii*1024}", f"s_add_u32 s67, s65, {(64*(ii&1) + 2*(ii>>1))*1024}")
                    vm.issue(f"buffer_load_dwordx4 v{4 if (ii&1)==0 else 11}, {X}, s67 offen lds", tag)
                for ii in range(4):
                    A(f"s_add_u32 m0, s70, {slot + 16384 + ii*1024}", f"s_add_u32 s67, s66, {ii*8192}")
                    vm.issue(f"buffer_load_dwordx4 v{2 + (ii&1)}, {W}, s67 offen lds", tag)
        def cregion(R):
            part = R >> 1
            A.srd(SRD_T0, 20 + 2 * part, 524288)
            A(f"s_lshl_b32 s64, s{S_G}, 6", f"s_lshl_b32 s65, s{S_W}, 3", "s_add_u32 s64, s64, s65", f"s_add_u32 s64, s64, {32*(R&1)}", "s_lshl_b32 s64, s64, 10")
            A(f"s_and_b32 s66, s{S_W}, 1", "s_lshl_b32 s66, s66, 7", "v_lshlrev_b32 v13, 4, v0", "v_xor_b32 v13, s66, v13")
            for i in range(8):
                A(f"v_xor_b32 v{14+(i&1)}, {i*16}, v13")
                A(f"s_add_u32 s67, s64, {i*1024}")
                vm.issue(f"buffer_load_dwordx4 {v(creg(R, i),4)}, v{14+(i&1)}, {R4(SRD_T0)}, s67 offen", ("c", R))
        self.cregion = cregion
        self.vm = vm
        A("s_waitcnt lgkmcnt(0)")
        A.srd(SRD_WS, 32, 268435456)
        self.stamp(1)
        sched = {0: [2], 1: [3], 2: [4], 3: [5], 4: [6], 5: [7], 6: [8], 7: [9]} if 'l3' not in EXP else {0: [2], 1: [3], 2: [4, 5], 3: [6], 4: [7], 5: [8], 6: [9], 7: []}
        if 's0' in EXP: sched[0] = [1, 2]
        for st in range(8):
            vm.need(("st", st))
            if st == 7:
                self.get_nonce(role)
            A("s_barrier")
            if st == 0: self.stamp(2)
            for x in sched[st]:
                if x <= last: issue(x)
            if role == "bu" and 'cearly' in EXP:
                if st == 6: cregion(0)
                if st == 7:
                    for R_ in (1, 2, 3): cregion(R_)
            elif role == "bu" and 'call7' in EXP:
                if st == 7:
                    for R_ in range(4): cregion(R_)
            elif role == "bu" and st == 7:
                for R_ in range(2): cregion(R_)
            if st == 4:
                A(f"s_load_dwordx2 s[{NON}:{NON+1}], s[30:31], 128")
        if role == "qkv": self.qkv_loader_tail()
        else: self.bu_loader_tail()

    def get_nonce(self, role):
        A, L = self.A, self.L
        ok, lp = L(f"nok_{role}"), L(f"nlp_{role}")
        A("s_waitcnt lgkmcnt(0)")
        A(f"s_cmp_lg_u32 s{NON}, 0", f"s_cbranch_scc1 {ok}")
        A.srd(SRD_T0, 30, 256)
        A(f"s_mov_b32 s72, {POLL_LIMIT}", "v_mov_b32 v13, 0")
        A.label(lp)
        A(f"buffer_load_dwordx2 v[14:15], v13, {R4(SRD_T0)}, 0 offen offset:128 sc1", "s_waitcnt vmcnt(0)")
        A(f"v_readfirstlane_b32 s{NON}, v14", f"v_readfirstlane_b32 s{NON+1}, v15", "s_nop 3")
        A("s_sub_u32 s72, s72, 1", f"s_cbranch_scc1 {ok}")
        A(f"s_cmp_lg_u32 s{NON}, 0", f"s_cbranch_scc1 {ok}", "s_sleep 2", f"s_branch {lp}")
        A.label(ok)
        if role == "bu":
            A(f"v_mov_b32 v14, s{NON}", f"v_mov_b32 v15, s{NON+1}", f"v_mov_b32 v13, {NONCE}")
            A("ds_write_b64 v13, v[14:15]", "s_waitcnt lgkmcnt(0)")

    def qkv_loader_tail(self):
        A, L, vm = self.A, self.L, self.vm
        A(f"v_mov_b32 v14, s{NON}", f"v_mov_b32 v15, s{NON+1}", f"v_mov_b32 v13, {NONCEQ}")
        A("ds_write_b64 v13, v[14:15]")
        vm.need(("st", 9))
        A("s_waitcnt lgkmcnt(0)")
        self.stamp(3)
        A("s_barrier")
        A("s_setprio 3")
        self.stamp(4)
        A("v_mul_u32_u24 v7, 24, v0", f"s_mul_i32 s64, s{S_W}, {PART_STRIDE}", "v_add_u32 v7, s64, v7")
        for w in range(4):
            for j in range(3):
                A(f"ds_read_b64 v[{16+6*w+2*j}:{17+6*w+2*j}], v7 offset:{PARTQ + w*4*PART_STRIDE + 8*j}")
        A("v_lshlrev_b32 v3, 4, v0")
        A(f"s_lshl_b32 s64, s{S_G}, 4", f"s_add_u32 s64, s64, s{S_RT}", "s_lshl_b32 s64, s64, 2", f"s_add_u32 s64, s64, s{S_W}", "s_lshl_b32 s64, s64, 10", f"s_add_u32 s64, s64, {WS['KVP']}")
        A(f"v_mov_b32 v51, s{NON}")
        A("s_waitcnt lgkmcnt(6)")
        for j in range(0, 6, 2):
            A(f"v_pk_add_f32 v[{16+j}:{17+j}], v[{16+j}:{17+j}], v[{22+j}:{23+j}]")
        A("s_waitcnt lgkmcnt(0)")
        for j in range(0, 6, 2):
            A(f"v_pk_add_f32 v[{28+j}:{29+j}], v[{28+j}:{29+j}], v[{34+j}:{35+j}]")
        for j in range(0, 6, 2):
            A(f"v_pk_add_f32 v[{16+j}:{17+j}], v[{16+j}:{17+j}], v[{28+j}:{29+j}]")
        for j in range(3):
            A(f"v_cvt_pk_bf16_f32 v{48+j}, v{16+2*j}, v{17+2*j}")
        A("s_mov_b64 s[66:67], exec", "s_mov_b32 exec_lo, -1", "s_mov_b32 exec_hi, 0x3fff")
        A(f"buffer_store_dwordx4 v[48:51], v3, {WSr}, s64 offen sc1")
        self.stamp(5)
        A("s_mov_b64 exec, s[66:67]")
        A.srd(SRD_T0, 8, 524288)
        A(f"s_lshl_b32 s64, s{S_W}, 17", f"s_lshl_b32 s65, s{S_G}, 7", "s_add_u32 s64, s64, s65")
        A(f"s_lshl_b32 s65, s{S_W}, 14")
        for i in range(16):
            A(f"s_add_u32 m0, s65, {WOIMG + i*1024}", f"s_add_u32 s69, s64, {i*8192}")
            A(f"buffer_load_dwordx4 v12, {R4(SRD_T0)}, s69 offen lds")
        if 'kvd' in EXP: A("s_waitcnt vmcnt(0)")
        A("s_mov_b32 exec_lo, -1", "s_mov_b32 exec_hi, 0x3fff")
        A(f"s_lshl_b32 s68, s{S_G}, 6", f"s_add_u32 s68, s68, s{S_W}", "s_lshl_b32 s68, s68, 10", f"s_add_u32 s68, s68, {WS['KVP']}")
        lp, ok, ll, llo = L("kv_poll"), L("kv_ok"), L("kv_light"), L("kv_lightok")
        A(f"s_mov_b32 s72, {POLL_LIMIT}")
        A("v_lshlrev_b32 v5, 12, v0", f"v_add_u32 v5, {45*16+12}, v5")
        A("s_mov_b32 exec_lo, 0xffff", "s_mov_b32 exec_hi, 0")
        A.label(ll)
        A(f"buffer_load_dword v6, v5, {WSr}, s68 offen sc1", "s_waitcnt vmcnt(0)")
        A(f"v_cmp_ne_u32 vcc, s{NON}, v6")
        A("s_sub_u32 s72, s72, 1", f"s_cbranch_scc1 {llo}")
        A(f"s_cbranch_vccnz {ll}")
        A.label(llo)
        A("s_mov_b32 exec_lo, -1", "s_mov_b32 exec_hi, 0x3fff")
        def bulk(fl):
            A("s_mov_b32 s64, s68")
            for r in range(16):
                A(f"buffer_load_dwordx4 v[{64+4*r}:{67+4*r}], v3, {WSr}, s64 offen {fl}")
                if r < 15: A("s_add_u32 s64, s64, 4096")
            A("s_waitcnt vmcnt(0)")
            A(f"v_xor_b32 v52, s{NON}, v67")
            for r in range(1, 16):
                A(f"v_xor_b32 v53, s{NON}, v{67+4*r}", "v_or_b32 v52, v52, v53")
            A("v_cmp_ne_u32 vcc, 0, v52")
        bulk("")
        A(f"s_cbranch_vccz {ok}")
        A.label(lp)
        bulk("sc1")
        A("s_sub_u32 s72, s72, 1", f"s_cbranch_scc1 {ok}")
        A(f"s_cbranch_vccnz {lp}")
        A.label(ok)
        self.stamp(6)
        A("s_mov_b64 exec, s[66:67]")
        for j in range(6): A(f"v_mov_b32 v{16+j}, 0")
        A("v_mov_b32 v24, 0x00003f80", "v_mov_b32 v25, 0x3f800000")
        for r in range(16):
            for j in range(3):
                A(f"v_dot2c_f32_bf16 v{16+2*j}, v{64+4*r+j}, v24")
                A(f"v_dot2c_f32_bf16 v{17+2*j}, v{64+4*r+j}, v25")
        A("s_nop 2")
        for j in range(3):
            A(f"v_cvt_pk_bf16_f32 v{48+j}, v{16+2*j}, v{17+2*j}")
        A("v_mul_u32_u24 v4, 12, v0", f"s_lshl_b32 s66, s{S_W}, 10", f"s_add_u32 s66, s66, {FIN}", "v_add_u32 v4, s66, v4")
        A("s_mov_b64 s[66:67], exec", "s_mov_b32 exec_lo, -1", "s_mov_b32 exec_hi, 0x3fff")
        for j in range(3): A(f"ds_write_b32 v4, v{48+j} offset:{4*j}")
        A("s_mov_b64 exec, s[66:67]")
        A("s_waitcnt lgkmcnt(0)")
        self.stamp(7)
        A("s_barrier")
        A("s_setprio 0")
        for i in range(32): A(f"v_mov_b32 v{P2ACC+i}, 0")
        A("s_waitcnt vmcnt(0)")
        self.stamp(8)
        A("s_barrier")

    def bu_loader_tail(self):
        A, L, vm = self.A, self.L, self.vm
        self.stamp(3)
        A("s_barrier")
        if 'cearly' not in EXP and 'call7' not in EXP:
            self.cregion(2); self.cregion(3)
        self.skip_issue(vm)
        A("v_lshlrev_b32 v13, 4, v0", f"s_lshl_b32 s65, s{S_W}, 13", "v_add_u32 v13, s65, v13")
        for R_ in range(4):
            vm.need(("c", R_))
            if R_ == 2: A("v_add_u32 v13, 0x10000, v13")
            for i in range(8):
                A(f"ds_write_b128 v13, {v(creg(R_, i),4)} offset:{(R_&1)*SLOT + i*1024}")
        A("s_waitcnt lgkmcnt(0)")
        vm.drain()
        self.skip_finish()
        for r in range(16):
            A(f"v_mov_b32 v{P2ACC+r}, 0", f"v_mov_b32 v{P2ACC+16+r}, v{XS+r}")
        self.stamp(4)
        A("s_barrier")

    def flag_addr(self, role, dst):
        A = self.A
        A(f"s_add_u32 s{dst}, s{S_RT}, {0 if role == 'A' else 16}", f"s_lshl_b32 s{dst}, s{dst}, 10", f"s_add_u32 s{dst}, s{dst}, {WS['FLG']}")

    def wave_flag(self, role, vn):
        A = self.A
        self.flag_addr(role, 64)
        A(f"s_lshl_b32 s65, s{S_G}, 7", "s_add_u32 s64, s64, s65", f"s_lshl_b32 s65, s{S_W}, 3", "s_add_u32 s64, s64, s65", "v_mov_b32 v12, 0")
        A("s_mov_b64 s[74:75], exec", "s_mov_b64 exec, 1")
        lf, lj = self.L(f"wf_fast_{role}"), self.L(f"wf_j_{role}")
        A("s_cmp_eq_u32 s73, 1", f"s_cbranch_scc1 {lf}")
        A(f"buffer_store_dwordx2 v[{vn}:{vn+1}], v12, {WSr}, s64 offen sc1")
        A(f"s_branch {lj}")
        A.label(lf)
        A(f"buffer_store_dwordx2 v[{vn}:{vn+1}], v12, {WSr}, s64 offen")
        A.label(lj)
        A("s_mov_b64 exec, s[74:75]")

    def p2_wait(self, role):
        A, L = self.A, self.L
        self.flag_addr(role, 64)
        A(f"s_lshr_b32 s65, s{S_WAVE}, 2", "s_lshl_b32 s65, s65, 9", "s_add_u32 s64, s64, s65")
        lp, done = L(f"fpoll_{role}"), L(f"fpolld_{role}")
        A(f"s_mov_b32 s72, {POLL_LIMIT}")
        if role == "B":
            A("v_lshrrev_b32 v10, 2, v0", "v_lshlrev_b32 v10, 7, v10", "v_and_b32 v11, 3, v0", "v_lshlrev_b32 v11, 3, v11", "v_add_u32 v10, v10, v11")
            A("s_mov_b64 s[74:75], exec", "s_mov_b64 exec, 0xffff")
        else:
            A(f"s_lshl_b32 s65, s{S_W}, 3", "v_lshlrev_b32 v10, 7, v0", "v_add_u32 v10, s65, v10")
            A("s_mov_b64 s[74:75], exec", "s_mov_b64 exec, 0xf")
        A.label(lp)
        A(f"buffer_load_dwordx2 v[8:9], v10, {WSr}, s64 offen sc1")
        A("s_waitcnt vmcnt(0)")
        A(f"v_xor_b32 v8, s{NON}, v8", f"v_xor_b32 v9, s{NON+1}, v9", "v_or_b32 v8, v8, v9")
        A("v_cmp_ne_u32 vcc, 0, v8")
        A("s_sub_u32 s72, s72, 1", f"s_cbranch_scc1 {done}")
        A(f"s_cbranch_vccz {done}")
        for e in EXP:
            if e.startswith('fsl'): A(f"s_sleep {int(e[3:])}")
        A(f"s_branch {lp}")
        A.label(done)
        A("s_mov_b64 exec, s[74:75]")

    def phi_pack(self, acc, n, dst, T):
        A = self.A
        for base in range(0, n, 8):
            for i in range(0, 8, 2):
                A(f"v_pk_mul_f32 v[{T+i}:{T+i+1}], v[{acc+base+i}:{acc+base+i+1}], s[76:77]")
            for i in range(8):
                A(f"v_exp_f32_e64 v{T+i}, v{T+i} clamp")
            for i in range(8):
                A(f"v_max_f32 v{acc+base+i}, 0, v{acc+base+i}")
            for i in range(0, 8, 2):
                A(f"v_pk_add_f32 v[{acc+base+i}:{acc+base+i+1}], v[{acc+base+i}:{acc+base+i+1}], v[{T+i}:{T+i+1}]")
            for i in range(0, 8, 2):
                A(f"v_pk_add_f32 v[{acc+base+i}:{acc+base+i+1}], v[{acc+base+i}:{acc+base+i+1}], s[64:65]")
            for i in range(0, 8, 2):
                A(f"v_cvt_pk_bf16_f32 v{dst+(base+i)//2}, v{acc+base+i}, v{acc+base+i+1}")

    def lam_code(self, P, T):
        A = self.A
        A(f"v_lshlrev_b32 v{P}, 16, v{P}", f"v_lshlrev_b32 v{P+1}, 16, v{P+1}", f"v_lshlrev_b32 v{P+2}, 16, v{P+2}")
        A(f"v_mul_f32 v{T}, {LOG2E:#x}, v{P+2}", f"v_exp_f32 v{T}, v{T}", "s_nop 0")
        A(f"v_cvt_pk_bf16_f32 v{T}, v{T}, v{T}", f"v_lshlrev_b32 v{T}, 16, v{T}")
        A(f"v_mul_f32 v{T+1}, v{T}, v{P}", f"v_mul_f32 v{T+2}, v{T}, v{P+1}")
        A(f"v_mul_f32 v{T+1}, {LOG2E:#x}, v{T+1}", f"v_mul_f32 v{T+2}, {INV2PI:#x}, v{T+2}")
        A(f"v_exp_f32 v{T+1}, v{T+1}", f"v_fract_f32 v{T+2}, v{T+2}", "s_nop 0")
        A(f"v_cos_f32 v{P+3}, v{T+2}", f"v_sin_f32 v{P+4}, v{T+2}", "s_nop 0")
        A(f"v_mul_f32 v{P+3}, v{P+3}, v{T+1}", f"v_mul_f32 v{P+4}, v{P+4}, v{T+1}")

    def csq(self, d, s_, t):
        A = self.A
        A(f"v_mul_f32 v{t}, v{s_+1}, v{s_+1}", f"v_mul_f32 v{d+1}, v{s_}, v{s_+1}")
        A(f"v_fma_f32 v{d}, v{s_}, v{s_}, -v{t}", f"v_add_f32 v{d+1}, v{d+1}, v{d+1}")

    def cfma(self, dr, di, ar, ai, br, bi, cr, ci):
        A = self.A
        A(f"v_fma_f32 v{dr}, v{ar}, v{br}, v{cr}", f"v_fma_f32 v{di}, v{ar}, v{bi}, v{ci}")
        A(f"v_fma_f32 v{dr}, -v{ai}, v{bi}, v{dr}", f"v_fma_f32 v{di}, v{ai}, v{br}, v{di}")

    def qkv_compute(self):
        A, L = self.A, self.L
        ACC, WF, XF, TMP = 16, 80, 112, 240
        VA, VW = 4, 8
        lg = Lgkm(A)
        A("v_and_b32 v10, 31, v0", "v_lshrrev_b32 v11, 5, v0")
        A(f"s_lshl_b32 s64, s{S_W}, 5", "v_add_u32 v12, s64, v10", "v_lshlrev_b32 v12, 7, v12")
        A("v_lshrrev_b32 v13, 1, v10", "v_and_b32 v13, 7, v13", "v_xor_b32 v13, v13, v11", "v_lshlrev_b32 v13, 4, v13")
        A(f"v_add_u32 v{VA}, v12, v13")
        for ks in range(1, 4): A(f"v_xor_b32 v{VA+ks}, {32*ks}, v{VA}")
        A("v_lshrrev_b32 v12, 5, v0", "v_lshlrev_b32 v12, 3, v12", "v_bfe_u32 v13, v0, 2, 2", "v_add_u32 v12, v12, v13", "v_lshlrev_b32 v12, 7, v12")
        A("v_bfe_u32 v13, v0, 3, 1", "v_lshlrev_b32 v13, 6, v13", "v_add_u32 v12, v12, v13")
        A("v_bfe_u32 v13, v0, 4, 1", "v_lshlrev_b32 v13, 5, v13", "v_add_u32 v12, v12, v13")
        A("v_and_b32 v13, 3, v0", "v_lshlrev_b32 v13, 3, v13", f"v_add_u32 v{VW}, v12, v13")
        A(f"v_xor_b32 v{VW+1}, 64, v{VW}")
        A(f"v_add_u32 v2, {3*SLOT}, v{VW}", f"v_add_u32 v3, {3*SLOT}, v{VW+1}")
        A(f"s_mov_b32 s76, {LOG2E:#x}", f"s_mov_b32 s77, {LOG2E:#x}")
        A("v_cmp_gt_u32 s[74:75], 16, v10")
        for i in range(64): A(f"v_mov_b32 v{ACC+i}, 0")
        A("v_and_b32 v12, 15, v10", "v_lshlrev_b32 v13, 4, v11", "v_add_u32 v12, v12, v13", "v_lshlrev_b32 v12, 5, v12")
        A("v_lshrrev_b32 v13, 4, v10", f"v_mul_u32_u24 v13, {PART_STRIDE}, v13", "v_add_u32 v12, v12, v13")
        A(f"s_mul_i32 s66, s{S_W}, {4*PART_STRIDE}", f"s_add_u32 s66, s66, {PARTQ}", "v_add_u32 v12, s66, v12")
        A("v_lshlrev_b32 v14, 5, v11", "v_add_u32 v14, v14, v13", "v_add_u32 v14, s66, v14", "v_add_u32 v14, 1024, v14")
        A("s_waitcnt lgkmcnt(0)")
        self.pf_srds("A")
        self.l2_prefetch("A", 0, 250)
        self.l2_prefetch("A", 4, 250) if 'pfall' in EXP else None
        A.srd(SRD_WS, 32, 268435456)
        self.mode_announce("A")
        self.flag_touch("A", 245)
        self.page_touch("A", 252)
        self.weight_touch(242)
        A("v_cmp_gt_u32 s[74:75], 16, v10")
        def reads(s_, ks):
            buf = (s_ * 4 + ks) & 1
            out = [(f"ds_read_b128 {v(XF + (s_*4+ks)*4, 4)}, v{VA+ks}", ("x", s_, ks))]
            for nt in range(4):
                part, sub = nt >> 1, nt & 1
                for a_ in range(2):
                    off = 16384 + part * 8192 + (16 * ks + 4 * a_) * 128
                    out.append((f"ds_read_b64_tr_b16 {v(WF + buf*16 + nt*4 + 2*a_, 2)}, v{VW+sub} offset:{off}", ("w", s_, ks, nt)))
            return out
        self.pf_srds("A")
        if 'prio' in EXP: A("s_setprio 2")
        A("s_barrier")
        self.stamp(1)
        for ins, tag in reads(0, 0): lg.issue(ins, tag)
        if 'pfall' not in EXP: self.l2_prefetch("A", 4, 250)
        for s_ in range(8):
            for ks in range(4):
                nxt = (s_, ks + 1) if ks < 3 else ((s_ + 1, 0) if s_ < 7 else None)
                if ks == 3 and s_ < 7:
                    A("s_barrier")
                    self.sstamp(3 + s_)
                    d = SLOT if (s_ + 1) % NSLOT != 0 else -(NSLOT - 1) * SLOT
                    for r in list(range(VA, VA + 4)) + [VW, VW + 1]:
                        A(f"v_add_u32 v{r}, {d & 0xffffffff:#x}, v{r}")
                nr = reads(*nxt) if nxt else []
                buf = (s_ * 4 + ks) & 1
                xf = v(XF + (s_ * 4 + ks) * 4, 4)
                for nt in range(4):
                    if nt == 0: lg.need(("x", s_, ks), ("w", s_, ks, 0))
                    else: lg.need(("w", s_, ks, nt))
                    A(f"v_mfma_f32_32x32x16_bf16 {v(ACC+16*nt,16)}, {xf}, {v(WF+buf*16+nt*4,4)}, {v(ACC+16*nt,16)}")
                    if nr:
                        for ins, tag in (nr[0:3] if nt == 0 else nr[1 + 2*nt: 3 + 2*nt]):
                            lg.issue(ins, tag)
        self.stamp(2)
        A("s_waitcnt vmcnt(0)")
        A(f"s_mov_b32 s64, {EPS:#x}", f"s_mov_b32 s65, {EPS:#x}")
        for i in range(4): A(f"v_mov_b32 v{TMP+8+i}, 0x3f803f80")
        A("s_nop 3")
        ONES = TMP + 8
        def kvm(hp):
            kv = ACC + 16 * hp; z = ACC + 32 + 16 * hp
            A(f"v_mfma_f32_32x32x16_bf16 {v(kv,16)}, {v(WF+8*hp,4)}, {v(WF+16+8*hp,4)}, 0")
            A(f"v_mfma_f32_32x32x16_bf16 {v(z,16)}, {v(WF+8*hp,4)}, {v(ONES,4)}, 0")
            A(f"v_mfma_f32_32x32x16_bf16 {v(kv,16)}, {v(WF+8*hp+4,4)}, {v(WF+16+8*hp+4,4)}, {v(kv,16)}")
            A(f"v_mfma_f32_32x32x16_bf16 {v(z,16)}, {v(WF+8*hp+4,4)}, {v(ONES,4)}, {v(z,16)}")
        def vpack(hp):
            for i in range(0, 16, 2):
                A(f"v_cvt_pk_bf16_f32 v{WF+16+8*hp+i//2}, v{ACC+32+16*hp+i}, v{ACC+33+16*hp+i}")
        def pwrite(hp):
            kv = ACC + 16 * hp; z = ACC + 32 + 16 * hp
            T0 = WF + 16 * hp if False else XF_FREE
            for j in range(8):
                A(f"v_cndmask_b32 v{T0+j}, v{kv+8+j}, v{kv+j}, s[74:75]")
            for j in range(8):
                A(f"v_cndmask_b32 v{T0+8+j}, v{z+8+j}, v{z+j}, s[74:75]")
            A(f"ds_write_b128 v12, {v(T0,4)} offset:{hp*2*PART_STRIDE}")
            A(f"ds_write_b128 v12, {v(T0+4,4)} offset:{hp*2*PART_STRIDE+16}")
            A("s_mov_b64 s[66:67], exec", "s_mov_b32 exec_lo, 0x00010001", "s_mov_b32 exec_hi, 0x00010001")
            A(f"ds_write_b128 v14, {v(T0+8,4)} offset:{hp*2*PART_STRIDE}")
            A(f"ds_write_b128 v14, {v(T0+12,4)} offset:{hp*2*PART_STRIDE+16}")
            A("s_mov_b64 exec, s[66:67]")
        self.phi_pack(ACC, 16, WF, TMP)
        vpack(0)
        A("s_nop 1")
        kvm(0)
        self.phi_pack(ACC + 16, 16, WF + 8, TMP)
        vpack(1)
        A("s_nop 1")
        kvm(1)
        XF_FREE = WF
        A("s_nop 1")
        pwrite(0)
        A("s_waitcnt lgkmcnt(0)")
        A("s_nop 4")
        pwrite(1)
        A("s_waitcnt lgkmcnt(0)")
        self.stamp(3)
        A("s_barrier")
        self.mode_load("A", 250)
        for i in range(32): A(f"v_mov_b32 v{ACC+i}, 0")
        lg = Lgkm(A)
        NB = 4
        def qreads(step):
            idx, ks = step >> 2, step & 3
            a9, u = idx >> 2, idx & 3
            b = WF + (step % NB) * 8
            out = []
            for sub in range(2):
                for a_ in range(2):
                    off = a9 * SLOT + u * 8192 + (16 * ks + 4 * a_) * 128
                    out.append((f"ds_read_b64_tr_b16 {v(b + sub*4 + 2*a_, 2)}, v{2+sub} offset:{off}", ("q", step, sub)))
            return out
        for st in range(3):
            for ins, tag in qreads(st): lg.issue(ins, tag)
        for step in range(32):
            b = WF + (step % NB) * 8
            xf = v(XF + step * 4, 4)
            nr = qreads(step + 3) if step + 3 < 32 else []
            for sub in range(2):
                lg.need(("q", step, sub))
                A(f"v_mfma_f32_32x32x16_bf16 {v(ACC+16*sub,16)}, {v(b+4*sub,4)}, {xf}, {v(ACC+16*sub,16)}")
                for ins, tag in nr[2*sub:2*sub+2]: lg.issue(ins, tag)
        self.stamp(4)
        A(f"s_mov_b32 s64, {EPS:#x}", f"s_mov_b32 s65, {EPS:#x}")
        for i in range(32): A(f"v_mov_b32 v{P2ACC+i}, 0")
        self.phi_pack(ACC, 16, WF, TMP)
        self.phi_pack(ACC + 16, 16, WF + 8, TMP)
        A("v_lshlrev_b32 v13, 4, v11", "v_add_u32 v13, v13, v10", "v_lshlrev_b32 v13, 4, v13")
        A("v_lshlrev_b32 v15, 4, v11", "v_add_u32 v15, 512, v15", "v_cndmask_b32 v13, v15, v13, s[74:75]", f"v_add_u32 v13, {FIN}, v13")
        A("v_lshlrev_b32 v12, 4, v0")
        A(f"s_lshl_b32 s64, s{S_RT}, 2", f"s_add_u32 s64, s64, s{S_W}", "s_lshl_b32 s64, s64, 5", f"s_lshl_b32 s65, s{S_G}, 2", "s_add_u32 s64, s64, s65", "s_lshl_b32 s64, s64, 10")
        A("s_waitcnt vmcnt(0)")
        self.mode_resolve("A", 250, "qc")
        self.stamp(5)
        A("s_barrier")
        self.stamp(6)
        A(f"v_mov_b32 v15, {NONCEQ}", "ds_read_b64 v[250:251], v15")
        for hl in range(4):
            A(f"ds_read_b128 {v(WF+16+4*hl,4)}, v13 offset:{hl*1024}")
        for hl in range(4):
            hp, a_ = hl >> 1, hl & 1
            A(f"s_waitcnt lgkmcnt({3-hl})")
            A(f"v_mfma_f32_32x32x16_bf16 {v(ACC+16*hl,16)}, {v(WF+16+4*hl,4)}, {v(WF+8*hp+4*a_,4)}, 0")
        A("s_nop 7")
        for hl in range(4):
            d = ACC + 16 * hl
            if hl == 3: A("s_nop 3")
            A(f"v_add_f32 v{d+8}, {EPS:#x}, v{d+8}")
        for hl in range(4):
            A(f"v_rcp_f32 v{ACC+16*hl+8}, v{ACC+16*hl+8}")
        A("s_nop 0")
        for hl in range(4):
            d = ACC + 16 * hl
            for j in range(0, 8, 2):
                A(f"v_pk_mul_f32 v[{d+j}:{d+j+1}], v[{d+j}:{d+j+1}], v[{d+8}:{d+9}] op_sel_hi:[1,0]")
            for j in range(4):
                A(f"v_cvt_pk_bf16_f32 v{d+12+j}, v{d+2*j}, v{d+2*j+1}")
        for hl in range(4):
            A(f"buffer_store_dwordx4 {v(ACC+16*hl+12,4)}, v12, {WSr}, s64 offen offset:{hl*1024} sc1")
        A(f"v_readfirstlane_b32 s{NON}, v250", f"v_readfirstlane_b32 s{NON+1}, v251")
        A("s_barrier")
        A("s_waitcnt vmcnt(0)")
        self.wave_flag("A", 250)
        self.stamp(7)

    def bu_compute(self):
        A, L = self.A, self.L
        RE, IM, AF, BF = 16, 48, 80, 144
        C = 160
        lg = Lgkm(A)
        A("v_and_b32 v10, 15, v0", "v_lshrrev_b32 v11, 4, v0")
        A(f"s_lshl_b32 s64, s{S_G}, 6", f"s_lshl_b32 s65, s{S_W}, 4", "s_add_u32 s64, s64, s65", "s_lshl_b32 s64, s64, 1")
        A("v_lshlrev_b32 v12, 1, v10")
        A("v_lshrrev_b32 v13, 1, v10", "v_xor_b32 v13, v13, v11", "v_lshlrev_b32 v13, 4, v13", "v_lshlrev_b32 v14, 7, v10", "v_add_u32 v4, v13, v14")
        A("v_xor_b32 v5, 64, v4")
        A(f"s_lshl_b32 s65, s{S_W}, 11", "s_add_u32 s65, s65, 16384")
        A("v_add_u32 v6, s65, v4", "v_add_u32 v7, s65, v5")
        for i in range(64): A(f"v_mov_b32 v{RE+i}, 0")
        A("s_waitcnt lgkmcnt(0)")
        A.srd(SRD_WS, 32, 268435456)
        A.srd(SRD_T0, 12, 1024); A.srd(SRD_T1, 14, 1024); A.srd(SRD_T2, 24, 1024)
        A(f"buffer_load_ushort v{C}, v12, {R4(SRD_T0)}, s64 offen")
        A(f"buffer_load_ushort v{C+1}, v12, {R4(SRD_T1)}, s64 offen")
        A(f"buffer_load_ushort v{C+2}, v12, {R4(SRD_T2)}, s64 offen")
        self.pf_srds("B")
        self.l2_prefetch("B", 0, 250)
        if 'pfall' in EXP: self.l2_prefetch("B", 4, 250)
        A(f"s_waitcnt vmcnt({0 if 'pf' not in EXP else 6 if 'pfall' in EXP else 3})")
        self.mode_announce("B")
        self.flag_touch("B", 243)
        self.page_touch("B", 252)
        self.weight_touch(240)
        self.lam_code(C, C + 8)
        A(f"v_mov_b32 v166, v{C+3}", f"v_mov_b32 v167, v{C+4}")
        A("v_add_f32 v163, -1.0, v163")
        A("v_mul_f32 v168, v160, v160", "v_fma_f32 v168, v161, v161, v168", "v_rcp_f32 v168, v168")
        A("v_mul_f32 v169, v163, v160", "v_fma_f32 v169, v167, v161, v169")
        A("v_mul_f32 v170, v167, v160", "v_fma_f32 v170, -v163, v161, v170")
        A("v_add_f32 v168, v168, v168")
        A("v_mul_f32 v164, v169, v168", "v_mul_f32 v165, v170, v168")
        self.csq(174, 166, 176); self.csq(178, 174, 176); self.csq(174, 178, 176); self.csq(168, 174, 176)
        self.csq(170, 168, 176); self.csq(174, 170, 176); self.csq(172, 174, 176)
        self.csq(214, 172, 176); self.csq(218, 214, 176)
        A("v_mul_f32 v216, v214, v172", "v_mul_f32 v217, v214, v173", "v_fma_f32 v216, -v215, v173, v216", "v_fma_f32 v217, v215, v172, v217")
        def reads(s_, k2):
            buf = (s_ * 2 + k2) & 1
            out = [(f"ds_read_b128 {v(BF + buf*8, 4)}, v{6+k2} offset:0", ("b", s_, k2, 0)),
                   (f"ds_read_b128 {v(BF + buf*8 + 4, 4)}, v{6+k2} offset:8192", ("b", s_, k2, 1))]
            for mt in range(8):
                out.append((f"ds_read_b128 {v(AF + buf*32 + mt*4, 4)}, v{4+k2} offset:{mt*2048}", ("a", s_, k2, mt)))
            return out
        self.pf_srds("B")
        if 'prio' in EXP: A("s_setprio 2")
        A("s_barrier")
        self.stamp(1)
        for ins, tag in reads(0, 0): lg.issue(ins, tag)
        if 'pfall' not in EXP: self.l2_prefetch("B", 4, 250)
        for s_ in range(8):
            for k2 in range(2):
                nxt = (s_, 1) if k2 == 0 else ((s_ + 1, 0) if s_ < 7 else None)
                if k2 == 1 and s_ < 7:
                    A("s_barrier")
                    self.sstamp(3 + s_)
                    d = SLOT if (s_ + 1) % NSLOT != 0 else -(NSLOT - 1) * SLOT
                    for r in range(4, 8):
                        A(f"v_add_u32 v{r}, {d & 0xffffffff:#x}, v{r}")
                nr = reads(*nxt) if nxt else []
                if nxt is None:
                    nr = []
                buf = (s_ * 2 + k2) & 1
                for mt in range(8):
                    if mt == 0: lg.need(("b", s_, k2, 0), ("b", s_, k2, 1), ("a", s_, k2, 0))
                    else: lg.need(("a", s_, k2, mt))
                    af = v(AF + buf*32 + mt*4, 4)
                    A(f"v_mfma_f32_16x16x32_bf16 {v(RE+4*mt,4)}, {af}, {v(BF+buf*8,4)}, {v(RE+4*mt,4)}")
                    A(f"v_mfma_f32_16x16x32_bf16 {v(IM+4*mt,4)}, {af}, {v(BF+buf*8+4,4)}, {v(IM+4*mt,4)}")
                    if nr:
                        for ins, tag in (nr[0:3] if mt == 0 else [nr[2 + mt]]):
                            lg.issue(ins, tag)
                    if nxt is None and mt == 0:
                        A(f"v_mov_b32 v12, {NONCE}")
                        lg.issue("ds_read_b64 v[230:231], v12", "nonce")
        self.stamp(2)
        def pr(base, sg): return base + 4 * (sg >> 1) + 2 * (sg & 1)
        E0, E1_ = 180, 184
        Lr = "v[166:167]"
        def step(dre, dim, sre, sim, ure, uim, M=Lr):
            A(f"v_pk_fma_f32 v[{dre}:{dre+1}], v[{sre}:{sre+1}], {M}, v[{ure}:{ure+1}] op_sel_hi:[1,0,1]")
            A(f"v_pk_fma_f32 v[{dim}:{dim+1}], v[{sim}:{sim+1}], {M}, v[{uim}:{uim+1}] op_sel_hi:[1,0,1]")
            A(f"v_pk_fma_f32 v[{dre}:{dre+1}], v[{sim}:{sim+1}], {M}, v[{dre}:{dre+1}] op_sel:[0,1,0] op_sel_hi:[1,1,1] neg_lo:[0,1,0] neg_hi:[0,1,0]")
            A(f"v_pk_fma_f32 v[{dim}:{dim+1}], v[{sre}:{sre+1}], {M}, v[{dim}:{dim+1}] op_sel:[0,1,0] op_sel_hi:[1,1,1]")
        A(f"s_lshl_b32 s64, s{S_G}, 4", f"s_add_u32 s64, s64, s{S_RT}", "s_lshl_b32 s64, s64, 6", f"s_lshl_b32 s65, s{S_W}, 4", "s_add_u32 s64, s64, s65", "s_lshl_b32 s64, s64, 4", f"s_add_u32 s64, s64, {WS['ES']}")
        A("v_lshlrev_b32 v13, 4, v10", "v_lshlrev_b32 v12, 2, v10")
        cur = (pr(RE, 0), pr(IM, 0))
        for sg in range(1, 16):
            d = E0 if sg & 1 else E1_
            step(d, d + 2, cur[0], cur[1], pr(RE, sg), pr(IM, sg))
            cur = (d, d + 2)
        er, ei = cur
        self.cfma(188, 189, 168, 169, er, ei, er + 1, ei + 1)
        for qq in range(4):
            A(f"v_add_u32 v{14 + (qq&1)}, {64*qq}, v12")
            A(f"ds_bpermute_b32 v{190+2*qq}, v{14 + (qq&1)}, v188", f"ds_bpermute_b32 v{191+2*qq}, v{14 + (qq&1)}, v189")
        A("s_waitcnt lgkmcnt(0)")
        self.cfma(198, 199, 170, 171, 190, 191, 192, 193)
        self.cfma(200, 201, 170, 171, 198, 199, 194, 195)
        self.cfma(228, 229, 170, 171, 200, 201, 196, 197)
        A("s_mov_b64 s[66:67], exec", "s_mov_b64 exec, 0xffff")
        A(f"buffer_store_dwordx4 v[228:231], v13, {WSr}, s64 offen sc1")
        A("s_mov_b64 exec, s[66:67]")
        self.stamp(3)
        A("s_barrier")
        self.skip_issue()
        self.mode_load("B", 224)
        K2 = "v[164:165]"
        for sg in range(16):
            r_, i_ = pr(RE, sg), pr(IM, sg)
            A(f"v_pk_mul_f32 v[232:233], v[{i_}:{i_+1}], {K2} op_sel:[0,1] op_sel_hi:[1,1]")
            A(f"v_pk_mul_f32 v[234:235], v[{r_}:{r_+1}], {K2} op_sel:[0,1] op_sel_hi:[1,1]")
            A(f"v_pk_fma_f32 v[{r_}:{r_+1}], v[{r_}:{r_+1}], {K2}, v[232:233] op_sel_hi:[1,0,1] neg_lo:[0,0,1] neg_hi:[0,0,1]")
            A(f"v_pk_fma_f32 v[{i_}:{i_+1}], v[{i_}:{i_+1}], {K2}, v[234:235] op_sel_hi:[1,0,1]")
        if 'epre' in EXP:
            A("s_waitcnt vmcnt(0)")
            self.skip_finish()
            for r in range(16):
                A(f"v_mov_b32 v{P2ACC+r}, v{XS+r}", f"v_mov_b32 v{P2ACC+16+r}, 0")
        self.stamp(4)
        A(f"s_lshl_b32 s64, s{S_G}, 10", f"s_lshl_b32 s65, s{S_W}, 4", "s_add_u32 s64, s64, s65", "s_lshl_b32 s64, s64, 4", f"s_add_u32 s64, s64, {WS['ES']}")
        A("v_lshlrev_b32 v13, 4, v10")
        lp, lgd, lok, ltd, lz, ldone = L("e_poll"), L("e_gd"), L("e_ok"), L("e_td"), L("e_zero"), L("e_done")
        A("v_lshlrev_b32 v14, 10, v11", "v_add_u32 v14, v14, v13")
        A(f"s_cmp_eq_u32 s{S_RT}, 0", f"s_cbranch_scc1 {lz}")
        for i in range(4):
            A(f"v_add_u32 v15, {4*i}, v11", f"v_cmp_gt_u32 s[{52+2*i}:{53+2*i}], s{S_RT}, v15")
        A(f"s_mov_b32 s72, {POLL_LIMIT}")
        A.label(lp)
        A("s_mov_b32 s65, s64")
        for i in range(4):
            A(f"s_cmp_le_u32 s{S_RT}, {4*i}", f"s_cbranch_scc1 {lgd}")
            A(f"buffer_load_dwordx4 v[{80+4*i}:{83+4*i}], v14, {WSr}, s65 offen sc1")
            if i < 3: A("s_add_u32 s65, s65, 4096")
        A.label(lgd)
        A("v_mov_b32 v236, 0")
        A("s_waitcnt vmcnt(0)")
        for i in range(4):
            A(f"s_cmp_le_u32 s{S_RT}, {4*i}", f"s_cbranch_scc1 {ltd}")
            A(f"v_xor_b32 v237, v230, v{82+4*i}", f"v_xor_b32 v238, v231, v{83+4*i}", "v_or_b32 v237, v237, v238")
            A(f"v_cndmask_b32 v237, 0, v237, s[{52+2*i}:{53+2*i}]", "v_or_b32 v236, v236, v237")
        A.label(ltd)
        A("v_cmp_ne_u32 vcc, 0, v236")
        A("s_sub_u32 s72, s72, 1", f"s_cbranch_scc1 {lok}")
        A(f"s_cbranch_vccnz {lp}")
        A.label(lok)
        A("v_mov_b32 v204, 0", "v_mov_b32 v205, 0")
        for i in range(4):
            self.cfma(206, 207, 218, 219, 204, 205, 80 + 4*i, 81 + 4*i)
            A(f"v_cndmask_b32 v204, v204, v206, s[{52+2*i}:{53+2*i}]", f"v_cndmask_b32 v205, v205, v207, s[{52+2*i}:{53+2*i}]")
        A(f"s_sub_u32 s65, s{S_RT}, 1", "v_sub_u32 v15, s65, v11", "v_and_b32 v15, 3, v15")
        A("v_mov_b32 v206, 1.0", "v_mov_b32 v207, 0")
        for e, (wr, wi) in enumerate(((172, 173), (214, 215), (216, 217)), start=1):
            A(f"v_cmp_eq_u32 vcc, {e}, v15", "s_nop 1")
            A(f"v_cndmask_b32 v206, v206, v{wr}, vcc", f"v_cndmask_b32 v207, v207, v{wi}, vcc")
        A("v_mul_f32 v236, v204, v206", "v_mul_f32 v237, v204, v207")
        A("v_fma_f32 v236, -v205, v207, v236", "v_fma_f32 v237, v205, v206, v237")
        A("v_mov_b32 v238, v236", "v_mov_b32 v206, v237", "s_nop 1")
        A("v_permlane32_swap_b32 v236, v238", "v_permlane32_swap_b32 v237, v206", "s_nop 1")
        A("v_add_f32 v236, v236, v238", "v_add_f32 v237, v237, v206")
        A("v_mov_b32 v238, v236", "v_mov_b32 v206, v237", "s_nop 1")
        A("v_permlane16_swap_b32 v236, v238", "v_permlane16_swap_b32 v237, v206", "s_nop 1")
        A("v_add_f32 v204, v236, v238", "v_add_f32 v205, v237, v206")
        A(f"s_branch {ldone}")
        A.label(lz)
        A("v_mov_b32 v204, 0", "v_mov_b32 v205, 0", "s_waitcnt vmcnt(0)")
        A.label(ldone)
        self.mode_resolve("B", 224, "bc")
        self.stamp(5)
        self.cfma(198, 199, 170, 171, 204, 205, 190, 191)
        self.cfma(200, 201, 170, 171, 198, 199, 192, 193)
        self.cfma(202, 203, 170, 171, 200, 201, 194, 195)
        for qq, (sr, si) in enumerate(((198, 199), (200, 201), (202, 203)), start=1):
            A(f"v_cmp_eq_u32 vcc, {qq}, v11", "s_nop 1")
            A(f"v_cndmask_b32 v204, v204, v{sr}, vcc", f"v_cndmask_b32 v205, v205, v{si}, vcc")
        self.cfma(206, 207, 168, 169, 204, 205, er, ei)
        def cmul(dr, di, ar, ai):
            A(f"v_mul_f32 v{dr}, v{ar}, v164", f"v_mul_f32 v{di}, v{ar}, v165")
            A(f"v_fma_f32 v{dr}, -v{ai}, v165, v{dr}", f"v_fma_f32 v{di}, v{ai}, v164, v{di}")
        cmul(208, 210, 204, 205)
        cmul(209, 211, 206, 207)
        A(f"s_lshl_b32 s64, s{S_W}, 13", f"s_add_u32 s64, s64, {MISC}")
        A("v_lshlrev_b32 v12, 6, v11", "v_lshlrev_b32 v13, 4, v10", "v_xor_b32 v12, v12, v13", "v_lshlrev_b32 v13, 8, v10", "v_add_u32 v12, v12, v13", "v_add_u32 v12, s64, v12")
        for c in range(1, 4): A(f"v_xor_b32 v{212+c}, {16*c}, v12")
        A("v_bfe_u32 v13, v0, 4, 1", "v_lshlrev_b32 v13, 5, v13", "v_and_b32 v14, 3, v0", "v_lshlrev_b32 v14, 3, v14", "v_add_u32 v13, v13, v14")
        A("v_bfe_u32 v14, v0, 2, 2", "v_lshlrev_b32 v15, 4, v14", "v_xor_b32 v13, v13, v15", "v_lshlrev_b32 v14, 8, v14", "v_add_u32 v13, v13, v14")
        A("v_lshrrev_b32 v14, 5, v0", "v_lshlrev_b32 v14, 12, v14", "v_add_u32 v13, v13, v14", "v_add_u32 v13, s64, v13")
        cur = (208, 210)
        def pack(pl_, c):
            base, neg = (RE, "") if pl_ == 0 else (IM, "-")
            for j in range(4):
                sg = 8 * (c & 1) + 2 * j
                r0, r1 = pr(base, sg) + (c >> 1), pr(base, sg + 1) + (c >> 1)
                A(f"v_cvt_pk_bf16_f32 v{80 + 16*pl_ + 4*c + j}, {neg}v{r0}, {neg}v{r1}")
            A(f"ds_write_b128 v{12 if c == 0 else 212+c}, {v(80 + 16*pl_ + 4*c, 4)} offset:{pl_*4096}")
        for sg in range(16):
            d = (pr(RE, sg), pr(IM, sg))
            step(d[0], d[1], cur[0], cur[1], d[0], d[1])
            cur = d
            if sg == 8:
                for pl_ in range(2):
                    pack(pl_, 0); pack(pl_, 2)
        self.stamp(6)
        for pl_ in range(2):
            pack(pl_, 1); pack(pl_, 3)
        A(f"s_lshl_b32 s64, s{S_RT}, 8", f"s_lshl_b32 s65, s{S_G}, 3", "s_add_u32 s64, s64, s65", f"s_lshl_b32 s65, s{S_W}, 1", "s_add_u32 s64, s64, s65", "s_lshl_b32 s64, s64, 10", f"s_add_u32 s64, s64, {WS['H']}")
        A("v_lshlrev_b32 v12, 4, v0")
        A("s_waitcnt lgkmcnt(0)")
        for rb in range(4):
            for ksl in range(2):
                for a_ in range(2):
                    off = (8 * ksl + 4 * a_) * 256 + ((64 * rb) ^ (128 * ksl + 64 * a_))
                    A(f"ds_read_b64_tr_b16 {v(16 + (rb*2+ksl)*4 + 2*a_, 2)}, v13 offset:{off}")
        for rb in range(4):
            A(f"s_waitcnt lgkmcnt({min(15, 12-4*rb)})")
            for ksl in range(2):
                A(f"buffer_store_dwordx4 {v(16 + (rb*2+ksl)*4, 4)}, v12, {WSr}, s64 offen offset:{ksl*1024} sc1")
            if rb < 3: A("s_add_u32 s64, s64, 0x10000")
        self.stamp(7)
        if 'epre' not in EXP:
            self.skip_finish()
            for r in range(16):
                A(f"v_mov_b32 v{P2ACC+r}, v{XS+r}", f"v_mov_b32 v{P2ACC+16+r}, 0")
        A(f"v_readfirstlane_b32 s{NON}, v230", f"v_readfirstlane_b32 s{NON+1}, v231")
        A("s_barrier")
        A("s_waitcnt vmcnt(0)")
        self.wave_flag("B", 230)
        self.stamp(8)

    def p2(self, role):
        A, L = self.A, self.L
        self.stamp(9)
        if 'prio' in EXP: A("s_setprio 0")
        nk = 32 if role == "A" else 64
        nst = nk // 2
        abase = WS["O"] if role == "A" else WS["H"]
        ACC, BF, AF = P2ACC, 48, 80
        NBUF, LA = 4, 7
        A(f"s_lshr_b32 s64, s{S_WAVE}, 2", f"s_and_b32 s65, s{S_WAVE}, 3")
        A("v_lshlrev_b32 v2, 4, v0")
        A(f"s_lshl_b32 s66, s{S_RT}, 2", "s_add_u32 s66, s66, s65", f"s_mul_i32 s66, s66, {nk*1024}")
        A(f"s_mul_i32 s67, s64, {nst*1024}", "s_add_u32 s66, s66, s67", f"s_add_u32 s66, s66, {abase}")
        def aload(k):
            A(f"buffer_load_dwordx4 {v(AF + 4*(k % 8), 4)}, v2, {WSr}, s66 offen offset:{(k % 4)*1024}")
            if k % 4 == 3: A("s_add_u32 s66, s66, 4096")
        A("v_and_b32 v5, 31, v0", "v_lshrrev_b32 v6, 5, v0")
        A(f"s_lshl_b32 s68, s{S_RT}, 7", "s_lshl_b32 s69, s65, 5", "s_add_u32 s68, s68, s69")
        A(f"s_lshl_b32 s69, s{S_G}, 6", "s_lshl_b32 s70, s64, 5", "s_add_u32 s69, s69, s70")
        lg = Lgkm(A)
        if role == "A":
            A("v_lshlrev_b32 v12, 2, v6", "v_bfe_u32 v13, v0, 2, 2", "v_add_u32 v12, v12, v13", "v_lshlrev_b32 v12, 7, v12")
            A("v_bfe_u32 v13, v0, 3, 1", "v_lshlrev_b32 v13, 6, v13", "v_add_u32 v12, v12, v13")
            A("v_bfe_u32 v13, v0, 4, 1", "v_lshlrev_b32 v13, 5, v13", "v_add_u32 v12, v12, v13")
            A("v_and_b32 v13, 3, v0", "v_lshlrev_b32 v13, 3, v13", "v_add_u32 v12, v12, v13")
            A("s_lshl_b32 s70, s64, 15", f"s_add_u32 s70, s70, {WOIMG}", "v_add_u32 v3, s70, v12", "v_xor_b32 v4, 64, v3")
            def bread(k):
                b = BF + 8 * (k % NBUF)
                for cb in range(2):
                    for a_ in range(2):
                        lg.issue(f"ds_read_b64_tr_b16 {v(b + 4*cb + 2*a_, 2)}, v{3+cb} offset:{(16*k + 8*a_)*128}", ("b", k))
        else:
            A("v_lshlrev_b32 v12, 16, v6", "v_lshlrev_b32 v13, 10, v5", "v_add_u32 v12, v12, v13")
            A("v_and_b32 v13, 15, v5", "v_lshlrev_b32 v13, 4, v13", "v_add_u32 v12, v12, v13")
            A("s_lshl_b32 s70, s64, 9", "v_add_u32 v3, s70, v12")
            def bread(k):
                b = BF + 8 * (k % NBUF)
                t = 8 + (k % 4)
                A(f"v_xor_b32 v{t}, {(k & 15) * 16}, v3")
                for cb in range(2):
                    lg.issue(f"ds_read_b128 {v(b + 4*cb, 4)}, v{t} offset:{(k >> 4) * 256 + cb * 32768}", ("b", k))
        for k in range(NBUF - 1): bread(k)
        A("s_mov_b32 s76, s64", "s_mov_b32 s77, s66")
        self.p2_wait(role)
        A("s_mov_b32 s64, s76", "s_mov_b32 s66, s77")
        for k in range(LA): aload(k)
        self.stamp(10)
        for k in range(nst):
            if k + LA < nst: aload(k + LA)
            if k + NBUF - 1 < nst: bread(k + NBUF - 1)
            rem = min(nst - 1 - k, LA)
            A(f"s_waitcnt vmcnt({rem})")
            lg.need(("b", k))
            b = BF + 8 * (k % NBUF)
            A(f"v_mfma_f32_32x32x16_bf16 {v(ACC,16)}, {v(AF+4*(k%8),4)}, {v(b,4)}, {v(ACC,16)}")
            A(f"v_mfma_f32_32x32x16_bf16 {v(ACC+16,16)}, {v(AF+4*(k%8),4)}, {v(b+4,4)}, {v(ACC+16,16)}")
        self.stamp(11)
        A(f"s_lshl_b32 s70, s{S_WAVE}, 12", f"s_add_u32 s70, s70, {MISC}", "v_add_u32 v9, s70, v2")
        A(f"s_xor_b32 s71, s{S_WAVE}, 4", "s_lshl_b32 s71, s71, 12", f"s_add_u32 s71, s71, {MISC}", "v_add_u32 v10, s71, v2")
        A("s_lshl_b32 s68, s68, 12", "s_lshl_b32 s69, s69, 2", "s_add_u32 s68, s68, s69")
        if role == "B": A("s_add_u32 s68, s68, 2048")
        A("v_lshlrev_b32 v11, 14, v6", "v_lshlrev_b32 v12, 2, v5", "v_add_u32 v11, v11, v12")
        A.srd(SRD_T0, 28, 8388608)
        lk, lj = L(f"kh1_{role}"), L(f"join_{role}")
        A("s_cmp_eq_u32 s64, 1", f"s_cbranch_scc1 {lk}")
        for i in range(4): A(f"ds_write_b128 v9, {v(ACC+16+4*i,4)} offset:{i*1024}")
        A(f"s_mov_b32 s71, 0")
        A(f"s_branch {lj}")
        A.label(lk)
        for i in range(4): A(f"ds_write_b128 v9, {v(ACC+4*i,4)} offset:{i*1024}")
        A("s_nop 1")
        for i in range(16): A(f"v_mov_b32 v{ACC+i}, v{ACC+16+i}")
        A.label(lj)
        A("s_waitcnt lgkmcnt(0)")
        A("s_barrier")
        for i in range(4): A(f"ds_read_b128 {v(48+4*i,4)}, v10 offset:{i*1024}")
        for i in range(4):
            A(f"s_waitcnt lgkmcnt({3-i})")
            for r in range(4*i, 4*i+4, 2):
                A(f"v_pk_add_f32 v[{ACC+r}:{ACC+r+1}], v[{ACC+r}:{ACC+r+1}], v[{48+r}:{49+r}]")
            for r in range(4*i, 4*i+4):
                row = (r & 3) + 8 * (r >> 2)
                A(f"s_add_u32 s69, s68, {row*4096}")
                A(f"buffer_store_dword v{ACC+r}, v11, {R4(SRD_T0)}, s69 offen {OUTFA if role == 'A' else OUTF}")
        self.stamp(12)
        if 'clk' in EXP:
            lx = L(f"clk_{role}")
            A("s_waitcnt vmcnt(0)")
            A(f"s_cmp_lg_u32 s2, {0 if role == 'A' else 4}", f"s_cbranch_scc1 {lx}", f"s_cmp_lg_u32 s{S_WAVE}, 0", f"s_cbranch_scc1 {lx}")
            A("s_memtime s[88:89]", "s_memrealtime s[90:91]", "s_waitcnt lgkmcnt(0)")
            A("s_sub_u32 s88, s88, s84", "s_sub_u32 s90, s90, s86", "v_mov_b32 v16, s88", "v_mov_b32 v17, s90")
            A(f"v_mov_b32 v18, {0 if role == 'A' else 8}")
            A.srd(SRD_T0, 30, 256)
            A("s_mov_b64 exec, 1")
            A(f"buffer_store_dwordx2 v[16:17], v18, {R4(SRD_T0)}, 0 offen sc1")
            A.label(lx)
        self.write_stamps()
        A("s_endpgm")

def build(out, stamps=False):
    A = Asm()
    K = NAME + "_kernel"
    A.raw(HEADER_COMMENT + f"; @launch grid=(256,1,1) block=(512,1,1) lds={LDS_BYTES}\n" + '.amdgcn_target "amdgcn-amd-amdhsa--gfx950"\n')
    G(A, K, stamps).gen()
    A.kernel_desc(K, 256, accum=256)
    open(out, "w").write(A.text())

if __name__ == "__main__":
    build(sys.argv[1], stamps=(len(sys.argv) > 2 and sys.argv[2] == "stamps"))
```

```python
import sys
sys.path.insert(0, "gen"); sys.path.insert(0, "scratch")
from asmlib import *
WS = dict(O=0x000000, H=0x200000, KVP=0x600000, ES=0x700000, FLG=0x740000, ST=0x900000)
LDS_BYTES = 163840
SLOT = 32768
NSLOT = 5
MISC = 4 * SLOT
PART_STRIDE = 1152
PARTQ = 0
FIN = 20480
WOIMG = SLOT
NONCE = MISC + 24576 + 64
NONCEQ = 28672
LOG2E = 0x3FB8AA3B
EPS = 0x358637BD
INV2PI = 0x3E22F983
POLL_LIMIT = 1 << 18
EXP = set(a for a in sys.argv[3:]) | {'kvd', 'epre', 'rotd', 'pt'}
OUTF = 'sc1' if 'osc1' in EXP else '' if 'opl' in EXP else 'sc0 sc1' if 'osc01' in EXP else 'nt'
OUTFA = 'sc1' if 'oAsc1' in EXP else OUTF
FASTF = 'nt' if 'fnt' in EXP else 'sc0' if 'fsc0' in EXP else 'sc0 nt' if 'fsc0nt' in EXP else ''

S_W, S_WAVE, S_XCD, S_SLOT, S_RT, S_G, S_ROT = 3, 34, 35, 36, 37, 38, 39
SRD_X, SRD_W, SRD_WS, SRD_T0, SRD_T1, SRD_T2, SRD_T3 = 40, 44, 48, 52, 56, 60, 96
NON = 78
P2ACC, XS, XD = 128, 112, 239
def R4(n): return f"s[{n}:{n+3}]"
def creg(R, i):
    n = R * 8 + i
    return 24 + 4 * n if n < 22 else 160 + 4 * (n - 22)
WSr = R4(SRD_WS)

class G:
    def __init__(self, A, K, stamps):
        self.A, self.K, self.stamps = A, K, stamps
    def L(self, n): return f"{self.K}_{n}"
    def stamp(self, i):
        if self.stamps:
            if 'pro' in EXP and 9 <= i <= 12 and not getattr(self, 'inpro', False): return
            if 'stg' in EXP and 3 <= i <= 12 and not getattr(self, 'instg', False): return
            self.A("s_memtime s[100:101]", "s_waitcnt lgkmcnt(0)", f"s_mov_b32 s{80+i}, s100")
    def sstamp(self, i):
        if 'stg' in EXP:
            self.instg = True
            self.A("s_memtime s[100:101]")
            self.A("s_waitcnt lgkmcnt(0)", f"s_mov_b32 s{80+i}, s100")
            self.instg = False
    def pstamp(self, i):
        if 'pro' in EXP:
            self.inpro = True; self.stamp(i); self.inpro = False
    def write_stamps(self):
        A = self.A
        if not self.stamps: return
        A("s_waitcnt vmcnt(0) lgkmcnt(0)")
        self.stamp(13)
        A("s_memrealtime s[100:101]", "s_waitcnt lgkmcnt(0)", "s_mov_b32 s95, s100")
        for j in range(16): A(f"v_mov_b32 v{16+j}, s{80+j}")
        A("s_lshl_b32 s64, s2, 3", f"s_add_u32 s64, s64, s{S_WAVE}", "s_lshl_b32 s64, s64, 6", f"s_add_u32 s64, s64, {WS['ST']}", "v_mov_b32 v2, s64")
        A("v_cmp_eq_u32 vcc, 0, v0", "s_and_saveexec_b64 s[66:67], vcc")
        for j in range(4):
            A(f"buffer_store_dwordx4 v[{16+4*j}:{19+4*j}], v2, {WSr}, 0 offen offset:{16*j}")

    def gen(self):
        A, L = self.A, self.L
        A.kernel_begin(self.K)
        A.label(L("start"))
        if self.stamps:
            for j in range(16): A(f"s_mov_b32 s{80+j}, 0")
            A("s_memrealtime s[100:101]", "s_waitcnt lgkmcnt(0)", "s_mov_b32 s94, s100")
            self.stamp(0)
        if 'clk' in EXP:
            A("s_memtime s[84:85]", "s_memrealtime s[86:87]")
        A("s_cmp_ge_u32 s2, 256", f"s_cbranch_scc1 {L('end')}")
        A("s_load_dwordx4 s[4:7], s[0:1], 0", "s_load_dwordx4 s[8:11], s[0:1], 16", "s_load_dwordx4 s[16:19], s[0:1], 48")
        if 'nocode' not in EXP:
            lc = L("nocode")
            A("s_getpc_b64 s[64:65]")
            A.label(L("pcref"))
            A(f"s_lshr_b32 s66, s2, 3", "s_mul_i32 s66, s66, 9", "v_add_u32 v2, s66, v0", "v_lshlrev_b32 v2, 7, v2")
            A(f"v_min_u32 v2, {L('end')}-{L('pcref')}, v2")
            A(f"v_cmp_gt_u32 vcc, 9, v0", "s_and_saveexec_b64 s[66:67], vcc", f"s_cbranch_execz {lc}")
            A("global_load_dword v255, v2, s[64:65]")
            A.label(lc)
            A("s_mov_b64 exec, s[66:67]")
        A("v_lshrrev_b32 v1, 6, v0", "v_and_b32 v0, 63, v0")
        A(f"v_readfirstlane_b32 s{S_WAVE}, v1")
        A(f"s_and_b32 s{S_XCD}, s2, 7", f"s_lshr_b32 s{S_SLOT}, s2, 3")
        A(f"s_and_b32 s64, s{S_XCD}, 3", f"s_lshl_b32 s{S_RT}, s64, 2", f"s_and_b32 s65, s{S_SLOT}, 3", f"s_add_u32 s{S_RT}, s{S_RT}, s65")
        A(f"s_lshr_b32 s{S_G}, s{S_SLOT}, 2")
        if 'rotb' in EXP:
            A("s_lshl_b32 s65, s65, 1", f"s_add_u32 s{S_ROT}, s{S_G}, s65", f"s_add_u32 s{S_ROT}, s{S_ROT}, s64", f"s_and_b32 s{S_ROT}, s{S_ROT}, 7")
        elif 'rotc' in EXP:
            A("s_lshl_b32 s65, s65, 1", f"s_add_u32 s{S_ROT}, s{S_G}, s65", f"s_and_b32 s{S_ROT}, s{S_ROT}, 7")
        elif 'roti' in EXP:
            A(f"s_lshl_b32 s{S_ROT}, s65, 1")
        elif 'rotj' in EXP:
            A(f"s_lshr_b32 s{S_ROT}, s{S_G}, 1", f"s_add_u32 s{S_ROT}, s{S_ROT}, s65", f"s_and_b32 s{S_ROT}, s{S_ROT}, 3", f"s_lshl_b32 s{S_ROT}, s{S_ROT}, 1")
        elif 'rote' in EXP:
            A(f"s_add_u32 s{S_ROT}, s{S_G}, s65", f"s_and_b32 s{S_ROT}, s{S_ROT}, 1", f"s_lshl_b32 s{S_ROT}, s{S_ROT}, 2")
        elif 'rotf' in EXP:
            A(f"s_add_u32 s{S_ROT}, s{S_G}, s65", f"s_and_b32 s{S_ROT}, s{S_ROT}, 3", f"s_lshl_b32 s{S_ROT}, s{S_ROT}, 1", "s_and_b32 s64, s64, 1", f"s_add_u32 s{S_ROT}, s{S_ROT}, s64")
        elif 'rotg' in EXP:
            A(f"s_and_b32 s{S_ROT}, s{S_G}, 3", f"s_lshl_b32 s{S_ROT}, s{S_ROT}, 1")
        elif 'roth' in EXP:
            A(f"s_add_u32 s{S_ROT}, s{S_G}, s65", f"s_and_b32 s{S_ROT}, s{S_ROT}, 3")
        elif 'rotd' in EXP:
            A(f"s_add_u32 s{S_ROT}, s{S_G}, s65", f"s_and_b32 s{S_ROT}, s{S_ROT}, 3", f"s_lshl_b32 s{S_ROT}, s{S_ROT}, 1")
        else:
            A("s_lshl_b32 s65, s65, 1", f"s_add_u32 s{S_ROT}, s{S_G}, s65", "s_and_b32 s64, s64, 1", f"s_add_u32 s{S_ROT}, s{S_ROT}, s64", f"s_and_b32 s{S_ROT}, s{S_ROT}, 7")
        if 'rot0' in EXP: A(f"s_mov_b32 s{S_ROT}, 0")
        A(f"s_and_b32 s{S_W}, s{S_WAVE}, 3")
        A(f"s_cmp_lt_u32 s{S_WAVE}, 4", f"s_cbranch_scc1 {L('compute')}")
        self.loader_prologue()
        A(f"s_cmp_ge_u32 s{S_XCD}, 4", f"s_cbranch_scc1 {L('bu_load')}")
        self.loader("qkv")
        A.label(L("p2A"))
        self.p2("A")
        A.label(L("bu_load"))
        self.loader("bu")
        A.label(L("p2B"))
        self.p2("B")
        A.label(L("compute"))
        self.rest_kernargs()
        A(f"s_cmp_ge_u32 s{S_XCD}, 4", f"s_cbranch_scc1 {L('bu')}")
        A("s_waitcnt lgkmcnt(0)")
        self.nonce_source()
        self.qkv_compute()
        A(f"s_branch {L('p2A')}")
        A.label(L("bu"))
        self.bu_compute()
        A(f"s_branch {L('p2B')}")
        A.label(L("end"))
        A("s_endpgm")

    def rest_kernargs(self):
        A = self.A
        A("s_load_dwordx4 s[12:15], s[0:1], 32", "s_load_dwordx4 s[20:23], s[0:1], 64", "s_load_dwordx4 s[24:27], s[0:1], 80")
        A("s_load_dwordx4 s[28:31], s[0:1], 96", "s_load_dwordx2 s[32:33], s[0:1], 112")

    def loader_prologue(self):
        A, L = self.A, self.L
        A("v_lshrrev_b32 v5, 3, v0", "v_and_b32 v6, 7, v0", "v_lshrrev_b32 v7, 4, v0")
        A("v_xor_b32 v8, v6, v7", "v_lshlrev_b32 v8, 4, v8")
        A("v_lshlrev_b32 v2, 10, v5", "v_add_u32 v2, v2, v8", "v_xor_b32 v3, 64, v2")
        A(f"s_lshl_b32 s70, s{S_W}, 12")
        lb, lj = L("pro_b"), L("pro_j")
        A(f"s_cmp_ge_u32 s{S_XCD}, 4", f"s_cbranch_scc1 {lb}")
        A("v_and_b32 v9, 1, v7", "v_lshlrev_b32 v9, 2, v9", "v_xor_b32 v9, v6, v9", "v_lshlrev_b32 v9, 4, v9")
        A("v_mul_u32_u24 v4, 3072, v5", "v_add_u32 v4, v4, v9", "v_lshlrev_b32 v12, 10, v5", "v_add_u32 v12, v12, v9")
        A("v_mov_b32 v20, v2", "v_mov_b32 v21, v3", "v_mov_b32 v22, v4", "v_mov_b32 v23, v4", "v_mov_b32 v11, v3")
        A(f"s_lshl_b32 s64, s{S_RT}, 7", f"s_lshl_b32 s65, s{S_W}, 5", "s_add_u32 s64, s64, s65", "s_lshl_b32 s68, s64, 10")
        A(f"s_mul_i32 s69, s{S_W}, {16*3072}", f"s_lshl_b32 s65, s{S_G}, 7", "s_add_u32 s69, s69, s65")
        A(f"s_mov_b32 s76, {64*3072}", "s_lshr_b32 s71, s70, 1")
        A("s_movk_i32 s52, 0x2000", "s_movk_i32 s53, 0x4000")
        A("s_movk_i32 s56, 0x2000")
        A("s_movk_i32 s60, 1024", "s_movk_i32 s61, 25600", "s_movk_i32 s62, 2048", "s_movk_i32 s63, 26624")
        A("s_waitcnt lgkmcnt(0)")
        A.srd(SRD_X, 4, 2097152); A.srd(SRD_W, 6, 1572864)
        A(f"s_branch {lj}")
        A.label(lb)
        A("v_lshrrev_b32 v9, 5, v0", "v_lshlrev_b32 v9, 5, v9", "v_and_b32 v10, 1, v5", "v_lshlrev_b32 v10, 4, v10", "v_add_u32 v9, v9, v10")
        A("v_and_b32 v10, 1, v7", "v_add_u32 v9, v9, v10", "v_lshlrev_b32 v4, 10, v9", "v_add_u32 v4, v4, v8", "v_xor_b32 v11, 64, v4")
        A("v_mov_b32 v20, v4", "v_mov_b32 v21, v11", "v_mov_b32 v22, v2", "v_mov_b32 v23, v3", "v_mov_b32 v12, v2")
        A(f"s_lshl_b32 s64, s{S_RT}, 7", f"s_lshl_b32 s65, s{S_W}, 2", "s_add_u32 s64, s64, s65", "s_lshl_b32 s68, s64, 10")
        A(f"s_lshl_b32 s64, s{S_G}, 6", f"s_and_b32 s65, s{S_W}, 1", "s_lshl_b32 s65, s65, 5", "s_add_u32 s64, s64, s65", "s_lshl_b32 s69, s64, 10")
        A("s_movk_i32 s76, 128", "s_mov_b32 s71, s70")
        A("s_mov_b32 s52, 0x10000", "s_movk_i32 s53, 0x800")
        A("s_movk_i32 s56, 0x800")
        A("s_movk_i32 s60, 0", "s_movk_i32 s61, 0x2000", "s_movk_i32 s62, 0x4000", "s_movk_i32 s63, 0x6000")
        A("s_waitcnt lgkmcnt(0)")
        A.srd(SRD_X, 10, 2097152)
        A(f"s_cmp_lt_u32 s{S_W}, 2", "s_cselect_b32 s64, s16, s18", "s_cselect_b32 s65, s17, s19")
        A.srd(SRD_W, 64, 524288)
        A.label(lj)
        A("s_add_u32 s54, s52, s53", "s_add_u32 s57, s56, 1024")
        self.pstamp(10)
        X, W = R4(SRD_X), R4(SRD_W)
        for st in range(1 if 's0' in EXP else 2):
            slot = st * SLOT
            A(f"s_add_u32 s64, s{S_ROT}, {st}", "s_and_b32 s64, s64, 7")
            A("s_lshl_b32 s65, s64, 7", "s_add_u32 s65, s65, s68", "s_mul_i32 s66, s64, s76", "s_add_u32 s66, s66, s69")
            xo = [None, "s52", "s53", "s54"]
            for ii in range(4):
                A(f"s_add_u32 m0, s70, {slot + ii*1024}")
                A(f"s_add_u32 s67, s65, {xo[ii]}" if xo[ii] else "s_mov_b32 s67, s65")
                A(f"buffer_load_dwordx4 v{20 + (ii&1)}, {X}, s67 offen lds")
            A(f"s_add_u32 s72, s71, {slot + 16384}")
            wl = ["0", "1024", "s56", "s57"]
            for ii in range(4):
                A(f"s_add_u32 m0, s72, {wl[ii]}", f"s_add_u32 s67, s66, s{60+ii}")
                A(f"buffer_load_dwordx4 v{22 + (ii&1)}, {W}, s67 offen lds")
            self.pstamp(11 + st)
        self.rest_kernargs()

    def poll_lines(self, tag, nl, sbase, stride_log2, R=8):
        A, L = self.A, self.L
        lp, done = L(f"poll_{tag}"), L(f"polld_{tag}")
        A(f"s_mov_b32 s72, {POLL_LIMIT}")
        A(f"v_lshlrev_b32 v{R+2}, {stride_log2}, v0")
        A("s_mov_b64 s[74:75], exec", f"s_mov_b64 exec, {(1 << nl) - 1:#x}")
        A.label(lp)
        A(f"buffer_load_dwordx2 v[{R}:{R+1}], v{R+2}, {WSr}, s{sbase} offen sc1")
        A("s_waitcnt vmcnt(0)")
        A(f"v_xor_b32 v{R}, s{NON}, v{R}", f"v_xor_b32 v{R+1}, s{NON+1}, v{R+1}", f"v_or_b32 v{R}, v{R}, v{R+1}")
        A(f"v_cmp_ne_u32 vcc, 0, v{R}")
        A("s_sub_u32 s72, s72, 1")
        A(f"s_cbranch_scc1 {done}")
        A(f"s_cbranch_vccz {done}")
        A(f"s_branch {lp}")
        A.label(done)
        A("s_mov_b64 exec, s[74:75]")

    def store_flag(self, sbase, tag, R=8):
        A, L = self.A, self.L
        A(f"v_mov_b32 v{R}, s{NON}", f"v_mov_b32 v{R+1}, s{NON+1}", f"v_mov_b32 v{R+2}, 0")
        A("s_mov_b64 s[74:75], exec", "s_mov_b64 exec, 1")
        lf, lj = L(f"sf_fast_{tag}"), L(f"sf_j_{tag}")
        A("s_cmp_eq_u32 s73, 1", f"s_cbranch_scc1 {lf}")
        A(f"buffer_store_dwordx2 v[{R}:{R+1}], v{R+2}, {WSr}, s{sbase} offen sc1")
        A(f"s_branch {lj}")
        A.label(lf)
        A(f"buffer_store_dwordx2 v[{R}:{R+1}], v{R+2}, {WSr}, s{sbase} offen")
        A.label(lj)
        A("s_mov_b64 exec, s[74:75]")

    def skip_issue(self, vm=None):
        A = self.A
        A(f"s_lshr_b32 s64, s{S_WAVE}, 2")
        A(f"s_lshl_b32 s68, s{S_RT}, 7", f"s_lshl_b32 s69, s{S_W}, 5", "s_add_u32 s68, s68, s69")
        A(f"s_lshl_b32 s69, s{S_G}, 6", "s_lshl_b32 s70, s64, 5", "s_add_u32 s69, s69, s70")
        A.srd(SRD_T0, 10, 2097152); A.srd(SRD_T1, 26, 1024)
        A("s_lshl_b32 s70, s68, 10", "s_lshl_b32 s71, s69, 1", "s_add_u32 s70, s70, s71")
        A("v_and_b32 v8, 31, v0", "v_lshrrev_b32 v7, 5, v0", "v_lshlrev_b32 v7, 12, v7", "v_lshlrev_b32 v8, 1, v8", "v_add_u32 v7, v7, v8")
        for r in range(16):
            if r % 4 == 0 and r > 0: A("s_add_u32 s70, s70, 8192")
            ins = f"buffer_load_ushort v{XS+r}, v7, {R4(SRD_T0)}, s70 offen offset:{(r%4)*1024}"
            vm.issue(ins, "skip") if vm else A(ins)
        ins = f"buffer_load_ushort v{XD}, v8, {R4(SRD_T1)}, s71 offen"
        vm.issue(ins, "skip") if vm else A(ins)

    def skip_finish(self):
        A = self.A
        A(f"v_lshlrev_b32 v{XD}, 16, v{XD}")
        for r in range(16): A(f"v_lshlrev_b32 v{XS+r}, 16, v{XS+r}")
        for r in range(16): A(f"v_mul_f32 v{XS+r}, v{XS+r}, v{XD}")
        for r in range(0, 16, 2): A(f"v_cvt_pk_bf16_f32 v{XS+r}, v{XS+r}, v{XS+r+1}")
        for r in range(0, 16, 2):
            A(f"v_and_b32 v{XS+r+1}, 0xffff0000, v{XS+r}", f"v_lshlrev_b32 v{XS+r}, 16, v{XS+r}")

    def mode_announce(self, role, R=240):
        A, L = self.A, self.L
        lx = L(f"ann_{role}")
        A(f"s_cmp_lg_u32 s{S_W}, 0", f"s_cbranch_scc1 {lx}")
        A("s_getreg_b32 s64, hwreg(HW_REG_XCC_ID, 0, 3)", "s_lshl_b32 s64, 1, s64", f"s_lshl_b32 s65, 0x100, s{S_G}", "s_or_b32 s64, s64, s65")
        A(f"s_add_u32 s65, s{S_RT}, {0 if role == 'A' else 16}", "s_lshl_b32 s65, s65, 2")
        A(f"v_mov_b32 v{R}, s64", f"v_mov_b32 v{R+1}, s65")
        A.srd(SRD_T3, 30, 256)
        A("s_mov_b64 s[66:67], exec", "s_mov_b64 exec, 1")
        A(f"buffer_atomic_or v{R}, v{R+1}, {R4(SRD_T3)}, 0 offen sc1")
        A("s_mov_b64 exec, s[66:67]")
        A.label(lx)

    def mode_load(self, role, R):
        A = self.A
        A(f"s_add_u32 s65, s{S_RT}, {0 if role == 'A' else 16}", "s_lshl_b32 s65, s65, 2", f"v_mov_b32 v{R+1}, s65")
        A.srd(SRD_T3, 30, 256)
        A(f"buffer_load_dword v{R}, v{R+1}, {R4(SRD_T3)}, 0 offen sc1")

    def mode_resolve(self, role, R, tag):
        A, L = self.A, self.L
        lp, ok = L(f"mode_lp_{tag}"), L(f"mode_ok_{tag}")
        A(f"s_mov_b32 s72, {POLL_LIMIT}")
        A.label(lp)
        A(f"v_readfirstlane_b32 s73, v{R}", "s_nop 3")
        A("s_and_b32 s71, s73, 0xff00", "s_cmp_eq_u32 s71, 0xff00", f"s_cbranch_scc1 {ok}")
        A("s_sub_u32 s72, s72, 1", f"s_cbranch_scc1 {ok}")
        A(f"buffer_load_dword v{R}, v{R+1}, {R4(SRD_T3)}, 0 offen sc1", "s_waitcnt vmcnt(0)", f"s_branch {lp}")
        A.label(ok)
        A("s_and_b32 s70, s73, 0xff", "s_bcnt1_i32_b32 s70, s70", "s_cmp_eq_u32 s70, 1", "s_cselect_b32 s73, 1, 0")
        A("s_cmp_eq_u32 s71, 0xff00", "s_cselect_b32 s73, s73, 0")
        if 'slow' in EXP: A("s_mov_b32 s73, 0")

    def flag_touch(self, role, R):
        A = self.A
        self.flag_addr(role, 64)
        A(f"s_lshl_b32 s65, s{S_G}, 7", "s_add_u32 s64, s64, s65", f"v_mov_b32 v{R}, 0")
        A("s_mov_b64 s[74:75], exec", "s_mov_b64 exec, 1")
        A(f"buffer_load_dword v{R+1}, v{R}, {WSr}, s64 offen sc1")
        A("s_mov_b64 exec, s[74:75]")

    def weight_touch(self, R):
        A = self.A
        if 'nowt' in EXP: return
        A("s_lshl_b32 s64, s2, 2", f"s_add_u32 s64, s64, s{S_W}", "s_mul_i32 s64, s64, 12")
        A(f"v_add_u32 v{R}, s64, v0", f"v_lshlrev_b32 v{R}, 7, v{R}")
        A.srd(SRD_T0, 8, 524288); A.srd(SRD_T1, 20, 524288); A.srd(SRD_T2, 22, 524288)
        A("s_mov_b64 s[74:75], exec", "s_mov_b64 exec, 0xfff")
        A(f"buffer_load_dword v{R+1}, v{R}, {R4(SRD_T0)}, 0 offen sc1")
        A(f"v_subrev_u32 v{R+2}, 0x80000, v{R}")
        A(f"buffer_load_dword v{R+1}, v{R+2}, {R4(SRD_T1)}, 0 offen sc1")
        A(f"v_subrev_u32 v{R+2}, 0x100000, v{R}")
        A(f"buffer_load_dword v{R+1}, v{R+2}, {R4(SRD_T2)}, 0 offen sc1")
        A("s_mov_b64 exec, s[74:75]")

    def l2_prefetch(self, role, base, R):
        A = self.A
        if 'pf' not in EXP: return
        A(f"s_add_u32 s64, s{S_W}, {base}")
        A(f"s_and_b32 s65, s{S_XCD}, 3", "s_lshl_b32 s65, s65, 9", f"s_lshl_b32 s66, s{S_SLOT}, 4", "s_add_u32 s65, s65, s66")
        A("s_lshl_b32 s65, s65, 10", "s_lshl_b32 s66, s64, 7", "s_add_u32 s65, s65, s66")
        A(f"v_and_b32 v{R+2}, 15, v0", f"v_lshlrev_b32 v{R}, 10, v{R+2}")
        A(f"buffer_load_dword v{R+1}, v{R}, {R4(SRD_T0)}, s65 offen sc1")
        if role == "A":
            A(f"v_bfe_u32 v{R+3}, v0, 4, 1", f"v_mul_u32_u24 v{R+3}, 3072, v{R+3}", f"v_lshlrev_b32 v{R+2}, 7, v{R+2}", f"v_add_u32 v{R+2}, v{R+2}, v{R+3}")
            A("s_lshl_b32 s70, s64, 6", f"s_lshl_b32 s66, s{S_SLOT}, 1", "s_add_u32 s70, s70, s66", "s_mul_i32 s70, s70, 3072", "s_add_u32 s70, s70, 1024")
            A(f"buffer_load_dword v{R+1}, v{R+2}, {R4(SRD_T1)}, s70 offen sc1")
        else:
            A(f"s_lshl_b32 s70, s{S_SLOT}, 14", "s_lshl_b32 s66, s64, 7", "s_add_u32 s70, s70, s66")
            A(f"buffer_load_dword v{R+1}, v{R}, {R4(SRD_T1)}, s70 offen sc1")
            A(f"buffer_load_dword v{R+1}, v{R}, {R4(SRD_T2)}, s70 offen sc1")

    def pf_srds(self, role):
        A = self.A
        if 'pf' not in EXP: return
        if role == "A":
            A.srd(SRD_T0, 4, 2097152); A.srd(SRD_T1, 6, 1572864)
        else:
            A.srd(SRD_T0, 10, 2097152); A.srd(SRD_T1, 16, 524288); A.srd(SRD_T2, 18, 524288)

    def page_touch(self, role, R):
        A = self.A
        if 'pt' not in EXP: return
        A(f"v_mov_b32 v{R}, 0")
        if role == "A":
            A(f"s_lshl_b32 s64, s{S_RT}, 2", f"s_add_u32 s64, s64, s{S_W}", "s_lshl_b32 s64, s64, 5", f"s_lshl_b32 s65, s{S_G}, 2", "s_add_u32 s64, s64, s65", "s_lshl_b32 s64, s64, 10")
        else:
            A(f"s_lshl_b32 s64, s{S_RT}, 2", f"s_add_u32 s64, s64, s{S_W}", "s_lshl_b32 s64, s64, 6", f"s_lshl_b32 s65, s{S_G}, 3", "s_add_u32 s64, s64, s65", "s_lshl_b32 s64, s64, 10", f"s_add_u32 s64, s64, {WS['H']}")
        A(f"buffer_load_dword v{R+1}, v{R}, {WSr}, s64 offen sc1")
        A.srd(SRD_T0, 28, 8388608)
        A(f"s_lshl_b32 s64, s{S_RT}, 7", f"s_lshl_b32 s65, s{S_W}, 5", "s_add_u32 s64, s64, s65", "s_lshl_b32 s64, s64, 12", f"s_lshl_b32 s65, s{S_G}, 8", "s_add_u32 s64, s64, s65")
        if role == "B": A("s_add_u32 s64, s64, 2048")
        A(f"buffer_load_dword v{R+1}, v{R}, {R4(SRD_T0)}, s64 offen sc1")
        if role == "B":
            A.srd(SRD_T1, 26, 1024)
            A(f"buffer_load_dword v{R+1}, v{R}, {R4(SRD_T1)}, 0 offen sc1")
        if 'pt2' in EXP:
            if role == "A":
                A.srd(SRD_T1, 8, 524288)
                A(f"s_lshl_b32 s64, s{S_G}, 7")
                A(f"buffer_load_dword v{R+1}, v{R}, {R4(SRD_T1)}, s64 offen sc1")
            else:
                A.srd(SRD_T0, 20, 524288); A.srd(SRD_T2, 22, 524288)
                A(f"s_lshl_b32 s64, s{S_G}, 16")
                A(f"buffer_load_dword v{R+1}, v{R}, {R4(SRD_T0)}, s64 offen sc1")
                A(f"buffer_load_dword v{R+1}, v{R}, {R4(SRD_T2)}, s64 offen sc1")

    def nonce_source(self):
        A, L = self.A, self.L
        ln = L("nononce")
        A("s_cmp_lg_u32 s2, 0", f"s_cbranch_scc1 {ln}", f"s_cmp_lg_u32 s{S_WAVE}, 0", f"s_cbranch_scc1 {ln}")
        A("s_memrealtime s[70:71]", "s_waitcnt lgkmcnt(0)", "s_or_b32 s70, s70, 1")
        A("v_mov_b32 v248, s70", "v_mov_b32 v249, s71", "v_mov_b32 v247, 0")
        A.srd(SRD_T3, 30, 256)
        A(f"buffer_store_dwordx2 v[248:249], v247, {R4(SRD_T3)}, 0 offen offset:128 sc1")
        A.label(ln)

    def loader(self, role):
        A, L = self.A, self.L
        last = 9 if role == "qkv" else 7
        vm = Vm(A)
        vm.q = [('st', 0)] * 8 + ([] if 's0' in EXP else [('st', 1)] * 8)
        X, W = R4(SRD_X), R4(SRD_W)
        def issue(st):
            slot = (st % NSLOT) * SLOT
            tag = ("st", st)
            if st >= 8:
                a = st - 8
                A(f"s_add_u32 s64, s{S_ROT}, s{S_W}", f"s_add_u32 s64, s64, {4*a}", "s_and_b32 s64, s64, 7")
                A(f"s_mul_i32 s64, s64, {64*3072}", f"s_lshl_b32 s65, s{S_G}, 7", "s_add_u32 s64, s64, s65")
                A("s_lshl_b32 s66, s70, 1")
                for i in range(8):
                    A(f"s_add_u32 m0, s66, {slot + i*1024}", f"s_add_u32 s67, s64, {i*8*3072}")
                    vm.issue(f"buffer_load_dwordx4 v4, {W}, s67 offen lds", tag)
                return
            A(f"s_add_u32 s64, s{S_ROT}, {st}", "s_and_b32 s64, s64, 7")
            A("s_lshl_b32 s65, s64, 7", "s_add_u32 s65, s65, s68")
            if role == "qkv":
                A(f"s_mul_i32 s66, s64, {64*3072}", "s_add_u32 s66, s66, s69")
                for ii in range(4):
                    A(f"s_add_u32 m0, s70, {slot + ii*1024}", f"s_add_u32 s67, s65, {ii*8192}")
                    vm.issue(f"buffer_load_dwordx4 v{2 + (ii&1)}, {X}, s67 offen lds", tag)
                A("s_lshr_b32 s71, s70, 1")
                for part in range(2):
                    for ii in range(2):
                        A(f"s_add_u32 m0, s71, {slot + 16384 + part*8192 + ii*1024}", f"s_add_u32 s67, s66, {ii*8*3072 + (1+part)*1024}")
                        vm.issue(f"buffer_load_dwordx4 v4, {W}, s67 offen lds", tag)
            else:
                A("s_lshl_b32 s66, s64, 7", "s_add_u32 s66, s66, s69")
                for ii in range(4):
                    A(f"s_add_u32 m0, s70, {slot + ii*1024}", f"s_add_u32 s67, s65, {(64*(ii&1) + 2*(ii>>1))*1024}")
                    vm.issue(f"buffer_load_dwordx4 v{4 if (ii&1)==0 else 11}, {X}, s67 offen lds", tag)
                for ii in range(4):
                    A(f"s_add_u32 m0, s70, {slot + 16384 + ii*1024}", f"s_add_u32 s67, s66, {ii*8192}")
                    vm.issue(f"buffer_load_dwordx4 v{2 + (ii&1)}, {W}, s67 offen lds", tag)
        def cregion(R):
            part = R >> 1
            A.srd(SRD_T0, 20 + 2 * part, 524288)
            A(f"s_lshl_b32 s64, s{S_G}, 6", f"s_lshl_b32 s65, s{S_W}, 3", "s_add_u32 s64, s64, s65", f"s_add_u32 s64, s64, {32*(R&1)}", "s_lshl_b32 s64, s64, 10")
            A(f"s_and_b32 s66, s{S_W}, 1", "s_lshl_b32 s66, s66, 7", "v_lshlrev_b32 v13, 4, v0", "v_xor_b32 v13, s66, v13")
            for i in range(8):
                A(f"v_xor_b32 v{14+(i&1)}, {i*16}, v13")
                A(f"s_add_u32 s67, s64, {i*1024}")
                vm.issue(f"buffer_load_dwordx4 {v(creg(R, i),4)}, v{14+(i&1)}, {R4(SRD_T0)}, s67 offen", ("c", R))
        self.cregion = cregion
        self.vm = vm
        A("s_waitcnt lgkmcnt(0)")
        A.srd(SRD_WS, 32, 268435456)
        self.stamp(1)
        sched = {0: [2], 1: [3], 2: [4], 3: [5], 4: [6], 5: [7], 6: [8], 7: [9]} if 'l3' not in EXP else {0: [2], 1: [3], 2: [4, 5], 3: [6], 4: [7], 5: [8], 6: [9], 7: []}
        if 's0' in EXP: sched[0] = [1, 2]
        for st in range(8):
            vm.need(("st", st))
            if st == 7:
                self.get_nonce(role)
            A("s_barrier")
            if st == 0: self.stamp(2)
            for x in sched[st]:
                if x <= last: issue(x)
            if (('fb' in EXP and st == (7 if role == "qkv" else 5)) or ('fbB' in EXP and role == "bu" and st == 5)):
                A("v_lshlrev_b32 v13, 7, v0")
                if role == "qkv":
                    A("v_and_b32 v13, 0xfff, v13")
                    A(f"s_lshl_b32 s64, s{S_RT}, 2", f"s_add_u32 s64, s64, s{S_W}", "s_lshl_b32 s64, s64, 5", f"s_lshl_b32 s65, s{S_G}, 2", "s_add_u32 s64, s64, s65", "s_lshl_b32 s64, s64, 10")
                else:
                    A(f"s_lshl_b32 s64, s{S_RT}, 2", f"s_add_u32 s64, s64, s{S_W}", "s_lshl_b32 s64, s64, 6", f"s_lshl_b32 s65, s{S_G}, 3", "s_add_u32 s64, s64, s65", "s_lshl_b32 s64, s64, 10", f"s_add_u32 s64, s64, {WS['H']}")
                vm.issue(f"buffer_load_dword v250, v13, {WSr}, s64 offen sc1", "touch")
            if role == "bu" and 'cearly' in EXP:
                if st == 6: cregion(0)
                if st == 7:
                    for R_ in (1, 2, 3): cregion(R_)
            elif role == "bu" and 'call7' in EXP:
                if st == 7:
                    for R_ in range(4): cregion(R_)
            elif role == "bu" and st == 7:
                for R_ in range(2): cregion(R_)
            if st == 4:
                A(f"s_load_dwordx2 s[{NON}:{NON+1}], s[30:31], 128")
        if role == "qkv": self.qkv_loader_tail()
        else: self.bu_loader_tail()

    def get_nonce(self, role):
        A, L = self.A, self.L
        ok, lp = L(f"nok_{role}"), L(f"nlp_{role}")
        A("s_waitcnt lgkmcnt(0)")
        A(f"s_cmp_lg_u32 s{NON}, 0", f"s_cbranch_scc1 {ok}")
        A.srd(SRD_T0, 30, 256)
        A(f"s_mov_b32 s72, {POLL_LIMIT}", "v_mov_b32 v13, 0")
        A.label(lp)
        A(f"buffer_load_dwordx2 v[14:15], v13, {R4(SRD_T0)}, 0 offen offset:128 sc1", "s_waitcnt vmcnt(0)")
        A(f"v_readfirstlane_b32 s{NON}, v14", f"v_readfirstlane_b32 s{NON+1}, v15", "s_nop 3")
        A("s_sub_u32 s72, s72, 1", f"s_cbranch_scc1 {ok}")
        A(f"s_cmp_lg_u32 s{NON}, 0", f"s_cbranch_scc1 {ok}", "s_sleep 2", f"s_branch {lp}")
        A.label(ok)
        if role == "bu":
            A(f"v_mov_b32 v14, s{NON}", f"v_mov_b32 v15, s{NON+1}", f"v_mov_b32 v13, {NONCE}")
            A("ds_write_b64 v13, v[14:15]", "s_waitcnt lgkmcnt(0)")

    def qkv_loader_tail(self):
        A, L, vm = self.A, self.L, self.vm
        A(f"v_mov_b32 v14, s{NON}", f"v_mov_b32 v15, s{NON+1}", f"v_mov_b32 v13, {NONCEQ}")
        A("ds_write_b64 v13, v[14:15]")
        vm.need(("st", 9))
        A("s_waitcnt lgkmcnt(0)")
        self.stamp(3)
        A("s_barrier")
        A("s_setprio 3")
        self.stamp(4)
        A("v_mul_u32_u24 v7, 24, v0", f"s_mul_i32 s64, s{S_W}, {PART_STRIDE}", "v_add_u32 v7, s64, v7")
        for w in range(4):
            for j in range(3):
                A(f"ds_read_b64 v[{16+6*w+2*j}:{17+6*w+2*j}], v7 offset:{PARTQ + w*4*PART_STRIDE + 8*j}")
        A("v_lshlrev_b32 v3, 4, v0")
        A(f"s_lshl_b32 s64, s{S_G}, 4", f"s_add_u32 s64, s64, s{S_RT}", "s_lshl_b32 s64, s64, 2", f"s_add_u32 s64, s64, s{S_W}", "s_lshl_b32 s64, s64, 10", f"s_add_u32 s64, s64, {WS['KVP']}")
        A(f"v_mov_b32 v51, s{NON}")
        A("s_waitcnt lgkmcnt(6)")
        for j in range(0, 6, 2):
            A(f"v_pk_add_f32 v[{16+j}:{17+j}], v[{16+j}:{17+j}], v[{22+j}:{23+j}]")
        A("s_waitcnt lgkmcnt(0)")
        for j in range(0, 6, 2):
            A(f"v_pk_add_f32 v[{28+j}:{29+j}], v[{28+j}:{29+j}], v[{34+j}:{35+j}]")
        for j in range(0, 6, 2):
            A(f"v_pk_add_f32 v[{16+j}:{17+j}], v[{16+j}:{17+j}], v[{28+j}:{29+j}]")
        for j in range(3):
            A(f"v_cvt_pk_bf16_f32 v{48+j}, v{16+2*j}, v{17+2*j}")
        A("s_mov_b64 s[66:67], exec", "s_mov_b32 exec_lo, -1", "s_mov_b32 exec_hi, 0x3fff")
        A(f"buffer_store_dwordx4 v[48:51], v3, {WSr}, s64 offen sc1")
        self.stamp(5)
        A("s_mov_b64 exec, s[66:67]")
        A.srd(SRD_T0, 8, 524288)
        A(f"s_lshl_b32 s64, s{S_W}, 17", f"s_lshl_b32 s65, s{S_G}, 7", "s_add_u32 s64, s64, s65")
        A(f"s_lshl_b32 s65, s{S_W}, 14")
        for i in range(16):
            A(f"s_add_u32 m0, s65, {WOIMG + i*1024}", f"s_add_u32 s69, s64, {i*8192}")
            A(f"buffer_load_dwordx4 v12, {R4(SRD_T0)}, s69 offen lds")
        if 'kvd' in EXP: A("s_waitcnt vmcnt(0)")
        A("s_mov_b32 exec_lo, -1", "s_mov_b32 exec_hi, 0x3fff")
        A(f"s_lshl_b32 s68, s{S_G}, 6", f"s_add_u32 s68, s68, s{S_W}", "s_lshl_b32 s68, s68, 10", f"s_add_u32 s68, s68, {WS['KVP']}")
        lp, ok, ll, llo = L("kv_poll"), L("kv_ok"), L("kv_light"), L("kv_lightok")
        A(f"s_mov_b32 s72, {POLL_LIMIT}")
        A("v_lshlrev_b32 v5, 12, v0", f"v_add_u32 v5, {45*16+12}, v5")
        A("s_mov_b32 exec_lo, 0xffff", "s_mov_b32 exec_hi, 0")
        A.label(ll)
        A(f"buffer_load_dword v6, v5, {WSr}, s68 offen sc1", "s_waitcnt vmcnt(0)")
        A(f"v_cmp_ne_u32 vcc, s{NON}, v6")
        A("s_sub_u32 s72, s72, 1", f"s_cbranch_scc1 {llo}")
        A(f"s_cbranch_vccnz {ll}")
        A.label(llo)
        A("s_mov_b32 exec_lo, -1", "s_mov_b32 exec_hi, 0x3fff")
        def bulk(fl):
            A("s_mov_b32 s64, s68")
            for r in range(16):
                A(f"buffer_load_dwordx4 v[{64+4*r}:{67+4*r}], v3, {WSr}, s64 offen {fl}")
                if r < 15: A("s_add_u32 s64, s64, 4096")
            A("s_waitcnt vmcnt(0)")
            A(f"v_xor_b32 v52, s{NON}, v67")
            for r in range(1, 16):
                A(f"v_xor_b32 v53, s{NON}, v{67+4*r}", "v_or_b32 v52, v52, v53")
            A("v_cmp_ne_u32 vcc, 0, v52")
        bulk("")
        A(f"s_cbranch_vccz {ok}")
        A.label(lp)
        bulk("sc1")
        A("s_sub_u32 s72, s72, 1", f"s_cbranch_scc1 {ok}")
        A(f"s_cbranch_vccnz {lp}")
        A.label(ok)
        self.stamp(6)
        A("s_mov_b64 exec, s[66:67]")
        for j in range(6): A(f"v_mov_b32 v{16+j}, 0")
        A("v_mov_b32 v24, 0x00003f80", "v_mov_b32 v25, 0x3f800000")
        for r in range(16):
            for j in range(3):
                A(f"v_dot2c_f32_bf16 v{16+2*j}, v{64+4*r+j}, v24")
                A(f"v_dot2c_f32_bf16 v{17+2*j}, v{64+4*r+j}, v25")
        A("s_nop 2")
        for j in range(3):
            A(f"v_cvt_pk_bf16_f32 v{48+j}, v{16+2*j}, v{17+2*j}")
        A("v_mul_u32_u24 v4, 12, v0", f"s_lshl_b32 s66, s{S_W}, 10", f"s_add_u32 s66, s66, {FIN}", "v_add_u32 v4, s66, v4")
        A("s_mov_b64 s[66:67], exec", "s_mov_b32 exec_lo, -1", "s_mov_b32 exec_hi, 0x3fff")
        for j in range(3): A(f"ds_write_b32 v4, v{48+j} offset:{4*j}")
        A("s_mov_b64 exec, s[66:67]")
        A("s_waitcnt lgkmcnt(0)")
        self.stamp(7)
        A("s_barrier")
        A("s_setprio 0")
        for i in range(32): A(f"v_mov_b32 v{P2ACC+i}, 0")
        A("s_waitcnt vmcnt(0)")
        self.stamp(8)
        A("s_barrier")

    def bu_loader_tail(self):
        A, L, vm = self.A, self.L, self.vm
        self.stamp(3)
        A("s_barrier")
        if 'cearly' not in EXP and 'call7' not in EXP:
            self.cregion(2); self.cregion(3)
        self.skip_issue(vm)
        A("v_lshlrev_b32 v13, 4, v0", f"s_lshl_b32 s65, s{S_W}, 13", "v_add_u32 v13, s65, v13")
        for R_ in range(4):
            vm.need(("c", R_))
            if R_ == 2: A("v_add_u32 v13, 0x10000, v13")
            for i in range(8):
                A(f"ds_write_b128 v13, {v(creg(R_, i),4)} offset:{(R_&1)*SLOT + i*1024}")
        A("s_waitcnt lgkmcnt(0)")
        vm.drain()
        self.skip_finish()
        for r in range(16):
            A(f"v_mov_b32 v{P2ACC+r}, 0", f"v_mov_b32 v{P2ACC+16+r}, v{XS+r}")
        self.stamp(4)
        A("s_barrier")

    def flag_addr(self, role, dst):
        A = self.A
        A(f"s_add_u32 s{dst}, s{S_RT}, {0 if role == 'A' else 16}", f"s_lshl_b32 s{dst}, s{dst}, 10", f"s_add_u32 s{dst}, s{dst}, {WS['FLG']}")

    def wave_flag(self, role, vn):
        A = self.A
        self.flag_addr(role, 64)
        A(f"s_lshl_b32 s65, s{S_G}, 7", "s_add_u32 s64, s64, s65", f"s_lshl_b32 s65, s{S_W}, 3", "s_add_u32 s64, s64, s65", "v_mov_b32 v12, 0")
        A("s_mov_b64 s[74:75], exec", "s_mov_b64 exec, 1")
        lf, lj = self.L(f"wf_fast_{role}"), self.L(f"wf_j_{role}")
        A("s_cmp_eq_u32 s73, 1", f"s_cbranch_scc1 {lf}")
        A(f"buffer_store_dwordx2 v[{vn}:{vn+1}], v12, {WSr}, s64 offen sc1")
        A(f"s_branch {lj}")
        A.label(lf)
        A(f"buffer_store_dwordx2 v[{vn}:{vn+1}], v12, {WSr}, s64 offen")
        A.label(lj)
        A("s_mov_b64 exec, s[74:75]")

    def p2_wait(self, role):
        A, L = self.A, self.L
        self.flag_addr(role, 64)
        A(f"s_lshr_b32 s65, s{S_WAVE}, 2", "s_lshl_b32 s65, s65, 9", "s_add_u32 s64, s64, s65")
        lp, done = L(f"fpoll_{role}"), L(f"fpolld_{role}")
        A(f"s_mov_b32 s72, {POLL_LIMIT}")
        if role == "B":
            A("v_lshrrev_b32 v10, 2, v0", "v_lshlrev_b32 v10, 7, v10", "v_and_b32 v11, 3, v0", "v_lshlrev_b32 v11, 3, v11", "v_add_u32 v10, v10, v11")
            A("s_mov_b64 s[74:75], exec", "s_mov_b64 exec, 0xffff")
        else:
            A(f"s_lshl_b32 s65, s{S_W}, 3", "v_lshlrev_b32 v10, 7, v0", "v_add_u32 v10, s65, v10")
            A("s_mov_b64 s[74:75], exec", "s_mov_b64 exec, 0xf")
        A.label(lp)
        A(f"buffer_load_dwordx2 v[8:9], v10, {WSr}, s64 offen sc1")
        A("s_waitcnt vmcnt(0)")
        A(f"v_xor_b32 v8, s{NON}, v8", f"v_xor_b32 v9, s{NON+1}, v9", "v_or_b32 v8, v8, v9")
        A("v_cmp_ne_u32 vcc, 0, v8")
        A("s_sub_u32 s72, s72, 1", f"s_cbranch_scc1 {done}")
        A(f"s_cbranch_vccz {done}")
        for e in EXP:
            if e.startswith('fsl'): A(f"s_sleep {int(e[3:])}")
        A(f"s_branch {lp}")
        A.label(done)
        A("s_mov_b64 exec, s[74:75]")

    def phi_pack(self, acc, n, dst, T):
        A = self.A
        for base in range(0, n, 8):
            for i in range(0, 8, 2):
                A(f"v_pk_mul_f32 v[{T+i}:{T+i+1}], v[{acc+base+i}:{acc+base+i+1}], s[76:77]")
            for i in range(8):
                A(f"v_exp_f32_e64 v{T+i}, v{T+i} clamp")
            for i in range(8):
                A(f"v_max_f32 v{acc+base+i}, 0, v{acc+base+i}")
            for i in range(0, 8, 2):
                A(f"v_pk_add_f32 v[{acc+base+i}:{acc+base+i+1}], v[{acc+base+i}:{acc+base+i+1}], v[{T+i}:{T+i+1}]")
            for i in range(0, 8, 2):
                A(f"v_pk_add_f32 v[{acc+base+i}:{acc+base+i+1}], v[{acc+base+i}:{acc+base+i+1}], s[64:65]")
            for i in range(0, 8, 2):
                A(f"v_cvt_pk_bf16_f32 v{dst+(base+i)//2}, v{acc+base+i}, v{acc+base+i+1}")

    def lam_code(self, P, T):
        A = self.A
        A(f"v_lshlrev_b32 v{P}, 16, v{P}", f"v_lshlrev_b32 v{P+1}, 16, v{P+1}", f"v_lshlrev_b32 v{P+2}, 16, v{P+2}")
        A(f"v_mul_f32 v{T}, {LOG2E:#x}, v{P+2}", f"v_exp_f32 v{T}, v{T}", "s_nop 0")
        A(f"v_cvt_pk_bf16_f32 v{T}, v{T}, v{T}", f"v_lshlrev_b32 v{T}, 16, v{T}")
        A(f"v_mul_f32 v{T+1}, v{T}, v{P}", f"v_mul_f32 v{T+2}, v{T}, v{P+1}")
        A(f"v_mul_f32 v{T+1}, {LOG2E:#x}, v{T+1}", f"v_mul_f32 v{T+2}, {INV2PI:#x}, v{T+2}")
        A(f"v_exp_f32 v{T+1}, v{T+1}", f"v_fract_f32 v{T+2}, v{T+2}", "s_nop 0")
        A(f"v_cos_f32 v{P+3}, v{T+2}", f"v_sin_f32 v{P+4}, v{T+2}", "s_nop 0")
        A(f"v_mul_f32 v{P+3}, v{P+3}, v{T+1}", f"v_mul_f32 v{P+4}, v{P+4}, v{T+1}")

    def csq(self, d, s_, t):
        A = self.A
        A(f"v_mul_f32 v{t}, v{s_+1}, v{s_+1}", f"v_mul_f32 v{d+1}, v{s_}, v{s_+1}")
        A(f"v_fma_f32 v{d}, v{s_}, v{s_}, -v{t}", f"v_add_f32 v{d+1}, v{d+1}, v{d+1}")

    def cfma(self, dr, di, ar, ai, br, bi, cr, ci):
        A = self.A
        A(f"v_fma_f32 v{dr}, v{ar}, v{br}, v{cr}", f"v_fma_f32 v{di}, v{ar}, v{bi}, v{ci}")
        A(f"v_fma_f32 v{dr}, -v{ai}, v{bi}, v{dr}", f"v_fma_f32 v{di}, v{ai}, v{br}, v{di}")

    def qkv_compute(self):
        A, L = self.A, self.L
        ACC, WF, XF, TMP = 16, 80, 112, 240
        VA, VW = 4, 8
        lg = Lgkm(A)
        A("v_and_b32 v10, 31, v0", "v_lshrrev_b32 v11, 5, v0")
        A(f"s_lshl_b32 s64, s{S_W}, 5", "v_add_u32 v12, s64, v10", "v_lshlrev_b32 v12, 7, v12")
        A("v_lshrrev_b32 v13, 1, v10", "v_and_b32 v13, 7, v13", "v_xor_b32 v13, v13, v11", "v_lshlrev_b32 v13, 4, v13")
        A(f"v_add_u32 v{VA}, v12, v13")
        for ks in range(1, 4): A(f"v_xor_b32 v{VA+ks}, {32*ks}, v{VA}")
        A("v_lshrrev_b32 v12, 5, v0", "v_lshlrev_b32 v12, 3, v12", "v_bfe_u32 v13, v0, 2, 2", "v_add_u32 v12, v12, v13", "v_lshlrev_b32 v12, 7, v12")
        A("v_bfe_u32 v13, v0, 3, 1", "v_lshlrev_b32 v13, 6, v13", "v_add_u32 v12, v12, v13")
        A("v_bfe_u32 v13, v0, 4, 1", "v_lshlrev_b32 v13, 5, v13", "v_add_u32 v12, v12, v13")
        A("v_and_b32 v13, 3, v0", "v_lshlrev_b32 v13, 3, v13", f"v_add_u32 v{VW}, v12, v13")
        A(f"v_xor_b32 v{VW+1}, 64, v{VW}")
        A(f"v_add_u32 v2, {3*SLOT}, v{VW}", f"v_add_u32 v3, {3*SLOT}, v{VW+1}")
        A(f"s_mov_b32 s76, {LOG2E:#x}", f"s_mov_b32 s77, {LOG2E:#x}")
        A("v_cmp_gt_u32 s[74:75], 16, v10")
        for i in range(64): A(f"v_mov_b32 v{ACC+i}, 0")
        A("v_and_b32 v12, 15, v10", "v_lshlrev_b32 v13, 4, v11", "v_add_u32 v12, v12, v13", "v_lshlrev_b32 v12, 5, v12")
        A("v_lshrrev_b32 v13, 4, v10", f"v_mul_u32_u24 v13, {PART_STRIDE}, v13", "v_add_u32 v12, v12, v13")
        A(f"s_mul_i32 s66, s{S_W}, {4*PART_STRIDE}", f"s_add_u32 s66, s66, {PARTQ}", "v_add_u32 v12, s66, v12")
        A("v_lshlrev_b32 v14, 5, v11", "v_add_u32 v14, v14, v13", "v_add_u32 v14, s66, v14", "v_add_u32 v14, 1024, v14")
        A("s_waitcnt lgkmcnt(0)")
        self.pf_srds("A")
        self.l2_prefetch("A", 0, 250)
        self.l2_prefetch("A", 4, 250) if 'pfall' in EXP else None
        A.srd(SRD_WS, 32, 268435456)
        self.mode_announce("A")
        self.flag_touch("A", 245)
        self.page_touch("A", 252)
        self.weight_touch(242)
        A("v_cmp_gt_u32 s[74:75], 16, v10")
        def reads(s_, ks):
            buf = (s_ * 4 + ks) & 1
            out = [(f"ds_read_b128 {v(XF + (s_*4+ks)*4, 4)}, v{VA+ks}", ("x", s_, ks))]
            for nt in range(4):
                part, sub = nt >> 1, nt & 1
                for a_ in range(2):
                    off = 16384 + part * 8192 + (16 * ks + 4 * a_) * 128
                    out.append((f"ds_read_b64_tr_b16 {v(WF + buf*16 + nt*4 + 2*a_, 2)}, v{VW+sub} offset:{off}", ("w", s_, ks, nt)))
            return out
        self.pf_srds("A")
        if 'prio' in EXP: A("s_setprio 2")
        A("s_barrier")
        self.stamp(1)
        for ins, tag in reads(0, 0): lg.issue(ins, tag)
        if 'pfall' not in EXP: self.l2_prefetch("A", 4, 250)
        for s_ in range(8):
            for ks in range(4):
                nxt = (s_, ks + 1) if ks < 3 else ((s_ + 1, 0) if s_ < 7 else None)
                if ks == 3 and s_ < 7:
                    A("s_barrier")
                    self.sstamp(3 + s_)
                    d = SLOT if (s_ + 1) % NSLOT != 0 else -(NSLOT - 1) * SLOT
                    for r in list(range(VA, VA + 4)) + [VW, VW + 1]:
                        A(f"v_add_u32 v{r}, {d & 0xffffffff:#x}, v{r}")
                nr = reads(*nxt) if nxt else []
                buf = (s_ * 4 + ks) & 1
                xf = v(XF + (s_ * 4 + ks) * 4, 4)
                for nt in range(4):
                    if nt == 0: lg.need(("x", s_, ks), ("w", s_, ks, 0))
                    else: lg.need(("w", s_, ks, nt))
                    A(f"v_mfma_f32_32x32x16_bf16 {v(ACC+16*nt,16)}, {xf}, {v(WF+buf*16+nt*4,4)}, {v(ACC+16*nt,16)}")
                    if nr:
                        for ins, tag in (nr[0:3] if nt == 0 else nr[1 + 2*nt: 3 + 2*nt]):
                            lg.issue(ins, tag)
        self.stamp(2)
        A("s_waitcnt vmcnt(0)")
        A(f"s_mov_b32 s64, {EPS:#x}", f"s_mov_b32 s65, {EPS:#x}")
        for i in range(4): A(f"v_mov_b32 v{TMP+8+i}, 0x3f803f80")
        A("s_nop 3")
        ONES = TMP + 8
        def kvm(hp):
            kv = ACC + 16 * hp; z = ACC + 32 + 16 * hp
            A(f"v_mfma_f32_32x32x16_bf16 {v(kv,16)}, {v(WF+8*hp,4)}, {v(WF+16+8*hp,4)}, 0")
            A(f"v_mfma_f32_32x32x16_bf16 {v(z,16)}, {v(WF+8*hp,4)}, {v(ONES,4)}, 0")
            A(f"v_mfma_f32_32x32x16_bf16 {v(kv,16)}, {v(WF+8*hp+4,4)}, {v(WF+16+8*hp+4,4)}, {v(kv,16)}")
            A(f"v_mfma_f32_32x32x16_bf16 {v(z,16)}, {v(WF+8*hp+4,4)}, {v(ONES,4)}, {v(z,16)}")
        def vpack(hp):
            for i in range(0, 16, 2):
                A(f"v_cvt_pk_bf16_f32 v{WF+16+8*hp+i//2}, v{ACC+32+16*hp+i}, v{ACC+33+16*hp+i}")
        def pwrite(hp):
            kv = ACC + 16 * hp; z = ACC + 32 + 16 * hp
            T0 = WF + 16 * hp if False else XF_FREE
            for j in range(8):
                A(f"v_cndmask_b32 v{T0+j}, v{kv+8+j}, v{kv+j}, s[74:75]")
            for j in range(8):
                A(f"v_cndmask_b32 v{T0+8+j}, v{z+8+j}, v{z+j}, s[74:75]")
            A(f"ds_write_b128 v12, {v(T0,4)} offset:{hp*2*PART_STRIDE}")
            A(f"ds_write_b128 v12, {v(T0+4,4)} offset:{hp*2*PART_STRIDE+16}")
            A("s_mov_b64 s[66:67], exec", "s_mov_b32 exec_lo, 0x00010001", "s_mov_b32 exec_hi, 0x00010001")
            A(f"ds_write_b128 v14, {v(T0+8,4)} offset:{hp*2*PART_STRIDE}")
            A(f"ds_write_b128 v14, {v(T0+12,4)} offset:{hp*2*PART_STRIDE+16}")
            A("s_mov_b64 exec, s[66:67]")
        self.phi_pack(ACC, 16, WF, TMP)
        vpack(0)
        A("s_nop 1")
        kvm(0)
        self.phi_pack(ACC + 16, 16, WF + 8, TMP)
        vpack(1)
        A("s_nop 1")
        kvm(1)
        XF_FREE = WF
        A("s_nop 1")
        pwrite(0)
        A("s_waitcnt lgkmcnt(0)")
        A("s_nop 4")
        pwrite(1)
        A("s_waitcnt lgkmcnt(0)")
        self.stamp(3)
        A("s_barrier")
        self.mode_load("A", 250)
        for i in range(32): A(f"v_mov_b32 v{ACC+i}, 0")
        lg = Lgkm(A)
        NB = 4
        def qreads(step):
            idx, ks = step >> 2, step & 3
            a9, u = idx >> 2, idx & 3
            b = WF + (step % NB) * 8
            out = []
            for sub in range(2):
                for a_ in range(2):
                    off = a9 * SLOT + u * 8192 + (16 * ks + 4 * a_) * 128
                    out.append((f"ds_read_b64_tr_b16 {v(b + sub*4 + 2*a_, 2)}, v{2+sub} offset:{off}", ("q", step, sub)))
            return out
        for st in range(3):
            for ins, tag in qreads(st): lg.issue(ins, tag)
        for step in range(32):
            b = WF + (step % NB) * 8
            xf = v(XF + step * 4, 4)
            nr = qreads(step + 3) if step + 3 < 32 else []
            for sub in range(2):
                lg.need(("q", step, sub))
                A(f"v_mfma_f32_32x32x16_bf16 {v(ACC+16*sub,16)}, {v(b+4*sub,4)}, {xf}, {v(ACC+16*sub,16)}")
                for ins, tag in nr[2*sub:2*sub+2]: lg.issue(ins, tag)
        self.stamp(4)
        A(f"s_mov_b32 s64, {EPS:#x}", f"s_mov_b32 s65, {EPS:#x}")
        for i in range(32): A(f"v_mov_b32 v{P2ACC+i}, 0")
        self.phi_pack(ACC, 16, WF, TMP)
        self.phi_pack(ACC + 16, 16, WF + 8, TMP)
        A("v_lshlrev_b32 v13, 4, v11", "v_add_u32 v13, v13, v10", "v_lshlrev_b32 v13, 4, v13")
        A("v_lshlrev_b32 v15, 4, v11", "v_add_u32 v15, 512, v15", "v_cndmask_b32 v13, v15, v13, s[74:75]", f"v_add_u32 v13, {FIN}, v13")
        A("v_lshlrev_b32 v12, 4, v0")
        A(f"s_lshl_b32 s64, s{S_RT}, 2", f"s_add_u32 s64, s64, s{S_W}", "s_lshl_b32 s64, s64, 5", f"s_lshl_b32 s65, s{S_G}, 2", "s_add_u32 s64, s64, s65", "s_lshl_b32 s64, s64, 10")
        A("s_waitcnt vmcnt(0)")
        self.mode_resolve("A", 250, "qc")
        self.stamp(5)
        A("s_barrier")
        self.stamp(6)
        A(f"v_mov_b32 v15, {NONCEQ}", "ds_read_b64 v[250:251], v15")
        for hl in range(4):
            A(f"ds_read_b128 {v(WF+16+4*hl,4)}, v13 offset:{hl*1024}")
        for hl in range(4):
            hp, a_ = hl >> 1, hl & 1
            A(f"s_waitcnt lgkmcnt({3-hl})")
            A(f"v_mfma_f32_32x32x16_bf16 {v(ACC+16*hl,16)}, {v(WF+16+4*hl,4)}, {v(WF+8*hp+4*a_,4)}, 0")
        A("s_nop 7")
        for hl in range(4):
            d = ACC + 16 * hl
            if hl == 3: A("s_nop 3")
            A(f"v_add_f32 v{d+8}, {EPS:#x}, v{d+8}")
        for hl in range(4):
            A(f"v_rcp_f32 v{ACC+16*hl+8}, v{ACC+16*hl+8}")
        A("s_nop 0")
        for hl in range(4):
            d = ACC + 16 * hl
            for j in range(0, 8, 2):
                A(f"v_pk_mul_f32 v[{d+j}:{d+j+1}], v[{d+j}:{d+j+1}], v[{d+8}:{d+9}] op_sel_hi:[1,0]")
            for j in range(4):
                A(f"v_cvt_pk_bf16_f32 v{d+12+j}, v{d+2*j}, v{d+2*j+1}")
        if 'fb' in EXP:
            lf, lj = L("o_fast"), L("o_j")
            A("s_cmp_eq_u32 s73, 1", f"s_cbranch_scc1 {lf}")
        for hl in range(4):
            A(f"buffer_store_dwordx4 {v(ACC+16*hl+12,4)}, v12, {WSr}, s64 offen offset:{hl*1024} sc1")
        if 'fb' in EXP:
            A(f"s_branch {lj}")
            A.label(lf)
            for hl in range(4):
                A(f"buffer_store_dwordx4 {v(ACC+16*hl+12,4)}, v12, {WSr}, s64 offen offset:{hl*1024} {FASTF}")
            A.label(lj)
        A(f"v_readfirstlane_b32 s{NON}, v250", f"v_readfirstlane_b32 s{NON+1}, v251")
        A("s_barrier")
        A("s_waitcnt vmcnt(0)")
        self.wave_flag("A", 250)
        self.stamp(7)

    def bu_compute(self):
        A, L = self.A, self.L
        RE, IM, AF, BF = 16, 48, 80, 144
        C = 160
        lg = Lgkm(A)
        A("v_and_b32 v10, 15, v0", "v_lshrrev_b32 v11, 4, v0")
        A(f"s_lshl_b32 s64, s{S_G}, 6", f"s_lshl_b32 s65, s{S_W}, 4", "s_add_u32 s64, s64, s65", "s_lshl_b32 s64, s64, 1")
        A("v_lshlrev_b32 v12, 1, v10")
        A("v_lshrrev_b32 v13, 1, v10", "v_xor_b32 v13, v13, v11", "v_lshlrev_b32 v13, 4, v13", "v_lshlrev_b32 v14, 7, v10", "v_add_u32 v4, v13, v14")
        A("v_xor_b32 v5, 64, v4")
        A(f"s_lshl_b32 s65, s{S_W}, 11", "s_add_u32 s65, s65, 16384")
        A("v_add_u32 v6, s65, v4", "v_add_u32 v7, s65, v5")
        for i in range(64): A(f"v_mov_b32 v{RE+i}, 0")
        A("s_waitcnt lgkmcnt(0)")
        A.srd(SRD_WS, 32, 268435456)
        A.srd(SRD_T0, 12, 1024); A.srd(SRD_T1, 14, 1024); A.srd(SRD_T2, 24, 1024)
        A(f"buffer_load_ushort v{C}, v12, {R4(SRD_T0)}, s64 offen")
        A(f"buffer_load_ushort v{C+1}, v12, {R4(SRD_T1)}, s64 offen")
        A(f"buffer_load_ushort v{C+2}, v12, {R4(SRD_T2)}, s64 offen")
        self.pf_srds("B")
        self.l2_prefetch("B", 0, 250)
        if 'pfall' in EXP: self.l2_prefetch("B", 4, 250)
        A(f"s_waitcnt vmcnt({0 if 'pf' not in EXP else 6 if 'pfall' in EXP else 3})")
        self.mode_announce("B")
        self.flag_touch("B", 243)
        self.page_touch("B", 252)
        self.weight_touch(240)
        self.lam_code(C, C + 8)
        A(f"v_mov_b32 v166, v{C+3}", f"v_mov_b32 v167, v{C+4}")
        A("v_add_f32 v163, -1.0, v163")
        A("v_mul_f32 v168, v160, v160", "v_fma_f32 v168, v161, v161, v168", "v_rcp_f32 v168, v168")
        A("v_mul_f32 v169, v163, v160", "v_fma_f32 v169, v167, v161, v169")
        A("v_mul_f32 v170, v167, v160", "v_fma_f32 v170, -v163, v161, v170")
        A("v_add_f32 v168, v168, v168")
        A("v_mul_f32 v164, v169, v168", "v_mul_f32 v165, v170, v168")
        self.csq(174, 166, 176); self.csq(178, 174, 176); self.csq(174, 178, 176); self.csq(168, 174, 176)
        self.csq(170, 168, 176); self.csq(174, 170, 176); self.csq(172, 174, 176)
        self.csq(214, 172, 176); self.csq(218, 214, 176)
        A("v_mul_f32 v216, v214, v172", "v_mul_f32 v217, v214, v173", "v_fma_f32 v216, -v215, v173, v216", "v_fma_f32 v217, v215, v172, v217")
        def reads(s_, k2):
            buf = (s_ * 2 + k2) & 1
            out = [(f"ds_read_b128 {v(BF + buf*8, 4)}, v{6+k2} offset:0", ("b", s_, k2, 0)),
                   (f"ds_read_b128 {v(BF + buf*8 + 4, 4)}, v{6+k2} offset:8192", ("b", s_, k2, 1))]
            for mt in range(8):
                out.append((f"ds_read_b128 {v(AF + buf*32 + mt*4, 4)}, v{4+k2} offset:{mt*2048}", ("a", s_, k2, mt)))
            return out
        self.pf_srds("B")
        if 'prio' in EXP: A("s_setprio 2")
        A("s_barrier")
        self.stamp(1)
        for ins, tag in reads(0, 0): lg.issue(ins, tag)
        if 'pfall' not in EXP: self.l2_prefetch("B", 4, 250)
        for s_ in range(8):
            for k2 in range(2):
                nxt = (s_, 1) if k2 == 0 else ((s_ + 1, 0) if s_ < 7 else None)
                if k2 == 1 and s_ < 7:
                    A("s_barrier")
                    self.sstamp(3 + s_)
                    d = SLOT if (s_ + 1) % NSLOT != 0 else -(NSLOT - 1) * SLOT
                    for r in range(4, 8):
                        A(f"v_add_u32 v{r}, {d & 0xffffffff:#x}, v{r}")
                nr = reads(*nxt) if nxt else []
                if nxt is None:
                    nr = []
                buf = (s_ * 2 + k2) & 1
                for mt in range(8):
                    if mt == 0: lg.need(("b", s_, k2, 0), ("b", s_, k2, 1), ("a", s_, k2, 0))
                    else: lg.need(("a", s_, k2, mt))
                    af = v(AF + buf*32 + mt*4, 4)
                    A(f"v_mfma_f32_16x16x32_bf16 {v(RE+4*mt,4)}, {af}, {v(BF+buf*8,4)}, {v(RE+4*mt,4)}")
                    A(f"v_mfma_f32_16x16x32_bf16 {v(IM+4*mt,4)}, {af}, {v(BF+buf*8+4,4)}, {v(IM+4*mt,4)}")
                    if nr:
                        for ins, tag in (nr[0:3] if mt == 0 else [nr[2 + mt]]):
                            lg.issue(ins, tag)
                    if nxt is None and mt == 0:
                        A(f"v_mov_b32 v12, {NONCE}")
                        lg.issue("ds_read_b64 v[230:231], v12", "nonce")
        self.stamp(2)
        def pr(base, sg): return base + 4 * (sg >> 1) + 2 * (sg & 1)
        E0, E1_ = 180, 184
        Lr = "v[166:167]"
        def step(dre, dim, sre, sim, ure, uim, M=Lr):
            A(f"v_pk_fma_f32 v[{dre}:{dre+1}], v[{sre}:{sre+1}], {M}, v[{ure}:{ure+1}] op_sel_hi:[1,0,1]")
            A(f"v_pk_fma_f32 v[{dim}:{dim+1}], v[{sim}:{sim+1}], {M}, v[{uim}:{uim+1}] op_sel_hi:[1,0,1]")
            A(f"v_pk_fma_f32 v[{dre}:{dre+1}], v[{sim}:{sim+1}], {M}, v[{dre}:{dre+1}] op_sel:[0,1,0] op_sel_hi:[1,1,1] neg_lo:[0,1,0] neg_hi:[0,1,0]")
            A(f"v_pk_fma_f32 v[{dim}:{dim+1}], v[{sre}:{sre+1}], {M}, v[{dim}:{dim+1}] op_sel:[0,1,0] op_sel_hi:[1,1,1]")
        A(f"s_lshl_b32 s64, s{S_G}, 4", f"s_add_u32 s64, s64, s{S_RT}", "s_lshl_b32 s64, s64, 6", f"s_lshl_b32 s65, s{S_W}, 4", "s_add_u32 s64, s64, s65", "s_lshl_b32 s64, s64, 4", f"s_add_u32 s64, s64, {WS['ES']}")
        A("v_lshlrev_b32 v13, 4, v10", "v_lshlrev_b32 v12, 2, v10")
        cur = (pr(RE, 0), pr(IM, 0))
        for sg in range(1, 16):
            d = E0 if sg & 1 else E1_
            step(d, d + 2, cur[0], cur[1], pr(RE, sg), pr(IM, sg))
            cur = (d, d + 2)
        er, ei = cur
        self.cfma(188, 189, 168, 169, er, ei, er + 1, ei + 1)
        for qq in range(4):
            A(f"v_add_u32 v{14 + (qq&1)}, {64*qq}, v12")
            A(f"ds_bpermute_b32 v{190+2*qq}, v{14 + (qq&1)}, v188", f"ds_bpermute_b32 v{191+2*qq}, v{14 + (qq&1)}, v189")
        A("s_waitcnt lgkmcnt(0)")
        self.cfma(198, 199, 170, 171, 190, 191, 192, 193)
        self.cfma(200, 201, 170, 171, 198, 199, 194, 195)
        self.cfma(228, 229, 170, 171, 200, 201, 196, 197)
        A("s_mov_b64 s[66:67], exec", "s_mov_b64 exec, 0xffff")
        A(f"buffer_store_dwordx4 v[228:231], v13, {WSr}, s64 offen sc1")
        A("s_mov_b64 exec, s[66:67]")
        self.stamp(3)
        A("s_barrier")
        self.skip_issue()
        self.mode_load("B", 224)
        K2 = "v[164:165]"
        for sg in range(16):
            r_, i_ = pr(RE, sg), pr(IM, sg)
            A(f"v_pk_mul_f32 v[232:233], v[{i_}:{i_+1}], {K2} op_sel:[0,1] op_sel_hi:[1,1]")
            A(f"v_pk_mul_f32 v[234:235], v[{r_}:{r_+1}], {K2} op_sel:[0,1] op_sel_hi:[1,1]")
            A(f"v_pk_fma_f32 v[{r_}:{r_+1}], v[{r_}:{r_+1}], {K2}, v[232:233] op_sel_hi:[1,0,1] neg_lo:[0,0,1] neg_hi:[0,0,1]")
            A(f"v_pk_fma_f32 v[{i_}:{i_+1}], v[{i_}:{i_+1}], {K2}, v[234:235] op_sel_hi:[1,0,1]")
        if 'epre' in EXP:
            A("s_waitcnt vmcnt(0)")
            self.skip_finish()
            for r in range(16):
                A(f"v_mov_b32 v{P2ACC+r}, v{XS+r}", f"v_mov_b32 v{P2ACC+16+r}, 0")
        self.stamp(4)
        A(f"s_lshl_b32 s64, s{S_G}, 10", f"s_lshl_b32 s65, s{S_W}, 4", "s_add_u32 s64, s64, s65", "s_lshl_b32 s64, s64, 4", f"s_add_u32 s64, s64, {WS['ES']}")
        A("v_lshlrev_b32 v13, 4, v10")
        lp, lgd, lok, ltd, lz, ldone = L("e_poll"), L("e_gd"), L("e_ok"), L("e_td"), L("e_zero"), L("e_done")
        A("v_lshlrev_b32 v14, 10, v11", "v_add_u32 v14, v14, v13")
        A(f"s_cmp_eq_u32 s{S_RT}, 0", f"s_cbranch_scc1 {lz}")
        for i in range(4):
            A(f"v_add_u32 v15, {4*i}, v11", f"v_cmp_gt_u32 s[{52+2*i}:{53+2*i}], s{S_RT}, v15")
        A(f"s_mov_b32 s72, {POLL_LIMIT}")
        A.label(lp)
        A("s_mov_b32 s65, s64")
        for i in range(4):
            A(f"s_cmp_le_u32 s{S_RT}, {4*i}", f"s_cbranch_scc1 {lgd}")
            A(f"buffer_load_dwordx4 v[{80+4*i}:{83+4*i}], v14, {WSr}, s65 offen sc1")
            if i < 3: A("s_add_u32 s65, s65, 4096")
        A.label(lgd)
        A("v_mov_b32 v236, 0")
        A("s_waitcnt vmcnt(0)")
        for i in range(4):
            A(f"s_cmp_le_u32 s{S_RT}, {4*i}", f"s_cbranch_scc1 {ltd}")
            A(f"v_xor_b32 v237, v230, v{82+4*i}", f"v_xor_b32 v238, v231, v{83+4*i}", "v_or_b32 v237, v237, v238")
            A(f"v_cndmask_b32 v237, 0, v237, s[{52+2*i}:{53+2*i}]", "v_or_b32 v236, v236, v237")
        A.label(ltd)
        A("v_cmp_ne_u32 vcc, 0, v236")
        A("s_sub_u32 s72, s72, 1", f"s_cbranch_scc1 {lok}")
        A(f"s_cbranch_vccnz {lp}")
        A.label(lok)
        A("v_mov_b32 v204, 0", "v_mov_b32 v205, 0")
        for i in range(4):
            self.cfma(206, 207, 218, 219, 204, 205, 80 + 4*i, 81 + 4*i)
            A(f"v_cndmask_b32 v204, v204, v206, s[{52+2*i}:{53+2*i}]", f"v_cndmask_b32 v205, v205, v207, s[{52+2*i}:{53+2*i}]")
        A(f"s_sub_u32 s65, s{S_RT}, 1", "v_sub_u32 v15, s65, v11", "v_and_b32 v15, 3, v15")
        A("v_mov_b32 v206, 1.0", "v_mov_b32 v207, 0")
        for e, (wr, wi) in enumerate(((172, 173), (214, 215), (216, 217)), start=1):
            A(f"v_cmp_eq_u32 vcc, {e}, v15", "s_nop 1")
            A(f"v_cndmask_b32 v206, v206, v{wr}, vcc", f"v_cndmask_b32 v207, v207, v{wi}, vcc")
        A("v_mul_f32 v236, v204, v206", "v_mul_f32 v237, v204, v207")
        A("v_fma_f32 v236, -v205, v207, v236", "v_fma_f32 v237, v205, v206, v237")
        A("v_mov_b32 v238, v236", "v_mov_b32 v206, v237", "s_nop 1")
        A("v_permlane32_swap_b32 v236, v238", "v_permlane32_swap_b32 v237, v206", "s_nop 1")
        A("v_add_f32 v236, v236, v238", "v_add_f32 v237, v237, v206")
        A("v_mov_b32 v238, v236", "v_mov_b32 v206, v237", "s_nop 1")
        A("v_permlane16_swap_b32 v236, v238", "v_permlane16_swap_b32 v237, v206", "s_nop 1")
        A("v_add_f32 v204, v236, v238", "v_add_f32 v205, v237, v206")
        A(f"s_branch {ldone}")
        A.label(lz)
        A("v_mov_b32 v204, 0", "v_mov_b32 v205, 0", "s_waitcnt vmcnt(0)")
        A.label(ldone)
        self.mode_resolve("B", 224, "bc")
        self.stamp(5)
        self.cfma(198, 199, 170, 171, 204, 205, 190, 191)
        self.cfma(200, 201, 170, 171, 198, 199, 192, 193)
        self.cfma(202, 203, 170, 171, 200, 201, 194, 195)
        for qq, (sr, si) in enumerate(((198, 199), (200, 201), (202, 203)), start=1):
            A(f"v_cmp_eq_u32 vcc, {qq}, v11", "s_nop 1")
            A(f"v_cndmask_b32 v204, v204, v{sr}, vcc", f"v_cndmask_b32 v205, v205, v{si}, vcc")
        self.cfma(206, 207, 168, 169, 204, 205, er, ei)
        def cmul(dr, di, ar, ai):
            A(f"v_mul_f32 v{dr}, v{ar}, v164", f"v_mul_f32 v{di}, v{ar}, v165")
            A(f"v_fma_f32 v{dr}, -v{ai}, v165, v{dr}", f"v_fma_f32 v{di}, v{ai}, v164, v{di}")
        cmul(208, 210, 204, 205)
        cmul(209, 211, 206, 207)
        A(f"s_lshl_b32 s64, s{S_W}, 13", f"s_add_u32 s64, s64, {MISC}")
        A("v_lshlrev_b32 v12, 6, v11", "v_lshlrev_b32 v13, 4, v10", "v_xor_b32 v12, v12, v13", "v_lshlrev_b32 v13, 8, v10", "v_add_u32 v12, v12, v13", "v_add_u32 v12, s64, v12")
        for c in range(1, 4): A(f"v_xor_b32 v{212+c}, {16*c}, v12")
        A("v_bfe_u32 v13, v0, 4, 1", "v_lshlrev_b32 v13, 5, v13", "v_and_b32 v14, 3, v0", "v_lshlrev_b32 v14, 3, v14", "v_add_u32 v13, v13, v14")
        A("v_bfe_u32 v14, v0, 2, 2", "v_lshlrev_b32 v15, 4, v14", "v_xor_b32 v13, v13, v15", "v_lshlrev_b32 v14, 8, v14", "v_add_u32 v13, v13, v14")
        A("v_lshrrev_b32 v14, 5, v0", "v_lshlrev_b32 v14, 12, v14", "v_add_u32 v13, v13, v14", "v_add_u32 v13, s64, v13")
        cur = (208, 210)
        def pack(pl_, c):
            base, neg = (RE, "") if pl_ == 0 else (IM, "-")
            for j in range(4):
                sg = 8 * (c & 1) + 2 * j
                r0, r1 = pr(base, sg) + (c >> 1), pr(base, sg + 1) + (c >> 1)
                A(f"v_cvt_pk_bf16_f32 v{80 + 16*pl_ + 4*c + j}, {neg}v{r0}, {neg}v{r1}")
            A(f"ds_write_b128 v{12 if c == 0 else 212+c}, {v(80 + 16*pl_ + 4*c, 4)} offset:{pl_*4096}")
        for sg in range(16):
            d = (pr(RE, sg), pr(IM, sg))
            step(d[0], d[1], cur[0], cur[1], d[0], d[1])
            cur = d
            if sg == 8:
                for pl_ in range(2):
                    pack(pl_, 0); pack(pl_, 2)
        self.stamp(6)
        for pl_ in range(2):
            pack(pl_, 1); pack(pl_, 3)
        A(f"s_lshl_b32 s64, s{S_RT}, 8", f"s_lshl_b32 s65, s{S_G}, 3", "s_add_u32 s64, s64, s65", f"s_lshl_b32 s65, s{S_W}, 1", "s_add_u32 s64, s64, s65", "s_lshl_b32 s64, s64, 10", f"s_add_u32 s64, s64, {WS['H']}")
        A("v_lshlrev_b32 v12, 4, v0")
        A("s_waitcnt lgkmcnt(0)")
        for rb in range(4):
            for ksl in range(2):
                for a_ in range(2):
                    off = (8 * ksl + 4 * a_) * 256 + ((64 * rb) ^ (128 * ksl + 64 * a_))
                    A(f"ds_read_b64_tr_b16 {v(16 + (rb*2+ksl)*4 + 2*a_, 2)}, v13 offset:{off}")
        fb = 'fb' in EXP or 'fbB' in EXP
        variants = ("sc1", FASTF + " ") if fb else ("sc1",)
        lf, lj = L("h_fast"), L("h_j")
        if fb: A("s_cmp_eq_u32 s73, 1", f"s_cbranch_scc1 {lf}")
        for fl in variants:
            if fl != "sc1": A.label(lf)
            A("s_mov_b32 s65, s64")
            for rb in range(4):
                A(f"s_waitcnt lgkmcnt({min(15, 12-4*rb)})")
                for ksl in range(2):
                    A(f"buffer_store_dwordx4 {v(16 + (rb*2+ksl)*4, 4)}, v12, {WSr}, s65 offen offset:{ksl*1024} {fl}")
                if rb < 3: A("s_add_u32 s65, s65, 0x10000")
            if fl == "sc1" and fb: A(f"s_branch {lj}")
        A.label(lj)
        self.stamp(7)
        if 'epre' not in EXP:
            self.skip_finish()
            for r in range(16):
                A(f"v_mov_b32 v{P2ACC+r}, v{XS+r}", f"v_mov_b32 v{P2ACC+16+r}, 0")
        A(f"v_readfirstlane_b32 s{NON}, v230", f"v_readfirstlane_b32 s{NON+1}, v231")
        A("s_barrier")
        A("s_waitcnt vmcnt(0)")
        self.wave_flag("B", 230)
        self.stamp(8)

    def p2(self, role):
        A, L = self.A, self.L
        self.stamp(9)
        if 'prio' in EXP: A("s_setprio 0")
        nk = 32 if role == "A" else 64
        nst = nk // 2
        abase = WS["O"] if role == "A" else WS["H"]
        ACC, BF, AF = P2ACC, 48, 80
        NBUF, LA = 4, 7
        A(f"s_lshr_b32 s64, s{S_WAVE}, 2", f"s_and_b32 s65, s{S_WAVE}, 3")
        A("v_lshlrev_b32 v2, 4, v0")
        A(f"s_lshl_b32 s66, s{S_RT}, 2", "s_add_u32 s66, s66, s65", f"s_mul_i32 s66, s66, {nk*1024}")
        A(f"s_mul_i32 s67, s64, {nst*1024}", "s_add_u32 s66, s66, s67", f"s_add_u32 s66, s66, {abase}")
        def aload(k):
            A(f"buffer_load_dwordx4 {v(AF + 4*(k % 8), 4)}, v2, {WSr}, s66 offen offset:{(k % 4)*1024}")
            if k % 4 == 3: A("s_add_u32 s66, s66, 4096")
        A("v_and_b32 v5, 31, v0", "v_lshrrev_b32 v6, 5, v0")
        A(f"s_lshl_b32 s68, s{S_RT}, 7", "s_lshl_b32 s69, s65, 5", "s_add_u32 s68, s68, s69")
        A(f"s_lshl_b32 s69, s{S_G}, 6", "s_lshl_b32 s70, s64, 5", "s_add_u32 s69, s69, s70")
        lg = Lgkm(A)
        if role == "A":
            A("v_lshlrev_b32 v12, 2, v6", "v_bfe_u32 v13, v0, 2, 2", "v_add_u32 v12, v12, v13", "v_lshlrev_b32 v12, 7, v12")
            A("v_bfe_u32 v13, v0, 3, 1", "v_lshlrev_b32 v13, 6, v13", "v_add_u32 v12, v12, v13")
            A("v_bfe_u32 v13, v0, 4, 1", "v_lshlrev_b32 v13, 5, v13", "v_add_u32 v12, v12, v13")
            A("v_and_b32 v13, 3, v0", "v_lshlrev_b32 v13, 3, v13", "v_add_u32 v12, v12, v13")
            A("s_lshl_b32 s70, s64, 15", f"s_add_u32 s70, s70, {WOIMG}", "v_add_u32 v3, s70, v12", "v_xor_b32 v4, 64, v3")
            def bread(k):
                b = BF + 8 * (k % NBUF)
                for cb in range(2):
                    for a_ in range(2):
                        lg.issue(f"ds_read_b64_tr_b16 {v(b + 4*cb + 2*a_, 2)}, v{3+cb} offset:{(16*k + 8*a_)*128}", ("b", k))
        else:
            A("v_lshlrev_b32 v12, 16, v6", "v_lshlrev_b32 v13, 10, v5", "v_add_u32 v12, v12, v13")
            A("v_and_b32 v13, 15, v5", "v_lshlrev_b32 v13, 4, v13", "v_add_u32 v12, v12, v13")
            A("s_lshl_b32 s70, s64, 9", "v_add_u32 v3, s70, v12")
            def bread(k):
                b = BF + 8 * (k % NBUF)
                t = 8 + (k % 4)
                A(f"v_xor_b32 v{t}, {(k & 15) * 16}, v3")
                for cb in range(2):
                    lg.issue(f"ds_read_b128 {v(b + 4*cb, 4)}, v{t} offset:{(k >> 4) * 256 + cb * 32768}", ("b", k))
        for k in range(NBUF - 1): bread(k)
        A("s_mov_b32 s76, s64", "s_mov_b32 s77, s66")
        self.p2_wait(role)
        A("s_mov_b32 s64, s76", "s_mov_b32 s66, s77")
        for k in range(LA): aload(k)
        self.stamp(10)
        for k in range(nst):
            if k + LA < nst: aload(k + LA)
            if k + NBUF - 1 < nst: bread(k + NBUF - 1)
            rem = min(nst - 1 - k, LA)
            A(f"s_waitcnt vmcnt({rem})")
            lg.need(("b", k))
            b = BF + 8 * (k % NBUF)
            A(f"v_mfma_f32_32x32x16_bf16 {v(ACC,16)}, {v(AF+4*(k%8),4)}, {v(b,4)}, {v(ACC,16)}")
            A(f"v_mfma_f32_32x32x16_bf16 {v(ACC+16,16)}, {v(AF+4*(k%8),4)}, {v(b+4,4)}, {v(ACC+16,16)}")
        self.stamp(11)
        A(f"s_lshl_b32 s70, s{S_WAVE}, 12", f"s_add_u32 s70, s70, {MISC}", "v_add_u32 v9, s70, v2")
        A(f"s_xor_b32 s71, s{S_WAVE}, 4", "s_lshl_b32 s71, s71, 12", f"s_add_u32 s71, s71, {MISC}", "v_add_u32 v10, s71, v2")
        A("s_lshl_b32 s68, s68, 12", "s_lshl_b32 s69, s69, 2", "s_add_u32 s68, s68, s69")
        if role == "B": A("s_add_u32 s68, s68, 2048")
        A("v_lshlrev_b32 v11, 14, v6", "v_lshlrev_b32 v12, 2, v5", "v_add_u32 v11, v11, v12")
        A.srd(SRD_T0, 28, 8388608)
        lk, lj = L(f"kh1_{role}"), L(f"join_{role}")
        A("s_cmp_eq_u32 s64, 1", f"s_cbranch_scc1 {lk}")
        for i in range(4): A(f"ds_write_b128 v9, {v(ACC+16+4*i,4)} offset:{i*1024}")
        A(f"s_mov_b32 s71, 0")
        A(f"s_branch {lj}")
        A.label(lk)
        for i in range(4): A(f"ds_write_b128 v9, {v(ACC+4*i,4)} offset:{i*1024}")
        A("s_nop 1")
        for i in range(16): A(f"v_mov_b32 v{ACC+i}, v{ACC+16+i}")
        A.label(lj)
        A("s_waitcnt lgkmcnt(0)")
        A("s_barrier")
        for i in range(4): A(f"ds_read_b128 {v(48+4*i,4)}, v10 offset:{i*1024}")
        for i in range(4):
            A(f"s_waitcnt lgkmcnt({3-i})")
            for r in range(4*i, 4*i+4, 2):
                A(f"v_pk_add_f32 v[{ACC+r}:{ACC+r+1}], v[{ACC+r}:{ACC+r+1}], v[{48+r}:{49+r}]")
            for r in range(4*i, 4*i+4):
                row = (r & 3) + 8 * (r >> 2)
                A(f"s_add_u32 s69, s68, {row*4096}")
                A(f"buffer_store_dword v{ACC+r}, v11, {R4(SRD_T0)}, s69 offen {OUTFA if role == 'A' else OUTF}")
        self.stamp(12)
        if 'clk' in EXP:
            lx = L(f"clk_{role}")
            A("s_waitcnt vmcnt(0)")
            A(f"s_cmp_lg_u32 s2, {0 if role == 'A' else 4}", f"s_cbranch_scc1 {lx}", f"s_cmp_lg_u32 s{S_WAVE}, 0", f"s_cbranch_scc1 {lx}")
            A("s_memtime s[88:89]", "s_memrealtime s[90:91]", "s_waitcnt lgkmcnt(0)")
            A("s_sub_u32 s88, s88, s84", "s_sub_u32 s90, s90, s86", "v_mov_b32 v16, s88", "v_mov_b32 v17, s90")
            A(f"v_mov_b32 v18, {0 if role == 'A' else 8}")
            A.srd(SRD_T0, 30, 256)
            A("s_mov_b64 exec, 1")
            A(f"buffer_store_dwordx2 v[16:17], v18, {R4(SRD_T0)}, 0 offen sc1")
            A.label(lx)
        self.write_stamps()
        A("s_endpgm")

def build(out, stamps=False):
    A = Asm()
    K = NAME + "_kernel"
    A.raw(HEADER_COMMENT + f"; @launch grid=(256,1,1) block=(512,1,1) lds={LDS_BYTES}\n" + '.amdgcn_target "amdgcn-amd-amdhsa--gfx950"\n')
    G(A, K, stamps).gen()
    A.kernel_desc(K, 256, accum=256)
    open(out, "w").write(A.text())

if __name__ == "__main__":
    build(sys.argv[1], stamps=(len(sys.argv) > 2 and sys.argv[2] == "stamps"))
```

```python
import sys
sys.path.insert(0, "gen"); sys.path.insert(0, "scratch")
from asmlib import *
WS = dict(O=0x000000, H=0x200000, KVP=0x600000, ES=0x700000, FLG=0x740000, IDT=0x760000, ST=0x900000)
LDS_BYTES = 163840
SLOT = 32768
NSLOT = 5
MISC = 4 * SLOT
PART_STRIDE = 1152
PARTQ = 0
FIN = 20480
WOIMG = SLOT
NONCE = MISC + 24576 + 64
NONCEQ = 28672
LOG2E = 0x3FB8AA3B
EPS = 0x358637BD
INV2PI = 0x3E22F983
POLL_LIMIT = 1 << 18
EXP = set(a for a in sys.argv[3:]) | {'kvd', 'epre', 'rotd', 'pt', 'fb', 'fnt'}
if 'fbB' in EXP: EXP.discard('fb')
OUTF = 'sc1' if 'osc1' in EXP else '' if 'opl' in EXP else 'sc0 sc1' if 'osc01' in EXP else 'nt'
OUTFA = 'sc1' if 'oAsc1' in EXP else OUTF
FASTF = 'nt' if 'fnt' in EXP else 'sc0' if 'fsc0' in EXP else 'sc0 nt' if 'fsc0nt' in EXP else ''

S_W, S_WAVE, S_XCD, S_SLOT, S_RT, S_G, S_ROT = 3, 34, 35, 36, 37, 38, 39
SRD_X, SRD_W, SRD_WS, SRD_T0, SRD_T1, SRD_T2, SRD_T3 = 40, 44, 48, 52, 56, 60, 96
NON = 78
P2ACC, XS, XD = 128, 112, 239
def R4(n): return f"s[{n}:{n+3}]"
def creg(R, i):
    n = R * 8 + i
    return 24 + 4 * n if n < 22 else 160 + 4 * (n - 22)
WSr = R4(SRD_WS)

class G:
    def __init__(self, A, K, stamps):
        self.A, self.K, self.stamps = A, K, stamps
    def L(self, n): return f"{self.K}_{n}"
    def stamp(self, i):
        if self.stamps:
            if 'pro' in EXP and 9 <= i <= 12 and not getattr(self, 'inpro', False): return
            if 'stg' in EXP and 3 <= i <= 12 and not getattr(self, 'instg', False): return
            self.A("s_memtime s[100:101]", "s_waitcnt lgkmcnt(0)", f"s_mov_b32 s{80+i}, s100")
    def sstamp(self, i):
        if 'stg' in EXP:
            self.instg = True
            self.A("s_memtime s[100:101]")
            self.A("s_waitcnt lgkmcnt(0)", f"s_mov_b32 s{80+i}, s100")
            self.instg = False
    def pstamp(self, i):
        if 'pro' in EXP:
            self.inpro = True; self.stamp(i); self.inpro = False
    def write_stamps(self):
        A = self.A
        if not self.stamps: return
        A("s_waitcnt vmcnt(0) lgkmcnt(0)")
        self.stamp(13)
        A("s_memrealtime s[100:101]", "s_waitcnt lgkmcnt(0)", "s_mov_b32 s95, s100")
        for j in range(16): A(f"v_mov_b32 v{16+j}, s{80+j}")
        A("s_lshl_b32 s64, s2, 3", f"s_add_u32 s64, s64, s{S_WAVE}", "s_lshl_b32 s64, s64, 6", f"s_add_u32 s64, s64, {WS['ST']}", "v_mov_b32 v2, s64")
        A("v_cmp_eq_u32 vcc, 0, v0", "s_and_saveexec_b64 s[66:67], vcc")
        for j in range(4):
            A(f"buffer_store_dwordx4 v[{16+4*j}:{19+4*j}], v2, {WSr}, 0 offen offset:{16*j}")

    def gen(self):
        A, L = self.A, self.L
        A.kernel_begin(self.K)
        A.label(L("start"))
        if self.stamps:
            for j in range(16): A(f"s_mov_b32 s{80+j}, 0")
            A("s_memrealtime s[100:101]", "s_waitcnt lgkmcnt(0)", "s_mov_b32 s94, s100")
            self.stamp(0)
        if 'clk' in EXP:
            A("s_memtime s[84:85]", "s_memrealtime s[86:87]")
        A("s_cmp_ge_u32 s2, 256", f"s_cbranch_scc1 {L('end')}")
        A("s_load_dwordx4 s[4:7], s[0:1], 0", "s_load_dwordx4 s[8:11], s[0:1], 16", "s_load_dwordx4 s[16:19], s[0:1], 48")
        if 'nocode' not in EXP:
            lc = L("nocode")
            A("s_getpc_b64 s[64:65]")
            A.label(L("pcref"))
            A(f"s_lshr_b32 s66, s2, 3", "s_mul_i32 s66, s66, 9", "v_add_u32 v2, s66, v0", "v_lshlrev_b32 v2, 7, v2")
            A(f"v_min_u32 v2, {L('end')}-{L('pcref')}, v2")
            A(f"v_cmp_gt_u32 vcc, 9, v0", "s_and_saveexec_b64 s[66:67], vcc", f"s_cbranch_execz {lc}")
            A("global_load_dword v255, v2, s[64:65]")
            A.label(lc)
            A("s_mov_b64 exec, s[66:67]")
        A("v_lshrrev_b32 v1, 6, v0", "v_and_b32 v0, 63, v0")
        A(f"v_readfirstlane_b32 s{S_WAVE}, v1")
        A(f"s_and_b32 s{S_XCD}, s2, 7", f"s_lshr_b32 s{S_SLOT}, s2, 3")
        A(f"s_and_b32 s64, s{S_XCD}, 3", f"s_lshl_b32 s{S_RT}, s64, 2", f"s_and_b32 s65, s{S_SLOT}, 3", f"s_add_u32 s{S_RT}, s{S_RT}, s65")
        A(f"s_lshr_b32 s{S_G}, s{S_SLOT}, 2")
        if 'rotb' in EXP:
            A("s_lshl_b32 s65, s65, 1", f"s_add_u32 s{S_ROT}, s{S_G}, s65", f"s_add_u32 s{S_ROT}, s{S_ROT}, s64", f"s_and_b32 s{S_ROT}, s{S_ROT}, 7")
        elif 'rotc' in EXP:
            A("s_lshl_b32 s65, s65, 1", f"s_add_u32 s{S_ROT}, s{S_G}, s65", f"s_and_b32 s{S_ROT}, s{S_ROT}, 7")
        elif 'roti' in EXP:
            A(f"s_lshl_b32 s{S_ROT}, s65, 1")
        elif 'rotj' in EXP:
            A(f"s_lshr_b32 s{S_ROT}, s{S_G}, 1", f"s_add_u32 s{S_ROT}, s{S_ROT}, s65", f"s_and_b32 s{S_ROT}, s{S_ROT}, 3", f"s_lshl_b32 s{S_ROT}, s{S_ROT}, 1")
        elif 'rote' in EXP:
            A(f"s_add_u32 s{S_ROT}, s{S_G}, s65", f"s_and_b32 s{S_ROT}, s{S_ROT}, 1", f"s_lshl_b32 s{S_ROT}, s{S_ROT}, 2")
        elif 'rotf' in EXP:
            A(f"s_add_u32 s{S_ROT}, s{S_G}, s65", f"s_and_b32 s{S_ROT}, s{S_ROT}, 3", f"s_lshl_b32 s{S_ROT}, s{S_ROT}, 1", "s_and_b32 s64, s64, 1", f"s_add_u32 s{S_ROT}, s{S_ROT}, s64")
        elif 'rotg' in EXP:
            A(f"s_and_b32 s{S_ROT}, s{S_G}, 3", f"s_lshl_b32 s{S_ROT}, s{S_ROT}, 1")
        elif 'roth' in EXP:
            A(f"s_add_u32 s{S_ROT}, s{S_G}, s65", f"s_and_b32 s{S_ROT}, s{S_ROT}, 3")
        elif 'rotd' in EXP:
            A(f"s_add_u32 s{S_ROT}, s{S_G}, s65", f"s_and_b32 s{S_ROT}, s{S_ROT}, 3", f"s_lshl_b32 s{S_ROT}, s{S_ROT}, 1")
        else:
            A("s_lshl_b32 s65, s65, 1", f"s_add_u32 s{S_ROT}, s{S_G}, s65", "s_and_b32 s64, s64, 1", f"s_add_u32 s{S_ROT}, s{S_ROT}, s64", f"s_and_b32 s{S_ROT}, s{S_ROT}, 7")
        if 'rot0' in EXP: A(f"s_mov_b32 s{S_ROT}, 0")
        A(f"s_and_b32 s{S_W}, s{S_WAVE}, 3")
        A(f"s_cmp_lt_u32 s{S_WAVE}, 4", f"s_cbranch_scc1 {L('compute')}")
        self.loader_prologue()
        A(f"s_cmp_ge_u32 s{S_XCD}, 4", f"s_cbranch_scc1 {L('bu_load')}")
        self.loader("qkv")
        A.label(L("p2A"))
        self.p2("A")
        A.label(L("bu_load"))
        self.loader("bu")
        A.label(L("p2B"))
        self.p2("B")
        A.label(L("compute"))
        self.rest_kernargs()
        A(f"s_cmp_ge_u32 s{S_XCD}, 4", f"s_cbranch_scc1 {L('bu')}")
        A("s_waitcnt lgkmcnt(0)")
        self.nonce_source()
        self.qkv_compute()
        A(f"s_branch {L('p2A')}")
        A.label(L("bu"))
        self.bu_compute()
        A(f"s_branch {L('p2B')}")
        A.label(L("end"))
        A("s_endpgm")

    def rest_kernargs(self):
        A = self.A
        A("s_load_dwordx4 s[12:15], s[0:1], 32", "s_load_dwordx4 s[20:23], s[0:1], 64", "s_load_dwordx4 s[24:27], s[0:1], 80")
        A("s_load_dwordx4 s[28:31], s[0:1], 96", "s_load_dwordx2 s[32:33], s[0:1], 112")

    def loader_prologue(self):
        A, L = self.A, self.L
        A("v_lshrrev_b32 v5, 3, v0", "v_and_b32 v6, 7, v0", "v_lshrrev_b32 v7, 4, v0")
        A("v_xor_b32 v8, v6, v7", "v_lshlrev_b32 v8, 4, v8")
        A("v_lshlrev_b32 v2, 10, v5", "v_add_u32 v2, v2, v8", "v_xor_b32 v3, 64, v2")
        A(f"s_lshl_b32 s70, s{S_W}, 12")
        lb, lj = L("pro_b"), L("pro_j")
        A(f"s_cmp_ge_u32 s{S_XCD}, 4", f"s_cbranch_scc1 {lb}")
        A("v_and_b32 v9, 1, v7", "v_lshlrev_b32 v9, 2, v9", "v_xor_b32 v9, v6, v9", "v_lshlrev_b32 v9, 4, v9")
        A("v_mul_u32_u24 v4, 3072, v5", "v_add_u32 v4, v4, v9", "v_lshlrev_b32 v12, 10, v5", "v_add_u32 v12, v12, v9")
        A("v_mov_b32 v20, v2", "v_mov_b32 v21, v3", "v_mov_b32 v22, v4", "v_mov_b32 v23, v4", "v_mov_b32 v11, v3")
        A(f"s_lshl_b32 s64, s{S_RT}, 7", f"s_lshl_b32 s65, s{S_W}, 5", "s_add_u32 s64, s64, s65", "s_lshl_b32 s68, s64, 10")
        A(f"s_mul_i32 s69, s{S_W}, {16*3072}", f"s_lshl_b32 s65, s{S_G}, 7", "s_add_u32 s69, s69, s65")
        A(f"s_mov_b32 s76, {64*3072}", "s_lshr_b32 s71, s70, 1")
        A("s_movk_i32 s52, 0x2000", "s_movk_i32 s53, 0x4000")
        A("s_movk_i32 s56, 0x2000")
        A("s_movk_i32 s60, 1024", "s_movk_i32 s61, 25600", "s_movk_i32 s62, 2048", "s_movk_i32 s63, 26624")
        A("s_waitcnt lgkmcnt(0)")
        A.srd(SRD_X, 4, 2097152); A.srd(SRD_W, 6, 1572864)
        A(f"s_branch {lj}")
        A.label(lb)
        A("v_lshrrev_b32 v9, 5, v0", "v_lshlrev_b32 v9, 5, v9", "v_and_b32 v10, 1, v5", "v_lshlrev_b32 v10, 4, v10", "v_add_u32 v9, v9, v10")
        A("v_and_b32 v10, 1, v7", "v_add_u32 v9, v9, v10", "v_lshlrev_b32 v4, 10, v9", "v_add_u32 v4, v4, v8", "v_xor_b32 v11, 64, v4")
        A("v_mov_b32 v20, v4", "v_mov_b32 v21, v11", "v_mov_b32 v22, v2", "v_mov_b32 v23, v3", "v_mov_b32 v12, v2")
        A(f"s_lshl_b32 s64, s{S_RT}, 7", f"s_lshl_b32 s65, s{S_W}, 2", "s_add_u32 s64, s64, s65", "s_lshl_b32 s68, s64, 10")
        A(f"s_lshl_b32 s64, s{S_G}, 6", f"s_and_b32 s65, s{S_W}, 1", "s_lshl_b32 s65, s65, 5", "s_add_u32 s64, s64, s65", "s_lshl_b32 s69, s64, 10")
        A("s_movk_i32 s76, 128", "s_mov_b32 s71, s70")
        A("s_mov_b32 s52, 0x10000", "s_movk_i32 s53, 0x800")
        A("s_movk_i32 s56, 0x800")
        A("s_movk_i32 s60, 0", "s_movk_i32 s61, 0x2000", "s_movk_i32 s62, 0x4000", "s_movk_i32 s63, 0x6000")
        A("s_waitcnt lgkmcnt(0)")
        A.srd(SRD_X, 10, 2097152)
        A(f"s_cmp_lt_u32 s{S_W}, 2", "s_cselect_b32 s64, s16, s18", "s_cselect_b32 s65, s17, s19")
        A.srd(SRD_W, 64, 524288)
        A.label(lj)
        A("s_add_u32 s54, s52, s53", "s_add_u32 s57, s56, 1024")
        self.pstamp(10)
        X, W = R4(SRD_X), R4(SRD_W)
        for st in range(1 if 's0' in EXP else 2):
            slot = st * SLOT
            A(f"s_add_u32 s64, s{S_ROT}, {st}", "s_and_b32 s64, s64, 7")
            A("s_lshl_b32 s65, s64, 7", "s_add_u32 s65, s65, s68", "s_mul_i32 s66, s64, s76", "s_add_u32 s66, s66, s69")
            xo = [None, "s52", "s53", "s54"]
            for ii in range(4):
                A(f"s_add_u32 m0, s70, {slot + ii*1024}")
                A(f"s_add_u32 s67, s65, {xo[ii]}" if xo[ii] else "s_mov_b32 s67, s65")
                A(f"buffer_load_dwordx4 v{20 + (ii&1)}, {X}, s67 offen lds")
            A(f"s_add_u32 s72, s71, {slot + 16384}")
            wl = ["0", "1024", "s56", "s57"]
            for ii in range(4):
                A(f"s_add_u32 m0, s72, {wl[ii]}", f"s_add_u32 s67, s66, s{60+ii}")
                A(f"buffer_load_dwordx4 v{22 + (ii&1)}, {W}, s67 offen lds")
            self.pstamp(11 + st)
        self.rest_kernargs()

    def poll_lines(self, tag, nl, sbase, stride_log2, R=8):
        A, L = self.A, self.L
        lp, done = L(f"poll_{tag}"), L(f"polld_{tag}")
        A(f"s_mov_b32 s72, {POLL_LIMIT}")
        A(f"v_lshlrev_b32 v{R+2}, {stride_log2}, v0")
        A("s_mov_b64 s[74:75], exec", f"s_mov_b64 exec, {(1 << nl) - 1:#x}")
        A.label(lp)
        A(f"buffer_load_dwordx2 v[{R}:{R+1}], v{R+2}, {WSr}, s{sbase} offen sc1")
        A("s_waitcnt vmcnt(0)")
        A(f"v_xor_b32 v{R}, s{NON}, v{R}", f"v_xor_b32 v{R+1}, s{NON+1}, v{R+1}", f"v_or_b32 v{R}, v{R}, v{R+1}")
        A(f"v_cmp_ne_u32 vcc, 0, v{R}")
        A("s_sub_u32 s72, s72, 1")
        A(f"s_cbranch_scc1 {done}")
        A(f"s_cbranch_vccz {done}")
        A(f"s_branch {lp}")
        A.label(done)
        A("s_mov_b64 exec, s[74:75]")

    def store_flag(self, sbase, tag, R=8):
        A, L = self.A, self.L
        A(f"v_mov_b32 v{R}, s{NON}", f"v_mov_b32 v{R+1}, s{NON+1}", f"v_mov_b32 v{R+2}, 0")
        A("s_mov_b64 s[74:75], exec", "s_mov_b64 exec, 1")
        lf, lj = L(f"sf_fast_{tag}"), L(f"sf_j_{tag}")
        A("s_cmp_eq_u32 s73, 1", f"s_cbranch_scc1 {lf}")
        A(f"buffer_store_dwordx2 v[{R}:{R+1}], v{R+2}, {WSr}, s{sbase} offen sc1")
        A(f"s_branch {lj}")
        A.label(lf)
        A(f"buffer_store_dwordx2 v[{R}:{R+1}], v{R+2}, {WSr}, s{sbase} offen")
        A.label(lj)
        A("s_mov_b64 exec, s[74:75]")

    def skip_issue(self, vm=None):
        A = self.A
        A(f"s_lshr_b32 s64, s{S_WAVE}, 2")
        A(f"s_lshl_b32 s68, s{S_RT}, 7", f"s_lshl_b32 s69, s{S_W}, 5", "s_add_u32 s68, s68, s69")
        A(f"s_lshl_b32 s69, s{S_G}, 6", "s_lshl_b32 s70, s64, 5", "s_add_u32 s69, s69, s70")
        A.srd(SRD_T0, 10, 2097152); A.srd(SRD_T1, 26, 1024)
        A("s_lshl_b32 s70, s68, 10", "s_lshl_b32 s71, s69, 1", "s_add_u32 s70, s70, s71")
        A("v_and_b32 v8, 31, v0", "v_lshrrev_b32 v7, 5, v0", "v_lshlrev_b32 v7, 12, v7", "v_lshlrev_b32 v8, 1, v8", "v_add_u32 v7, v7, v8")
        for r in range(16):
            if r % 4 == 0 and r > 0: A("s_add_u32 s70, s70, 8192")
            ins = f"buffer_load_ushort v{XS+r}, v7, {R4(SRD_T0)}, s70 offen offset:{(r%4)*1024}"
            vm.issue(ins, "skip") if vm else A(ins)
        ins = f"buffer_load_ushort v{XD}, v8, {R4(SRD_T1)}, s71 offen"
        vm.issue(ins, "skip") if vm else A(ins)

    def skip_finish(self):
        A = self.A
        A(f"v_lshlrev_b32 v{XD}, 16, v{XD}")
        for r in range(16): A(f"v_lshlrev_b32 v{XS+r}, 16, v{XS+r}")
        for r in range(16): A(f"v_mul_f32 v{XS+r}, v{XS+r}, v{XD}")
        for r in range(0, 16, 2): A(f"v_cvt_pk_bf16_f32 v{XS+r}, v{XS+r}, v{XS+r+1}")
        for r in range(0, 16, 2):
            A(f"v_and_b32 v{XS+r+1}, 0xffff0000, v{XS+r}", f"v_lshlrev_b32 v{XS+r}, 16, v{XS+r}")

    def id_addr(self, role, dst):
        A = self.A
        A(f"s_add_u32 s{dst}, s{S_RT}, {0 if role == 'A' else 16}", f"s_lshl_b32 s{dst}, s{dst}, 7", f"s_add_u32 s{dst}, s{dst}, {WS['IDT']}")

    def id_publish(self, role, vm):
        A = self.A
        self.id_addr(role, 64)
        A(f"s_lshl_b32 s65, s{S_G}, 4", "s_add_u32 s64, s64, s65", "s_getreg_b32 s65, hwreg(HW_REG_XCC_ID, 0, 4)")
        A(f"v_mov_b32 v16, s{NON}", f"v_mov_b32 v17, s{NON+1}", "v_mov_b32 v18, s65", "v_mov_b32 v19, 0", "v_mov_b32 v13, 0")
        vm.issue(f"buffer_store_dwordx4 v[16:19], v13, {WSr}, s64 offen sc1", "id")

    def mode_load(self, role, R):
        A = self.A
        self.id_addr(role, 69)
        A(f"v_and_b32 v{R+4}, 7, v0", f"v_lshlrev_b32 v{R+4}, 4, v{R+4}", f"v_add_u32 v{R+4}, s69, v{R+4}")
        A(f"buffer_load_dwordx4 v[{R}:{R+3}], v{R+4}, {WSr}, 0 offen sc1")

    def mode_resolve(self, role, R, tag):
        A, L = self.A, self.L
        lp, ok = L(f"mode_lp_{tag}"), L(f"mode_ok_{tag}")
        A(f"s_mov_b32 s72, {POLL_LIMIT}", "s_mov_b32 s73, 0")
        A.label(lp)
        A(f"v_xor_b32 v{R}, s{NON}, v{R}", f"v_xor_b32 v{R+1}, s{NON+1}, v{R+1}", f"v_or_b32 v{R}, v{R}, v{R+1}")
        A(f"v_cmp_ne_u32 vcc, 0, v{R}")
        A(f"s_cbranch_vccz {ok}")
        A("s_sub_u32 s72, s72, 1", f"s_cbranch_scc1 {L('mode_to_' + tag)}")
        A(f"buffer_load_dwordx4 v[{R}:{R+3}], v{R+4}, {WSr}, 0 offen sc1", "s_waitcnt vmcnt(0)", f"s_branch {lp}")
        A.label(ok)
        A("s_getreg_b32 s70, hwreg(HW_REG_XCC_ID, 0, 4)")
        A(f"v_cmp_ne_u32 vcc, s70, v{R+2}")
        A("s_cmp_eq_u64 vcc, 0", "s_cselect_b32 s73, 1, 0")
        A.label(L('mode_to_' + tag))

    def flag_touch(self, role, R):
        A = self.A
        self.flag_addr(role, 64)
        A(f"s_lshl_b32 s65, s{S_G}, 7", "s_add_u32 s64, s64, s65", f"v_mov_b32 v{R}, 0")
        A("s_mov_b64 s[74:75], exec", "s_mov_b64 exec, 1")
        A(f"buffer_load_dword v{R+1}, v{R}, {WSr}, s64 offen sc1")
        A("s_mov_b64 exec, s[74:75]")

    def weight_touch(self, R):
        A = self.A
        if 'nowt' in EXP: return
        A("s_lshl_b32 s64, s2, 2", f"s_add_u32 s64, s64, s{S_W}", "s_mul_i32 s64, s64, 12")
        A(f"v_add_u32 v{R}, s64, v0", f"v_lshlrev_b32 v{R}, 7, v{R}")
        A.srd(SRD_T0, 8, 524288); A.srd(SRD_T1, 20, 524288); A.srd(SRD_T2, 22, 524288)
        A("s_mov_b64 s[74:75], exec", "s_mov_b64 exec, 0xfff")
        A(f"buffer_load_dword v{R+1}, v{R}, {R4(SRD_T0)}, 0 offen sc1")
        A(f"v_subrev_u32 v{R+2}, 0x80000, v{R}")
        A(f"buffer_load_dword v{R+1}, v{R+2}, {R4(SRD_T1)}, 0 offen sc1")
        A(f"v_subrev_u32 v{R+2}, 0x100000, v{R}")
        A(f"buffer_load_dword v{R+1}, v{R+2}, {R4(SRD_T2)}, 0 offen sc1")
        A("s_mov_b64 exec, s[74:75]")

    def l2_prefetch(self, role, base, R):
        A = self.A
        if 'pf' not in EXP: return
        A(f"s_add_u32 s64, s{S_W}, {base}")
        A(f"s_and_b32 s65, s{S_XCD}, 3", "s_lshl_b32 s65, s65, 9", f"s_lshl_b32 s66, s{S_SLOT}, 4", "s_add_u32 s65, s65, s66")
        A("s_lshl_b32 s65, s65, 10", "s_lshl_b32 s66, s64, 7", "s_add_u32 s65, s65, s66")
        A(f"v_and_b32 v{R+2}, 15, v0", f"v_lshlrev_b32 v{R}, 10, v{R+2}")
        A(f"buffer_load_dword v{R+1}, v{R}, {R4(SRD_T0)}, s65 offen sc1")
        if role == "A":
            A(f"v_bfe_u32 v{R+3}, v0, 4, 1", f"v_mul_u32_u24 v{R+3}, 3072, v{R+3}", f"v_lshlrev_b32 v{R+2}, 7, v{R+2}", f"v_add_u32 v{R+2}, v{R+2}, v{R+3}")
            A("s_lshl_b32 s70, s64, 6", f"s_lshl_b32 s66, s{S_SLOT}, 1", "s_add_u32 s70, s70, s66", "s_mul_i32 s70, s70, 3072", "s_add_u32 s70, s70, 1024")
            A(f"buffer_load_dword v{R+1}, v{R+2}, {R4(SRD_T1)}, s70 offen sc1")
        else:
            A(f"s_lshl_b32 s70, s{S_SLOT}, 14", "s_lshl_b32 s66, s64, 7", "s_add_u32 s70, s70, s66")
            A(f"buffer_load_dword v{R+1}, v{R}, {R4(SRD_T1)}, s70 offen sc1")
            A(f"buffer_load_dword v{R+1}, v{R}, {R4(SRD_T2)}, s70 offen sc1")

    def pf_srds(self, role):
        A = self.A
        if 'pf' not in EXP: return
        if role == "A":
            A.srd(SRD_T0, 4, 2097152); A.srd(SRD_T1, 6, 1572864)
        else:
            A.srd(SRD_T0, 10, 2097152); A.srd(SRD_T1, 16, 524288); A.srd(SRD_T2, 18, 524288)

    def page_touch(self, role, R):
        A = self.A
        if 'pt' not in EXP: return
        A(f"v_mov_b32 v{R}, 0")
        if role == "A":
            A(f"s_lshl_b32 s64, s{S_RT}, 2", f"s_add_u32 s64, s64, s{S_W}", "s_lshl_b32 s64, s64, 5", f"s_lshl_b32 s65, s{S_G}, 2", "s_add_u32 s64, s64, s65", "s_lshl_b32 s64, s64, 10")
        else:
            A(f"s_lshl_b32 s64, s{S_RT}, 2", f"s_add_u32 s64, s64, s{S_W}", "s_lshl_b32 s64, s64, 6", f"s_lshl_b32 s65, s{S_G}, 3", "s_add_u32 s64, s64, s65", "s_lshl_b32 s64, s64, 10", f"s_add_u32 s64, s64, {WS['H']}")
        A(f"buffer_load_dword v{R+1}, v{R}, {WSr}, s64 offen sc1")
        A.srd(SRD_T0, 28, 8388608)
        A(f"s_lshl_b32 s64, s{S_RT}, 7", f"s_lshl_b32 s65, s{S_W}, 5", "s_add_u32 s64, s64, s65", "s_lshl_b32 s64, s64, 12", f"s_lshl_b32 s65, s{S_G}, 8", "s_add_u32 s64, s64, s65")
        if role == "B": A("s_add_u32 s64, s64, 2048")
        A(f"buffer_load_dword v{R+1}, v{R}, {R4(SRD_T0)}, s64 offen sc1")
        if role == "B":
            A.srd(SRD_T1, 26, 1024)
            A(f"buffer_load_dword v{R+1}, v{R}, {R4(SRD_T1)}, 0 offen sc1")
        if 'pt2' in EXP:
            if role == "A":
                A.srd(SRD_T1, 8, 524288)
                A(f"s_lshl_b32 s64, s{S_G}, 7")
                A(f"buffer_load_dword v{R+1}, v{R}, {R4(SRD_T1)}, s64 offen sc1")
            else:
                A.srd(SRD_T0, 20, 524288); A.srd(SRD_T2, 22, 524288)
                A(f"s_lshl_b32 s64, s{S_G}, 16")
                A(f"buffer_load_dword v{R+1}, v{R}, {R4(SRD_T0)}, s64 offen sc1")
                A(f"buffer_load_dword v{R+1}, v{R}, {R4(SRD_T2)}, s64 offen sc1")

    def nonce_source(self):
        A, L = self.A, self.L
        ln = L("nononce")
        A("s_cmp_lg_u32 s2, 0", f"s_cbranch_scc1 {ln}", f"s_cmp_lg_u32 s{S_WAVE}, 0", f"s_cbranch_scc1 {ln}")
        A("s_memrealtime s[70:71]", "s_waitcnt lgkmcnt(0)", "s_or_b32 s70, s70, 1")
        A("v_mov_b32 v248, s70", "v_mov_b32 v249, s71", "v_mov_b32 v247, 0")
        A.srd(SRD_T3, 30, 256)
        A(f"buffer_store_dwordx2 v[248:249], v247, {R4(SRD_T3)}, 0 offen offset:128 sc1")
        A.label(ln)

    def loader(self, role):
        A, L = self.A, self.L
        last = 9 if role == "qkv" else 7
        vm = Vm(A)
        vm.q = [('st', 0)] * 8 + ([] if 's0' in EXP else [('st', 1)] * 8)
        X, W = R4(SRD_X), R4(SRD_W)
        def issue(st):
            slot = (st % NSLOT) * SLOT
            tag = ("st", st)
            if st >= 8:
                a = st - 8
                A(f"s_add_u32 s64, s{S_ROT}, s{S_W}", f"s_add_u32 s64, s64, {4*a}", "s_and_b32 s64, s64, 7")
                A(f"s_mul_i32 s64, s64, {64*3072}", f"s_lshl_b32 s65, s{S_G}, 7", "s_add_u32 s64, s64, s65")
                A("s_lshl_b32 s66, s70, 1")
                for i in range(8):
                    A(f"s_add_u32 m0, s66, {slot + i*1024}", f"s_add_u32 s67, s64, {i*8*3072}")
                    vm.issue(f"buffer_load_dwordx4 v4, {W}, s67 offen lds", tag)
                return
            A(f"s_add_u32 s64, s{S_ROT}, {st}", "s_and_b32 s64, s64, 7")
            A("s_lshl_b32 s65, s64, 7", "s_add_u32 s65, s65, s68")
            if role == "qkv":
                A(f"s_mul_i32 s66, s64, {64*3072}", "s_add_u32 s66, s66, s69")
                for ii in range(4):
                    A(f"s_add_u32 m0, s70, {slot + ii*1024}", f"s_add_u32 s67, s65, {ii*8192}")
                    vm.issue(f"buffer_load_dwordx4 v{2 + (ii&1)}, {X}, s67 offen lds", tag)
                A("s_lshr_b32 s71, s70, 1")
                for part in range(2):
                    for ii in range(2):
                        A(f"s_add_u32 m0, s71, {slot + 16384 + part*8192 + ii*1024}", f"s_add_u32 s67, s66, {ii*8*3072 + (1+part)*1024}")
                        vm.issue(f"buffer_load_dwordx4 v4, {W}, s67 offen lds", tag)
            else:
                A("s_lshl_b32 s66, s64, 7", "s_add_u32 s66, s66, s69")
                for ii in range(4):
                    A(f"s_add_u32 m0, s70, {slot + ii*1024}", f"s_add_u32 s67, s65, {(64*(ii&1) + 2*(ii>>1))*1024}")
                    vm.issue(f"buffer_load_dwordx4 v{4 if (ii&1)==0 else 11}, {X}, s67 offen lds", tag)
                for ii in range(4):
                    A(f"s_add_u32 m0, s70, {slot + 16384 + ii*1024}", f"s_add_u32 s67, s66, {ii*8192}")
                    vm.issue(f"buffer_load_dwordx4 v{2 + (ii&1)}, {W}, s67 offen lds", tag)
        def cregion(R):
            part = R >> 1
            A.srd(SRD_T0, 20 + 2 * part, 524288)
            A(f"s_lshl_b32 s64, s{S_G}, 6", f"s_lshl_b32 s65, s{S_W}, 3", "s_add_u32 s64, s64, s65", f"s_add_u32 s64, s64, {32*(R&1)}", "s_lshl_b32 s64, s64, 10")
            A(f"s_and_b32 s66, s{S_W}, 1", "s_lshl_b32 s66, s66, 7", "v_lshlrev_b32 v13, 4, v0", "v_xor_b32 v13, s66, v13")
            for i in range(8):
                A(f"v_xor_b32 v{14+(i&1)}, {i*16}, v13")
                A(f"s_add_u32 s67, s64, {i*1024}")
                vm.issue(f"buffer_load_dwordx4 {v(creg(R, i),4)}, v{14+(i&1)}, {R4(SRD_T0)}, s67 offen", ("c", R))
        self.cregion = cregion
        self.vm = vm
        A("s_waitcnt lgkmcnt(0)")
        A.srd(SRD_WS, 32, 268435456)
        self.stamp(1)
        sched = {0: [2], 1: [3], 2: [4], 3: [5], 4: [6], 5: [7], 6: [8], 7: [9]} if 'l3' not in EXP else {0: [2], 1: [3], 2: [4, 5], 3: [6], 4: [7], 5: [8], 6: [9], 7: []}
        if 's0' in EXP: sched[0] = [1, 2]
        for st in range(8):
            vm.need(("st", st))
            if st == 4:
                self.get_nonce(role)
                self.id_publish("A" if role == "qkv" else "B", vm)
            if st == 7 and role == "bu":
                A(f"v_mov_b32 v14, s{NON}", f"v_mov_b32 v15, s{NON+1}", f"v_mov_b32 v13, {NONCE}")
                A("ds_write_b64 v13, v[14:15]", "s_waitcnt lgkmcnt(0)")
            A("s_barrier")
            if st == 0: self.stamp(2)
            for x in sched[st]:
                if x <= last: issue(x)
            if (('fb' in EXP and st == (7 if role == "qkv" else 5)) or ('fbB' in EXP and role == "bu" and st == 5)):
                A("v_lshlrev_b32 v13, 7, v0")
                if role == "qkv":
                    A("v_and_b32 v13, 0xfff, v13")
                    A(f"s_lshl_b32 s64, s{S_RT}, 2", f"s_add_u32 s64, s64, s{S_W}", "s_lshl_b32 s64, s64, 5", f"s_lshl_b32 s65, s{S_G}, 2", "s_add_u32 s64, s64, s65", "s_lshl_b32 s64, s64, 10")
                else:
                    A(f"s_lshl_b32 s64, s{S_RT}, 2", f"s_add_u32 s64, s64, s{S_W}", "s_lshl_b32 s64, s64, 6", f"s_lshl_b32 s65, s{S_G}, 3", "s_add_u32 s64, s64, s65", "s_lshl_b32 s64, s64, 10", f"s_add_u32 s64, s64, {WS['H']}")
                vm.issue(f"buffer_load_dword v250, v13, {WSr}, s64 offen sc1", "touch")
            if role == "bu" and 'cearly' in EXP:
                if st == 6: cregion(0)
                if st == 7:
                    for R_ in (1, 2, 3): cregion(R_)
            elif role == "bu" and 'call7' in EXP:
                if st == 7:
                    for R_ in range(4): cregion(R_)
            elif role == "bu" and st == 7:
                for R_ in range(2): cregion(R_)
            if st == 2:
                A(f"s_load_dwordx2 s[{NON}:{NON+1}], s[30:31], 128")
        if role == "qkv": self.qkv_loader_tail()
        else: self.bu_loader_tail()

    def get_nonce(self, role):
        A, L = self.A, self.L
        ok, lp = L(f"nok_{role}"), L(f"nlp_{role}")
        A("s_waitcnt lgkmcnt(0)")
        A(f"s_cmp_lg_u32 s{NON}, 0", f"s_cbranch_scc1 {ok}")
        A.srd(SRD_T0, 30, 256)
        A(f"s_mov_b32 s72, {POLL_LIMIT}", "v_mov_b32 v13, 0")
        A.label(lp)
        A(f"buffer_load_dwordx2 v[14:15], v13, {R4(SRD_T0)}, 0 offen offset:128 sc1", "s_waitcnt vmcnt(0)")
        A(f"v_readfirstlane_b32 s{NON}, v14", f"v_readfirstlane_b32 s{NON+1}, v15", "s_nop 3")
        A("s_sub_u32 s72, s72, 1", f"s_cbranch_scc1 {ok}")
        A(f"s_cmp_lg_u32 s{NON}, 0", f"s_cbranch_scc1 {ok}", "s_sleep 2", f"s_branch {lp}")
        A.label(ok)

    def qkv_loader_tail(self):
        A, L, vm = self.A, self.L, self.vm
        A(f"v_mov_b32 v14, s{NON}", f"v_mov_b32 v15, s{NON+1}", f"v_mov_b32 v13, {NONCEQ}")
        A("ds_write_b64 v13, v[14:15]")
        vm.need(("st", 9))
        A("s_waitcnt lgkmcnt(0)")
        self.stamp(3)
        A("s_barrier")
        A("s_setprio 3")
        self.stamp(4)
        A("v_mul_u32_u24 v7, 24, v0", f"s_mul_i32 s64, s{S_W}, {PART_STRIDE}", "v_add_u32 v7, s64, v7")
        for w in range(4):
            for j in range(3):
                A(f"ds_read_b64 v[{16+6*w+2*j}:{17+6*w+2*j}], v7 offset:{PARTQ + w*4*PART_STRIDE + 8*j}")
        A("v_lshlrev_b32 v3, 4, v0")
        A(f"s_lshl_b32 s64, s{S_G}, 4", f"s_add_u32 s64, s64, s{S_RT}", "s_lshl_b32 s64, s64, 2", f"s_add_u32 s64, s64, s{S_W}", "s_lshl_b32 s64, s64, 10", f"s_add_u32 s64, s64, {WS['KVP']}")
        A(f"v_mov_b32 v51, s{NON}")
        A("s_waitcnt lgkmcnt(6)")
        for j in range(0, 6, 2):
            A(f"v_pk_add_f32 v[{16+j}:{17+j}], v[{16+j}:{17+j}], v[{22+j}:{23+j}]")
        A("s_waitcnt lgkmcnt(0)")
        for j in range(0, 6, 2):
            A(f"v_pk_add_f32 v[{28+j}:{29+j}], v[{28+j}:{29+j}], v[{34+j}:{35+j}]")
        for j in range(0, 6, 2):
            A(f"v_pk_add_f32 v[{16+j}:{17+j}], v[{16+j}:{17+j}], v[{28+j}:{29+j}]")
        for j in range(3):
            A(f"v_cvt_pk_bf16_f32 v{48+j}, v{16+2*j}, v{17+2*j}")
        A("s_mov_b64 s[66:67], exec", "s_mov_b32 exec_lo, -1", "s_mov_b32 exec_hi, 0x3fff")
        A(f"buffer_store_dwordx4 v[48:51], v3, {WSr}, s64 offen sc1")
        self.stamp(5)
        A("s_mov_b64 exec, s[66:67]")
        A.srd(SRD_T0, 8, 524288)
        A(f"s_lshl_b32 s64, s{S_W}, 17", f"s_lshl_b32 s65, s{S_G}, 7", "s_add_u32 s64, s64, s65")
        A(f"s_lshl_b32 s65, s{S_W}, 14")
        for i in range(16):
            A(f"s_add_u32 m0, s65, {WOIMG + i*1024}", f"s_add_u32 s69, s64, {i*8192}")
            A(f"buffer_load_dwordx4 v12, {R4(SRD_T0)}, s69 offen lds")
        if 'kvd' in EXP: A("s_waitcnt vmcnt(0)")
        A("s_mov_b32 exec_lo, -1", "s_mov_b32 exec_hi, 0x3fff")
        A(f"s_lshl_b32 s68, s{S_G}, 6", f"s_add_u32 s68, s68, s{S_W}", "s_lshl_b32 s68, s68, 10", f"s_add_u32 s68, s68, {WS['KVP']}")
        lp, ok, ll, llo = L("kv_poll"), L("kv_ok"), L("kv_light"), L("kv_lightok")
        A(f"s_mov_b32 s72, {POLL_LIMIT}")
        A("v_lshlrev_b32 v5, 12, v0", f"v_add_u32 v5, {45*16+12}, v5")
        A("s_mov_b32 exec_lo, 0xffff", "s_mov_b32 exec_hi, 0")
        A.label(ll)
        A(f"buffer_load_dword v6, v5, {WSr}, s68 offen sc1", "s_waitcnt vmcnt(0)")
        A(f"v_cmp_ne_u32 vcc, s{NON}, v6")
        A("s_sub_u32 s72, s72, 1", f"s_cbranch_scc1 {llo}")
        A(f"s_cbranch_vccnz {ll}")
        A.label(llo)
        A("s_mov_b32 exec_lo, -1", "s_mov_b32 exec_hi, 0x3fff")
        def bulk(fl):
            A("s_mov_b32 s64, s68")
            for r in range(16):
                A(f"buffer_load_dwordx4 v[{64+4*r}:{67+4*r}], v3, {WSr}, s64 offen {fl}")
                if r < 15: A("s_add_u32 s64, s64, 4096")
            A("s_waitcnt vmcnt(0)")
            A(f"v_xor_b32 v52, s{NON}, v67")
            for r in range(1, 16):
                A(f"v_xor_b32 v53, s{NON}, v{67+4*r}", "v_or_b32 v52, v52, v53")
            A("v_cmp_ne_u32 vcc, 0, v52")
        bulk("")
        A(f"s_cbranch_vccz {ok}")
        A.label(lp)
        bulk("sc1")
        A("s_sub_u32 s72, s72, 1", f"s_cbranch_scc1 {ok}")
        A(f"s_cbranch_vccnz {lp}")
        A.label(ok)
        self.stamp(6)
        A("s_mov_b64 exec, s[66:67]")
        for j in range(6): A(f"v_mov_b32 v{16+j}, 0")
        A("v_mov_b32 v24, 0x00003f80", "v_mov_b32 v25, 0x3f800000")
        for r in range(16):
            for j in range(3):
                A(f"v_dot2c_f32_bf16 v{16+2*j}, v{64+4*r+j}, v24")
                A(f"v_dot2c_f32_bf16 v{17+2*j}, v{64+4*r+j}, v25")
        A("s_nop 2")
        for j in range(3):
            A(f"v_cvt_pk_bf16_f32 v{48+j}, v{16+2*j}, v{17+2*j}")
        A("v_mul_u32_u24 v4, 12, v0", f"s_lshl_b32 s66, s{S_W}, 10", f"s_add_u32 s66, s66, {FIN}", "v_add_u32 v4, s66, v4")
        A("s_mov_b64 s[66:67], exec", "s_mov_b32 exec_lo, -1", "s_mov_b32 exec_hi, 0x3fff")
        for j in range(3): A(f"ds_write_b32 v4, v{48+j} offset:{4*j}")
        A("s_mov_b64 exec, s[66:67]")
        A("s_waitcnt lgkmcnt(0)")
        self.stamp(7)
        A("s_barrier")
        A("s_setprio 0")
        for i in range(32): A(f"v_mov_b32 v{P2ACC+i}, 0")
        A("s_waitcnt vmcnt(0)")
        self.stamp(8)
        A("s_barrier")

    def bu_loader_tail(self):
        A, L, vm = self.A, self.L, self.vm
        self.stamp(3)
        A("s_barrier")
        if 'cearly' not in EXP and 'call7' not in EXP:
            self.cregion(2); self.cregion(3)
        self.skip_issue(vm)
        A("v_lshlrev_b32 v13, 4, v0", f"s_lshl_b32 s65, s{S_W}, 13", "v_add_u32 v13, s65, v13")
        for R_ in range(4):
            vm.need(("c", R_))
            if R_ == 2: A("v_add_u32 v13, 0x10000, v13")
            for i in range(8):
                A(f"ds_write_b128 v13, {v(creg(R_, i),4)} offset:{(R_&1)*SLOT + i*1024}")
        A("s_waitcnt lgkmcnt(0)")
        vm.drain()
        self.skip_finish()
        for r in range(16):
            A(f"v_mov_b32 v{P2ACC+r}, 0", f"v_mov_b32 v{P2ACC+16+r}, v{XS+r}")
        self.stamp(4)
        A("s_barrier")

    def flag_addr(self, role, dst):
        A = self.A
        A(f"s_add_u32 s{dst}, s{S_RT}, {0 if role == 'A' else 16}", f"s_lshl_b32 s{dst}, s{dst}, 10", f"s_add_u32 s{dst}, s{dst}, {WS['FLG']}")

    def wave_flag(self, role, vn):
        A = self.A
        self.flag_addr(role, 64)
        A(f"s_lshl_b32 s65, s{S_G}, 7", "s_add_u32 s64, s64, s65", f"s_lshl_b32 s65, s{S_W}, 3", "s_add_u32 s64, s64, s65", "v_mov_b32 v12, 0")
        A("s_mov_b64 s[74:75], exec", "s_mov_b64 exec, 1")
        lf, lj = self.L(f"wf_fast_{role}"), self.L(f"wf_j_{role}")
        A("s_cmp_eq_u32 s73, 1", f"s_cbranch_scc1 {lf}")
        A(f"buffer_store_dwordx2 v[{vn}:{vn+1}], v12, {WSr}, s64 offen sc1")
        A(f"s_branch {lj}")
        A.label(lf)
        A(f"buffer_store_dwordx2 v[{vn}:{vn+1}], v12, {WSr}, s64 offen")
        A.label(lj)
        A("s_mov_b64 exec, s[74:75]")

    def p2_wait(self, role):
        A, L = self.A, self.L
        self.flag_addr(role, 64)
        A(f"s_lshr_b32 s65, s{S_WAVE}, 2", "s_lshl_b32 s65, s65, 9", "s_add_u32 s64, s64, s65")
        lp, done = L(f"fpoll_{role}"), L(f"fpolld_{role}")
        A(f"s_mov_b32 s72, {POLL_LIMIT}")
        if role == "B":
            A("v_lshrrev_b32 v10, 2, v0", "v_lshlrev_b32 v10, 7, v10", "v_and_b32 v11, 3, v0", "v_lshlrev_b32 v11, 3, v11", "v_add_u32 v10, v10, v11")
            A("s_mov_b64 s[74:75], exec", "s_mov_b64 exec, 0xffff")
        else:
            A(f"s_lshl_b32 s65, s{S_W}, 3", "v_lshlrev_b32 v10, 7, v0", "v_add_u32 v10, s65, v10")
            A("s_mov_b64 s[74:75], exec", "s_mov_b64 exec, 0xf")
        A.label(lp)
        A(f"buffer_load_dwordx2 v[8:9], v10, {WSr}, s64 offen sc1")
        A("s_waitcnt vmcnt(0)")
        A(f"v_xor_b32 v8, s{NON}, v8", f"v_xor_b32 v9, s{NON+1}, v9", "v_or_b32 v8, v8, v9")
        A("v_cmp_ne_u32 vcc, 0, v8")
        A("s_sub_u32 s72, s72, 1", f"s_cbranch_scc1 {done}")
        A(f"s_cbranch_vccz {done}")
        for e in EXP:
            if e.startswith('fsl'): A(f"s_sleep {int(e[3:])}")
        A(f"s_branch {lp}")
        A.label(done)
        A("s_mov_b64 exec, s[74:75]")

    def phi_pack(self, acc, n, dst, T):
        A = self.A
        for base in range(0, n, 8):
            for i in range(0, 8, 2):
                A(f"v_pk_mul_f32 v[{T+i}:{T+i+1}], v[{acc+base+i}:{acc+base+i+1}], s[76:77]")
            for i in range(8):
                A(f"v_exp_f32_e64 v{T+i}, v{T+i} clamp")
            for i in range(8):
                A(f"v_max_f32 v{acc+base+i}, 0, v{acc+base+i}")
            for i in range(0, 8, 2):
                A(f"v_pk_add_f32 v[{acc+base+i}:{acc+base+i+1}], v[{acc+base+i}:{acc+base+i+1}], v[{T+i}:{T+i+1}]")
            for i in range(0, 8, 2):
                A(f"v_pk_add_f32 v[{acc+base+i}:{acc+base+i+1}], v[{acc+base+i}:{acc+base+i+1}], s[64:65]")
            for i in range(0, 8, 2):
                A(f"v_cvt_pk_bf16_f32 v{dst+(base+i)//2}, v{acc+base+i}, v{acc+base+i+1}")

    def lam_code(self, P, T):
        A = self.A
        A(f"v_lshlrev_b32 v{P}, 16, v{P}", f"v_lshlrev_b32 v{P+1}, 16, v{P+1}", f"v_lshlrev_b32 v{P+2}, 16, v{P+2}")
        A(f"v_mul_f32 v{T}, {LOG2E:#x}, v{P+2}", f"v_exp_f32 v{T}, v{T}", "s_nop 0")
        A(f"v_cvt_pk_bf16_f32 v{T}, v{T}, v{T}", f"v_lshlrev_b32 v{T}, 16, v{T}")
        A(f"v_mul_f32 v{T+1}, v{T}, v{P}", f"v_mul_f32 v{T+2}, v{T}, v{P+1}")
        A(f"v_mul_f32 v{T+1}, {LOG2E:#x}, v{T+1}", f"v_mul_f32 v{T+2}, {INV2PI:#x}, v{T+2}")
        A(f"v_exp_f32 v{T+1}, v{T+1}", f"v_fract_f32 v{T+2}, v{T+2}", "s_nop 0")
        A(f"v_cos_f32 v{P+3}, v{T+2}", f"v_sin_f32 v{P+4}, v{T+2}", "s_nop 0")
        A(f"v_mul_f32 v{P+3}, v{P+3}, v{T+1}", f"v_mul_f32 v{P+4}, v{P+4}, v{T+1}")

    def csq(self, d, s_, t):
        A = self.A
        A(f"v_mul_f32 v{t}, v{s_+1}, v{s_+1}", f"v_mul_f32 v{d+1}, v{s_}, v{s_+1}")
        A(f"v_fma_f32 v{d}, v{s_}, v{s_}, -v{t}", f"v_add_f32 v{d+1}, v{d+1}, v{d+1}")

    def cfma(self, dr, di, ar, ai, br, bi, cr, ci):
        A = self.A
        A(f"v_fma_f32 v{dr}, v{ar}, v{br}, v{cr}", f"v_fma_f32 v{di}, v{ar}, v{bi}, v{ci}")
        A(f"v_fma_f32 v{dr}, -v{ai}, v{bi}, v{dr}", f"v_fma_f32 v{di}, v{ai}, v{br}, v{di}")

    def qkv_compute(self):
        A, L = self.A, self.L
        ACC, WF, XF, TMP = 16, 80, 112, 240
        VA, VW = 4, 8
        lg = Lgkm(A)
        A("v_and_b32 v10, 31, v0", "v_lshrrev_b32 v11, 5, v0")
        A(f"s_lshl_b32 s64, s{S_W}, 5", "v_add_u32 v12, s64, v10", "v_lshlrev_b32 v12, 7, v12")
        A("v_lshrrev_b32 v13, 1, v10", "v_and_b32 v13, 7, v13", "v_xor_b32 v13, v13, v11", "v_lshlrev_b32 v13, 4, v13")
        A(f"v_add_u32 v{VA}, v12, v13")
        for ks in range(1, 4): A(f"v_xor_b32 v{VA+ks}, {32*ks}, v{VA}")
        A("v_lshrrev_b32 v12, 5, v0", "v_lshlrev_b32 v12, 3, v12", "v_bfe_u32 v13, v0, 2, 2", "v_add_u32 v12, v12, v13", "v_lshlrev_b32 v12, 7, v12")
        A("v_bfe_u32 v13, v0, 3, 1", "v_lshlrev_b32 v13, 6, v13", "v_add_u32 v12, v12, v13")
        A("v_bfe_u32 v13, v0, 4, 1", "v_lshlrev_b32 v13, 5, v13", "v_add_u32 v12, v12, v13")
        A("v_and_b32 v13, 3, v0", "v_lshlrev_b32 v13, 3, v13", f"v_add_u32 v{VW}, v12, v13")
        A(f"v_xor_b32 v{VW+1}, 64, v{VW}")
        A(f"v_add_u32 v2, {3*SLOT}, v{VW}", f"v_add_u32 v3, {3*SLOT}, v{VW+1}")
        A(f"s_mov_b32 s76, {LOG2E:#x}", f"s_mov_b32 s77, {LOG2E:#x}")
        A("v_cmp_gt_u32 s[74:75], 16, v10")
        for i in range(64): A(f"v_mov_b32 v{ACC+i}, 0")
        A("v_and_b32 v12, 15, v10", "v_lshlrev_b32 v13, 4, v11", "v_add_u32 v12, v12, v13", "v_lshlrev_b32 v12, 5, v12")
        A("v_lshrrev_b32 v13, 4, v10", f"v_mul_u32_u24 v13, {PART_STRIDE}, v13", "v_add_u32 v12, v12, v13")
        A(f"s_mul_i32 s66, s{S_W}, {4*PART_STRIDE}", f"s_add_u32 s66, s66, {PARTQ}", "v_add_u32 v12, s66, v12")
        A("v_lshlrev_b32 v14, 5, v11", "v_add_u32 v14, v14, v13", "v_add_u32 v14, s66, v14", "v_add_u32 v14, 1024, v14")
        A("s_waitcnt lgkmcnt(0)")
        self.pf_srds("A")
        self.l2_prefetch("A", 0, 250)
        self.l2_prefetch("A", 4, 250) if 'pfall' in EXP else None
        A.srd(SRD_WS, 32, 268435456)
        self.flag_touch("A", 245)
        self.page_touch("A", 252)
        self.weight_touch(242)
        A("v_cmp_gt_u32 s[74:75], 16, v10")
        def reads(s_, ks):
            buf = (s_ * 4 + ks) & 1
            out = [(f"ds_read_b128 {v(XF + (s_*4+ks)*4, 4)}, v{VA+ks}", ("x", s_, ks))]
            for nt in range(4):
                part, sub = nt >> 1, nt & 1
                for a_ in range(2):
                    off = 16384 + part * 8192 + (16 * ks + 4 * a_) * 128
                    out.append((f"ds_read_b64_tr_b16 {v(WF + buf*16 + nt*4 + 2*a_, 2)}, v{VW+sub} offset:{off}", ("w", s_, ks, nt)))
            return out
        self.pf_srds("A")
        if 'prio' in EXP: A("s_setprio 2")
        A("s_barrier")
        self.stamp(1)
        for ins, tag in reads(0, 0): lg.issue(ins, tag)
        if 'pfall' not in EXP: self.l2_prefetch("A", 4, 250)
        for s_ in range(8):
            for ks in range(4):
                nxt = (s_, ks + 1) if ks < 3 else ((s_ + 1, 0) if s_ < 7 else None)
                if ks == 3 and s_ < 7:
                    A("s_barrier")
                    self.sstamp(3 + s_)
                    d = SLOT if (s_ + 1) % NSLOT != 0 else -(NSLOT - 1) * SLOT
                    for r in list(range(VA, VA + 4)) + [VW, VW + 1]:
                        A(f"v_add_u32 v{r}, {d & 0xffffffff:#x}, v{r}")
                nr = reads(*nxt) if nxt else []
                buf = (s_ * 4 + ks) & 1
                xf = v(XF + (s_ * 4 + ks) * 4, 4)
                for nt in range(4):
                    if nt == 0: lg.need(("x", s_, ks), ("w", s_, ks, 0))
                    else: lg.need(("w", s_, ks, nt))
                    A(f"v_mfma_f32_32x32x16_bf16 {v(ACC+16*nt,16)}, {xf}, {v(WF+buf*16+nt*4,4)}, {v(ACC+16*nt,16)}")
                    if nr:
                        for ins, tag in (nr[0:3] if nt == 0 else nr[1 + 2*nt: 3 + 2*nt]):
                            lg.issue(ins, tag)
        self.stamp(2)
        A("s_waitcnt vmcnt(0)")
        A(f"s_mov_b32 s64, {EPS:#x}", f"s_mov_b32 s65, {EPS:#x}")
        for i in range(4): A(f"v_mov_b32 v{TMP+8+i}, 0x3f803f80")
        A("s_nop 3")
        ONES = TMP + 8
        def kvm(hp):
            kv = ACC + 16 * hp; z = ACC + 32 + 16 * hp
            A(f"v_mfma_f32_32x32x16_bf16 {v(kv,16)}, {v(WF+8*hp,4)}, {v(WF+16+8*hp,4)}, 0")
            A(f"v_mfma_f32_32x32x16_bf16 {v(z,16)}, {v(WF+8*hp,4)}, {v(ONES,4)}, 0")
            A(f"v_mfma_f32_32x32x16_bf16 {v(kv,16)}, {v(WF+8*hp+4,4)}, {v(WF+16+8*hp+4,4)}, {v(kv,16)}")
            A(f"v_mfma_f32_32x32x16_bf16 {v(z,16)}, {v(WF+8*hp+4,4)}, {v(ONES,4)}, {v(z,16)}")
        def vpack(hp):
            for i in range(0, 16, 2):
                A(f"v_cvt_pk_bf16_f32 v{WF+16+8*hp+i//2}, v{ACC+32+16*hp+i}, v{ACC+33+16*hp+i}")
        def pwrite(hp):
            kv = ACC + 16 * hp; z = ACC + 32 + 16 * hp
            T0 = WF + 16 * hp if False else XF_FREE
            for j in range(8):
                A(f"v_cndmask_b32 v{T0+j}, v{kv+8+j}, v{kv+j}, s[74:75]")
            for j in range(8):
                A(f"v_cndmask_b32 v{T0+8+j}, v{z+8+j}, v{z+j}, s[74:75]")
            A(f"ds_write_b128 v12, {v(T0,4)} offset:{hp*2*PART_STRIDE}")
            A(f"ds_write_b128 v12, {v(T0+4,4)} offset:{hp*2*PART_STRIDE+16}")
            A("s_mov_b64 s[66:67], exec", "s_mov_b32 exec_lo, 0x00010001", "s_mov_b32 exec_hi, 0x00010001")
            A(f"ds_write_b128 v14, {v(T0+8,4)} offset:{hp*2*PART_STRIDE}")
            A(f"ds_write_b128 v14, {v(T0+12,4)} offset:{hp*2*PART_STRIDE+16}")
            A("s_mov_b64 exec, s[66:67]")
        self.phi_pack(ACC, 16, WF, TMP)
        vpack(0)
        A("s_nop 1")
        kvm(0)
        self.phi_pack(ACC + 16, 16, WF + 8, TMP)
        vpack(1)
        A("s_nop 1")
        kvm(1)
        XF_FREE = WF
        A("s_nop 1")
        pwrite(0)
        A("s_waitcnt lgkmcnt(0)")
        A("s_nop 4")
        pwrite(1)
        A("s_waitcnt lgkmcnt(0)")
        self.stamp(3)
        A("s_barrier")
        self.mode_load("A", 248)
        A(f"v_mov_b32 v15, {NONCEQ}", "ds_read_b64 v[254:255], v15", "s_waitcnt lgkmcnt(0)")
        A(f"v_readfirstlane_b32 s{NON}, v254", f"v_readfirstlane_b32 s{NON+1}, v255")
        for i in range(32): A(f"v_mov_b32 v{ACC+i}, 0")
        lg = Lgkm(A)
        NB = 4
        def qreads(step):
            idx, ks = step >> 2, step & 3
            a9, u = idx >> 2, idx & 3
            b = WF + (step % NB) * 8
            out = []
            for sub in range(2):
                for a_ in range(2):
                    off = a9 * SLOT + u * 8192 + (16 * ks + 4 * a_) * 128
                    out.append((f"ds_read_b64_tr_b16 {v(b + sub*4 + 2*a_, 2)}, v{2+sub} offset:{off}", ("q", step, sub)))
            return out
        for st in range(3):
            for ins, tag in qreads(st): lg.issue(ins, tag)
        for step in range(32):
            b = WF + (step % NB) * 8
            xf = v(XF + step * 4, 4)
            nr = qreads(step + 3) if step + 3 < 32 else []
            for sub in range(2):
                lg.need(("q", step, sub))
                A(f"v_mfma_f32_32x32x16_bf16 {v(ACC+16*sub,16)}, {v(b+4*sub,4)}, {xf}, {v(ACC+16*sub,16)}")
                for ins, tag in nr[2*sub:2*sub+2]: lg.issue(ins, tag)
        self.stamp(4)
        A(f"s_mov_b32 s64, {EPS:#x}", f"s_mov_b32 s65, {EPS:#x}")
        for i in range(32): A(f"v_mov_b32 v{P2ACC+i}, 0")
        self.phi_pack(ACC, 16, WF, TMP)
        self.phi_pack(ACC + 16, 16, WF + 8, TMP)
        A("v_lshlrev_b32 v13, 4, v11", "v_add_u32 v13, v13, v10", "v_lshlrev_b32 v13, 4, v13")
        A("v_lshlrev_b32 v15, 4, v11", "v_add_u32 v15, 512, v15", "v_cndmask_b32 v13, v15, v13, s[74:75]", f"v_add_u32 v13, {FIN}, v13")
        A("v_lshlrev_b32 v12, 4, v0")
        A(f"s_lshl_b32 s64, s{S_RT}, 2", f"s_add_u32 s64, s64, s{S_W}", "s_lshl_b32 s64, s64, 5", f"s_lshl_b32 s65, s{S_G}, 2", "s_add_u32 s64, s64, s65", "s_lshl_b32 s64, s64, 10")
        A("s_waitcnt vmcnt(0)")
        self.mode_resolve("A", 248, "qc")
        self.stamp(5)
        A("s_barrier")
        self.stamp(6)
        A(f"v_mov_b32 v15, {NONCEQ}", "ds_read_b64 v[250:251], v15")
        for hl in range(4):
            A(f"ds_read_b128 {v(WF+16+4*hl,4)}, v13 offset:{hl*1024}")
        for hl in range(4):
            hp, a_ = hl >> 1, hl & 1
            A(f"s_waitcnt lgkmcnt({3-hl})")
            A(f"v_mfma_f32_32x32x16_bf16 {v(ACC+16*hl,16)}, {v(WF+16+4*hl,4)}, {v(WF+8*hp+4*a_,4)}, 0")
        A("s_nop 7")
        for hl in range(4):
            d = ACC + 16 * hl
            if hl == 3: A("s_nop 3")
            A(f"v_add_f32 v{d+8}, {EPS:#x}, v{d+8}")
        for hl in range(4):
            A(f"v_rcp_f32 v{ACC+16*hl+8}, v{ACC+16*hl+8}")
        A("s_nop 0")
        for hl in range(4):
            d = ACC + 16 * hl
            for j in range(0, 8, 2):
                A(f"v_pk_mul_f32 v[{d+j}:{d+j+1}], v[{d+j}:{d+j+1}], v[{d+8}:{d+9}] op_sel_hi:[1,0]")
            for j in range(4):
                A(f"v_cvt_pk_bf16_f32 v{d+12+j}, v{d+2*j}, v{d+2*j+1}")
        if 'fb' in EXP:
            lf, lj = L("o_fast"), L("o_j")
            A("s_cmp_eq_u32 s73, 1", f"s_cbranch_scc1 {lf}")
        for hl in range(4):
            A(f"buffer_store_dwordx4 {v(ACC+16*hl+12,4)}, v12, {WSr}, s64 offen offset:{hl*1024} sc1")
        if 'fb' in EXP:
            A(f"s_branch {lj}")
            A.label(lf)
            for hl in range(4):
                A(f"buffer_store_dwordx4 {v(ACC+16*hl+12,4)}, v12, {WSr}, s64 offen offset:{hl*1024} {FASTF}")
            A.label(lj)
        A(f"v_readfirstlane_b32 s{NON}, v250", f"v_readfirstlane_b32 s{NON+1}, v251")
        A("s_barrier")
        A("s_waitcnt vmcnt(0)")
        self.wave_flag("A", 250)
        self.stamp(7)

    def bu_compute(self):
        A, L = self.A, self.L
        RE, IM, AF, BF = 16, 48, 80, 144
        C = 160
        lg = Lgkm(A)
        A("v_and_b32 v10, 15, v0", "v_lshrrev_b32 v11, 4, v0")
        A(f"s_lshl_b32 s64, s{S_G}, 6", f"s_lshl_b32 s65, s{S_W}, 4", "s_add_u32 s64, s64, s65", "s_lshl_b32 s64, s64, 1")
        A("v_lshlrev_b32 v12, 1, v10")
        A("v_lshrrev_b32 v13, 1, v10", "v_xor_b32 v13, v13, v11", "v_lshlrev_b32 v13, 4, v13", "v_lshlrev_b32 v14, 7, v10", "v_add_u32 v4, v13, v14")
        A("v_xor_b32 v5, 64, v4")
        A(f"s_lshl_b32 s65, s{S_W}, 11", "s_add_u32 s65, s65, 16384")
        A("v_add_u32 v6, s65, v4", "v_add_u32 v7, s65, v5")
        for i in range(64): A(f"v_mov_b32 v{RE+i}, 0")
        A("s_waitcnt lgkmcnt(0)")
        A.srd(SRD_WS, 32, 268435456)
        A.srd(SRD_T0, 12, 1024); A.srd(SRD_T1, 14, 1024); A.srd(SRD_T2, 24, 1024)
        A(f"buffer_load_ushort v{C}, v12, {R4(SRD_T0)}, s64 offen")
        A(f"buffer_load_ushort v{C+1}, v12, {R4(SRD_T1)}, s64 offen")
        A(f"buffer_load_ushort v{C+2}, v12, {R4(SRD_T2)}, s64 offen")
        self.pf_srds("B")
        self.l2_prefetch("B", 0, 250)
        if 'pfall' in EXP: self.l2_prefetch("B", 4, 250)
        A(f"s_waitcnt vmcnt({0 if 'pf' not in EXP else 6 if 'pfall' in EXP else 3})")
        self.flag_touch("B", 243)
        self.page_touch("B", 252)
        self.weight_touch(240)
        self.lam_code(C, C + 8)
        A(f"v_mov_b32 v166, v{C+3}", f"v_mov_b32 v167, v{C+4}")
        A("v_add_f32 v163, -1.0, v163")
        A("v_mul_f32 v168, v160, v160", "v_fma_f32 v168, v161, v161, v168", "v_rcp_f32 v168, v168")
        A("v_mul_f32 v169, v163, v160", "v_fma_f32 v169, v167, v161, v169")
        A("v_mul_f32 v170, v167, v160", "v_fma_f32 v170, -v163, v161, v170")
        A("v_add_f32 v168, v168, v168")
        A("v_mul_f32 v164, v169, v168", "v_mul_f32 v165, v170, v168")
        self.csq(174, 166, 176); self.csq(178, 174, 176); self.csq(174, 178, 176); self.csq(168, 174, 176)
        self.csq(170, 168, 176); self.csq(174, 170, 176); self.csq(172, 174, 176)
        self.csq(214, 172, 176); self.csq(218, 214, 176)
        A("v_mul_f32 v216, v214, v172", "v_mul_f32 v217, v214, v173", "v_fma_f32 v216, -v215, v173, v216", "v_fma_f32 v217, v215, v172, v217")
        def reads(s_, k2):
            buf = (s_ * 2 + k2) & 1
            out = [(f"ds_read_b128 {v(BF + buf*8, 4)}, v{6+k2} offset:0", ("b", s_, k2, 0)),
                   (f"ds_read_b128 {v(BF + buf*8 + 4, 4)}, v{6+k2} offset:8192", ("b", s_, k2, 1))]
            for mt in range(8):
                out.append((f"ds_read_b128 {v(AF + buf*32 + mt*4, 4)}, v{4+k2} offset:{mt*2048}", ("a", s_, k2, mt)))
            return out
        self.pf_srds("B")
        if 'prio' in EXP: A("s_setprio 2")
        A("s_barrier")
        self.stamp(1)
        for ins, tag in reads(0, 0): lg.issue(ins, tag)
        if 'pfall' not in EXP: self.l2_prefetch("B", 4, 250)
        for s_ in range(8):
            for k2 in range(2):
                nxt = (s_, 1) if k2 == 0 else ((s_ + 1, 0) if s_ < 7 else None)
                if k2 == 1 and s_ < 7:
                    A("s_barrier")
                    self.sstamp(3 + s_)
                    d = SLOT if (s_ + 1) % NSLOT != 0 else -(NSLOT - 1) * SLOT
                    for r in range(4, 8):
                        A(f"v_add_u32 v{r}, {d & 0xffffffff:#x}, v{r}")
                nr = reads(*nxt) if nxt else []
                if nxt is None:
                    nr = []
                buf = (s_ * 2 + k2) & 1
                for mt in range(8):
                    if mt == 0: lg.need(("b", s_, k2, 0), ("b", s_, k2, 1), ("a", s_, k2, 0))
                    else: lg.need(("a", s_, k2, mt))
                    af = v(AF + buf*32 + mt*4, 4)
                    A(f"v_mfma_f32_16x16x32_bf16 {v(RE+4*mt,4)}, {af}, {v(BF+buf*8,4)}, {v(RE+4*mt,4)}")
                    A(f"v_mfma_f32_16x16x32_bf16 {v(IM+4*mt,4)}, {af}, {v(BF+buf*8+4,4)}, {v(IM+4*mt,4)}")
                    if nr:
                        for ins, tag in (nr[0:3] if mt == 0 else [nr[2 + mt]]):
                            lg.issue(ins, tag)
                    if nxt is None and mt == 0:
                        A(f"v_mov_b32 v12, {NONCE}")
                        lg.issue("ds_read_b64 v[230:231], v12", "nonce")
        self.stamp(2)
        def pr(base, sg): return base + 4 * (sg >> 1) + 2 * (sg & 1)
        E0, E1_ = 180, 184
        Lr = "v[166:167]"
        def step(dre, dim, sre, sim, ure, uim, M=Lr):
            A(f"v_pk_fma_f32 v[{dre}:{dre+1}], v[{sre}:{sre+1}], {M}, v[{ure}:{ure+1}] op_sel_hi:[1,0,1]")
            A(f"v_pk_fma_f32 v[{dim}:{dim+1}], v[{sim}:{sim+1}], {M}, v[{uim}:{uim+1}] op_sel_hi:[1,0,1]")
            A(f"v_pk_fma_f32 v[{dre}:{dre+1}], v[{sim}:{sim+1}], {M}, v[{dre}:{dre+1}] op_sel:[0,1,0] op_sel_hi:[1,1,1] neg_lo:[0,1,0] neg_hi:[0,1,0]")
            A(f"v_pk_fma_f32 v[{dim}:{dim+1}], v[{sre}:{sre+1}], {M}, v[{dim}:{dim+1}] op_sel:[0,1,0] op_sel_hi:[1,1,1]")
        A(f"s_lshl_b32 s64, s{S_G}, 4", f"s_add_u32 s64, s64, s{S_RT}", "s_lshl_b32 s64, s64, 6", f"s_lshl_b32 s65, s{S_W}, 4", "s_add_u32 s64, s64, s65", "s_lshl_b32 s64, s64, 4", f"s_add_u32 s64, s64, {WS['ES']}")
        A("v_lshlrev_b32 v13, 4, v10", "v_lshlrev_b32 v12, 2, v10")
        cur = (pr(RE, 0), pr(IM, 0))
        for sg in range(1, 16):
            d = E0 if sg & 1 else E1_
            step(d, d + 2, cur[0], cur[1], pr(RE, sg), pr(IM, sg))
            cur = (d, d + 2)
        er, ei = cur
        self.cfma(188, 189, 168, 169, er, ei, er + 1, ei + 1)
        for qq in range(4):
            A(f"v_add_u32 v{14 + (qq&1)}, {64*qq}, v12")
            A(f"ds_bpermute_b32 v{190+2*qq}, v{14 + (qq&1)}, v188", f"ds_bpermute_b32 v{191+2*qq}, v{14 + (qq&1)}, v189")
        A("s_waitcnt lgkmcnt(0)")
        self.cfma(198, 199, 170, 171, 190, 191, 192, 193)
        self.cfma(200, 201, 170, 171, 198, 199, 194, 195)
        self.cfma(228, 229, 170, 171, 200, 201, 196, 197)
        A("s_mov_b64 s[66:67], exec", "s_mov_b64 exec, 0xffff")
        A(f"buffer_store_dwordx4 v[228:231], v13, {WSr}, s64 offen sc1")
        A("s_mov_b64 exec, s[66:67]")
        self.stamp(3)
        A("s_barrier")
        self.skip_issue()
        self.mode_load("B", 224)
        K2 = "v[164:165]"
        for sg in range(16):
            r_, i_ = pr(RE, sg), pr(IM, sg)
            A(f"v_pk_mul_f32 v[232:233], v[{i_}:{i_+1}], {K2} op_sel:[0,1] op_sel_hi:[1,1]")
            A(f"v_pk_mul_f32 v[234:235], v[{r_}:{r_+1}], {K2} op_sel:[0,1] op_sel_hi:[1,1]")
            A(f"v_pk_fma_f32 v[{r_}:{r_+1}], v[{r_}:{r_+1}], {K2}, v[232:233] op_sel_hi:[1,0,1] neg_lo:[0,0,1] neg_hi:[0,0,1]")
            A(f"v_pk_fma_f32 v[{i_}:{i_+1}], v[{i_}:{i_+1}], {K2}, v[234:235] op_sel_hi:[1,0,1]")
        if 'epre' in EXP:
            A("s_waitcnt vmcnt(0)")
            self.skip_finish()
            for r in range(16):
                A(f"v_mov_b32 v{P2ACC+r}, v{XS+r}", f"v_mov_b32 v{P2ACC+16+r}, 0")
        self.stamp(4)
        A(f"s_lshl_b32 s64, s{S_G}, 10", f"s_lshl_b32 s65, s{S_W}, 4", "s_add_u32 s64, s64, s65", "s_lshl_b32 s64, s64, 4", f"s_add_u32 s64, s64, {WS['ES']}")
        A("v_lshlrev_b32 v13, 4, v10")
        lp, lgd, lok, ltd, lz, ldone = L("e_poll"), L("e_gd"), L("e_ok"), L("e_td"), L("e_zero"), L("e_done")
        A("v_lshlrev_b32 v14, 10, v11", "v_add_u32 v14, v14, v13")
        A(f"s_cmp_eq_u32 s{S_RT}, 0", f"s_cbranch_scc1 {lz}")
        for i in range(4):
            A(f"v_add_u32 v15, {4*i}, v11", f"v_cmp_gt_u32 s[{52+2*i}:{53+2*i}], s{S_RT}, v15")
        A(f"s_mov_b32 s72, {POLL_LIMIT}")
        A.label(lp)
        A("s_mov_b32 s65, s64")
        for i in range(4):
            A(f"s_cmp_le_u32 s{S_RT}, {4*i}", f"s_cbranch_scc1 {lgd}")
            A(f"buffer_load_dwordx4 v[{80+4*i}:{83+4*i}], v14, {WSr}, s65 offen sc1")
            if i < 3: A("s_add_u32 s65, s65, 4096")
        A.label(lgd)
        A("v_mov_b32 v236, 0")
        A("s_waitcnt vmcnt(0)")
        for i in range(4):
            A(f"s_cmp_le_u32 s{S_RT}, {4*i}", f"s_cbranch_scc1 {ltd}")
            A(f"v_xor_b32 v237, v230, v{82+4*i}", f"v_xor_b32 v238, v231, v{83+4*i}", "v_or_b32 v237, v237, v238")
            A(f"v_cndmask_b32 v237, 0, v237, s[{52+2*i}:{53+2*i}]", "v_or_b32 v236, v236, v237")
        A.label(ltd)
        A("v_cmp_ne_u32 vcc, 0, v236")
        A("s_sub_u32 s72, s72, 1", f"s_cbranch_scc1 {lok}")
        A(f"s_cbranch_vccnz {lp}")
        A.label(lok)
        A("v_mov_b32 v204, 0", "v_mov_b32 v205, 0")
        for i in range(4):
            self.cfma(206, 207, 218, 219, 204, 205, 80 + 4*i, 81 + 4*i)
            A(f"v_cndmask_b32 v204, v204, v206, s[{52+2*i}:{53+2*i}]", f"v_cndmask_b32 v205, v205, v207, s[{52+2*i}:{53+2*i}]")
        A(f"s_sub_u32 s65, s{S_RT}, 1", "v_sub_u32 v15, s65, v11", "v_and_b32 v15, 3, v15")
        A("v_mov_b32 v206, 1.0", "v_mov_b32 v207, 0")
        for e, (wr, wi) in enumerate(((172, 173), (214, 215), (216, 217)), start=1):
            A(f"v_cmp_eq_u32 vcc, {e}, v15", "s_nop 1")
            A(f"v_cndmask_b32 v206, v206, v{wr}, vcc", f"v_cndmask_b32 v207, v207, v{wi}, vcc")
        A("v_mul_f32 v236, v204, v206", "v_mul_f32 v237, v204, v207")
        A("v_fma_f32 v236, -v205, v207, v236", "v_fma_f32 v237, v205, v206, v237")
        A("v_mov_b32 v238, v236", "v_mov_b32 v206, v237", "s_nop 1")
        A("v_permlane32_swap_b32 v236, v238", "v_permlane32_swap_b32 v237, v206", "s_nop 1")
        A("v_add_f32 v236, v236, v238", "v_add_f32 v237, v237, v206")
        A("v_mov_b32 v238, v236", "v_mov_b32 v206, v237", "s_nop 1")
        A("v_permlane16_swap_b32 v236, v238", "v_permlane16_swap_b32 v237, v206", "s_nop 1")
        A("v_add_f32 v204, v236, v238", "v_add_f32 v205, v237, v206")
        A(f"s_branch {ldone}")
        A.label(lz)
        A("v_mov_b32 v204, 0", "v_mov_b32 v205, 0", "s_waitcnt vmcnt(0)")
        A.label(ldone)
        A(f"v_readfirstlane_b32 s{NON}, v230", f"v_readfirstlane_b32 s{NON+1}, v231", "s_nop 1")
        self.mode_resolve("B", 224, "bc")
        self.stamp(5)
        self.cfma(198, 199, 170, 171, 204, 205, 190, 191)
        self.cfma(200, 201, 170, 171, 198, 199, 192, 193)
        self.cfma(202, 203, 170, 171, 200, 201, 194, 195)
        for qq, (sr, si) in enumerate(((198, 199), (200, 201), (202, 203)), start=1):
            A(f"v_cmp_eq_u32 vcc, {qq}, v11", "s_nop 1")
            A(f"v_cndmask_b32 v204, v204, v{sr}, vcc", f"v_cndmask_b32 v205, v205, v{si}, vcc")
        self.cfma(206, 207, 168, 169, 204, 205, er, ei)
        def cmul(dr, di, ar, ai):
            A(f"v_mul_f32 v{dr}, v{ar}, v164", f"v_mul_f32 v{di}, v{ar}, v165")
            A(f"v_fma_f32 v{dr}, -v{ai}, v165, v{dr}", f"v_fma_f32 v{di}, v{ai}, v164, v{di}")
        cmul(208, 210, 204, 205)
        cmul(209, 211, 206, 207)
        A(f"s_lshl_b32 s64, s{S_W}, 13", f"s_add_u32 s64, s64, {MISC}")
        A("v_lshlrev_b32 v12, 6, v11", "v_lshlrev_b32 v13, 4, v10", "v_xor_b32 v12, v12, v13", "v_lshlrev_b32 v13, 8, v10", "v_add_u32 v12, v12, v13", "v_add_u32 v12, s64, v12")
        for c in range(1, 4): A(f"v_xor_b32 v{212+c}, {16*c}, v12")
        A("v_bfe_u32 v13, v0, 4, 1", "v_lshlrev_b32 v13, 5, v13", "v_and_b32 v14, 3, v0", "v_lshlrev_b32 v14, 3, v14", "v_add_u32 v13, v13, v14")
        A("v_bfe_u32 v14, v0, 2, 2", "v_lshlrev_b32 v15, 4, v14", "v_xor_b32 v13, v13, v15", "v_lshlrev_b32 v14, 8, v14", "v_add_u32 v13, v13, v14")
        A("v_lshrrev_b32 v14, 5, v0", "v_lshlrev_b32 v14, 12, v14", "v_add_u32 v13, v13, v14", "v_add_u32 v13, s64, v13")
        cur = (208, 210)
        def pack(pl_, c):
            base, neg = (RE, "") if pl_ == 0 else (IM, "-")
            for j in range(4):
                sg = 8 * (c & 1) + 2 * j
                r0, r1 = pr(base, sg) + (c >> 1), pr(base, sg + 1) + (c >> 1)
                A(f"v_cvt_pk_bf16_f32 v{80 + 16*pl_ + 4*c + j}, {neg}v{r0}, {neg}v{r1}")
            A(f"ds_write_b128 v{12 if c == 0 else 212+c}, {v(80 + 16*pl_ + 4*c, 4)} offset:{pl_*4096}")
        for sg in range(16):
            d = (pr(RE, sg), pr(IM, sg))
            step(d[0], d[1], cur[0], cur[1], d[0], d[1])
            cur = d
            if sg == 8:
                for pl_ in range(2):
                    pack(pl_, 0); pack(pl_, 2)
        self.stamp(6)
        for pl_ in range(2):
            pack(pl_, 1); pack(pl_, 3)
        A(f"s_lshl_b32 s64, s{S_RT}, 8", f"s_lshl_b32 s65, s{S_G}, 3", "s_add_u32 s64, s64, s65", f"s_lshl_b32 s65, s{S_W}, 1", "s_add_u32 s64, s64, s65", "s_lshl_b32 s64, s64, 10", f"s_add_u32 s64, s64, {WS['H']}")
        A("v_lshlrev_b32 v12, 4, v0")
        A("s_waitcnt lgkmcnt(0)")
        for rb in range(4):
            for ksl in range(2):
                for a_ in range(2):
                    off = (8 * ksl + 4 * a_) * 256 + ((64 * rb) ^ (128 * ksl + 64 * a_))
                    A(f"ds_read_b64_tr_b16 {v(16 + (rb*2+ksl)*4 + 2*a_, 2)}, v13 offset:{off}")
        fb = 'fb' in EXP or 'fbB' in EXP
        variants = ("sc1", FASTF + " ") if fb else ("sc1",)
        lf, lj = L("h_fast"), L("h_j")
        if fb: A("s_cmp_eq_u32 s73, 1", f"s_cbranch_scc1 {lf}")
        for fl in variants:
            if fl != "sc1": A.label(lf)
            A("s_mov_b32 s65, s64")
            for rb in range(4):
                A(f"s_waitcnt lgkmcnt({min(15, 12-4*rb)})")
                for ksl in range(2):
                    A(f"buffer_store_dwordx4 {v(16 + (rb*2+ksl)*4, 4)}, v12, {WSr}, s65 offen offset:{ksl*1024} {fl}")
                if rb < 3: A("s_add_u32 s65, s65, 0x10000")
            if fl == "sc1" and fb: A(f"s_branch {lj}")
        A.label(lj)
        self.stamp(7)
        if 'epre' not in EXP:
            self.skip_finish()
            for r in range(16):
                A(f"v_mov_b32 v{P2ACC+r}, v{XS+r}", f"v_mov_b32 v{P2ACC+16+r}, 0")
        A(f"v_readfirstlane_b32 s{NON}, v230", f"v_readfirstlane_b32 s{NON+1}, v231")
        A("s_barrier")
        A("s_waitcnt vmcnt(0)")
        self.wave_flag("B", 230)
        self.stamp(8)

    def p2(self, role):
        A, L = self.A, self.L
        self.stamp(9)
        if 'prio' in EXP: A("s_setprio 0")
        nk = 32 if role == "A" else 64
        nst = nk // 2
        abase = WS["O"] if role == "A" else WS["H"]
        ACC, BF, AF = P2ACC, 48, 80
        NBUF, LA = 4, 7
        A(f"s_lshr_b32 s64, s{S_WAVE}, 2", f"s_and_b32 s65, s{S_WAVE}, 3")
        A("v_lshlrev_b32 v2, 4, v0")
        A(f"s_lshl_b32 s66, s{S_RT}, 2", "s_add_u32 s66, s66, s65", f"s_mul_i32 s66, s66, {nk*1024}")
        A(f"s_mul_i32 s67, s64, {nst*1024}", "s_add_u32 s66, s66, s67", f"s_add_u32 s66, s66, {abase}")
        def aload(k):
            A(f"buffer_load_dwordx4 {v(AF + 4*(k % 8), 4)}, v2, {WSr}, s66 offen offset:{(k % 4)*1024}")
            if k % 4 == 3: A("s_add_u32 s66, s66, 4096")
        A("v_and_b32 v5, 31, v0", "v_lshrrev_b32 v6, 5, v0")
        A(f"s_lshl_b32 s68, s{S_RT}, 7", "s_lshl_b32 s69, s65, 5", "s_add_u32 s68, s68, s69")
        A(f"s_lshl_b32 s69, s{S_G}, 6", "s_lshl_b32 s70, s64, 5", "s_add_u32 s69, s69, s70")
        lg = Lgkm(A)
        if role == "A":
            A("v_lshlrev_b32 v12, 2, v6", "v_bfe_u32 v13, v0, 2, 2", "v_add_u32 v12, v12, v13", "v_lshlrev_b32 v12, 7, v12")
            A("v_bfe_u32 v13, v0, 3, 1", "v_lshlrev_b32 v13, 6, v13", "v_add_u32 v12, v12, v13")
            A("v_bfe_u32 v13, v0, 4, 1", "v_lshlrev_b32 v13, 5, v13", "v_add_u32 v12, v12, v13")
            A("v_and_b32 v13, 3, v0", "v_lshlrev_b32 v13, 3, v13", "v_add_u32 v12, v12, v13")
            A("s_lshl_b32 s70, s64, 15", f"s_add_u32 s70, s70, {WOIMG}", "v_add_u32 v3, s70, v12", "v_xor_b32 v4, 64, v3")
            def bread(k):
                b = BF + 8 * (k % NBUF)
                for cb in range(2):
                    for a_ in range(2):
                        lg.issue(f"ds_read_b64_tr_b16 {v(b + 4*cb + 2*a_, 2)}, v{3+cb} offset:{(16*k + 8*a_)*128}", ("b", k))
        else:
            A("v_lshlrev_b32 v12, 16, v6", "v_lshlrev_b32 v13, 10, v5", "v_add_u32 v12, v12, v13")
            A("v_and_b32 v13, 15, v5", "v_lshlrev_b32 v13, 4, v13", "v_add_u32 v12, v12, v13")
            A("s_lshl_b32 s70, s64, 9", "v_add_u32 v3, s70, v12")
            def bread(k):
                b = BF + 8 * (k % NBUF)
                t = 8 + (k % 4)
                A(f"v_xor_b32 v{t}, {(k & 15) * 16}, v3")
                for cb in range(2):
                    lg.issue(f"ds_read_b128 {v(b + 4*cb, 4)}, v{t} offset:{(k >> 4) * 256 + cb * 32768}", ("b", k))
        for k in range(NBUF - 1): bread(k)
        A("s_mov_b32 s76, s64", "s_mov_b32 s77, s66")
        self.p2_wait(role)
        A("s_mov_b32 s64, s76", "s_mov_b32 s66, s77")
        for k in range(LA): aload(k)
        self.stamp(10)
        for k in range(nst):
            if k + LA < nst: aload(k + LA)
            if k + NBUF - 1 < nst: bread(k + NBUF - 1)
            rem = min(nst - 1 - k, LA)
            A(f"s_waitcnt vmcnt({rem})")
            lg.need(("b", k))
            b = BF + 8 * (k % NBUF)
            A(f"v_mfma_f32_32x32x16_bf16 {v(ACC,16)}, {v(AF+4*(k%8),4)}, {v(b,4)}, {v(ACC,16)}")
            A(f"v_mfma_f32_32x32x16_bf16 {v(ACC+16,16)}, {v(AF+4*(k%8),4)}, {v(b+4,4)}, {v(ACC+16,16)}")
        self.stamp(11)
        A(f"s_lshl_b32 s70, s{S_WAVE}, 12", f"s_add_u32 s70, s70, {MISC}", "v_add_u32 v9, s70, v2")
        A(f"s_xor_b32 s71, s{S_WAVE}, 4", "s_lshl_b32 s71, s71, 12", f"s_add_u32 s71, s71, {MISC}", "v_add_u32 v10, s71, v2")
        A("s_lshl_b32 s68, s68, 12", "s_lshl_b32 s69, s69, 2", "s_add_u32 s68, s68, s69")
        if role == "B": A("s_add_u32 s68, s68, 2048")
        A("v_lshlrev_b32 v11, 14, v6", "v_lshlrev_b32 v12, 2, v5", "v_add_u32 v11, v11, v12")
        A.srd(SRD_T0, 28, 8388608)
        lk, lj = L(f"kh1_{role}"), L(f"join_{role}")
        A("s_cmp_eq_u32 s64, 1", f"s_cbranch_scc1 {lk}")
        for i in range(4): A(f"ds_write_b128 v9, {v(ACC+16+4*i,4)} offset:{i*1024}")
        A(f"s_mov_b32 s71, 0")
        A(f"s_branch {lj}")
        A.label(lk)
        for i in range(4): A(f"ds_write_b128 v9, {v(ACC+4*i,4)} offset:{i*1024}")
        A("s_nop 1")
        for i in range(16): A(f"v_mov_b32 v{ACC+i}, v{ACC+16+i}")
        A.label(lj)
        A("s_waitcnt lgkmcnt(0)")
        A("s_barrier")
        for i in range(4): A(f"ds_read_b128 {v(48+4*i,4)}, v10 offset:{i*1024}")
        for i in range(4):
            A(f"s_waitcnt lgkmcnt({3-i})")
            for r in range(4*i, 4*i+4, 2):
                A(f"v_pk_add_f32 v[{ACC+r}:{ACC+r+1}], v[{ACC+r}:{ACC+r+1}], v[{48+r}:{49+r}]")
            for r in range(4*i, 4*i+4):
                row = (r & 3) + 8 * (r >> 2)
                A(f"s_add_u32 s69, s68, {row*4096}")
                A(f"buffer_store_dword v{ACC+r}, v11, {R4(SRD_T0)}, s69 offen {OUTFA if role == 'A' else OUTF}")
        self.stamp(12)
        if 'clk' in EXP:
            lx = L(f"clk_{role}")
            A("s_waitcnt vmcnt(0)")
            A(f"s_cmp_lg_u32 s2, {0 if role == 'A' else 4}", f"s_cbranch_scc1 {lx}", f"s_cmp_lg_u32 s{S_WAVE}, 0", f"s_cbranch_scc1 {lx}")
            A("s_memtime s[88:89]", "s_memrealtime s[90:91]", "s_waitcnt lgkmcnt(0)")
            A("s_sub_u32 s88, s88, s84", "s_sub_u32 s90, s90, s86", "v_mov_b32 v16, s88", "v_mov_b32 v17, s90")
            A(f"v_mov_b32 v18, {0 if role == 'A' else 8}")
            A.srd(SRD_T0, 30, 256)
            A("s_mov_b64 exec, 1")
            A(f"buffer_store_dwordx2 v[16:17], v18, {R4(SRD_T0)}, 0 offen sc1")
            A.label(lx)
        self.write_stamps()
        A("s_endpgm")

def build(out, stamps=False):
    A = Asm()
    K = NAME + "_kernel"
    A.raw(HEADER_COMMENT + f"; @launch grid=(256,1,1) block=(512,1,1) lds={LDS_BYTES}\n" + '.amdgcn_target "amdgcn-amd-amdhsa--gfx950"\n')
    G(A, K, stamps).gen()
    A.kernel_desc(K, 256, accum=256)
    open(out, "w").write(A.text())

if __name__ == "__main__":
    build(sys.argv[1], stamps=(len(sys.argv) > 2 and sys.argv[2] == "stamps"))
```

```python
import sys
sys.path.insert(0, "gen"); sys.path.insert(0, "scratch")
from asmlib import *
WS = dict(O=0x000000, H=0x200000, KVP=0x600000, ES=0x700000, FLG=0x740000, IDT=0x760000, ST=0x900000)
LDS_BYTES = 163840
SLOT = 32768
NSLOT = 5
MISC = 4 * SLOT
PART_STRIDE = 1152
PARTQ = 0
FIN = 20480
WOIMG = SLOT
NONCE = MISC + 24576 + 64
NONCEQ = 28672
LOG2E = 0x3FB8AA3B
EPS = 0x358637BD
INV2PI = 0x3E22F983
POLL_LIMIT = 1 << 18
EXP = set(a for a in sys.argv[3:]) | {'kvd', 'epre', 'rotd', 'pt', 'fb', 'fnt'}
if 'fbB' in EXP: EXP.discard('fb')
OUTF = 'sc1' if 'osc1' in EXP else '' if 'opl' in EXP else 'sc0 sc1' if 'osc01' in EXP else 'nt'
OUTFA = 'sc1' if 'oAsc1' in EXP else OUTF
FASTF = 'nt' if 'fnt' in EXP else 'sc0' if 'fsc0' in EXP else 'sc0 nt' if 'fsc0nt' in EXP else ''

S_W, S_WAVE, S_XCD, S_SLOT, S_RT, S_G, S_ROT = 3, 34, 35, 36, 37, 38, 39
SRD_X, SRD_W, SRD_WS, SRD_T0, SRD_T1, SRD_T2, SRD_T3 = 40, 44, 48, 52, 56, 60, 96
NON = 78
P2ACC, XS, XD = 128, 112, 239
def R4(n): return f"s[{n}:{n+3}]"
def creg(R, i):
    n = R * 8 + i
    return 24 + 4 * n if n < 22 else 160 + 4 * (n - 22)
WSr = R4(SRD_WS)

DOC = """; ---------------------------------------------------------------------------------------------------------
;   workgroups with (id & 7) < 4 : branch A.  128 x 192 tile of x @ wqkv (k,v first, q after), phi, per-tile kv / z partials,
; Hand-offs between workgroups go through d_ws and carry a per-launch tag (a clock value published in the zeroed d_debug), so words
; ---------------------------------------------------------------------------------------------------------
"""

class G:
    def __init__(self, A, K, stamps):
        self.A, self.K, self.stamps = A, K, stamps
    def L(self, n): return f"{self.K}_{n}"
    def stamp(self, i):
        if self.stamps:
            if 'pro' in EXP and 9 <= i <= 12 and not getattr(self, 'inpro', False): return
            if 'stg' in EXP and 3 <= i <= 12 and not getattr(self, 'instg', False): return
            self.A("s_memtime s[100:101]", "s_waitcnt lgkmcnt(0)", f"s_mov_b32 s{80+i}, s100")
    def sstamp(self, i):
        if 'stg' in EXP:
            self.instg = True
            self.A("s_memtime s[100:101]")
            self.A("s_waitcnt lgkmcnt(0)", f"s_mov_b32 s{80+i}, s100")
            self.instg = False
    def pstamp(self, i):
        if 'pro' in EXP:
            self.inpro = True; self.stamp(i); self.inpro = False
    def write_stamps(self):
        A = self.A
        if not self.stamps: return
        A("s_waitcnt vmcnt(0) lgkmcnt(0)")
        self.stamp(13)
        A("s_memrealtime s[100:101]", "s_waitcnt lgkmcnt(0)", "s_mov_b32 s95, s100")
        for j in range(16): A(f"v_mov_b32 v{16+j}, s{80+j}")
        A("s_lshl_b32 s64, s2, 3", f"s_add_u32 s64, s64, s{S_WAVE}", "s_lshl_b32 s64, s64, 6", f"s_add_u32 s64, s64, {WS['ST']}", "v_mov_b32 v2, s64")
        A("v_cmp_eq_u32 vcc, 0, v0", "s_and_saveexec_b64 s[66:67], vcc")
        for j in range(4):
            A(f"buffer_store_dwordx4 v[{16+4*j}:{19+4*j}], v2, {WSr}, 0 offen offset:{16*j}")

    def gen(self):
        A, L = self.A, self.L
        A.kernel_begin(self.K)
        A.label(L("start"))
        if self.stamps:
            for j in range(16): A(f"s_mov_b32 s{80+j}, 0")
            A("s_memrealtime s[100:101]", "s_waitcnt lgkmcnt(0)", "s_mov_b32 s94, s100")
            self.stamp(0)
        if 'clk' in EXP:
            A("s_memtime s[84:85]", "s_memrealtime s[86:87]")
        A("s_cmp_ge_u32 s2, 256", f"s_cbranch_scc1 {L('end')}")
        A("s_load_dwordx4 s[4:7], s[0:1], 0", "s_load_dwordx4 s[8:11], s[0:1], 16", "s_load_dwordx4 s[16:19], s[0:1], 48")
        if 'nocode' not in EXP:
            lc = L("nocode")
            A("s_getpc_b64 s[64:65]")
            A.label(L("pcref"))
            A(f"s_lshr_b32 s66, s2, 3", "s_mul_i32 s66, s66, 9", "v_add_u32 v2, s66, v0", "v_lshlrev_b32 v2, 7, v2")
            A(f"v_min_u32 v2, {L('end')}-{L('pcref')}, v2")
            A(f"v_cmp_gt_u32 vcc, 9, v0", "s_and_saveexec_b64 s[66:67], vcc", f"s_cbranch_execz {lc}")
            A("global_load_dword v255, v2, s[64:65]")
            A.label(lc)
            A("s_mov_b64 exec, s[66:67]")
        A("v_lshrrev_b32 v1, 6, v0", "v_and_b32 v0, 63, v0")
        A(f"v_readfirstlane_b32 s{S_WAVE}, v1")
        A(f"s_and_b32 s{S_XCD}, s2, 7", f"s_lshr_b32 s{S_SLOT}, s2, 3")
        A(f"s_and_b32 s64, s{S_XCD}, 3", f"s_lshl_b32 s{S_RT}, s64, 2", f"s_and_b32 s65, s{S_SLOT}, 3", f"s_add_u32 s{S_RT}, s{S_RT}, s65")
        A(f"s_lshr_b32 s{S_G}, s{S_SLOT}, 2")
        if 'rotb' in EXP:
            A("s_lshl_b32 s65, s65, 1", f"s_add_u32 s{S_ROT}, s{S_G}, s65", f"s_add_u32 s{S_ROT}, s{S_ROT}, s64", f"s_and_b32 s{S_ROT}, s{S_ROT}, 7")
        elif 'rotc' in EXP:
            A("s_lshl_b32 s65, s65, 1", f"s_add_u32 s{S_ROT}, s{S_G}, s65", f"s_and_b32 s{S_ROT}, s{S_ROT}, 7")
        elif 'roti' in EXP:
            A(f"s_lshl_b32 s{S_ROT}, s65, 1")
        elif 'rotj' in EXP:
            A(f"s_lshr_b32 s{S_ROT}, s{S_G}, 1", f"s_add_u32 s{S_ROT}, s{S_ROT}, s65", f"s_and_b32 s{S_ROT}, s{S_ROT}, 3", f"s_lshl_b32 s{S_ROT}, s{S_ROT}, 1")
        elif 'rote' in EXP:
            A(f"s_add_u32 s{S_ROT}, s{S_G}, s65", f"s_and_b32 s{S_ROT}, s{S_ROT}, 1", f"s_lshl_b32 s{S_ROT}, s{S_ROT}, 2")
        elif 'rotf' in EXP:
            A(f"s_add_u32 s{S_ROT}, s{S_G}, s65", f"s_and_b32 s{S_ROT}, s{S_ROT}, 3", f"s_lshl_b32 s{S_ROT}, s{S_ROT}, 1", "s_and_b32 s64, s64, 1", f"s_add_u32 s{S_ROT}, s{S_ROT}, s64")
        elif 'rotg' in EXP:
            A(f"s_and_b32 s{S_ROT}, s{S_G}, 3", f"s_lshl_b32 s{S_ROT}, s{S_ROT}, 1")
        elif 'roth' in EXP:
            A(f"s_add_u32 s{S_ROT}, s{S_G}, s65", f"s_and_b32 s{S_ROT}, s{S_ROT}, 3")
        elif 'rotd' in EXP:
            A(f"s_add_u32 s{S_ROT}, s{S_G}, s65", f"s_and_b32 s{S_ROT}, s{S_ROT}, 3", f"s_lshl_b32 s{S_ROT}, s{S_ROT}, 1")
        else:
            A("s_lshl_b32 s65, s65, 1", f"s_add_u32 s{S_ROT}, s{S_G}, s65", "s_and_b32 s64, s64, 1", f"s_add_u32 s{S_ROT}, s{S_ROT}, s64", f"s_and_b32 s{S_ROT}, s{S_ROT}, 7")
        if 'rot0' in EXP: A(f"s_mov_b32 s{S_ROT}, 0")
        A(f"s_and_b32 s{S_W}, s{S_WAVE}, 3")
        A(f"s_cmp_lt_u32 s{S_WAVE}, 4", f"s_cbranch_scc1 {L('compute')}")
        self.loader_prologue()
        A(f"s_cmp_ge_u32 s{S_XCD}, 4", f"s_cbranch_scc1 {L('bu_load')}")
        self.loader("qkv")
        A.label(L("p2A"))
        self.p2("A")
        A.label(L("bu_load"))
        self.loader("bu")
        A.label(L("p2B"))
        self.p2("B")
        A.label(L("compute"))
        self.rest_kernargs()
        A(f"s_cmp_ge_u32 s{S_XCD}, 4", f"s_cbranch_scc1 {L('bu')}")
        A("s_waitcnt lgkmcnt(0)")
        self.nonce_source()
        self.qkv_compute()
        A(f"s_branch {L('p2A')}")
        A.label(L("bu"))
        self.bu_compute()
        A(f"s_branch {L('p2B')}")
        A.label(L("end"))
        A("s_endpgm")

    def rest_kernargs(self):
        A = self.A
        A("s_load_dwordx4 s[12:15], s[0:1], 32", "s_load_dwordx4 s[20:23], s[0:1], 64", "s_load_dwordx4 s[24:27], s[0:1], 80")
        A("s_load_dwordx4 s[28:31], s[0:1], 96", "s_load_dwordx2 s[32:33], s[0:1], 112")

    def loader_prologue(self):
        A, L = self.A, self.L
        A("v_lshrrev_b32 v5, 3, v0", "v_and_b32 v6, 7, v0", "v_lshrrev_b32 v7, 4, v0")
        A("v_xor_b32 v8, v6, v7", "v_lshlrev_b32 v8, 4, v8")
        A("v_lshlrev_b32 v2, 10, v5", "v_add_u32 v2, v2, v8", "v_xor_b32 v3, 64, v2")
        A(f"s_lshl_b32 s70, s{S_W}, 12")
        lb, lj = L("pro_b"), L("pro_j")
        A(f"s_cmp_ge_u32 s{S_XCD}, 4", f"s_cbranch_scc1 {lb}")
        A("v_and_b32 v9, 1, v7", "v_lshlrev_b32 v9, 2, v9", "v_xor_b32 v9, v6, v9", "v_lshlrev_b32 v9, 4, v9")
        A("v_mul_u32_u24 v4, 3072, v5", "v_add_u32 v4, v4, v9", "v_lshlrev_b32 v12, 10, v5", "v_add_u32 v12, v12, v9")
        A("v_mov_b32 v20, v2", "v_mov_b32 v21, v3", "v_mov_b32 v22, v4", "v_mov_b32 v23, v4", "v_mov_b32 v11, v3")
        A(f"s_lshl_b32 s64, s{S_RT}, 7", f"s_lshl_b32 s65, s{S_W}, 5", "s_add_u32 s64, s64, s65", "s_lshl_b32 s68, s64, 10")
        A(f"s_mul_i32 s69, s{S_W}, {16*3072}", f"s_lshl_b32 s65, s{S_G}, 7", "s_add_u32 s69, s69, s65")
        A(f"s_mov_b32 s76, {64*3072}", "s_lshr_b32 s71, s70, 1")
        A("s_movk_i32 s52, 0x2000", "s_movk_i32 s53, 0x4000")
        A("s_movk_i32 s56, 0x2000")
        A("s_movk_i32 s60, 1024", "s_movk_i32 s61, 25600", "s_movk_i32 s62, 2048", "s_movk_i32 s63, 26624")
        A("s_waitcnt lgkmcnt(0)")
        A.srd(SRD_X, 4, 2097152); A.srd(SRD_W, 6, 1572864)
        A(f"s_branch {lj}")
        A.label(lb)
        A("v_lshrrev_b32 v9, 5, v0", "v_lshlrev_b32 v9, 5, v9", "v_and_b32 v10, 1, v5", "v_lshlrev_b32 v10, 4, v10", "v_add_u32 v9, v9, v10")
        A("v_and_b32 v10, 1, v7", "v_add_u32 v9, v9, v10", "v_lshlrev_b32 v4, 10, v9", "v_add_u32 v4, v4, v8", "v_xor_b32 v11, 64, v4")
        A("v_mov_b32 v20, v4", "v_mov_b32 v21, v11", "v_mov_b32 v22, v2", "v_mov_b32 v23, v3", "v_mov_b32 v12, v2")
        A(f"s_lshl_b32 s64, s{S_RT}, 7", f"s_lshl_b32 s65, s{S_W}, 2", "s_add_u32 s64, s64, s65", "s_lshl_b32 s68, s64, 10")
        A(f"s_lshl_b32 s64, s{S_G}, 6", f"s_and_b32 s65, s{S_W}, 1", "s_lshl_b32 s65, s65, 5", "s_add_u32 s64, s64, s65", "s_lshl_b32 s69, s64, 10")
        A("s_movk_i32 s76, 128", "s_mov_b32 s71, s70")
        A("s_mov_b32 s52, 0x10000", "s_movk_i32 s53, 0x800")
        A("s_movk_i32 s56, 0x800")
        A("s_movk_i32 s60, 0", "s_movk_i32 s61, 0x2000", "s_movk_i32 s62, 0x4000", "s_movk_i32 s63, 0x6000")
        A("s_waitcnt lgkmcnt(0)")
        A.srd(SRD_X, 10, 2097152)
        A(f"s_cmp_lt_u32 s{S_W}, 2", "s_cselect_b32 s64, s16, s18", "s_cselect_b32 s65, s17, s19")
        A.srd(SRD_W, 64, 524288)
        A.label(lj)
        A("s_add_u32 s54, s52, s53", "s_add_u32 s57, s56, 1024")
        self.pstamp(10)
        X, W = R4(SRD_X), R4(SRD_W)
        for st in range(1 if 's0' in EXP else 2):
            slot = st * SLOT
            A(f"s_add_u32 s64, s{S_ROT}, {st}", "s_and_b32 s64, s64, 7")
            A("s_lshl_b32 s65, s64, 7", "s_add_u32 s65, s65, s68", "s_mul_i32 s66, s64, s76", "s_add_u32 s66, s66, s69")
            xo = [None, "s52", "s53", "s54"]
            for ii in range(4):
                A(f"s_add_u32 m0, s70, {slot + ii*1024}")
                A(f"s_add_u32 s67, s65, {xo[ii]}" if xo[ii] else "s_mov_b32 s67, s65")
                A(f"buffer_load_dwordx4 v{20 + (ii&1)}, {X}, s67 offen lds")
            A(f"s_add_u32 s72, s71, {slot + 16384}")
            wl = ["0", "1024", "s56", "s57"]
            for ii in range(4):
                A(f"s_add_u32 m0, s72, {wl[ii]}", f"s_add_u32 s67, s66, s{60+ii}")
                A(f"buffer_load_dwordx4 v{22 + (ii&1)}, {W}, s67 offen lds")
            self.pstamp(11 + st)
        self.rest_kernargs()

    def poll_lines(self, tag, nl, sbase, stride_log2, R=8):
        A, L = self.A, self.L
        lp, done = L(f"poll_{tag}"), L(f"polld_{tag}")
        A(f"s_mov_b32 s72, {POLL_LIMIT}")
        A(f"v_lshlrev_b32 v{R+2}, {stride_log2}, v0")
        A("s_mov_b64 s[74:75], exec", f"s_mov_b64 exec, {(1 << nl) - 1:#x}")
        A.label(lp)
        A(f"buffer_load_dwordx2 v[{R}:{R+1}], v{R+2}, {WSr}, s{sbase} offen sc1")
        A("s_waitcnt vmcnt(0)")
        A(f"v_xor_b32 v{R}, s{NON}, v{R}", f"v_xor_b32 v{R+1}, s{NON+1}, v{R+1}", f"v_or_b32 v{R}, v{R}, v{R+1}")
        A(f"v_cmp_ne_u32 vcc, 0, v{R}")
        A("s_sub_u32 s72, s72, 1")
        A(f"s_cbranch_scc1 {done}")
        A(f"s_cbranch_vccz {done}")
        A(f"s_branch {lp}")
        A.label(done)
        A("s_mov_b64 exec, s[74:75]")

    def store_flag(self, sbase, tag, R=8):
        A, L = self.A, self.L
        A(f"v_mov_b32 v{R}, s{NON}", f"v_mov_b32 v{R+1}, s{NON+1}", f"v_mov_b32 v{R+2}, 0")
        A("s_mov_b64 s[74:75], exec", "s_mov_b64 exec, 1")
        lf, lj = L(f"sf_fast_{tag}"), L(f"sf_j_{tag}")
        A("s_cmp_eq_u32 s73, 1", f"s_cbranch_scc1 {lf}")
        A(f"buffer_store_dwordx2 v[{R}:{R+1}], v{R+2}, {WSr}, s{sbase} offen sc1")
        A(f"s_branch {lj}")
        A.label(lf)
        A(f"buffer_store_dwordx2 v[{R}:{R+1}], v{R+2}, {WSr}, s{sbase} offen")
        A.label(lj)
        A("s_mov_b64 exec, s[74:75]")

    def skip_issue(self, vm=None):
        A = self.A
        A(f"s_lshr_b32 s64, s{S_WAVE}, 2")
        A(f"s_lshl_b32 s68, s{S_RT}, 7", f"s_lshl_b32 s69, s{S_W}, 5", "s_add_u32 s68, s68, s69")
        A(f"s_lshl_b32 s69, s{S_G}, 6", "s_lshl_b32 s70, s64, 5", "s_add_u32 s69, s69, s70")
        A.srd(SRD_T0, 10, 2097152); A.srd(SRD_T1, 26, 1024)
        A("s_lshl_b32 s70, s68, 10", "s_lshl_b32 s71, s69, 1", "s_add_u32 s70, s70, s71")
        A("v_and_b32 v8, 31, v0", "v_lshrrev_b32 v7, 5, v0", "v_lshlrev_b32 v7, 12, v7", "v_lshlrev_b32 v8, 1, v8", "v_add_u32 v7, v7, v8")
        for r in range(16):
            if r % 4 == 0 and r > 0: A("s_add_u32 s70, s70, 8192")
            ins = f"buffer_load_ushort v{XS+r}, v7, {R4(SRD_T0)}, s70 offen offset:{(r%4)*1024}"
            vm.issue(ins, "skip") if vm else A(ins)
        ins = f"buffer_load_ushort v{XD}, v8, {R4(SRD_T1)}, s71 offen"
        vm.issue(ins, "skip") if vm else A(ins)

    def skip_finish(self):
        A = self.A
        A(f"v_lshlrev_b32 v{XD}, 16, v{XD}")
        for r in range(16): A(f"v_lshlrev_b32 v{XS+r}, 16, v{XS+r}")
        for r in range(16): A(f"v_mul_f32 v{XS+r}, v{XS+r}, v{XD}")
        for r in range(0, 16, 2): A(f"v_cvt_pk_bf16_f32 v{XS+r}, v{XS+r}, v{XS+r+1}")
        for r in range(0, 16, 2):
            A(f"v_and_b32 v{XS+r+1}, 0xffff0000, v{XS+r}", f"v_lshlrev_b32 v{XS+r}, 16, v{XS+r}")

    def id_addr(self, role, dst):
        A = self.A
        A(f"s_add_u32 s{dst}, s{S_RT}, {0 if role == 'A' else 16}", f"s_lshl_b32 s{dst}, s{dst}, 7", f"s_add_u32 s{dst}, s{dst}, {WS['IDT']}")

    def id_publish(self, role, vm):
        A = self.A
        self.id_addr(role, 64)
        A(f"s_lshl_b32 s65, s{S_G}, 4", "s_add_u32 s64, s64, s65", "s_getreg_b32 s65, hwreg(HW_REG_XCC_ID, 0, 4)")
        A(f"v_mov_b32 v16, s{NON}", f"v_mov_b32 v17, s{NON+1}", "v_mov_b32 v18, s65", "v_mov_b32 v19, 0", "v_mov_b32 v13, 0")
        vm.issue(f"buffer_store_dwordx4 v[16:19], v13, {WSr}, s64 offen sc1", "id")

    def mode_load(self, role, R):
        A = self.A
        self.id_addr(role, 69)
        A(f"v_and_b32 v{R+4}, 7, v0", f"v_lshlrev_b32 v{R+4}, 4, v{R+4}", f"v_add_u32 v{R+4}, s69, v{R+4}")
        A(f"buffer_load_dwordx4 v[{R}:{R+3}], v{R+4}, {WSr}, 0 offen sc1")

    def mode_resolve(self, role, R, tag):
        A, L = self.A, self.L
        lp, ok = L(f"mode_lp_{tag}"), L(f"mode_ok_{tag}")
        A(f"s_mov_b32 s72, {POLL_LIMIT}", "s_mov_b32 s73, 0")
        A.label(lp)
        A(f"v_xor_b32 v{R}, s{NON}, v{R}", f"v_xor_b32 v{R+1}, s{NON+1}, v{R+1}", f"v_or_b32 v{R}, v{R}, v{R+1}")
        A(f"v_cmp_ne_u32 vcc, 0, v{R}")
        A(f"s_cbranch_vccz {ok}")
        A("s_sub_u32 s72, s72, 1", f"s_cbranch_scc1 {L('mode_to_' + tag)}")
        A(f"buffer_load_dwordx4 v[{R}:{R+3}], v{R+4}, {WSr}, 0 offen sc1", "s_waitcnt vmcnt(0)", f"s_branch {lp}")
        A.label(ok)
        A("s_getreg_b32 s70, hwreg(HW_REG_XCC_ID, 0, 4)")
        A(f"v_cmp_ne_u32 vcc, s70, v{R+2}")
        A("s_cmp_eq_u64 vcc, 0", "s_cselect_b32 s73, 1, 0")
        A.label(L('mode_to_' + tag))

    def flag_touch(self, role, R):
        A = self.A
        self.flag_addr(role, 64)
        A(f"s_lshl_b32 s65, s{S_G}, 7", "s_add_u32 s64, s64, s65", f"v_mov_b32 v{R}, 0")
        A("s_mov_b64 s[74:75], exec", "s_mov_b64 exec, 1")
        A(f"buffer_load_dword v{R+1}, v{R}, {WSr}, s64 offen sc1")
        A("s_mov_b64 exec, s[74:75]")

    def weight_touch(self, R):
        A = self.A
        if 'nowt' in EXP: return
        A("s_lshl_b32 s64, s2, 2", f"s_add_u32 s64, s64, s{S_W}", "s_mul_i32 s64, s64, 12")
        A(f"v_add_u32 v{R}, s64, v0", f"v_lshlrev_b32 v{R}, 7, v{R}")
        A.srd(SRD_T0, 8, 524288); A.srd(SRD_T1, 20, 524288); A.srd(SRD_T2, 22, 524288)
        A("s_mov_b64 s[74:75], exec", "s_mov_b64 exec, 0xfff")
        A(f"buffer_load_dword v{R+1}, v{R}, {R4(SRD_T0)}, 0 offen sc1")
        A(f"v_subrev_u32 v{R+2}, 0x80000, v{R}")
        A(f"buffer_load_dword v{R+1}, v{R+2}, {R4(SRD_T1)}, 0 offen sc1")
        A(f"v_subrev_u32 v{R+2}, 0x100000, v{R}")
        A(f"buffer_load_dword v{R+1}, v{R+2}, {R4(SRD_T2)}, 0 offen sc1")
        A("s_mov_b64 exec, s[74:75]")

    def l2_prefetch(self, role, base, R):
        A = self.A
        if 'pf' not in EXP: return
        A(f"s_add_u32 s64, s{S_W}, {base}")
        A(f"s_and_b32 s65, s{S_XCD}, 3", "s_lshl_b32 s65, s65, 9", f"s_lshl_b32 s66, s{S_SLOT}, 4", "s_add_u32 s65, s65, s66")
        A("s_lshl_b32 s65, s65, 10", "s_lshl_b32 s66, s64, 7", "s_add_u32 s65, s65, s66")
        A(f"v_and_b32 v{R+2}, 15, v0", f"v_lshlrev_b32 v{R}, 10, v{R+2}")
        A(f"buffer_load_dword v{R+1}, v{R}, {R4(SRD_T0)}, s65 offen sc1")
        if role == "A":
            A(f"v_bfe_u32 v{R+3}, v0, 4, 1", f"v_mul_u32_u24 v{R+3}, 3072, v{R+3}", f"v_lshlrev_b32 v{R+2}, 7, v{R+2}", f"v_add_u32 v{R+2}, v{R+2}, v{R+3}")
            A("s_lshl_b32 s70, s64, 6", f"s_lshl_b32 s66, s{S_SLOT}, 1", "s_add_u32 s70, s70, s66", "s_mul_i32 s70, s70, 3072", "s_add_u32 s70, s70, 1024")
            A(f"buffer_load_dword v{R+1}, v{R+2}, {R4(SRD_T1)}, s70 offen sc1")
        else:
            A(f"s_lshl_b32 s70, s{S_SLOT}, 14", "s_lshl_b32 s66, s64, 7", "s_add_u32 s70, s70, s66")
            A(f"buffer_load_dword v{R+1}, v{R}, {R4(SRD_T1)}, s70 offen sc1")
            A(f"buffer_load_dword v{R+1}, v{R}, {R4(SRD_T2)}, s70 offen sc1")

    def pf_srds(self, role):
        A = self.A
        if 'pf' not in EXP: return
        if role == "A":
            A.srd(SRD_T0, 4, 2097152); A.srd(SRD_T1, 6, 1572864)
        else:
            A.srd(SRD_T0, 10, 2097152); A.srd(SRD_T1, 16, 524288); A.srd(SRD_T2, 18, 524288)

    def page_touch(self, role, R):
        A = self.A
        if 'pt' not in EXP: return
        A(f"v_mov_b32 v{R}, 0")
        if role == "A":
            A(f"s_lshl_b32 s64, s{S_RT}, 2", f"s_add_u32 s64, s64, s{S_W}", "s_lshl_b32 s64, s64, 5", f"s_lshl_b32 s65, s{S_G}, 2", "s_add_u32 s64, s64, s65", "s_lshl_b32 s64, s64, 10")
        else:
            A(f"s_lshl_b32 s64, s{S_RT}, 2", f"s_add_u32 s64, s64, s{S_W}", "s_lshl_b32 s64, s64, 6", f"s_lshl_b32 s65, s{S_G}, 3", "s_add_u32 s64, s64, s65", "s_lshl_b32 s64, s64, 10", f"s_add_u32 s64, s64, {WS['H']}")
        A(f"buffer_load_dword v{R+1}, v{R}, {WSr}, s64 offen sc1")
        A.srd(SRD_T0, 28, 8388608)
        A(f"s_lshl_b32 s64, s{S_RT}, 7", f"s_lshl_b32 s65, s{S_W}, 5", "s_add_u32 s64, s64, s65", "s_lshl_b32 s64, s64, 12", f"s_lshl_b32 s65, s{S_G}, 8", "s_add_u32 s64, s64, s65")
        if role == "B": A("s_add_u32 s64, s64, 2048")
        A(f"buffer_load_dword v{R+1}, v{R}, {R4(SRD_T0)}, s64 offen sc1")
        if role == "B":
            A.srd(SRD_T1, 26, 1024)
            A(f"buffer_load_dword v{R+1}, v{R}, {R4(SRD_T1)}, 0 offen sc1")
        if 'pt2' in EXP:
            if role == "A":
                A.srd(SRD_T1, 8, 524288)
                A(f"s_lshl_b32 s64, s{S_G}, 7")
                A(f"buffer_load_dword v{R+1}, v{R}, {R4(SRD_T1)}, s64 offen sc1")
            else:
                A.srd(SRD_T0, 20, 524288); A.srd(SRD_T2, 22, 524288)
                A(f"s_lshl_b32 s64, s{S_G}, 16")
                A(f"buffer_load_dword v{R+1}, v{R}, {R4(SRD_T0)}, s64 offen sc1")
                A(f"buffer_load_dword v{R+1}, v{R}, {R4(SRD_T2)}, s64 offen sc1")

    def nonce_source(self):
        A, L = self.A, self.L
        ln = L("nononce")
        A("s_cmp_lg_u32 s2, 0", f"s_cbranch_scc1 {ln}", f"s_cmp_lg_u32 s{S_WAVE}, 0", f"s_cbranch_scc1 {ln}")
        A("s_memrealtime s[70:71]", "s_waitcnt lgkmcnt(0)", "s_or_b32 s70, s70, 1")
        A("v_mov_b32 v248, s70", "v_mov_b32 v249, s71", "v_mov_b32 v247, 0")
        A.srd(SRD_T3, 30, 256)
        A(f"buffer_store_dwordx2 v[248:249], v247, {R4(SRD_T3)}, 0 offen offset:128 sc1")
        A.label(ln)

    def loader(self, role):
        A, L = self.A, self.L
        last = 9 if role == "qkv" else 7
        vm = Vm(A)
        vm.q = [('st', 0)] * 8 + ([] if 's0' in EXP else [('st', 1)] * 8)
        X, W = R4(SRD_X), R4(SRD_W)
        def issue(st):
            slot = (st % NSLOT) * SLOT
            tag = ("st", st)
            if st >= 8:
                a = st - 8
                A(f"s_add_u32 s64, s{S_ROT}, s{S_W}", f"s_add_u32 s64, s64, {4*a}", "s_and_b32 s64, s64, 7")
                A(f"s_mul_i32 s64, s64, {64*3072}", f"s_lshl_b32 s65, s{S_G}, 7", "s_add_u32 s64, s64, s65")
                A("s_lshl_b32 s66, s70, 1")
                for i in range(8):
                    A(f"s_add_u32 m0, s66, {slot + i*1024}", f"s_add_u32 s67, s64, {i*8*3072}")
                    vm.issue(f"buffer_load_dwordx4 v4, {W}, s67 offen lds", tag)
                return
            A(f"s_add_u32 s64, s{S_ROT}, {st}", "s_and_b32 s64, s64, 7")
            A("s_lshl_b32 s65, s64, 7", "s_add_u32 s65, s65, s68")
            if role == "qkv":
                A(f"s_mul_i32 s66, s64, {64*3072}", "s_add_u32 s66, s66, s69")
                for ii in range(4):
                    A(f"s_add_u32 m0, s70, {slot + ii*1024}", f"s_add_u32 s67, s65, {ii*8192}")
                    vm.issue(f"buffer_load_dwordx4 v{2 + (ii&1)}, {X}, s67 offen lds", tag)
                A("s_lshr_b32 s71, s70, 1")
                for part in range(2):
                    for ii in range(2):
                        A(f"s_add_u32 m0, s71, {slot + 16384 + part*8192 + ii*1024}", f"s_add_u32 s67, s66, {ii*8*3072 + (1+part)*1024}")
                        vm.issue(f"buffer_load_dwordx4 v4, {W}, s67 offen lds", tag)
            else:
                A("s_lshl_b32 s66, s64, 7", "s_add_u32 s66, s66, s69")
                for ii in range(4):
                    A(f"s_add_u32 m0, s70, {slot + ii*1024}", f"s_add_u32 s67, s65, {(64*(ii&1) + 2*(ii>>1))*1024}")
                    vm.issue(f"buffer_load_dwordx4 v{4 if (ii&1)==0 else 11}, {X}, s67 offen lds", tag)
                for ii in range(4):
                    A(f"s_add_u32 m0, s70, {slot + 16384 + ii*1024}", f"s_add_u32 s67, s66, {ii*8192}")
                    vm.issue(f"buffer_load_dwordx4 v{2 + (ii&1)}, {W}, s67 offen lds", tag)
        def cregion(R):
            part = R >> 1
            A.srd(SRD_T0, 20 + 2 * part, 524288)
            A(f"s_lshl_b32 s64, s{S_G}, 6", f"s_lshl_b32 s65, s{S_W}, 3", "s_add_u32 s64, s64, s65", f"s_add_u32 s64, s64, {32*(R&1)}", "s_lshl_b32 s64, s64, 10")
            A(f"s_and_b32 s66, s{S_W}, 1", "s_lshl_b32 s66, s66, 7", "v_lshlrev_b32 v13, 4, v0", "v_xor_b32 v13, s66, v13")
            for i in range(8):
                A(f"v_xor_b32 v{14+(i&1)}, {i*16}, v13")
                A(f"s_add_u32 s67, s64, {i*1024}")
                vm.issue(f"buffer_load_dwordx4 {v(creg(R, i),4)}, v{14+(i&1)}, {R4(SRD_T0)}, s67 offen", ("c", R))
        self.cregion = cregion
        self.vm = vm
        A("s_waitcnt lgkmcnt(0)")
        A.srd(SRD_WS, 32, 268435456)
        self.stamp(1)
        sched = {0: [2], 1: [3], 2: [4], 3: [5], 4: [6], 5: [7], 6: [8], 7: [9]} if 'l3' not in EXP else {0: [2], 1: [3], 2: [4, 5], 3: [6], 4: [7], 5: [8], 6: [9], 7: []}
        if 's0' in EXP: sched[0] = [1, 2]
        for st in range(8):
            vm.need(("st", st))
            if st == 4:
                self.get_nonce(role)
                self.id_publish("A" if role == "qkv" else "B", vm)
            if st == 7 and role == "bu":
                A(f"v_mov_b32 v14, s{NON}", f"v_mov_b32 v15, s{NON+1}", f"v_mov_b32 v13, {NONCE}")
                A("ds_write_b64 v13, v[14:15]", "s_waitcnt lgkmcnt(0)")
            A("s_barrier")
            if st == 0: self.stamp(2)
            for x in sched[st]:
                if x <= last: issue(x)
            if (('fb' in EXP and st == (7 if role == "qkv" else 5)) or ('fbB' in EXP and role == "bu" and st == 5)):
                A("v_lshlrev_b32 v13, 7, v0")
                if role == "qkv":
                    A("v_and_b32 v13, 0xfff, v13")
                    A(f"s_lshl_b32 s64, s{S_RT}, 2", f"s_add_u32 s64, s64, s{S_W}", "s_lshl_b32 s64, s64, 5", f"s_lshl_b32 s65, s{S_G}, 2", "s_add_u32 s64, s64, s65", "s_lshl_b32 s64, s64, 10")
                else:
                    A(f"s_lshl_b32 s64, s{S_RT}, 2", f"s_add_u32 s64, s64, s{S_W}", "s_lshl_b32 s64, s64, 6", f"s_lshl_b32 s65, s{S_G}, 3", "s_add_u32 s64, s64, s65", "s_lshl_b32 s64, s64, 10", f"s_add_u32 s64, s64, {WS['H']}")
                vm.issue(f"buffer_load_dword v250, v13, {WSr}, s64 offen sc1", "touch")
            if role == "bu" and 'cearly' in EXP:
                if st == 6: cregion(0)
                if st == 7:
                    for R_ in (1, 2, 3): cregion(R_)
            elif role == "bu" and 'call7' in EXP:
                if st == 7:
                    for R_ in range(4): cregion(R_)
            elif role == "bu" and st == 7:
                for R_ in range(2): cregion(R_)
            if st == 2:
                A(f"s_load_dwordx2 s[{NON}:{NON+1}], s[30:31], 128")
        if role == "qkv": self.qkv_loader_tail()
        else: self.bu_loader_tail()

    def get_nonce(self, role):
        A, L = self.A, self.L
        ok, lp = L(f"nok_{role}"), L(f"nlp_{role}")
        A("s_waitcnt lgkmcnt(0)")
        A(f"s_cmp_lg_u32 s{NON}, 0", f"s_cbranch_scc1 {ok}")
        A.srd(SRD_T0, 30, 256)
        A(f"s_mov_b32 s72, {POLL_LIMIT}", "v_mov_b32 v13, 0")
        A.label(lp)
        A(f"buffer_load_dwordx2 v[14:15], v13, {R4(SRD_T0)}, 0 offen offset:128 sc1", "s_waitcnt vmcnt(0)")
        A(f"v_readfirstlane_b32 s{NON}, v14", f"v_readfirstlane_b32 s{NON+1}, v15", "s_nop 3")
        A("s_sub_u32 s72, s72, 1", f"s_cbranch_scc1 {ok}")
        A(f"s_cmp_lg_u32 s{NON}, 0", f"s_cbranch_scc1 {ok}", "s_sleep 2", f"s_branch {lp}")
        A.label(ok)

    def qkv_loader_tail(self):
        A, L, vm = self.A, self.L, self.vm
        A(f"v_mov_b32 v14, s{NON}", f"v_mov_b32 v15, s{NON+1}", f"v_mov_b32 v13, {NONCEQ}")
        A("ds_write_b64 v13, v[14:15]")
        vm.need(("st", 9))
        A("s_waitcnt lgkmcnt(0)")
        self.stamp(3)
        A("s_barrier")
        A("s_setprio 3")
        self.stamp(4)
        A("v_mul_u32_u24 v7, 24, v0", f"s_mul_i32 s64, s{S_W}, {PART_STRIDE}", "v_add_u32 v7, s64, v7")
        for w in range(4):
            for j in range(3):
                A(f"ds_read_b64 v[{16+6*w+2*j}:{17+6*w+2*j}], v7 offset:{PARTQ + w*4*PART_STRIDE + 8*j}")
        A("v_lshlrev_b32 v3, 4, v0")
        A(f"s_lshl_b32 s64, s{S_G}, 4", f"s_add_u32 s64, s64, s{S_RT}", "s_lshl_b32 s64, s64, 2", f"s_add_u32 s64, s64, s{S_W}", "s_lshl_b32 s64, s64, 10", f"s_add_u32 s64, s64, {WS['KVP']}")
        A(f"v_mov_b32 v51, s{NON}")
        A("s_waitcnt lgkmcnt(6)")
        for j in range(0, 6, 2):
            A(f"v_pk_add_f32 v[{16+j}:{17+j}], v[{16+j}:{17+j}], v[{22+j}:{23+j}]")
        A("s_waitcnt lgkmcnt(0)")
        for j in range(0, 6, 2):
            A(f"v_pk_add_f32 v[{28+j}:{29+j}], v[{28+j}:{29+j}], v[{34+j}:{35+j}]")
        for j in range(0, 6, 2):
            A(f"v_pk_add_f32 v[{16+j}:{17+j}], v[{16+j}:{17+j}], v[{28+j}:{29+j}]")
        for j in range(3):
            A(f"v_cvt_pk_bf16_f32 v{48+j}, v{16+2*j}, v{17+2*j}")
        A("s_mov_b64 s[66:67], exec", "s_mov_b32 exec_lo, -1", "s_mov_b32 exec_hi, 0x3fff")
        A(f"buffer_store_dwordx4 v[48:51], v3, {WSr}, s64 offen sc1")
        self.stamp(5)
        A("s_mov_b64 exec, s[66:67]")
        A.srd(SRD_T0, 8, 524288)
        A(f"s_lshl_b32 s64, s{S_W}, 17", f"s_lshl_b32 s65, s{S_G}, 7", "s_add_u32 s64, s64, s65")
        A(f"s_lshl_b32 s65, s{S_W}, 14")
        for i in range(16):
            A(f"s_add_u32 m0, s65, {WOIMG + i*1024}", f"s_add_u32 s69, s64, {i*8192}")
            A(f"buffer_load_dwordx4 v12, {R4(SRD_T0)}, s69 offen lds")
        if 'kvd' in EXP: A("s_waitcnt vmcnt(0)")
        A("s_mov_b32 exec_lo, -1", "s_mov_b32 exec_hi, 0x3fff")
        A(f"s_lshl_b32 s68, s{S_G}, 6", f"s_add_u32 s68, s68, s{S_W}", "s_lshl_b32 s68, s68, 10", f"s_add_u32 s68, s68, {WS['KVP']}")
        lp, ok, ll, llo = L("kv_poll"), L("kv_ok"), L("kv_light"), L("kv_lightok")
        A(f"s_mov_b32 s72, {POLL_LIMIT}")
        A("v_lshlrev_b32 v5, 12, v0", f"v_add_u32 v5, {45*16+12}, v5")
        A("s_mov_b32 exec_lo, 0xffff", "s_mov_b32 exec_hi, 0")
        A.label(ll)
        A(f"buffer_load_dword v6, v5, {WSr}, s68 offen sc1", "s_waitcnt vmcnt(0)")
        A(f"v_cmp_ne_u32 vcc, s{NON}, v6")
        A("s_sub_u32 s72, s72, 1", f"s_cbranch_scc1 {llo}")
        A(f"s_cbranch_vccnz {ll}")
        A.label(llo)
        A("s_mov_b32 exec_lo, -1", "s_mov_b32 exec_hi, 0x3fff")
        def bulk(fl):
            A("s_mov_b32 s64, s68")
            for r in range(16):
                A(f"buffer_load_dwordx4 v[{64+4*r}:{67+4*r}], v3, {WSr}, s64 offen {fl}")
                if r < 15: A("s_add_u32 s64, s64, 4096")
            A("s_waitcnt vmcnt(0)")
            A(f"v_xor_b32 v52, s{NON}, v67")
            for r in range(1, 16):
                A(f"v_xor_b32 v53, s{NON}, v{67+4*r}", "v_or_b32 v52, v52, v53")
            A("v_cmp_ne_u32 vcc, 0, v52")
        bulk("")
        A(f"s_cbranch_vccz {ok}")
        A.label(lp)
        bulk("sc1")
        A("s_sub_u32 s72, s72, 1", f"s_cbranch_scc1 {ok}")
        A(f"s_cbranch_vccnz {lp}")
        A.label(ok)
        self.stamp(6)
        A("s_mov_b64 exec, s[66:67]")
        for j in range(6): A(f"v_mov_b32 v{16+j}, 0")
        A("v_mov_b32 v24, 0x00003f80", "v_mov_b32 v25, 0x3f800000")
        for r in range(16):
            for j in range(3):
                A(f"v_dot2c_f32_bf16 v{16+2*j}, v{64+4*r+j}, v24")
                A(f"v_dot2c_f32_bf16 v{17+2*j}, v{64+4*r+j}, v25")
        A("s_nop 2")
        for j in range(3):
            A(f"v_cvt_pk_bf16_f32 v{48+j}, v{16+2*j}, v{17+2*j}")
        A("v_mul_u32_u24 v4, 12, v0", f"s_lshl_b32 s66, s{S_W}, 10", f"s_add_u32 s66, s66, {FIN}", "v_add_u32 v4, s66, v4")
        A("s_mov_b64 s[66:67], exec", "s_mov_b32 exec_lo, -1", "s_mov_b32 exec_hi, 0x3fff")
        for j in range(3): A(f"ds_write_b32 v4, v{48+j} offset:{4*j}")
        A("s_mov_b64 exec, s[66:67]")
        A("s_waitcnt lgkmcnt(0)")
        self.stamp(7)
        A("s_barrier")
        A("s_setprio 0")
        for i in range(32): A(f"v_mov_b32 v{P2ACC+i}, 0")
        A("s_waitcnt vmcnt(0)")
        self.stamp(8)
        A("s_barrier")

    def bu_loader_tail(self):
        A, L, vm = self.A, self.L, self.vm
        self.stamp(3)
        A("s_barrier")
        if 'cearly' not in EXP and 'call7' not in EXP:
            self.cregion(2); self.cregion(3)
        self.skip_issue(vm)
        A("v_lshlrev_b32 v13, 4, v0", f"s_lshl_b32 s65, s{S_W}, 13", "v_add_u32 v13, s65, v13")
        for R_ in range(4):
            vm.need(("c", R_))
            if R_ == 2: A("v_add_u32 v13, 0x10000, v13")
            for i in range(8):
                A(f"ds_write_b128 v13, {v(creg(R_, i),4)} offset:{(R_&1)*SLOT + i*1024}")
        A("s_waitcnt lgkmcnt(0)")
        vm.drain()
        self.skip_finish()
        for r in range(16):
            A(f"v_mov_b32 v{P2ACC+r}, 0", f"v_mov_b32 v{P2ACC+16+r}, v{XS+r}")
        self.stamp(4)
        A("s_barrier")

    def flag_addr(self, role, dst):
        A = self.A
        A(f"s_add_u32 s{dst}, s{S_RT}, {0 if role == 'A' else 16}", f"s_lshl_b32 s{dst}, s{dst}, 10", f"s_add_u32 s{dst}, s{dst}, {WS['FLG']}")

    def wave_flag(self, role, vn):
        A = self.A
        self.flag_addr(role, 64)
        A(f"s_lshl_b32 s65, s{S_G}, 7", "s_add_u32 s64, s64, s65", f"s_lshl_b32 s65, s{S_W}, 3", "s_add_u32 s64, s64, s65", "v_mov_b32 v12, 0")
        A("s_mov_b64 s[74:75], exec", "s_mov_b64 exec, 1")
        lf, lj = self.L(f"wf_fast_{role}"), self.L(f"wf_j_{role}")
        A("s_cmp_eq_u32 s73, 1", f"s_cbranch_scc1 {lf}")
        A(f"buffer_store_dwordx2 v[{vn}:{vn+1}], v12, {WSr}, s64 offen sc1")
        A(f"s_branch {lj}")
        A.label(lf)
        A(f"buffer_store_dwordx2 v[{vn}:{vn+1}], v12, {WSr}, s64 offen")
        A.label(lj)
        A("s_mov_b64 exec, s[74:75]")

    def p2_wait(self, role):
        A, L = self.A, self.L
        self.flag_addr(role, 64)
        A(f"s_lshr_b32 s65, s{S_WAVE}, 2", "s_lshl_b32 s65, s65, 9", "s_add_u32 s64, s64, s65")
        lp, done = L(f"fpoll_{role}"), L(f"fpolld_{role}")
        A(f"s_mov_b32 s72, {POLL_LIMIT}")
        if role == "B":
            A("v_lshrrev_b32 v10, 2, v0", "v_lshlrev_b32 v10, 7, v10", "v_and_b32 v11, 3, v0", "v_lshlrev_b32 v11, 3, v11", "v_add_u32 v10, v10, v11")
            A("s_mov_b64 s[74:75], exec", "s_mov_b64 exec, 0xffff")
        else:
            A(f"s_lshl_b32 s65, s{S_W}, 3", "v_lshlrev_b32 v10, 7, v0", "v_add_u32 v10, s65, v10")
            A("s_mov_b64 s[74:75], exec", "s_mov_b64 exec, 0xf")
        A.label(lp)
        A(f"buffer_load_dwordx2 v[8:9], v10, {WSr}, s64 offen sc1")
        A("s_waitcnt vmcnt(0)")
        A(f"v_xor_b32 v8, s{NON}, v8", f"v_xor_b32 v9, s{NON+1}, v9", "v_or_b32 v8, v8, v9")
        A("v_cmp_ne_u32 vcc, 0, v8")
        A("s_sub_u32 s72, s72, 1", f"s_cbranch_scc1 {done}")
        A(f"s_cbranch_vccz {done}")
        for e in EXP:
            if e.startswith('fsl'): A(f"s_sleep {int(e[3:])}")
        A(f"s_branch {lp}")
        A.label(done)
        A("s_mov_b64 exec, s[74:75]")

    def phi_pack(self, acc, n, dst, T):
        A = self.A
        for base in range(0, n, 8):
            for i in range(0, 8, 2):
                A(f"v_pk_mul_f32 v[{T+i}:{T+i+1}], v[{acc+base+i}:{acc+base+i+1}], s[76:77]")
            for i in range(8):
                A(f"v_exp_f32_e64 v{T+i}, v{T+i} clamp")
            for i in range(8):
                A(f"v_max_f32 v{acc+base+i}, 0, v{acc+base+i}")
            for i in range(0, 8, 2):
                A(f"v_pk_add_f32 v[{acc+base+i}:{acc+base+i+1}], v[{acc+base+i}:{acc+base+i+1}], v[{T+i}:{T+i+1}]")
            for i in range(0, 8, 2):
                A(f"v_pk_add_f32 v[{acc+base+i}:{acc+base+i+1}], v[{acc+base+i}:{acc+base+i+1}], s[64:65]")
            for i in range(0, 8, 2):
                A(f"v_cvt_pk_bf16_f32 v{dst+(base+i)//2}, v{acc+base+i}, v{acc+base+i+1}")

    def lam_code(self, P, T):
        A = self.A
        A(f"v_lshlrev_b32 v{P}, 16, v{P}", f"v_lshlrev_b32 v{P+1}, 16, v{P+1}", f"v_lshlrev_b32 v{P+2}, 16, v{P+2}")
        A(f"v_mul_f32 v{T}, {LOG2E:#x}, v{P+2}", f"v_exp_f32 v{T}, v{T}", "s_nop 0")
        A(f"v_cvt_pk_bf16_f32 v{T}, v{T}, v{T}", f"v_lshlrev_b32 v{T}, 16, v{T}")
        A(f"v_mul_f32 v{T+1}, v{T}, v{P}", f"v_mul_f32 v{T+2}, v{T}, v{P+1}")
        A(f"v_mul_f32 v{T+1}, {LOG2E:#x}, v{T+1}", f"v_mul_f32 v{T+2}, {INV2PI:#x}, v{T+2}")
        A(f"v_exp_f32 v{T+1}, v{T+1}", f"v_fract_f32 v{T+2}, v{T+2}", "s_nop 0")
        A(f"v_cos_f32 v{P+3}, v{T+2}", f"v_sin_f32 v{P+4}, v{T+2}", "s_nop 0")
        A(f"v_mul_f32 v{P+3}, v{P+3}, v{T+1}", f"v_mul_f32 v{P+4}, v{P+4}, v{T+1}")

    def csq(self, d, s_, t):
        A = self.A
        A(f"v_mul_f32 v{t}, v{s_+1}, v{s_+1}", f"v_mul_f32 v{d+1}, v{s_}, v{s_+1}")
        A(f"v_fma_f32 v{d}, v{s_}, v{s_}, -v{t}", f"v_add_f32 v{d+1}, v{d+1}, v{d+1}")

    def cfma(self, dr, di, ar, ai, br, bi, cr, ci):
        A = self.A
        A(f"v_fma_f32 v{dr}, v{ar}, v{br}, v{cr}", f"v_fma_f32 v{di}, v{ar}, v{bi}, v{ci}")
        A(f"v_fma_f32 v{dr}, -v{ai}, v{bi}, v{dr}", f"v_fma_f32 v{di}, v{ai}, v{br}, v{di}")

    def qkv_compute(self):
        A, L = self.A, self.L
        ACC, WF, XF, TMP = 16, 80, 112, 240
        VA, VW = 4, 8
        lg = Lgkm(A)
        A("v_and_b32 v10, 31, v0", "v_lshrrev_b32 v11, 5, v0")
        A(f"s_lshl_b32 s64, s{S_W}, 5", "v_add_u32 v12, s64, v10", "v_lshlrev_b32 v12, 7, v12")
        A("v_lshrrev_b32 v13, 1, v10", "v_and_b32 v13, 7, v13", "v_xor_b32 v13, v13, v11", "v_lshlrev_b32 v13, 4, v13")
        A(f"v_add_u32 v{VA}, v12, v13")
        for ks in range(1, 4): A(f"v_xor_b32 v{VA+ks}, {32*ks}, v{VA}")
        A("v_lshrrev_b32 v12, 5, v0", "v_lshlrev_b32 v12, 3, v12", "v_bfe_u32 v13, v0, 2, 2", "v_add_u32 v12, v12, v13", "v_lshlrev_b32 v12, 7, v12")
        A("v_bfe_u32 v13, v0, 3, 1", "v_lshlrev_b32 v13, 6, v13", "v_add_u32 v12, v12, v13")
        A("v_bfe_u32 v13, v0, 4, 1", "v_lshlrev_b32 v13, 5, v13", "v_add_u32 v12, v12, v13")
        A("v_and_b32 v13, 3, v0", "v_lshlrev_b32 v13, 3, v13", f"v_add_u32 v{VW}, v12, v13")
        A(f"v_xor_b32 v{VW+1}, 64, v{VW}")
        A(f"v_add_u32 v2, {3*SLOT}, v{VW}", f"v_add_u32 v3, {3*SLOT}, v{VW+1}")
        A(f"s_mov_b32 s76, {LOG2E:#x}", f"s_mov_b32 s77, {LOG2E:#x}")
        A("v_cmp_gt_u32 s[74:75], 16, v10")
        for i in range(64): A(f"v_mov_b32 v{ACC+i}, 0")
        A("v_and_b32 v12, 15, v10", "v_lshlrev_b32 v13, 4, v11", "v_add_u32 v12, v12, v13", "v_lshlrev_b32 v12, 5, v12")
        A("v_lshrrev_b32 v13, 4, v10", f"v_mul_u32_u24 v13, {PART_STRIDE}, v13", "v_add_u32 v12, v12, v13")
        A(f"s_mul_i32 s66, s{S_W}, {4*PART_STRIDE}", f"s_add_u32 s66, s66, {PARTQ}", "v_add_u32 v12, s66, v12")
        A("v_lshlrev_b32 v14, 5, v11", "v_add_u32 v14, v14, v13", "v_add_u32 v14, s66, v14", "v_add_u32 v14, 1024, v14")
        A("s_waitcnt lgkmcnt(0)")
        self.pf_srds("A")
        self.l2_prefetch("A", 0, 250)
        self.l2_prefetch("A", 4, 250) if 'pfall' in EXP else None
        A.srd(SRD_WS, 32, 268435456)
        self.flag_touch("A", 245)
        self.page_touch("A", 252)
        self.weight_touch(242)
        A("v_cmp_gt_u32 s[74:75], 16, v10")
        def reads(s_, ks):
            buf = (s_ * 4 + ks) & 1
            out = [(f"ds_read_b128 {v(XF + (s_*4+ks)*4, 4)}, v{VA+ks}", ("x", s_, ks))]
            for nt in range(4):
                part, sub = nt >> 1, nt & 1
                for a_ in range(2):
                    off = 16384 + part * 8192 + (16 * ks + 4 * a_) * 128
                    out.append((f"ds_read_b64_tr_b16 {v(WF + buf*16 + nt*4 + 2*a_, 2)}, v{VW+sub} offset:{off}", ("w", s_, ks, nt)))
            return out
        self.pf_srds("A")
        if 'prio' in EXP: A("s_setprio 2")
        A("s_barrier")
        self.stamp(1)
        for ins, tag in reads(0, 0): lg.issue(ins, tag)
        if 'pfall' not in EXP: self.l2_prefetch("A", 4, 250)
        for s_ in range(8):
            for ks in range(4):
                nxt = (s_, ks + 1) if ks < 3 else ((s_ + 1, 0) if s_ < 7 else None)
                if ks == 3 and s_ < 7:
                    A("s_barrier")
                    self.sstamp(3 + s_)
                    d = SLOT if (s_ + 1) % NSLOT != 0 else -(NSLOT - 1) * SLOT
                    for r in list(range(VA, VA + 4)) + [VW, VW + 1]:
                        A(f"v_add_u32 v{r}, {d & 0xffffffff:#x}, v{r}")
                nr = reads(*nxt) if nxt else []
                buf = (s_ * 4 + ks) & 1
                xf = v(XF + (s_ * 4 + ks) * 4, 4)
                for nt in range(4):
                    if nt == 0: lg.need(("x", s_, ks), ("w", s_, ks, 0))
                    else: lg.need(("w", s_, ks, nt))
                    A(f"v_mfma_f32_32x32x16_bf16 {v(ACC+16*nt,16)}, {xf}, {v(WF+buf*16+nt*4,4)}, {v(ACC+16*nt,16)}")
                    if nr:
                        for ins, tag in (nr[0:3] if nt == 0 else nr[1 + 2*nt: 3 + 2*nt]):
                            lg.issue(ins, tag)
        self.stamp(2)
        A("s_waitcnt vmcnt(0)")
        A(f"s_mov_b32 s64, {EPS:#x}", f"s_mov_b32 s65, {EPS:#x}")
        for i in range(4): A(f"v_mov_b32 v{TMP+8+i}, 0x3f803f80")
        A("s_nop 3")
        ONES = TMP + 8
        def kvm(hp):
            kv = ACC + 16 * hp; z = ACC + 32 + 16 * hp
            A(f"v_mfma_f32_32x32x16_bf16 {v(kv,16)}, {v(WF+8*hp,4)}, {v(WF+16+8*hp,4)}, 0")
            A(f"v_mfma_f32_32x32x16_bf16 {v(z,16)}, {v(WF+8*hp,4)}, {v(ONES,4)}, 0")
            A(f"v_mfma_f32_32x32x16_bf16 {v(kv,16)}, {v(WF+8*hp+4,4)}, {v(WF+16+8*hp+4,4)}, {v(kv,16)}")
            A(f"v_mfma_f32_32x32x16_bf16 {v(z,16)}, {v(WF+8*hp+4,4)}, {v(ONES,4)}, {v(z,16)}")
        def vpack(hp):
            for i in range(0, 16, 2):
                A(f"v_cvt_pk_bf16_f32 v{WF+16+8*hp+i//2}, v{ACC+32+16*hp+i}, v{ACC+33+16*hp+i}")
        def pwrite(hp):
            kv = ACC + 16 * hp; z = ACC + 32 + 16 * hp
            T0 = WF + 16 * hp if False else XF_FREE
            for j in range(8):
                A(f"v_cndmask_b32 v{T0+j}, v{kv+8+j}, v{kv+j}, s[74:75]")
            for j in range(8):
                A(f"v_cndmask_b32 v{T0+8+j}, v{z+8+j}, v{z+j}, s[74:75]")
            A(f"ds_write_b128 v12, {v(T0,4)} offset:{hp*2*PART_STRIDE}")
            A(f"ds_write_b128 v12, {v(T0+4,4)} offset:{hp*2*PART_STRIDE+16}")
            A("s_mov_b64 s[66:67], exec", "s_mov_b32 exec_lo, 0x00010001", "s_mov_b32 exec_hi, 0x00010001")
            A(f"ds_write_b128 v14, {v(T0+8,4)} offset:{hp*2*PART_STRIDE}")
            A(f"ds_write_b128 v14, {v(T0+12,4)} offset:{hp*2*PART_STRIDE+16}")
            A("s_mov_b64 exec, s[66:67]")
        self.phi_pack(ACC, 16, WF, TMP)
        vpack(0)
        A("s_nop 1")
        kvm(0)
        self.phi_pack(ACC + 16, 16, WF + 8, TMP)
        vpack(1)
        A("s_nop 1")
        kvm(1)
        XF_FREE = WF
        A("s_nop 1")
        pwrite(0)
        A("s_waitcnt lgkmcnt(0)")
        A("s_nop 4")
        pwrite(1)
        A("s_waitcnt lgkmcnt(0)")
        self.stamp(3)
        A("s_barrier")
        self.mode_load("A", 248)
        A(f"v_mov_b32 v15, {NONCEQ}", "ds_read_b64 v[254:255], v15", "s_waitcnt lgkmcnt(0)")
        A(f"v_readfirstlane_b32 s{NON}, v254", f"v_readfirstlane_b32 s{NON+1}, v255")
        for i in range(32): A(f"v_mov_b32 v{ACC+i}, 0")
        lg = Lgkm(A)
        NB = 4
        def qreads(step):
            idx, ks = step >> 2, step & 3
            a9, u = idx >> 2, idx & 3
            b = WF + (step % NB) * 8
            out = []
            for sub in range(2):
                for a_ in range(2):
                    off = a9 * SLOT + u * 8192 + (16 * ks + 4 * a_) * 128
                    out.append((f"ds_read_b64_tr_b16 {v(b + sub*4 + 2*a_, 2)}, v{2+sub} offset:{off}", ("q", step, sub)))
            return out
        for st in range(3):
            for ins, tag in qreads(st): lg.issue(ins, tag)
        for step in range(32):
            b = WF + (step % NB) * 8
            xf = v(XF + step * 4, 4)
            nr = qreads(step + 3) if step + 3 < 32 else []
            for sub in range(2):
                lg.need(("q", step, sub))
                A(f"v_mfma_f32_32x32x16_bf16 {v(ACC+16*sub,16)}, {v(b+4*sub,4)}, {xf}, {v(ACC+16*sub,16)}")
                for ins, tag in nr[2*sub:2*sub+2]: lg.issue(ins, tag)
        self.stamp(4)
        A(f"s_mov_b32 s64, {EPS:#x}", f"s_mov_b32 s65, {EPS:#x}")
        for i in range(32): A(f"v_mov_b32 v{P2ACC+i}, 0")
        self.phi_pack(ACC, 16, WF, TMP)
        self.phi_pack(ACC + 16, 16, WF + 8, TMP)
        A("v_lshlrev_b32 v13, 4, v11", "v_add_u32 v13, v13, v10", "v_lshlrev_b32 v13, 4, v13")
        A("v_lshlrev_b32 v15, 4, v11", "v_add_u32 v15, 512, v15", "v_cndmask_b32 v13, v15, v13, s[74:75]", f"v_add_u32 v13, {FIN}, v13")
        A("v_lshlrev_b32 v12, 4, v0")
        A(f"s_lshl_b32 s64, s{S_RT}, 2", f"s_add_u32 s64, s64, s{S_W}", "s_lshl_b32 s64, s64, 5", f"s_lshl_b32 s65, s{S_G}, 2", "s_add_u32 s64, s64, s65", "s_lshl_b32 s64, s64, 10")
        A("s_waitcnt vmcnt(0)")
        self.mode_resolve("A", 248, "qc")
        self.stamp(5)
        A("s_barrier")
        self.stamp(6)
        A(f"v_mov_b32 v15, {NONCEQ}", "ds_read_b64 v[250:251], v15")
        for hl in range(4):
            A(f"ds_read_b128 {v(WF+16+4*hl,4)}, v13 offset:{hl*1024}")
        for hl in range(4):
            hp, a_ = hl >> 1, hl & 1
            A(f"s_waitcnt lgkmcnt({3-hl})")
            A(f"v_mfma_f32_32x32x16_bf16 {v(ACC+16*hl,16)}, {v(WF+16+4*hl,4)}, {v(WF+8*hp+4*a_,4)}, 0")
        A("s_nop 7")
        for hl in range(4):
            d = ACC + 16 * hl
            if hl == 3: A("s_nop 3")
            A(f"v_add_f32 v{d+8}, {EPS:#x}, v{d+8}")
        for hl in range(4):
            A(f"v_rcp_f32 v{ACC+16*hl+8}, v{ACC+16*hl+8}")
        A("s_nop 0")
        for hl in range(4):
            d = ACC + 16 * hl
            for j in range(0, 8, 2):
                A(f"v_pk_mul_f32 v[{d+j}:{d+j+1}], v[{d+j}:{d+j+1}], v[{d+8}:{d+9}] op_sel_hi:[1,0]")
            for j in range(4):
                A(f"v_cvt_pk_bf16_f32 v{d+12+j}, v{d+2*j}, v{d+2*j+1}")
        if 'fb' in EXP:
            lf, lj = L("o_fast"), L("o_j")
            A("s_cmp_eq_u32 s73, 1", f"s_cbranch_scc1 {lf}")
        for hl in range(4):
            A(f"buffer_store_dwordx4 {v(ACC+16*hl+12,4)}, v12, {WSr}, s64 offen offset:{hl*1024} sc1")
        if 'fb' in EXP:
            A(f"s_branch {lj}")
            A.label(lf)
            for hl in range(4):
                A(f"buffer_store_dwordx4 {v(ACC+16*hl+12,4)}, v12, {WSr}, s64 offen offset:{hl*1024} {FASTF}")
            A.label(lj)
        A(f"v_readfirstlane_b32 s{NON}, v250", f"v_readfirstlane_b32 s{NON+1}, v251")
        A("s_barrier")
        A("s_waitcnt vmcnt(0)")
        self.wave_flag("A", 250)
        self.stamp(7)

    def bu_compute(self):
        A, L = self.A, self.L
        RE, IM, AF, BF = 16, 48, 80, 144
        C = 160
        lg = Lgkm(A)
        A("v_and_b32 v10, 15, v0", "v_lshrrev_b32 v11, 4, v0")
        A(f"s_lshl_b32 s64, s{S_G}, 6", f"s_lshl_b32 s65, s{S_W}, 4", "s_add_u32 s64, s64, s65", "s_lshl_b32 s64, s64, 1")
        A("v_lshlrev_b32 v12, 1, v10")
        A("v_lshrrev_b32 v13, 1, v10", "v_xor_b32 v13, v13, v11", "v_lshlrev_b32 v13, 4, v13", "v_lshlrev_b32 v14, 7, v10", "v_add_u32 v4, v13, v14")
        A("v_xor_b32 v5, 64, v4")
        A(f"s_lshl_b32 s65, s{S_W}, 11", "s_add_u32 s65, s65, 16384")
        A("v_add_u32 v6, s65, v4", "v_add_u32 v7, s65, v5")
        for i in range(64): A(f"v_mov_b32 v{RE+i}, 0")
        A("s_waitcnt lgkmcnt(0)")
        A.srd(SRD_WS, 32, 268435456)
        A.srd(SRD_T0, 12, 1024); A.srd(SRD_T1, 14, 1024); A.srd(SRD_T2, 24, 1024)
        A(f"buffer_load_ushort v{C}, v12, {R4(SRD_T0)}, s64 offen")
        A(f"buffer_load_ushort v{C+1}, v12, {R4(SRD_T1)}, s64 offen")
        A(f"buffer_load_ushort v{C+2}, v12, {R4(SRD_T2)}, s64 offen")
        self.pf_srds("B")
        self.l2_prefetch("B", 0, 250)
        if 'pfall' in EXP: self.l2_prefetch("B", 4, 250)
        A(f"s_waitcnt vmcnt({0 if 'pf' not in EXP else 6 if 'pfall' in EXP else 3})")
        self.flag_touch("B", 243)
        self.page_touch("B", 252)
        self.weight_touch(240)
        self.lam_code(C, C + 8)
        A(f"v_mov_b32 v166, v{C+3}", f"v_mov_b32 v167, v{C+4}")
        A("v_add_f32 v163, -1.0, v163")
        A("v_mul_f32 v168, v160, v160", "v_fma_f32 v168, v161, v161, v168", "v_rcp_f32 v168, v168")
        A("v_mul_f32 v169, v163, v160", "v_fma_f32 v169, v167, v161, v169")
        A("v_mul_f32 v170, v167, v160", "v_fma_f32 v170, -v163, v161, v170")
        A("v_add_f32 v168, v168, v168")
        A("v_mul_f32 v164, v169, v168", "v_mul_f32 v165, v170, v168")
        self.csq(174, 166, 176); self.csq(178, 174, 176); self.csq(174, 178, 176); self.csq(168, 174, 176)
        self.csq(170, 168, 176); self.csq(174, 170, 176); self.csq(172, 174, 176)
        self.csq(214, 172, 176); self.csq(218, 214, 176)
        A("v_mul_f32 v216, v214, v172", "v_mul_f32 v217, v214, v173", "v_fma_f32 v216, -v215, v173, v216", "v_fma_f32 v217, v215, v172, v217")
        def reads(s_, k2):
            buf = (s_ * 2 + k2) & 1
            out = [(f"ds_read_b128 {v(BF + buf*8, 4)}, v{6+k2} offset:0", ("b", s_, k2, 0)),
                   (f"ds_read_b128 {v(BF + buf*8 + 4, 4)}, v{6+k2} offset:8192", ("b", s_, k2, 1))]
            for mt in range(8):
                out.append((f"ds_read_b128 {v(AF + buf*32 + mt*4, 4)}, v{4+k2} offset:{mt*2048}", ("a", s_, k2, mt)))
            return out
        self.pf_srds("B")
        if 'prio' in EXP: A("s_setprio 2")
        A("s_barrier")
        self.stamp(1)
        for ins, tag in reads(0, 0): lg.issue(ins, tag)
        if 'pfall' not in EXP: self.l2_prefetch("B", 4, 250)
        for s_ in range(8):
            for k2 in range(2):
                nxt = (s_, 1) if k2 == 0 else ((s_ + 1, 0) if s_ < 7 else None)
                if k2 == 1 and s_ < 7:
                    A("s_barrier")
                    self.sstamp(3 + s_)
                    d = SLOT if (s_ + 1) % NSLOT != 0 else -(NSLOT - 1) * SLOT
                    for r in range(4, 8):
                        A(f"v_add_u32 v{r}, {d & 0xffffffff:#x}, v{r}")
                nr = reads(*nxt) if nxt else []
                if nxt is None:
                    nr = []
                buf = (s_ * 2 + k2) & 1
                for mt in range(8):
                    if mt == 0: lg.need(("b", s_, k2, 0), ("b", s_, k2, 1), ("a", s_, k2, 0))
                    else: lg.need(("a", s_, k2, mt))
                    af = v(AF + buf*32 + mt*4, 4)
                    A(f"v_mfma_f32_16x16x32_bf16 {v(RE+4*mt,4)}, {af}, {v(BF+buf*8,4)}, {v(RE+4*mt,4)}")
                    A(f"v_mfma_f32_16x16x32_bf16 {v(IM+4*mt,4)}, {af}, {v(BF+buf*8+4,4)}, {v(IM+4*mt,4)}")
                    if nr:
                        for ins, tag in (nr[0:3] if mt == 0 else [nr[2 + mt]]):
                            lg.issue(ins, tag)
                    if nxt is None and mt == 0:
                        A(f"v_mov_b32 v12, {NONCE}")
                        lg.issue("ds_read_b64 v[230:231], v12", "nonce")
        self.stamp(2)
        def pr(base, sg): return base + 4 * (sg >> 1) + 2 * (sg & 1)
        E0, E1_ = 180, 184
        Lr = "v[166:167]"
        def step(dre, dim, sre, sim, ure, uim, M=Lr):
            A(f"v_pk_fma_f32 v[{dre}:{dre+1}], v[{sre}:{sre+1}], {M}, v[{ure}:{ure+1}] op_sel_hi:[1,0,1]")
            A(f"v_pk_fma_f32 v[{dim}:{dim+1}], v[{sim}:{sim+1}], {M}, v[{uim}:{uim+1}] op_sel_hi:[1,0,1]")
            A(f"v_pk_fma_f32 v[{dre}:{dre+1}], v[{sim}:{sim+1}], {M}, v[{dre}:{dre+1}] op_sel:[0,1,0] op_sel_hi:[1,1,1] neg_lo:[0,1,0] neg_hi:[0,1,0]")
            A(f"v_pk_fma_f32 v[{dim}:{dim+1}], v[{sre}:{sre+1}], {M}, v[{dim}:{dim+1}] op_sel:[0,1,0] op_sel_hi:[1,1,1]")
        A(f"s_lshl_b32 s64, s{S_G}, 4", f"s_add_u32 s64, s64, s{S_RT}", "s_lshl_b32 s64, s64, 6", f"s_lshl_b32 s65, s{S_W}, 4", "s_add_u32 s64, s64, s65", "s_lshl_b32 s64, s64, 4", f"s_add_u32 s64, s64, {WS['ES']}")
        A("v_lshlrev_b32 v13, 4, v10", "v_lshlrev_b32 v12, 2, v10")
        cur = (pr(RE, 0), pr(IM, 0))
        for sg in range(1, 16):
            d = E0 if sg & 1 else E1_
            step(d, d + 2, cur[0], cur[1], pr(RE, sg), pr(IM, sg))
            cur = (d, d + 2)
        er, ei = cur
        self.cfma(188, 189, 168, 169, er, ei, er + 1, ei + 1)
        for qq in range(4):
            A(f"v_add_u32 v{14 + (qq&1)}, {64*qq}, v12")
            A(f"ds_bpermute_b32 v{190+2*qq}, v{14 + (qq&1)}, v188", f"ds_bpermute_b32 v{191+2*qq}, v{14 + (qq&1)}, v189")
        A("s_waitcnt lgkmcnt(0)")
        self.cfma(198, 199, 170, 171, 190, 191, 192, 193)
        self.cfma(200, 201, 170, 171, 198, 199, 194, 195)
        self.cfma(228, 229, 170, 171, 200, 201, 196, 197)
        A("s_mov_b64 s[66:67], exec", "s_mov_b64 exec, 0xffff")
        A(f"buffer_store_dwordx4 v[228:231], v13, {WSr}, s64 offen sc1")
        A("s_mov_b64 exec, s[66:67]")
        self.stamp(3)
        A("s_barrier")
        self.skip_issue()
        self.mode_load("B", 224)
        K2 = "v[164:165]"
        for sg in range(16):
            r_, i_ = pr(RE, sg), pr(IM, sg)
            A(f"v_pk_mul_f32 v[232:233], v[{i_}:{i_+1}], {K2} op_sel:[0,1] op_sel_hi:[1,1]")
            A(f"v_pk_mul_f32 v[234:235], v[{r_}:{r_+1}], {K2} op_sel:[0,1] op_sel_hi:[1,1]")
            A(f"v_pk_fma_f32 v[{r_}:{r_+1}], v[{r_}:{r_+1}], {K2}, v[232:233] op_sel_hi:[1,0,1] neg_lo:[0,0,1] neg_hi:[0,0,1]")
            A(f"v_pk_fma_f32 v[{i_}:{i_+1}], v[{i_}:{i_+1}], {K2}, v[234:235] op_sel_hi:[1,0,1]")
        if 'epre' in EXP:
            A("s_waitcnt vmcnt(0)")
            self.skip_finish()
            for r in range(16):
                A(f"v_mov_b32 v{P2ACC+r}, v{XS+r}", f"v_mov_b32 v{P2ACC+16+r}, 0")
        self.stamp(4)
        A(f"s_lshl_b32 s64, s{S_G}, 10", f"s_lshl_b32 s65, s{S_W}, 4", "s_add_u32 s64, s64, s65", "s_lshl_b32 s64, s64, 4", f"s_add_u32 s64, s64, {WS['ES']}")
        A("v_lshlrev_b32 v13, 4, v10")
        lp, lgd, lok, ltd, lz, ldone = L("e_poll"), L("e_gd"), L("e_ok"), L("e_td"), L("e_zero"), L("e_done")
        A("v_lshlrev_b32 v14, 10, v11", "v_add_u32 v14, v14, v13")
        A(f"s_cmp_eq_u32 s{S_RT}, 0", f"s_cbranch_scc1 {lz}")
        for i in range(4):
            A(f"v_add_u32 v15, {4*i}, v11", f"v_cmp_gt_u32 s[{52+2*i}:{53+2*i}], s{S_RT}, v15")
        A(f"s_mov_b32 s72, {POLL_LIMIT}")
        A.label(lp)
        A("s_mov_b32 s65, s64")
        for i in range(4):
            A(f"s_cmp_le_u32 s{S_RT}, {4*i}", f"s_cbranch_scc1 {lgd}")
            A(f"buffer_load_dwordx4 v[{80+4*i}:{83+4*i}], v14, {WSr}, s65 offen sc1")
            if i < 3: A("s_add_u32 s65, s65, 4096")
        A.label(lgd)
        A("v_mov_b32 v236, 0")
        A("s_waitcnt vmcnt(0)")
        for i in range(4):
            A(f"s_cmp_le_u32 s{S_RT}, {4*i}", f"s_cbranch_scc1 {ltd}")
            A(f"v_xor_b32 v237, v230, v{82+4*i}", f"v_xor_b32 v238, v231, v{83+4*i}", "v_or_b32 v237, v237, v238")
            A(f"v_cndmask_b32 v237, 0, v237, s[{52+2*i}:{53+2*i}]", "v_or_b32 v236, v236, v237")
        A.label(ltd)
        A("v_cmp_ne_u32 vcc, 0, v236")
        A("s_sub_u32 s72, s72, 1", f"s_cbranch_scc1 {lok}")
        A(f"s_cbranch_vccnz {lp}")
        A.label(lok)
        A("v_mov_b32 v204, 0", "v_mov_b32 v205, 0")
        for i in range(4):
            self.cfma(206, 207, 218, 219, 204, 205, 80 + 4*i, 81 + 4*i)
            A(f"v_cndmask_b32 v204, v204, v206, s[{52+2*i}:{53+2*i}]", f"v_cndmask_b32 v205, v205, v207, s[{52+2*i}:{53+2*i}]")
        A(f"s_sub_u32 s65, s{S_RT}, 1", "v_sub_u32 v15, s65, v11", "v_and_b32 v15, 3, v15")
        A("v_mov_b32 v206, 1.0", "v_mov_b32 v207, 0")
        for e, (wr, wi) in enumerate(((172, 173), (214, 215), (216, 217)), start=1):
            A(f"v_cmp_eq_u32 vcc, {e}, v15", "s_nop 1")
            A(f"v_cndmask_b32 v206, v206, v{wr}, vcc", f"v_cndmask_b32 v207, v207, v{wi}, vcc")
        A("v_mul_f32 v236, v204, v206", "v_mul_f32 v237, v204, v207")
        A("v_fma_f32 v236, -v205, v207, v236", "v_fma_f32 v237, v205, v206, v237")
        A("v_mov_b32 v238, v236", "v_mov_b32 v206, v237", "s_nop 1")
        A("v_permlane32_swap_b32 v236, v238", "v_permlane32_swap_b32 v237, v206", "s_nop 1")
        A("v_add_f32 v236, v236, v238", "v_add_f32 v237, v237, v206")
        A("v_mov_b32 v238, v236", "v_mov_b32 v206, v237", "s_nop 1")
        A("v_permlane16_swap_b32 v236, v238", "v_permlane16_swap_b32 v237, v206", "s_nop 1")
        A("v_add_f32 v204, v236, v238", "v_add_f32 v205, v237, v206")
        A(f"s_branch {ldone}")
        A.label(lz)
        A("v_mov_b32 v204, 0", "v_mov_b32 v205, 0", "s_waitcnt vmcnt(0)")
        A.label(ldone)
        A(f"v_readfirstlane_b32 s{NON}, v230", f"v_readfirstlane_b32 s{NON+1}, v231", "s_nop 1")
        self.mode_resolve("B", 224, "bc")
        self.stamp(5)
        self.cfma(198, 199, 170, 171, 204, 205, 190, 191)
        self.cfma(200, 201, 170, 171, 198, 199, 192, 193)
        self.cfma(202, 203, 170, 171, 200, 201, 194, 195)
        for qq, (sr, si) in enumerate(((198, 199), (200, 201), (202, 203)), start=1):
            A(f"v_cmp_eq_u32 vcc, {qq}, v11", "s_nop 1")
            A(f"v_cndmask_b32 v204, v204, v{sr}, vcc", f"v_cndmask_b32 v205, v205, v{si}, vcc")
        self.cfma(206, 207, 168, 169, 204, 205, er, ei)
        def cmul(dr, di, ar, ai):
            A(f"v_mul_f32 v{dr}, v{ar}, v164", f"v_mul_f32 v{di}, v{ar}, v165")
            A(f"v_fma_f32 v{dr}, -v{ai}, v165, v{dr}", f"v_fma_f32 v{di}, v{ai}, v164, v{di}")
        cmul(208, 210, 204, 205)
        cmul(209, 211, 206, 207)
        A(f"s_lshl_b32 s64, s{S_W}, 13", f"s_add_u32 s64, s64, {MISC}")
        A("v_lshlrev_b32 v12, 6, v11", "v_lshlrev_b32 v13, 4, v10", "v_xor_b32 v12, v12, v13", "v_lshlrev_b32 v13, 8, v10", "v_add_u32 v12, v12, v13", "v_add_u32 v12, s64, v12")
        for c in range(1, 4): A(f"v_xor_b32 v{212+c}, {16*c}, v12")
        A("v_bfe_u32 v13, v0, 4, 1", "v_lshlrev_b32 v13, 5, v13", "v_and_b32 v14, 3, v0", "v_lshlrev_b32 v14, 3, v14", "v_add_u32 v13, v13, v14")
        A("v_bfe_u32 v14, v0, 2, 2", "v_lshlrev_b32 v15, 4, v14", "v_xor_b32 v13, v13, v15", "v_lshlrev_b32 v14, 8, v14", "v_add_u32 v13, v13, v14")
        A("v_lshrrev_b32 v14, 5, v0", "v_lshlrev_b32 v14, 12, v14", "v_add_u32 v13, v13, v14", "v_add_u32 v13, s64, v13")
        cur = (208, 210)
        def pack(pl_, c):
            base, neg = (RE, "") if pl_ == 0 else (IM, "-")
            for j in range(4):
                sg = 8 * (c & 1) + 2 * j
                r0, r1 = pr(base, sg) + (c >> 1), pr(base, sg + 1) + (c >> 1)
                A(f"v_cvt_pk_bf16_f32 v{80 + 16*pl_ + 4*c + j}, {neg}v{r0}, {neg}v{r1}")
            A(f"ds_write_b128 v{12 if c == 0 else 212+c}, {v(80 + 16*pl_ + 4*c, 4)} offset:{pl_*4096}")
        for sg in range(16):
            d = (pr(RE, sg), pr(IM, sg))
            step(d[0], d[1], cur[0], cur[1], d[0], d[1])
            cur = d
            if sg == 8:
                for pl_ in range(2):
                    pack(pl_, 0); pack(pl_, 2)
        self.stamp(6)
        for pl_ in range(2):
            pack(pl_, 1); pack(pl_, 3)
        A(f"s_lshl_b32 s64, s{S_RT}, 8", f"s_lshl_b32 s65, s{S_G}, 3", "s_add_u32 s64, s64, s65", f"s_lshl_b32 s65, s{S_W}, 1", "s_add_u32 s64, s64, s65", "s_lshl_b32 s64, s64, 10", f"s_add_u32 s64, s64, {WS['H']}")
        A("v_lshlrev_b32 v12, 4, v0")
        A("s_waitcnt lgkmcnt(0)")
        for rb in range(4):
            for ksl in range(2):
                for a_ in range(2):
                    off = (8 * ksl + 4 * a_) * 256 + ((64 * rb) ^ (128 * ksl + 64 * a_))
                    A(f"ds_read_b64_tr_b16 {v(16 + (rb*2+ksl)*4 + 2*a_, 2)}, v13 offset:{off}")
        fb = 'fb' in EXP or 'fbB' in EXP
        variants = ("sc1", FASTF + " ") if fb else ("sc1",)
        lf, lj = L("h_fast"), L("h_j")
        if fb: A("s_cmp_eq_u32 s73, 1", f"s_cbranch_scc1 {lf}")
        for fl in variants:
            if fl != "sc1": A.label(lf)
            A("s_mov_b32 s65, s64")
            for rb in range(4):
                A(f"s_waitcnt lgkmcnt({min(15, 12-4*rb)})")
                for ksl in range(2):
                    A(f"buffer_store_dwordx4 {v(16 + (rb*2+ksl)*4, 4)}, v12, {WSr}, s65 offen offset:{ksl*1024} {fl}")
                if rb < 3: A("s_add_u32 s65, s65, 0x10000")
            if fl == "sc1" and fb: A(f"s_branch {lj}")
        A.label(lj)
        self.stamp(7)
        if 'epre' not in EXP:
            self.skip_finish()
            for r in range(16):
                A(f"v_mov_b32 v{P2ACC+r}, v{XS+r}", f"v_mov_b32 v{P2ACC+16+r}, 0")
        A(f"v_readfirstlane_b32 s{NON}, v230", f"v_readfirstlane_b32 s{NON+1}, v231")
        A("s_barrier")
        A("s_waitcnt vmcnt(0)")
        self.wave_flag("B", 230)
        self.stamp(8)

    def p2(self, role):
        A, L = self.A, self.L
        self.stamp(9)
        if 'prio' in EXP: A("s_setprio 0")
        nk = 32 if role == "A" else 64
        nst = nk // 2
        abase = WS["O"] if role == "A" else WS["H"]
        ACC, BF, AF = P2ACC, 48, 80
        NBUF, LA = 4, 7
        A(f"s_lshr_b32 s64, s{S_WAVE}, 2", f"s_and_b32 s65, s{S_WAVE}, 3")
        A("v_lshlrev_b32 v2, 4, v0")
        A(f"s_lshl_b32 s66, s{S_RT}, 2", "s_add_u32 s66, s66, s65", f"s_mul_i32 s66, s66, {nk*1024}")
        A(f"s_mul_i32 s67, s64, {nst*1024}", "s_add_u32 s66, s66, s67", f"s_add_u32 s66, s66, {abase}")
        def aload(k):
            A(f"buffer_load_dwordx4 {v(AF + 4*(k % 8), 4)}, v2, {WSr}, s66 offen offset:{(k % 4)*1024}")
            if k % 4 == 3: A("s_add_u32 s66, s66, 4096")
        A("v_and_b32 v5, 31, v0", "v_lshrrev_b32 v6, 5, v0")
        A(f"s_lshl_b32 s68, s{S_RT}, 7", "s_lshl_b32 s69, s65, 5", "s_add_u32 s68, s68, s69")
        A(f"s_lshl_b32 s69, s{S_G}, 6", "s_lshl_b32 s70, s64, 5", "s_add_u32 s69, s69, s70")
        lg = Lgkm(A)
        if role == "A":
            A("v_lshlrev_b32 v12, 2, v6", "v_bfe_u32 v13, v0, 2, 2", "v_add_u32 v12, v12, v13", "v_lshlrev_b32 v12, 7, v12")
            A("v_bfe_u32 v13, v0, 3, 1", "v_lshlrev_b32 v13, 6, v13", "v_add_u32 v12, v12, v13")
            A("v_bfe_u32 v13, v0, 4, 1", "v_lshlrev_b32 v13, 5, v13", "v_add_u32 v12, v12, v13")
            A("v_and_b32 v13, 3, v0", "v_lshlrev_b32 v13, 3, v13", "v_add_u32 v12, v12, v13")
            A("s_lshl_b32 s70, s64, 15", f"s_add_u32 s70, s70, {WOIMG}", "v_add_u32 v3, s70, v12", "v_xor_b32 v4, 64, v3")
            def bread(k):
                b = BF + 8 * (k % NBUF)
                for cb in range(2):
                    for a_ in range(2):
                        lg.issue(f"ds_read_b64_tr_b16 {v(b + 4*cb + 2*a_, 2)}, v{3+cb} offset:{(16*k + 8*a_)*128}", ("b", k))
        else:
            A("v_lshlrev_b32 v12, 16, v6", "v_lshlrev_b32 v13, 10, v5", "v_add_u32 v12, v12, v13")
            A("v_and_b32 v13, 15, v5", "v_lshlrev_b32 v13, 4, v13", "v_add_u32 v12, v12, v13")
            A("s_lshl_b32 s70, s64, 9", "v_add_u32 v3, s70, v12")
            def bread(k):
                b = BF + 8 * (k % NBUF)
                t = 8 + (k % 4)
                A(f"v_xor_b32 v{t}, {(k & 15) * 16}, v3")
                for cb in range(2):
                    lg.issue(f"ds_read_b128 {v(b + 4*cb, 4)}, v{t} offset:{(k >> 4) * 256 + cb * 32768}", ("b", k))
        for k in range(NBUF - 1): bread(k)
        A("s_mov_b32 s76, s64", "s_mov_b32 s77, s66")
        self.p2_wait(role)
        A("s_mov_b32 s64, s76", "s_mov_b32 s66, s77")
        for k in range(LA): aload(k)
        self.stamp(10)
        for k in range(nst):
            if k + LA < nst: aload(k + LA)
            if k + NBUF - 1 < nst: bread(k + NBUF - 1)
            rem = min(nst - 1 - k, LA)
            A(f"s_waitcnt vmcnt({rem})")
            lg.need(("b", k))
            b = BF + 8 * (k % NBUF)
            A(f"v_mfma_f32_32x32x16_bf16 {v(ACC,16)}, {v(AF+4*(k%8),4)}, {v(b,4)}, {v(ACC,16)}")
            A(f"v_mfma_f32_32x32x16_bf16 {v(ACC+16,16)}, {v(AF+4*(k%8),4)}, {v(b+4,4)}, {v(ACC+16,16)}")
        self.stamp(11)
        A(f"s_lshl_b32 s70, s{S_WAVE}, 12", f"s_add_u32 s70, s70, {MISC}", "v_add_u32 v9, s70, v2")
        A(f"s_xor_b32 s71, s{S_WAVE}, 4", "s_lshl_b32 s71, s71, 12", f"s_add_u32 s71, s71, {MISC}", "v_add_u32 v10, s71, v2")
        A("s_lshl_b32 s68, s68, 12", "s_lshl_b32 s69, s69, 2", "s_add_u32 s68, s68, s69")
        if role == "B": A("s_add_u32 s68, s68, 2048")
        A("v_lshlrev_b32 v11, 14, v6", "v_lshlrev_b32 v12, 2, v5", "v_add_u32 v11, v11, v12")
        A.srd(SRD_T0, 28, 8388608)
        lk, lj = L(f"kh1_{role}"), L(f"join_{role}")
        A("s_cmp_eq_u32 s64, 1", f"s_cbranch_scc1 {lk}")
        for i in range(4): A(f"ds_write_b128 v9, {v(ACC+16+4*i,4)} offset:{i*1024}")
        A(f"s_mov_b32 s71, 0")
        A(f"s_branch {lj}")
        A.label(lk)
        for i in range(4): A(f"ds_write_b128 v9, {v(ACC+4*i,4)} offset:{i*1024}")
        A("s_nop 1")
        for i in range(16): A(f"v_mov_b32 v{ACC+i}, v{ACC+16+i}")
        A.label(lj)
        A("s_waitcnt lgkmcnt(0)")
        A("s_barrier")
        for i in range(4): A(f"ds_read_b128 {v(48+4*i,4)}, v10 offset:{i*1024}")
        for i in range(4):
            A(f"s_waitcnt lgkmcnt({3-i})")
            for r in range(4*i, 4*i+4, 2):
                A(f"v_pk_add_f32 v[{ACC+r}:{ACC+r+1}], v[{ACC+r}:{ACC+r+1}], v[{48+r}:{49+r}]")
            for r in range(4*i, 4*i+4):
                row = (r & 3) + 8 * (r >> 2)
                A(f"s_add_u32 s69, s68, {row*4096}")
                A(f"buffer_store_dword v{ACC+r}, v11, {R4(SRD_T0)}, s69 offen {OUTFA if role == 'A' else OUTF}")
        self.stamp(12)
        if 'clk' in EXP:
            lx = L(f"clk_{role}")
            A("s_waitcnt vmcnt(0)")
            A(f"s_cmp_lg_u32 s2, {0 if role == 'A' else 4}", f"s_cbranch_scc1 {lx}", f"s_cmp_lg_u32 s{S_WAVE}, 0", f"s_cbranch_scc1 {lx}")
            A("s_memtime s[88:89]", "s_memrealtime s[90:91]", "s_waitcnt lgkmcnt(0)")
            A("s_sub_u32 s88, s88, s84", "s_sub_u32 s90, s90, s86", "v_mov_b32 v16, s88", "v_mov_b32 v17, s90")
            A(f"v_mov_b32 v18, {0 if role == 'A' else 8}")
            A.srd(SRD_T0, 30, 256)
            A("s_mov_b64 exec, 1")
            A(f"buffer_store_dwordx2 v[16:17], v18, {R4(SRD_T0)}, 0 offen sc1")
            A.label(lx)
        self.write_stamps()
        A("s_endpgm")

def build(out, stamps=False):
    A = Asm()
    K = NAME + "_kernel"
    A.raw(HEADER_COMMENT + f"; @launch grid=(256,1,1) block=(512,1,1) lds={LDS_BYTES}\n" + DOC + '.amdgcn_target "amdgcn-amd-amdhsa--gfx950"\n')
    G(A, K, stamps).gen()
    A.kernel_desc(K, 256, accum=256)
    open(out, "w").write(A.text())

if __name__ == "__main__":
    build(sys.argv[1], stamps=(len(sys.argv) > 2 and sys.argv[2] == "stamps"))
```
